```python
import torch

def _softmax(x, axis=-1):
    return torch.softmax(x, dim=axis)

def _gelu(x):
    return torch.nn.functional.gelu(x, approximate='tanh')

def _silu(x):
    return torch.nn.functional.silu(x)

def _sigmoid(x):
    return torch.sigmoid(x)

def _layernorm(x, axis=-1, eps=1e-05):
    m = x.mean(dim=axis, keepdim=True)
    v = x.var(dim=axis, keepdim=True, unbiased=False)
    return (x - m) / torch.sqrt(v + eps)

def _scatter_add(tgt, idx, src, axis=0):
    return tgt.clone().index_add_(axis, idx, src)

def _segment_sum(src, seg, n):
    out = torch.zeros((n,) + src.shape[1:], dtype=src.dtype)
    return out.index_add_(0, seg, src)

def _pad(x, pw):
    flat = tuple((v for pair in reversed(pw) for v in pair))
    return torch.nn.functional.pad(x, flat)
kernel_name = 'adaLN_cond__spectral_fnet__geglu_ffn__prompt'

def setup_inputs():

    _w = lambda a: (lambda t: t.to(torch.bfloat16) if t.is_floating_point() else t)(torch.as_tensor(a))

    def _A_setup():
        B, S, D = (1, 2048, 512)
        ns = torch.arange(S)[:, None] * torch.arange(S)[None, :]
        nd = torch.arange(D)[:, None] * torch.arange(D)[None, :]
        Ws_re = torch.cos(-2.0 * torch.pi * ns / S).to(float)
        Ws_im = torch.sin(-2.0 * torch.pi * ns / S).to(float)
        Wd_re = torch.cos(-2.0 * torch.pi * nd / D).to(float)
        Wd_im = torch.sin(-2.0 * torch.pi * nd / D).to(float)
        return {'x': _w((lambda *s: torch.randn(*s, dtype=torch.bfloat16) * 0.05)(B, S, D)), 'dft_seq_re': _w(Ws_re), 'dft_seq_im': _w(Ws_im), 'dft_hid_re': _w(Wd_re), 'dft_hid_im': _w(Wd_im)}
    _A_in = _A_setup()

    def _B_setup():
        B, S, D, F = (1, 2048, 512, 1792)
        return {'x': _w((lambda *s: torch.randn(*s, dtype=torch.bfloat16) * 0.05)(B, S, D)), 'w_gate': _w((lambda *s: torch.randn(*s, dtype=torch.bfloat16) * 0.4)(D, F)), 'w_up': _w((lambda *s: torch.randn(*s, dtype=torch.bfloat16) * 0.4)(D, F)), 'w_down': _w((lambda *s: torch.randn(*s, dtype=torch.bfloat16) * 0.4)(F, D))}
    _B_in = _B_setup()
    return {'A_x': _A_in['x'], 'A_dft_seq_re': _A_in['dft_seq_re'], 'A_dft_seq_im': _A_in['dft_seq_im'], 'A_dft_hid_re': _A_in['dft_hid_re'], 'A_dft_hid_im': _A_in['dft_hid_im'], 'B_x': _B_in['x'], 'B_w_gate': _B_in['w_gate'], 'B_w_up': _B_in['w_up'], 'B_w_down': _B_in['w_down'], 'c': _w((lambda *s: torch.randn(*s, dtype=torch.bfloat16) * 0.2)(1, 512) * 8.0), 'w_mod': _w((lambda *s: torch.randn(*s, dtype=torch.bfloat16) * 0.2)(512, 6 * 512) * 512 ** (-0.5) * 8.0)}

def reference(A_x, A_dft_seq_re, A_dft_seq_im, A_dft_hid_re, A_dft_hid_im, B_x, B_w_gate, B_w_up, B_w_down, c, w_mod):

    def _A_ref(x, dft_seq_re, dft_seq_im, dft_hid_re, dft_hid_im):
        a = torch.einsum('bsd,ed->bse', x, dft_hid_re)
        b = torch.einsum('bsd,ed->bse', x, dft_hid_im)
        y = torch.einsum('ts,bse->bte', dft_seq_re, a) - torch.einsum('ts,bse->bte', dft_seq_im, b)
        return y

    def _B_ref(x, w_gate, w_up, w_down):
        return _gelu(x @ w_gate) * (x @ w_up) @ w_down
    x = A_x
    mod = (_silu(c) @ w_mod).reshape(c.shape[0], 6, 1, -1)
    sa, ca, ga, sb, cb, gb = (mod[:, 0].clone(), mod[:, 1].clone(), mod[:, 2].clone(), mod[:, 3].clone(), mod[:, 4].clone(), mod[:, 5].clone())
    h = _layernorm(x, axis=-1) * (1 + ca) + sa
    x = x + ga * _A_ref(h, A_dft_seq_re, A_dft_seq_im, A_dft_hid_re, A_dft_hid_im)
    h = _layernorm(x, axis=-1) * (1 + cb) + sb
    x = x + gb * _B_ref(h, B_w_gate, B_w_up, B_w_down)
    return x
```

```python
import re

_REG = re.compile(r'^(-|\|)?(abs\()?([vas])(\d+|\[(\d+):(\d+)\])\)?\|?$')
def regs_of(op):
    op = op.strip()
    if op in ('vcc', 'vcc_lo', 'vcc_hi'): return {('vcc', 0)}
    if op in ('exec', 'exec_lo', 'exec_hi'): return {('exec', 0)}
    if op == 'm0': return {('m0', 0)}
    m = _REG.match(op)
    if not m: return set()
    k = m.group(3)
    if m.group(5) is not None: return {(k, i) for i in range(int(m.group(5)), int(m.group(6)) + 1)}
    return {(k, int(m.group(4)))}

TRANS = ('v_exp_f32', 'v_log_f32', 'v_rcp_f32', 'v_rsq_f32', 'v_sqrt_f32', 'v_sin_f32', 'v_cos_f32', 'v_rcp_iflag_f32')

class Ins:
    def __init__(self, text):
        self.text = text
        t = text.split(';')[0].strip()
        parts = t.split(None, 1)
        self.op = parts[0]
        rest = parts[1] if len(parts) > 1 else ''
        ops = []; cur = ''; depth = 0
        for ch in rest:
            if ch in '[(': depth += 1
            if ch in '])': depth -= 1
            if ch == ',' and depth == 0: ops.append(cur.strip()); cur = ''
            else: cur += ch
        if cur.strip(): ops.append(cur.strip())
        self.mods = ''
        if ops:
            sp = ops[-1].split(None, 1)
            ops[-1] = sp[0]
            if len(sp) > 1: self.mods = sp[1]
        self.ops = ops
        op = self.op
        self.is_mfma = op.startswith('v_mfma')
        self.is_valu = op.startswith('v_') and not self.is_mfma
        self.is_salu = op.startswith('s_')
        self.is_vmem = op.startswith(('buffer_', 'global_', 'flat_'))
        self.is_ds = op.startswith('ds_')
        self.is_trans = op.split('_e32')[0].split('_e64')[0] in TRANS
        self.is_dpp = any(k in self.mods for k in ('quad_perm', 'row_', 'wave_')) or '_dpp' in op
        R = [regs_of(o) for o in ops]
        self.w = set(); self.r = set(); self.srcc = set(); self.sab = set(); self.store_data = set()
        def U(l):
            s = set()
            for x in l: s |= x
            return s
        if self.is_mfma:
            self.w = R[0]; self.sab = R[1] | R[2]; self.srcc = R[3]; self.r = self.sab | self.srcc
            self.passes = 8 if '32x32' in op else 4
        elif self.is_valu:
            if op.startswith('v_cmp'):
                self.w = R[0]; self.r = U(R[1:])
                if op.startswith('v_cmpx'): self.w = self.w | {('exec', 0)}
            elif op.startswith('v_permlane') and 'swap' in op:
                self.w = R[0] | R[1]; self.r = R[0] | R[1]
            elif op.startswith(('v_add_co', 'v_sub_co', 'v_addc_co', 'v_subb_co', 'v_subrev_co')):
                self.w = R[0] | R[1]; self.r = U(R[2:])
            elif op == 'v_nop': pass
            else:
                self.w = R[0]; self.r = U(R[1:])
                if op.startswith(('v_fmac', 'v_pk_fmac', 'v_dot2c', 'v_writelane', 'v_mac')) or self.is_dpp: self.r = self.r | R[0]
                if op.startswith('v_cndmask') and len(ops) == 3: self.r = self.r | {('vcc', 0)}
        elif self.is_vmem:
            lds = ' lds' in (' ' + self.mods) or '_lds_' in op
            if 'store' in op or ('atomic' in op):
                self.r = U(R)
                if op.startswith('buffer_'): self.store_data = R[0]
                else: self.store_data = R[1]
                if 'atomic' in op and 'sc0' in self.mods: self.w = R[0]
            elif lds:
                self.r = U(R) | {('m0', 0)}
            else:
                self.w = R[0]; self.r = U(R[1:])
            self.lds = lds
        elif self.is_ds:
            if op.startswith(('ds_write', 'ds_add', 'ds_store')): self.r = U(R)
            else: self.w = R[0]; self.r = U(R[1:])
        elif self.is_salu:
            if op.startswith(('s_cmp', 's_cbranch', 's_branch', 's_waitcnt', 's_nop', 's_barrier', 's_endpgm', 's_setprio', 's_sleep', 's_bitcmp')):
                self.r = U(R)
            else:
                self.w = R[0] if R else set(); self.r = U(R[1:])
                if 'saveexec' in op: self.w = self.w | {('exec', 0)}
    def states(self):
        if self.op == 's_nop': return int(self.ops[0], 0) + 1
        return 1

def vg(s): return {x for x in s if x[0] in 'va'  and x[0] != 'vcc'}
def sg(s): return {x for x in s if x[0] in ('s', 'vcc')}

def need(p, c):
    n = 0
    if p.is_valu:
        pw = vg(p.w); ps = sg(p.w)
        if c.is_mfma and pw & c.r: n = max(n, 2)
        if c.is_valu:
            if c.op.startswith(('v_readlane', 'v_readfirstlane')) and pw & c.r: n = max(n, 1)
            if c.op.startswith(('v_readlane', 'v_writelane')) and ps & c.r: n = max(n, 4)
            if c.is_dpp and pw & c.r: n = max(n, 2)
            if c.op.startswith('v_permlane') and pw & c.r: n = max(n, 2)
            if ps & c.r: n = max(n, 2)
            if p.is_trans and not c.is_trans and pw & c.r: n = max(n, 1)
            if p.is_trans and c.is_trans and pw & c.r: n = max(n, 1)
            if ('op_sel' in p.mods or 'sdwa' in p.op or 'dst_sel' in p.mods) and not p.op.startswith('v_pk') and pw & (c.r | c.w): n = max(n, 1)
            if ('exec', 0) in p.w:
                if c.is_dpp: n = max(n, 5)
                if c.op.startswith(('v_readlane', 'v_readfirstlane', 'v_writelane', 'v_permlane')): n = max(n, 4)
        if c.is_vmem and ps & c.r: n = max(n, 5)
        if c.is_mfma and ('exec', 0) in p.w: n = max(n, 4)
        if c.is_salu and ps & c.r: n = max(n, 1)
    if p.is_mfma:
        big = p.passes == 8
        if c.is_mfma:
            if p.w & c.sab: n = max(n, 12 if big else 8)
            if p.w & c.srcc and not (p.w == c.srcc and p.passes == c.passes): n = max(n, 10 if big else 6)
            if p.w & c.w and p.w != c.srcc: n = max(n, 12 if big else 8)
        elif c.is_valu or c.is_vmem or c.is_ds:
            if p.w & (c.r | c.w): n = max(n, 12 if big else 8)
            if c.is_valu and p.srcc & c.w: n = max(n, 7 if big else 3)
            if (c.is_vmem or c.is_ds) and p.srcc & c.w: n = max(n, 7 if big else 3)
    if p.is_salu:
        if ('m0', 0) in p.w and ('m0', 0) in c.r: n = max(n, 1)
    if p.is_vmem and p.store_data and ('x3' in p.op or 'x4' in p.op):
        if p.store_data & c.w: n = max(n, 2 if c.is_valu else 1)
    return n

class Asm:
    def __init__(self):
        self.out = []
        self.hist = []
        self.vm = 0
        self.tags = {}
        self.lg = 0
        self.ltags = {}
        self.nops = 0
    def raw(self, s): self.out.append(s)
    def comment(self, s): self.out.append('    ; ' + s)
    def label(self, l):
        self.out.append(l + ':')
    def fence(self):
        self('s_nop 7'); self('s_nop 3')
    def __call__(self, text, tag=None):
        for line in text.split('\n'):
            line = line.strip()
            if not line: continue
            i = Ins(line)
            dist = 0; req = 0
            for p in reversed(self.hist):
                n = need(p, i)
                if n - dist > req: req = n - dist
                dist += p.states()
                if dist >= 13: break
            while req > 0:
                k = min(req, 8)
                nop = Ins('s_nop %d' % (k - 1)); self.hist.append(nop); self.out.append('    s_nop %d' % (k - 1)); req -= k; self.nops += k
            self.hist.append(i); self.hist = self.hist[-16:]
            self.out.append('    ' + line)
            if i.is_vmem:
                self.vm += 1
                if tag: self.tags[tag] = self.vm
            if i.is_ds:
                self.lg += 1
                if tag: self.ltags[tag] = self.lg
    def wait_vm(self, tag):
        n = self.vm - self.tags[tag]
        assert n <= 63, n
        self('s_waitcnt vmcnt(%d)' % n)
    def wait_lg(self, tag):
        n = self.lg - self.ltags.get(tag, self.lg)
        self('s_waitcnt lgkmcnt(%d)' % min(n, 15))
    def text(self): return '\n'.join(self.out) + '\n'

def kernel_desc(name, vgpr, sgpr=96, accum=None):
    if accum is None: accum = (min(vgpr, 256) + 3) // 4 * 4
    return '\n'.join(['.section .rodata,"a"', '.p2align 6', '.amdhsa_kernel %s' % name,
        '  .amdhsa_next_free_vgpr %d' % vgpr, '  .amdhsa_next_free_sgpr %d' % sgpr, '  .amdhsa_accum_offset %d' % accum,
        '  .amdhsa_group_segment_fixed_size 0', '  .amdhsa_kernarg_size 112', '  .amdhsa_user_sgpr_count 2',
        '  .amdhsa_user_sgpr_kernarg_segment_ptr 1', '  .amdhsa_system_sgpr_workgroup_id_x 1',
        '.end_amdhsa_kernel', '.text']) + '\n'
```

```python
import sys, struct
from asmlib import Asm, kernel_desc

MODF = 0x000000
MODM = 0x004000
MODH = 0x005000
CSB  = 0x008000
STATS= 0x020000
XE   = 0x100000
XO   = 0x200000
XS   = 0x320000
AET  = 0x520000
BOT  = 0x5C0000
ABP  = 65 * 1024
X1T  = 0x660000
ZT   = 0x860000
ACT  = 0xA60000
WSZ  = 0x1160000

def fbits(f): return '0x%08x' % struct.unpack('<I', struct.pack('<f', f))[0]
LOG2E = 1.4426950408889634

def srd(a, d, lo, size):
    a('s_mov_b32 s%d, s%d' % (d, lo)); a('s_mov_b32 s%d, s%d' % (d + 1, lo + 1))
    a('s_mov_b32 s%d, 0x%x' % (d + 2, size)); a('s_mov_b32 s%d, 0x20000' % (d + 3))

def head(a, name, nwg):
    a.raw('.p2align 8'); a.raw('.globl %s' % name); a.raw('.type %s,@function' % name); a.label(name)
    a('s_cmp_ge_u32 s2, %d' % nwg); a('s_cbranch_scc1 %s_end' % name)

def swap23_v(a, dst, src, t0, t1):
    a('v_and_b32 v%d, 0x13, v%d' % (dst, src))
    a('v_and_b32 v%d, 4, v%d' % (t0, src)); a('v_lshl_or_b32 v%d, v%d, 1, v%d' % (dst, t0, dst))
    a('v_and_b32 v%d, 8, v%d' % (t1, src)); a('v_lshrrev_b32 v%d, 1, v%d' % (t1, t1)); a('v_or_b32 v%d, v%d, v%d' % (dst, dst, t1))

def wave_sum(a, regs, tmp_s):
    for sh in ('quad_perm:[1,0,3,2]', 'quad_perm:[2,3,0,1]', 'row_half_mirror', 'row_mirror'):
        for r in regs: a('v_add_f32_dpp v%d, v%d, v%d %s' % (r, r, r, sh))
    for r in regs: a('v_add_f32_dpp v%d, v%d, v%d row_bcast:15 row_mask:0xa' % (r, r, r))
    for r in regs: a('v_add_f32_dpp v%d, v%d, v%d row_bcast:31 row_mask:0xc' % (r, r, r))
    for r, s in zip(regs, tmp_s): a('v_readlane_b32 s%d, v%d, 63' % (s, r))

def gemv_core(a, nvec, wsrd, pitch, vecs, tagp):
    a('s_mov_b32 s40, 0x05040100'); a('s_mov_b32 s41, 0x07060302')
    acc = [64, 72]
    for k in range(nvec):
        for c in range(8): a('v_mov_b32 v%d, 0' % (acc[k] + c))
    for ip in range(4):
        a.wait_vm(tagp + str(2 * ip + 1))
        r0 = 32 + 8 * ip; r1 = r0 + 4
        for d in range(4):
            a('v_perm_b32 v%d, v%d, v%d, s40' % (80 + 2 * d, r1 + d, r0 + d))
            a('v_perm_b32 v%d, v%d, v%d, s41' % (81 + 2 * d, r1 + d, r0 + d))
        for k in range(nvec):
            for c in range(8): a('v_dot2c_f32_bf16 v%d, v%d, v%d' % (acc[k] + c, 80 + c, vecs[k] + ip))
    a('s_nop 2')
    for sh in ('row_ror:4', 'row_ror:8'):
        for k in range(nvec):
            for c in range(8): a('v_add_f32_dpp v%d, v%d, v%d %s' % (acc[k] + c, acc[k] + c, acc[k] + c, sh))
    a('v_lshrrev_b32 v10, 4, v0'); a('v_lshlrev_b32 v10, 8, v10')
    a('v_and_b32 v11, 3, v0'); a('v_lshl_add_u32 v10, v11, 5, v10')
    a('v_and_b32 v11, 15, v0'); a('v_cmp_gt_u32 vcc, 4, v11'); a('s_and_saveexec_b64 s[42:43], vcc')
    for k in range(nvec):
        a('ds_write_b128 v10, v[%d:%d] offset:%d' % (acc[k], acc[k] + 3, 128 * k))
        a('ds_write_b128 v10, v[%d:%d] offset:%d' % (acc[k] + 4, acc[k] + 7, 128 * k + 16))
    a('s_mov_b64 exec, s[42:43]')
    a('s_waitcnt lgkmcnt(0)'); a('s_barrier')

def gemv_final(a):
    a('v_lshlrev_b32 v10, 2, v1')
    for p in range(8): a('ds_read2st64_b32 v[%d:%d], v10 offset0:%d offset1:%d' % (32 + 2 * p, 33 + 2 * p, 2 * p, 2 * p + 1))
    a('s_waitcnt lgkmcnt(0)')
    for st in (8, 4, 2, 1):
        for i in range(st): a('v_add_f32 v%d, v%d, v%d' % (32 + i, 32 + i, 32 + st + i))
    a('v_mov_b32 v20, v32')

def k1():
    a = Asm(); name = 'k1_prep_kernel'
    head(a, name, 352)
    a('s_load_dwordx2 s[4:5], s[0:1], 0'); a('s_load_dwordx4 s[8:11], s[0:1], 72'); a('s_load_dwordx2 s[6:7], s[0:1], 104')
    a('v_and_b32 v1, 63, v0'); a('v_lshrrev_b32 v2, 6, v0'); a('v_readfirstlane_b32 s3, v2')
    a('s_cmp_lt_u32 s2, 96'); a('s_cbranch_scc1 k1_gemv')
    a('s_sub_u32 s20, s2, 96'); a('s_and_b32 s21, s20, 7'); a('s_lshr_b32 s22, s20, 3')
    a('s_lshr_b32 s23, s22, 3'); a('s_lshl_b32 s21, s21, 2'); a('s_add_u32 s23, s23, s21')
    a('s_and_b32 s24, s22, 7'); a('s_lshl_b32 s24, s24, 2'); a('s_add_u32 s24, s24, s3')
    a('s_and_b32 s25, s24, 0x13'); a('s_and_b32 s26, s24, 4'); a('s_lshl_b32 s26, s26, 1'); a('s_or_b32 s25, s25, s26')
    a('s_and_b32 s26, s24, 8'); a('s_lshr_b32 s26, s26, 1'); a('s_or_b32 s25, s25, s26')
    a('s_lshl_b32 s26, s23, 5'); a('s_add_u32 s26, s26, s25')
    a('s_sub_u32 s27, 2048, s26'); a('s_cmp_eq_u32 s26, 0'); a('s_cselect_b32 s27, 1024, s27')
    a('s_lshl_b32 s28, s26, 10'); a('s_lshl_b32 s29, s27, 10')
    a('v_lshlrev_b32 v3, 4, v1')
    a('s_waitcnt lgkmcnt(0)')
    srd(a, 12, 4, 2048 * 1024); srd(a, 16, 6, WSZ)
    a('buffer_load_dwordx4 v[4:7], v3, s[12:15], s28 offen'); a('buffer_load_dwordx4 v[8:11], v3, s[12:15], s29 offen')
    a('v_lshrrev_b32 v12, 1, v1'); a('v_lshlrev_b32 v12, 10, v12'); a('v_and_b32 v13, 1, v1'); a('v_lshl_add_u32 v12, v13, 9, v12')
    a('s_lshl_b32 s30, s23, 15'); a('s_lshl_b32 s31, s24, 4'); a('s_add_u32 s31, s30, s31')
    a('s_add_u32 s32, s31, 0x%x' % XE); a('s_add_u32 s33, s31, 0x%x' % XO)
    a('v_sub_u32 v13, 95, v1'); a('v_cmp_gt_u32 vcc, 32, v1'); a('v_cndmask_b32 v13, v13, v1, vcc')
    a('v_lshrrev_b32 v14, 1, v13'); a('v_lshlrev_b32 v14, 10, v14'); a('v_and_b32 v13, 1, v13'); a('v_lshl_add_u32 v14, v13, 9, v14')
    a('s_lshl_b32 s34, s25, 4'); a('s_add_u32 s34, s34, s30'); a('s_add_u32 s34, s34, 0x%x' % XS); a('s_add_u32 s35, s34, 0x100000')
    a('s_mov_b32 s36, 0xffff0000'); a('s_mov_b32 s37, 0xffff')
    a('s_waitcnt vmcnt(0)')
    for rI, (src, dst) in enumerate(((4, 16), (8, 24))):
        for d in range(4):
            a('v_lshlrev_b32 v%d, 16, v%d' % (dst + 2 * d, src + d)); a('v_and_b32 v%d, s36, v%d' % (dst + 2 * d + 1, src + d))
    for dst, t in ((16, 32), (24, 33)):
        a('v_add_f32 v%d, v%d, v%d' % (t, dst, dst + 1))
        for i in range(2, 8): a('v_add_f32 v%d, v%d, v%d' % (t, t, dst + i))
    for src, dst in ((4, 40), (8, 44)):
        a('v_mov_b32_dpp v48, v%d wave_shl:1' % src)
        a('v_readlane_b32 s38, v%d, 32' % src); a('v_writelane_b32 v48, s38, 63')
        a('v_bfi_b32 v49, s37, v48, v%d' % (src + 3)); a('v_bfi_b32 v50, s37, v%d, v%d' % (src + 3, src + 2))
        a('v_bfi_b32 v51, s37, v%d, v%d' % (src + 2, src + 1)); a('v_bfi_b32 v52, s37, v%d, v%d' % (src + 1, src))
        for d in range(4): a('v_cndmask_b32 v%d, v%d, v%d, vcc' % (dst + d, 49 + d, src + d))
    a('buffer_store_dwordx4 v[40:43], v14, s[16:19], s34 offen'); a('buffer_store_dwordx4 v[44:47], v14, s[16:19], s35 offen')
    wave_sum(a, [32, 33], [40, 41])
    a('v_mov_b32 v34, %s' % fbits(-1.0 / 512))
    a('v_mul_f32 v35, s40, v34'); a('v_mul_f32 v36, s41, v34')
    for i in range(8): a('v_add_f32 v%d, v%d, v35' % (16 + i, 16 + i)); a('v_add_f32 v%d, v%d, v36' % (24 + i, 24 + i))
    for dst, t in ((16, 32), (24, 33)):
        a('v_mul_f32 v%d, v%d, v%d' % (t, dst, dst))
        for i in range(1, 8): a('v_fmac_f32 v%d, v%d, v%d' % (t, dst + i, dst + i))
    wave_sum(a, [32, 33], [40, 41])
    a('v_mov_b32 v34, %s' % fbits(1.0 / 512)); a('v_mov_b32 v35, %s' % fbits(1e-5)); a('v_mov_b32 v36, v35')
    a('v_fmac_f32 v35, s40, v34'); a('v_fmac_f32 v36, s41, v34')
    a('v_rsq_f32 v35, v35'); a('v_rsq_f32 v36, v36')
    a('s_cmp_eq_u32 s26, 0'); a('s_cselect_b32 s40, 0, 1.0'); a('s_cselect_b32 s41, 1.0, -1.0')
    a('v_mul_f32 v37, s40, v36'); a('v_mul_f32 v38, s40, v35'); a('v_mul_f32 v39, s41, v36')
    for i in range(8):
        a('v_mul_f32 v%d, v35, v%d' % (56 + i, 16 + i)); a('v_fmac_f32 v%d, v37, v%d' % (56 + i, 24 + i))
        a('v_mul_f32 v%d, v38, v%d' % (64 + i, 16 + i)); a('v_fmac_f32 v%d, v39, v%d' % (64 + i, 24 + i))
    for d in range(4):
        a('v_cvt_pk_bf16_f32 v%d, v%d, v%d' % (72 + d, 56 + 2 * d, 57 + 2 * d)); a('v_cvt_pk_bf16_f32 v%d, v%d, v%d' % (76 + d, 64 + 2 * d, 65 + 2 * d))
    a('buffer_store_dwordx4 v[72:75], v12, s[16:19], s32 offen'); a('buffer_store_dwordx4 v[76:79], v12, s[16:19], s33 offen')
    a('s_cbranch_scc0 k1_prep_kernel_end')
    for d in range(4): a('v_mov_b32 v%d, 0x3f803f80' % (80 + d))
    a('s_mov_b32 s33, 0x%x' % (XO + 32 * 32768))
    a('buffer_store_dwordx4 v[80:83], v12, s[16:19], s33 offen')
    a('s_endpgm')
    a.label('k1_gemv'); a.hist = []
    a('s_lshr_b32 s20, s2, 4'); a('s_lshl_b32 s20, s20, 4'); a('s_and_b32 s21, s2, 7'); a('s_lshl_b32 s21, s21, 1'); a('s_add_u32 s20, s20, s21')
    a('s_lshr_b32 s21, s2, 3'); a('s_and_b32 s21, s21, 1'); a('s_add_u32 s20, s20, s21')
    a('v_lshrrev_b32 v4, 2, v0'); a('v_lshlrev_b32 v5, 4, v4')
    a('v_mul_u32_u24 v6, %d, v4' % (8 * 6144)); a('v_and_b32 v7, 3, v0'); a('v_lshl_add_u32 v6, v7, 4, v6')
    a('s_lshl_b32 s22, s20, 6')
    a('s_waitcnt lgkmcnt(0)')
    srd(a, 12, 8, 1024); srd(a, 24, 10, 512 * 6144); srd(a, 16, 6, WSZ)
    a('buffer_load_dwordx4 v[8:11], v5, s[12:15], 0 offen', tag='c')
    for i in range(8):
        a('buffer_load_dwordx4 v[%d:%d], v6, s[24:27], s22 offen' % (32 + 4 * i, 35 + 4 * i), tag='w%d' % i)
        if i < 7: a('s_add_u32 s22, s22, 6144')
    a('s_mov_b32 s36, 0xffff0000')
    a.wait_vm('c')
    for d in range(4):
        a('v_lshlrev_b32 v%d, 16, v%d' % (12 + 2 * d, 8 + d)); a('v_and_b32 v%d, s36, v%d' % (13 + 2 * d, 8 + d))
    for i in range(8): a('v_mul_f32 v%d, %s, v%d' % (20 + i, fbits(-LOG2E), 12 + i))
    for i in range(8): a('v_exp_f32 v%d, v%d' % (20 + i, 20 + i))
    for i in range(8): a('v_add_f32 v%d, 1.0, v%d' % (20 + i, 20 + i))
    for i in range(8): a('v_rcp_f32 v%d, v%d' % (20 + i, 20 + i))
    for i in range(8): a('v_mul_f32 v%d, v%d, v%d' % (20 + i, 20 + i, 12 + i))
    for d in range(4): a('v_cvt_pk_bf16_f32 v%d, v%d, v%d' % (28 + d, 20 + 2 * d, 21 + 2 * d))
    gemv_core(a, 1, 24, 6144, [28], 'w')
    a('s_cmp_lg_u32 s3, 0'); a('s_cbranch_scc1 k1_prep_kernel_end')
    gemv_final(a)
    a('v_cvt_pk_bf16_f32 v21, v20, v20'); a('v_and_b32 v21, s36, v21')
    a('s_lshr_b32 s21, s20, 4')
    a('s_cmp_eq_u32 s21, 1'); a('s_cselect_b32 s22, 1.0, 0'); a('s_cmp_eq_u32 s21, 4'); a('s_cselect_b32 s22, 1.0, s22')
    a('v_add_f32 v21, s22, v21'); a('v_cvt_pk_bf16_f32 v22, v21, v21'); a('v_and_b32 v21, s36, v22')
    a('s_lshl_b32 s23, s20, 5'); a('v_add_u32 v23, s23, v1')
    a('v_lshlrev_b32 v24, 2, v23'); a('v_lshlrev_b32 v25, 1, v23')
    a('v_and_b32 v26, 511, v23'); a('v_sub_u32 v27, 512, v26'); a('v_and_b32 v27, 255, v27'); a('v_lshlrev_b32 v27, 2, v27')
    a('s_mov_b32 s28, 0x%x' % MODH)
    a('v_cmp_gt_u32 vcc, 32, v1'); a('s_and_saveexec_b64 s[42:43], vcc')
    a('buffer_store_dword v21, v24, s[16:19], 0 offen')
    a('buffer_store_short v22, v25, s[16:19], s28 offen')
    a('s_and_b32 s29, s20, 8'); a('s_cmp_eq_u32 s29, 0'); a('s_cbranch_scc1 k1_prep_kernel_end')
    a('s_mov_b32 s28, 0x%x' % MODM); a('s_cmp_eq_u32 s21, 2'); a('s_cbranch_scc1 k1_mir')
    a('s_mov_b32 s28, 0x%x' % (MODM + 1024)); a('s_cmp_eq_u32 s21, 4'); a('s_cbranch_scc0 k1_prep_kernel_end')
    a.label('k1_mir')
    a('buffer_store_dword v21, v27, s[16:19], s28 offen')
    a.label(name + '_end'); a('s_endpgm')
    return name, a.text() + kernel_desc(name, 96, 64), (352, 256, 4096)

def gen_seeds(a, freq, phase, base, inv, C0, C1, K, tmp, fn):
    N = int(round(1 / inv))
    a('v_mul_u32_u24 v%d, v%d, v%d' % (tmp, freq, base)); a('v_and_b32 v%d, %d, v%d' % (tmp, N - 1, tmp))
    a('v_cvt_f32_u32 v%d, v%d' % (tmp, tmp)); a('v_cvt_f32_u32 v%d, v%d' % (tmp + 1, freq))
    a('v_mul_f32 v%d, %s, v%d' % (tmp + 1, fbits(inv), tmp + 1))
    if phase is None: a('v_mul_f32 v%d, %s, v%d' % (C0, fbits(inv), tmp))
    else: a('v_fmamk_f32 v%d, v%d, %s, v%d' % (C0, tmp, fbits(inv), phase))
    a('v_mul_f32 v%d, %s, v%d' % (K, fbits(16.0), tmp + 1))
    for i in range(1, 8): a('v_add_f32 v%d, v%d, v%d' % (C0 + i, C0 + i - 1, tmp + 1))
    for i in range(8): a('v_add_f32 v%d, v%d, v%d' % (C1 + i, C0 + i, K))
    a('v_cos_f32 v%d, v%d' % (K, K))
    for i in range(8): a('%s v%d, v%d' % (fn, C0 + i, C0 + i))
    for i in range(8): a('%s v%d, v%d' % (fn, C1 + i, C1 + i))
    a('v_add_f32 v%d, v%d, v%d' % (K, K, K))

def cheb(a, dst, p1, p2, K):
    for i in range(0, 8, 2):
        a('v_pk_fma_f32 v[%d:%d], v[%d:%d], v[%d:%d], v[%d:%d] op_sel_hi:[1,0,1] neg_lo:[0,0,1] neg_hi:[0,0,1]' % (
            dst + i, dst + i + 1, p1 + i, p1 + i + 1, K, K + 1, p2 + i, p2 + i + 1))

def split3(a, v, d0, d1, t):
    a('v_cvt_pk_bf16_f32 v%d, v%d, v%d' % (t, v, v)); a('v_and_b32 v%d, s36, v%d' % (t, t))
    a('v_sub_f32 v%d, v%d, v%d' % (t + 1, v, t))
    a('v_cvt_pk_bf16_f32 v%d, v%d, v%d' % (d0, t, t + 1)); a('v_and_b32 v%d, s36, v%d' % (t, d0))
    a('v_sub_f32 v%d, v%d, v%d' % (t + 1, t + 1, t)); a('v_mov_b32 v%d, 0' % t)
    a('v_cvt_pk_bf16_f32 v%d, v%d, v%d' % (d1, t + 1, t))

def k2():
    a = Asm(); name = 'k2_hid_kernel'
    head(a, name, 376)
    a('s_load_dwordx2 s[6:7], s[0:1], 104'); a('s_load_dwordx4 s[8:11], s[0:1], 48')
    a('v_and_b32 v1, 63, v0'); a('v_lshrrev_b32 v2, 6, v0'); a('v_readfirstlane_b32 s3, v2')
    a('s_cmp_ge_u32 s2, 264'); a('s_cbranch_scc1 k2_gemv')
    a('s_and_b32 s20, s2, 7'); a('s_lshr_b32 s21, s2, 3'); a('s_and_b32 s22, s21, 7')
    a('s_lshr_b32 s23, s21, 3'); a('s_lshl_b32 s24, s20, 2'); a('s_add_u32 s23, s23, s24')
    a('s_cmp_ge_u32 s2, 256'); a('s_cselect_b32 s22, s20, s22'); a('s_cselect_b32 s23, 32, s23'); a('s_cselect_b32 s25, 1, 0')
    a('s_cselect_b32 s26, %d, %d' % (MODF, MODF + 2048))
    a('s_mov_b32 s27, 0x%x' % XE)
    a('s_lshl_b32 s28, s23, 15'); a('s_lshl_b32 s29, s3, 13'); a('s_add_u32 s28, s28, s29')
    a('s_add_u32 s27, s27, s28'); a('s_add_u32 s28, s28, 0x%x' % XO)
    a('s_lshl_b32 s29, s3, 9'); a('s_add_u32 s26, s26, s29')
    a('v_lshlrev_b32 v3, 4, v1'); a('v_lshrrev_b32 v4, 5, v1'); a('v_lshlrev_b32 v5, 5, v4')
    a('v_and_b32 v6, 31, v1'); swap23_v(a, 7, 6, 8, 9)
    a('s_lshl_b32 s30, s22, 5'); a('v_add_u32 v7, s30, v7')
    a('s_lshl_b32 s30, s3, 7'); a('v_lshl_add_u32 v8, v4, 3, s30')
    a('s_waitcnt lgkmcnt(0)')
    srd(a, 16, 6, WSZ)
    for jj in range(8):
        a('buffer_load_dwordx4 v[%d:%d], v5, s[16:19], s26 offen offset:%d' % (192 + 8 * jj, 195 + 8 * jj, 64 * jj))
        a('buffer_load_dwordx4 v[%d:%d], v5, s[16:19], s26 offen offset:%d' % (196 + 8 * jj, 199 + 8 * jj, 64 * jj + 16), tag='g%d' % jj)
    for jj in range(8):
        if jj == 4: a('s_add_u32 s27, s27, 4096'); a('s_add_u32 s28, s28, 4096')
        a('buffer_load_dwordx4 a[%d:%d], v3, s[16:19], s27 offen offset:%d' % (8 * jj, 8 * jj + 3, 1024 * (jj & 3)))
        a('buffer_load_dwordx4 a[%d:%d], v3, s[16:19], s28 offen offset:%d' % (8 * jj + 4, 8 * jj + 7, 1024 * (jj & 3)), tag='x%d' % jj)
    CF, SF = 64, 128
    gen_seeds(a, 7, None, 8, 1 / 512, CF, CF + 8, 10, 14, 'v_cos_f32')
    a('v_cmp_eq_u32 vcc, 0, v7'); a('v_mov_b32 v9, 256'); a('v_cndmask_b32 v9, v7, v9, vcc')
    a('v_mov_b32 v16, 0'); a('v_mov_b32 v17, %s' % fbits(0.25)); a('v_cndmask_b32 v16, v16, v17, vcc')
    gen_seeds(a, 9, 16, 8, 1 / 512, SF, SF + 8, 12, 14, 'v_sin_f32')
    for jj in range(2, 8):
        cheb(a, CF + 8 * jj, CF + 8 * jj - 8, CF + 8 * jj - 16, 10); cheb(a, SF + 8 * jj, SF + 8 * jj - 8, SF + 8 * jj - 16, 12)
    for jj in range(8):
        a.wait_vm('g%d' % jj)
        for B in (CF, SF):
            b = B + 8 * jj
            for i in range(0, 8, 2): a('v_pk_mul_f32 v[%d:%d], v[%d:%d], v[%d:%d]' % (b + i, b + i + 1, b + i, b + i + 1, 192 + 8 * jj + i, 193 + 8 * jj + i))
            for d in range(4): a('v_cvt_pk_bf16_f32 v%d, v%d, v%d' % (b + d, b + 2 * d, b + 2 * d + 1))
    AC, AS, AX, AY = 16, 32, 192, 208
    def mf(acc, areg, breg, first): a('v_mfma_f32_32x32x16_bf16 v[%d:%d], a[%d:%d], v[%d:%d], %s' % (acc, acc + 15, areg, areg + 3, breg, breg + 3, '0' if first else 'v[%d:%d]' % (acc, acc + 15)))
    for jj in range(8):
        a.wait_vm('x%d' % jj)
        mf(AC, 8 * jj, CF + 8 * jj, jj == 0); mf(AS, 8 * jj + 4, SF + 8 * jj, jj == 0)
    a('s_lshl_b32 s30, s3, 11'); a('v_add_u32 v48, s30, v3')
    a('s_lshl_b32 s30, s3, 13'); a('v_add_u32 v49, s30, v3')
    a('s_lshl_b32 s30, s3, 8'); a('v_lshl_add_u32 v50, v1, 2, s30')
    a('s_and_b32 s31, s23, 31')
    a('s_cmp_lg_u32 s31, 0'); a('s_cbranch_scc1 k2_noY')
    for jj in range(8): mf(AY, 8 * jj + 4, CF + 8 * jj, jj == 0)
    a('ds_write_b32 v50, v%d offset:33792' % AS)
    a('ds_write_b32 v50, v%d offset:32768' % AY)
    a.label('k2_noY')
    a('s_cmp_lg_u32 s22, 0'); a('s_cbranch_scc1 k2_noX')
    for jj in range(8): mf(AX, 8 * jj, SF + 8 * jj, jj == 0)
    a('v_cmp_eq_u32 vcc, 0, v6')
    a('s_waitcnt lgkmcnt(0)')
    for r in range(16): a('v_cndmask_b32 v%d, v%d, v%d, vcc' % (AS + r, AS + r, AX + r))
    a.label('k2_noX'); a.fence()
    for p in range(4):
        for hf in range(2):
            r = 16 + 8 * p + 4 * hf
            a('ds_write_b128 v48, v[%d:%d] offset:%d' % (r, r + 3, p * 8192 + hf * 1024))
    a('s_waitcnt lgkmcnt(0)'); a('s_barrier')
    for src in range(4):
        for hf in range(2): a('ds_read_b128 v[%d:%d], v49 offset:%d' % (64 + 8 * src + 4 * hf, 67 + 8 * src + 4 * hf, src * 2048 + hf * 1024))
    a('s_cmp_lt_u32 s3, 2'); a('s_cselect_b32 s32, 0, 0x%x' % (BOT - AET)); a('s_mul_i32 s33, s22, %d' % ABP); a('s_add_u32 s33, s33, 0x%x' % AET); a('s_add_u32 s33, s32, s33'); a('s_mov_b32 s32, s33')
    a('s_lshl_b32 s34, s23, 1'); a('s_and_b32 s35, s3, 1'); a('s_add_u32 s34, s34, s35'); a('s_lshl_b32 s34, s34, 10'); a('s_add_u32 s32, s32, s34')
    a('s_waitcnt lgkmcnt(0)')
    for i in range(0, 8, 2):
        a('v_pk_add_f32 v[%d:%d], v[%d:%d], v[%d:%d]' % (64 + i, 65 + i, 64 + i, 65 + i, 72 + i, 73 + i))
        a('v_pk_add_f32 v[%d:%d], v[%d:%d], v[%d:%d]' % (80 + i, 81 + i, 80 + i, 81 + i, 88 + i, 89 + i))
    for i in range(0, 8, 2): a('v_pk_add_f32 v[%d:%d], v[%d:%d], v[%d:%d]' % (64 + i, 65 + i, 64 + i, 65 + i, 80 + i, 81 + i))
    for d in range(4): a('v_cvt_pk_bf16_f32 v%d, v%d, v%d' % (96 + d, 64 + 2 * d, 65 + 2 * d))
    a('s_cmp_lg_u32 s25, 0'); a('s_cbranch_scc1 k2_nostore')
    a('buffer_store_dwordx4 v[96:99], v3, s[16:19], s32 offen')
    a.label('k2_nostore')
    a('s_cmp_lg_u32 s31, 0'); a('s_cbranch_scc1 k2_hid_kernel_end')
    a('s_cmp_lg_u32 s35, 0'); a('s_cbranch_scc1 k2_hid_kernel_end')
    a('s_lshr_b32 s37, s3, 1')
    a('s_mul_i32 s38, s37, s22'); a('s_cmp_lg_u32 s38, 0'); a('s_cbranch_scc1 k2_hid_kernel_end')
    a('s_lshl_b32 s38, s37, 10'); a('v_lshl_add_u32 v51, v1, 2, s38')
    for src in range(4): a('ds_read_b32 v%d, v51 offset:%d' % (100 + src, 32768 + 256 * src))
    a('s_mov_b32 s36, 0xffff0000')
    a('s_cmp_lg_u32 s25, 0'); a('s_cselect_b32 s39, %s, 1.0' % fbits(2048.0))
    a('s_waitcnt lgkmcnt(0)')
    a('v_add_f32 v100, v100, v101'); a('v_add_f32 v102, v102, v103'); a('v_add_f32 v100, v100, v102'); a('v_mul_f32 v100, s39, v100')
    a('v_mul_u32_u24 v104, s37, v1'); a('v_cmp_eq_u32 vcc, 0, v104'); a('v_cndmask_b32 v100, 0, v100, vcc')
    split3(a, 100, 108, 109, 104); a('v_mov_b32 v110, 0'); a('v_mov_b32 v111, 0')
    a('s_add_u32 s32, s33, 65536')
    a('s_lshl_b32 s38, s25, 9'); a('s_add_u32 s32, s32, s38')
    a('v_cmp_gt_u32 vcc, 32, v1'); a('s_and_saveexec_b64 s[42:43], vcc')
    a('buffer_store_dwordx4 v[108:111], v3, s[16:19], s32 offen')
    a('s_endpgm')
    a.label('k2_gemv'); a.hist = []
    a('s_sub_u32 s20, s2, 264')
    a('s_lshr_b32 s21, s20, 4'); a('s_lshl_b32 s21, s21, 4'); a('s_and_b32 s22, s20, 7'); a('s_lshl_b32 s22, s22, 1'); a('s_add_u32 s21, s21, s22')
    a('s_lshr_b32 s22, s20, 3'); a('s_and_b32 s22, s22, 1'); a('s_add_u32 s21, s21, s22')
    a('s_cmp_ge_u32 s21, 56'); a('s_cselect_b32 s23, 1, 0'); a('s_cselect_b32 s24, 56, 0'); a('s_sub_u32 s21, s21, s24')
    a('v_lshrrev_b32 v4, 2, v0'); a('v_lshlrev_b32 v5, 4, v4')
    a('v_mul_u32_u24 v6, %d, v4' % (8 * 3584)); a('v_and_b32 v7, 3, v0'); a('v_lshl_add_u32 v6, v7, 4, v6')
    a('s_lshl_b32 s22, s21, 6')
    a('s_waitcnt lgkmcnt(0)')
    a('s_cmp_eq_u32 s23, 1'); a('s_cselect_b32 s4, s10, s8'); a('s_cselect_b32 s5, s11, s9')
    srd(a, 24, 4, 512 * 3584); srd(a, 16, 6, WSZ)
    a('s_mov_b32 s28, 0x%x' % (MODH + 4 * 1024)); a('s_mov_b32 s29, 0x%x' % (MODH + 3 * 1024))
    a('buffer_load_dwordx4 v[24:27], v5, s[16:19], s28 offen'); a('buffer_load_dwordx4 v[28:31], v5, s[16:19], s29 offen')
    for i in range(8):
        a('buffer_load_dwordx4 v[%d:%d], v6, s[24:27], s22 offen' % (32 + 4 * i, 35 + 4 * i), tag='w%d' % i)
        if i < 7: a('s_add_u32 s22, s22, 3584')
    gemv_core(a, 2, 24, 3584, [24, 28], 'w')
    a('s_cmp_lg_u32 s3, 0'); a('s_cbranch_scc1 k2_hid_kernel_end')
    gemv_final(a)
    a('s_mov_b32 s36, 0xffff0000')
    a('v_cvt_pk_bf16_f32 v22, v20, v20'); a('v_and_b32 v21, s36, v22'); a('v_sub_f32 v21, v20, v21'); a('v_cvt_pk_bf16_f32 v23, v21, v21')
    a('v_and_b32 v24, 15, v1'); swap23_v(a, 25, 24, 26, 27)
    a('v_lshlrev_b32 v25, 4, v25'); a('v_bfe_u32 v26, v1, 4, 1'); a('v_lshl_add_u32 v25, v26, 9, v25')
    a('v_lshrrev_b32 v26, 5, v1'); a('v_lshl_add_u32 v25, v26, 3, v25')
    a('s_lshl_b32 s28, s21, 10'); a('s_lshl_b32 s29, s23, 8'); a('s_add_u32 s28, s28, s29'); a('s_add_u32 s28, s28, 0x%x' % CSB)
    a('buffer_store_dwordx2 v[22:23], v25, s[16:19], s28 offen')
    a.label(name + '_end'); a('s_endpgm')
    return name, a.text() + kernel_desc(name, 256 + 64, 64, 256), (376, 256, 34816)

def k3():
    a = Asm(); name = 'k3_seq_kernel'
    head(a, name, 256)
    a('s_load_dwordx2 s[6:7], s[0:1], 104')
    a('v_and_b32 v1, 63, v0'); a('v_lshrrev_b32 v2, 6, v0'); a('v_readfirstlane_b32 s3, v2')
    a('s_and_b32 s20, s2, 7'); a('s_lshr_b32 s21, s2, 3'); a('s_and_b32 s22, s21, 7')
    a('s_lshr_b32 s23, s21, 3'); a('s_lshl_b32 s24, s20, 2'); a('s_add_u32 s23, s23, s24')
    a('s_mul_i32 s26, s22, %d' % ABP); a('s_lshl_b32 s27, s3, 14'); a('s_add_u32 s27, s27, s26')
    a('s_add_u32 s28, s27, 0x%x' % BOT); a('s_add_u32 s27, s27, 0x%x' % AET)
    a('v_lshlrev_b32 v3, 4, v1'); a('v_lshrrev_b32 v4, 5, v1'); a('v_lshlrev_b32 v5, 5, v4'); a('v_and_b32 v6, 31, v1')
    a('s_lshl_b32 s30, s23, 5'); a('v_add_u32 v7, s30, v6')
    a('s_lshl_b32 s30, s3, 8'); a('v_lshl_add_u32 v8, v4, 3, s30')
    a('s_waitcnt lgkmcnt(0)')
    srd(a, 16, 6, WSZ)
    for j in range(16):
        if j and j % 4 == 0: a('s_add_u32 s27, s27, 4096'); a('s_add_u32 s28, s28, 4096')
        a('buffer_load_dwordx4 a[%d:%d], v3, s[16:19], s27 offen offset:%d' % (8 * j, 8 * j + 3, 1024 * (j & 3)))
        a('buffer_load_dwordx4 a[%d:%d], v3, s[16:19], s28 offen offset:%d' % (8 * j + 4, 8 * j + 7, 1024 * (j & 3)), tag='x%d' % j)
    a('s_add_u32 s27, s26, 0x%x' % (AET + 65536)); a('s_mov_b32 s28, 0x%x' % (BOT + 65536))
    a('buffer_load_dwordx4 a[128:131], v3, s[16:19], s27 offen'); a('buffer_load_dwordx4 a[132:135], v3, s[16:19], s28 offen', tag='ext')
    FR = 128
    CH = [80, 96, 112]
    gen_seeds(a, 7, None, 8, 1 / 2048, CH[0], CH[1], 10, 14, 'v_cos_f32')
    a('v_cmp_eq_u32 vcc, 0, v7'); a('v_mov_b32 v9, 1024'); a('v_cndmask_b32 v9, v7, v9, vcc')
    a('v_mov_b32 v16, 0'); a('v_mov_b32 v17, %s' % fbits(0.25)); a('v_cndmask_b32 v16, v16, v17, vcc')
    gen_seeds(a, 9, 16, 8, 1 / 2048, CH[0] + 8, CH[1] + 8, 12, 14, 'v_sin_f32')
    AP, AQ, AX, AY = 16, 32, 48, 64
    def mf(acc, areg, breg, first): a('v_mfma_f32_32x32x16_bf16 v[%d:%d], a[%d:%d], v[%d:%d], %s' % (acc, acc + 15, areg, areg + 3, breg, breg + 3, '0' if first else 'v[%d:%d]' % (acc, acc + 15)))
    for j in range(16):
        c = CH[j % 3]
        if j >= 2:
            cheb(a, c, CH[(j - 1) % 3], CH[(j - 2) % 3], 10); cheb(a, c + 8, CH[(j - 1) % 3] + 8, CH[(j - 2) % 3] + 8, 12)
        for d in range(8): a('v_cvt_pk_bf16_f32 v%d, v%d, v%d' % (FR + 8 * j + d, c + 2 * d, c + 2 * d + 1))
    a('s_and_b32 s33, s3, 1'); a('s_lshr_b32 s34, s3, 1')
    a('s_lshl_b32 s35, s22, 7'); a('s_lshl_b32 s36, s33, 6'); a('s_add_u32 s35, s35, s36')
    a('s_add_u32 s36, s35, %d' % (MODF + 2 * 2048)); a('s_add_u32 s37, s35, %d' % (MODF + 4 * 2048)); a('s_add_u32 s38, s35, %d' % MODM)
    GA, G2, GAU, G2U, XL, XU = 80, 88, 96, 104, 112, 116
    for reg, so, off in ((GA, 36, 0), (G2, 37, 0), (GAU, 38, 0), (G2U, 38, 1024)):
        a('buffer_load_dwordx4 v[%d:%d], v5, s[16:19], s%d offen offset:%d' % (reg, reg + 3, so, off))
        a('buffer_load_dwordx4 v[%d:%d], v5, s[16:19], s%d offen offset:%d' % (reg + 4, reg + 7, so, off + 16))
    a('s_lshl_b32 s39, s34, 5'); a('s_add_u32 s39, s39, s23')
    a('s_lshl_b32 s40, s39, 15'); a('s_lshl_b32 s41, s22, 1'); a('s_add_u32 s41, s41, s33'); a('s_lshl_b32 s41, s41, 10'); a('s_add_u32 s40, s40, s41')
    a('s_add_u32 s41, s40, 0x%x' % XS); a('s_add_u32 s42, s41, 16384')
    a('buffer_load_dwordx4 v[%d:%d], v3, s[16:19], s41 offen' % (XL, XL + 3)); a('buffer_load_dwordx4 v[%d:%d], v3, s[16:19], s42 offen' % (XU, XU + 3), tag='cst')
    a('v_and_b32 v14, 1, v7'); a('v_lshlrev_b32 v14, 15, v14'); a('v_or_b32 v14, 0x3f80, v14')
    a('v_mov_b32 v15, 0x3f80'); a('v_cmp_eq_u32 vcc, 0, v7'); a('v_cndmask_b32 v15, 0, v15, vcc')
    a('v_cmp_eq_u32 vcc, 0, v4'); a('v_cndmask_b32 v121, v15, v14, vcc'); a('v_cndmask_b32 v125, 0, v15, vcc')
    a('s_cmp_eq_u32 s3, 0'); a('s_cselect_b32 s43, 0xffff, 0')
    a('v_and_b32 v121, s43, v121'); a('v_and_b32 v125, s43, v125')
    a('v_lshl_or_b32 v120, v121, 16, v121'); a('v_lshl_or_b32 v124, v125, 16, v125')
    for r in (122, 123, 126, 127): a('v_mov_b32 v%d, 0' % r)
    for j in range(16):
        a.wait_vm('x%d' % j)
        mf(AP, 8 * j, FR + 8 * j, j == 0); mf(AQ, 8 * j + 4, FR + 8 * j + 4, j == 0)
    a.wait_vm('ext')
    mf(AP, 128, 120, False)
    a('s_lshl_b32 s30, s3, 11'); a('v_add_u32 v10, s30, v3')
    a('s_lshl_b32 s30, s33, 13'); a('v_add_u32 v11, s30, v3')
    a('s_lshl_b32 s30, s3, 3'); a('v_mov_b32 v12, s30')
    a('s_cmp_lg_u32 s22, 0'); a('s_cbranch_scc1 k3_noX')
    mf(AQ, 132, 124, False)
    for j in range(16): mf(AX, 8 * j + 4, FR + 8 * j, j == 0)
    mf(AX, 132, 120, False)
    a.label('k3_noX')
    a('s_cmp_lg_u32 s23, 0'); a('s_cbranch_scc1 k3_noY')
    for j in range(16): mf(AY, 8 * j, FR + 8 * j + 4, j == 0)
    mf(AY, 128, 124, False)
    a.fence()
    a('v_mov_b32 v13, v%d' % AQ)
    a('v_cmp_eq_u32 vcc, 0, v6')
    for r in range(16): a('v_cndmask_b32 v%d, v%d, v%d, vcc' % (AQ + r, AQ + r, AY + r))
    a.label('k3_noY'); a.fence()
    a('s_cmp_lg_u32 s22, 0'); a('s_cbranch_scc1 k3_noX2')
    a('v_cmp_eq_u32 vcc, 0, v4'); a('v_cndmask_b32 v%d, v%d, v%d, vcc' % (AQ, AQ, AX))
    a('s_cmp_lg_u32 s23, 0'); a('s_cbranch_scc1 k3_noX2')
    a('v_mov_b32 v14, v%d' % AY); a('v_mov_b32 v15, v13')
    a('s_mov_b64 exec, 1'); a('ds_write_b64 v12, v[14:15] offset:32768'); a('s_mov_b64 exec, -1')
    a.label('k3_noX2'); a.fence()
    for p in range(4):
        for hf in range(2):
            r = 16 + 8 * p + 4 * hf
            a('ds_write_b128 v10, v[%d:%d] offset:%d' % (r, r + 3, p * 8192 + hf * 1024))
    a('s_waitcnt lgkmcnt(0)'); a('s_barrier')
    RP, RQ = 128, 160
    for src in range(4):
        for hf in range(2):
            a('ds_read_b128 v[%d:%d], v11 offset:%d' % (RP + 8 * src + 4 * hf, RP + 3 + 8 * src + 4 * hf, src * 2048 + hf * 1024))
    for src in range(4):
        for hf in range(2):
            a('ds_read_b128 v[%d:%d], v11 offset:%d' % (RQ + 8 * src + 4 * hf, RQ + 3 + 8 * src + 4 * hf, 16384 + src * 2048 + hf * 1024))
    a('s_cmp_eq_u32 s34, 0'); a('s_cselect_b32 s44, -1.0, 1.0'); a('s_mov_b32 s45, s44')
    a('s_mov_b32 s46, 0xffff0000')
    a.wait_vm('cst')
    XLF, XUF = 192, 200
    for src, dst in ((XL, XLF), (XU, XUF)):
        for d in range(4):
            a('v_lshlrev_b32 v%d, 16, v%d' % (dst + 2 * d, src + d)); a('v_and_b32 v%d, s46, v%d' % (dst + 2 * d + 1, src + d))
    def pk(op, d, x, y, extra=''): a('%s v[%d:%d], v[%d:%d], v[%d:%d]%s' % (op, d, d + 1, x, x + 1, y, y + 1, extra))
    for n, R in enumerate((RP, RQ)):
        a('s_waitcnt lgkmcnt(%d)' % (8 if n == 0 else 0))
        for i in range(0, 8, 2): pk('v_pk_add_f32', R + i, R + i, R + 8 + i); pk('v_pk_add_f32', R + 16 + i, R + 16 + i, R + 24 + i)
        for i in range(0, 8, 2): pk('v_pk_add_f32', R + i, R + i, R + 16 + i)
    YL, YU = 208, 216
    for i in range(0, 8, 2):
        a('v_pk_fma_f32 v[%d:%d], v[%d:%d], s[44:45], v[%d:%d]' % (YL + i, YL + i + 1, RQ + i, RQ + i + 1, RP + i, RP + i + 1))
        a('v_pk_fma_f32 v[%d:%d], v[%d:%d], s[44:45], v[%d:%d] neg_lo:[1,0,0] neg_hi:[1,0,0]' % (YU + i, YU + i + 1, RQ + i, RQ + i + 1, RP + i, RP + i + 1))
    a('s_cmp_lg_u32 s23, 0'); a('s_cbranch_scc1 k3_e1')
    a('v_cmp_eq_u32 vcc, 0, v6'); a('s_cmp_eq_u32 s34, 0'); a('s_cbranch_scc1 k3_e0a')
    for i in range(8): a('v_cndmask_b32 v%d, v%d, v%d, vcc' % (YL + i, YL + i, RQ + i)); a('v_cndmask_b32 v%d, v%d, v%d, vcc' % (YU + i, YU + i, RQ + i))
    a('s_branch k3_e1')
    a.label('k3_e0a'); a('s_nop 1')
    for i in range(8): a('v_cndmask_b32 v%d, v%d, v%d, vcc' % (YL + i, YL + i, RP + i)); a('v_cndmask_b32 v%d, v%d, v%d, vcc' % (YU + i, YU + i, RP + i))
    a.label('k3_e1')
    a('s_or_b32 s47, s22, s33'); a('s_cmp_lg_u32 s47, 0'); a('s_cbranch_scc1 k3_e2')
    a('v_cmp_eq_u32 vcc, 0, v4'); a('v_cndmask_b32 v%d, v%d, v%d, vcc' % (YL, YL, RP)); a('v_cndmask_b32 v%d, v%d, v%d, vcc' % (YU, YU, RQ))
    a('s_cmp_lg_u32 s23, 0'); a('s_cbranch_scc1 k3_e2')
    a('s_cmp_eq_u32 s34, 0'); a('s_cbranch_scc1 k3_e2')
    a('v_mov_b32 v12, 0')
    a('ds_read_b128 v[224:227], v12 offset:32768'); a('ds_read_b128 v[228:231], v12 offset:32784')
    a('s_waitcnt lgkmcnt(0)')
    pk('v_pk_add_f32', 224, 224, 226); pk('v_pk_add_f32', 228, 228, 230); pk('v_pk_add_f32', 224, 224, 228)
    a('v_cmp_eq_u32 vcc, 0, v1'); a('v_cndmask_b32 v%d, v%d, v224, vcc' % (YL, YL)); a('v_cndmask_b32 v%d, v%d, v225, vcc' % (YU, YU))
    a.label('k3_e2'); a('s_nop 1')
    for Y, G, X in ((YL, GA, XLF), (YU, GAU, XUF)):
        for i in range(0, 8, 2): a('v_pk_fma_f32 v[%d:%d], v[%d:%d], v[%d:%d], v[%d:%d]' % (Y + i, Y + i + 1, Y + i, Y + i + 1, G + i, G + i + 1, X + i, X + i + 1))
    for Y, G, Z in ((YL, G2, 192), (YU, G2U, 200)):
        for i in range(0, 8, 2): pk('v_pk_mul_f32', Z + i, Y + i, G + i)
    for src, dst in ((YL, 128), (YU, 132), (192, 136), (200, 140)):
        for d in range(4): a('v_cvt_pk_bf16_f32 v%d, v%d, v%d' % (dst + d, src + 2 * d, src + 2 * d + 1))
    a('s_add_u32 s41, s40, 0x%x' % X1T); a('s_add_u32 s42, s41, 16384'); a('s_add_u32 s43, s40, 0x%x' % ZT); a('s_add_u32 s44, s43, 16384')
    a('buffer_store_dwordx4 v[136:139], v3, s[16:19], s43 offen'); a('buffer_store_dwordx4 v[140:143], v3, s[16:19], s44 offen')
    a('buffer_store_dwordx4 v[128:131], v3, s[16:19], s41 offen'); a('buffer_store_dwordx4 v[132:135], v3, s[16:19], s42 offen')
    pk('v_pk_add_f32', 144, YL, YL + 2); pk('v_pk_mul_f32', 146, YL, YL)
    for i in range(2, 16, 2):
        if i > 2: pk('v_pk_add_f32', 144, 144, YL + i)
        a('v_pk_fma_f32 v[146:147], v[%d:%d], v[%d:%d], v[146:147]' % (YL + i, YL + i + 1, YL + i, YL + i + 1))
    a('v_add_f32 v148, v144, v145'); a('v_add_f32 v149, v146, v147')
    a('v_mov_b32 v150, v148'); a('v_mov_b32 v151, v149')
    a('v_permlane32_swap_b32 v150, v148'); a('v_permlane32_swap_b32 v151, v149')
    a('v_add_f32 v148, v148, v150'); a('v_add_f32 v149, v149, v151')
    a('s_lshl_b32 s41, s39, 12'); a('s_lshl_b32 s42, s22, 9'); a('s_add_u32 s41, s41, s42'); a('s_lshl_b32 s42, s33, 3'); a('s_add_u32 s41, s41, s42'); a('s_add_u32 s41, s41, 0x%x' % STATS)
    a('s_mov_b64 exec, 0xffffffff')
    a('buffer_store_dwordx2 v[148:149], v3, s[16:19], s41 offen')
    a.label(name + '_end'); a('s_endpgm')
    return name, a.text() + kernel_desc(name, 256 + 136, 64, 256), (256, 256, 33024)

UPO = 14464; SLOT4 = 28928
def k4():
    a = Asm(); name = 'k4_gateup_kernel'
    head(a, name, 256)
    a('s_load_dwordx2 s[6:7], s[0:1], 104'); a('s_load_dwordx4 s[8:11], s[0:1], 48')
    a('v_and_b32 v1, 63, v0'); a('v_lshrrev_b32 v2, 6, v0'); a('v_readfirstlane_b32 s3, v2')
    a('s_and_b32 s20, s2, 7'); a('s_lshr_b32 s21, s2, 3'); a('s_and_b32 s22, s21, 1'); a('s_lshr_b32 s23, s21, 1')
    a('s_lshl_b32 s24, s22, 5'); a('s_lshl_b32 s25, s20, 2'); a('s_add_u32 s24, s24, s25'); a('s_add_u32 s24, s24, s3')
    a('s_and_b32 s26, s3, 1'); a('s_lshr_b32 s27, s3, 1')
    a('v_lshlrev_b32 v3, 4, v1')
    for q in range(7):
        a('v_add_u32 v20, %d, v1' % (64 * q)); a('v_mul_u32_u24 v21, 4682, v20'); a('v_lshrrev_b32 v21, 16, v21')
        a('v_mul_u32_u24 v22, 14, v21'); a('v_sub_u32 v22, v20, v22'); a('v_lshlrev_b32 v22, 4, v22')
        a('v_mul_u32_u24 v23, 3584, v21'); a('v_add_u32 v%d, v23, v22' % (4 + q))
        a('v_sub_u32 v23, %d, v23' % (31 * 3584)); a('v_add_u32 v%d, v23, v22' % (11 + q))
        if q == 0:
            a('s_lshl_b32 s28, s27, 5'); a('v_add_u32 v23, s28, v21'); a('v_sub_u32 v24, 512, v23')
            a('v_cmp_eq_u32 vcc, 0, v23'); a('v_mov_b32 v25, 256'); a('v_cndmask_b32 v24, v24, v25, vcc')
            a('v_mul_u32_u24 v24, 3584, v24'); a('v_add_u32 v18, v24, v22')
    a('v_bfe_u32 v20, v1, 4, 1'); a('v_mul_u32_u24 v20, %d, v20' % UPO)
    a('v_lshrrev_b32 v21, 5, v1'); a('v_lshlrev_b32 v21, 3, v21'); a('v_bfe_u32 v22, v1, 2, 2'); a('v_add_u32 v21, v21, v22'); a('v_mul_u32_u24 v21, 224, v21')
    a('v_add_u32 v20, v20, v21')
    a('v_and_b32 v21, 1, v1'); a('v_lshl_add_u32 v20, v21, 4, v20'); a('v_bfe_u32 v21, v1, 1, 1'); a('v_lshl_add_u32 v26, v21, 3, v20')
    for s in range(1, 5): a('v_add_u32 v%d, %d, v26' % (26 + s, s * SLOT4))
    a('s_mul_i32 s30, s23, 224')
    a('s_mul_i32 s31, s27, %d' % (32 * 3584)); a('s_add_u32 s32, s30, s31')
    a('s_sub_u32 s33, %d, s31' % (481 * 3584)); a('s_add_u32 s33, s33, s30')
    a('s_mul_i32 s34, s26, %d' % UPO); a('s_mul_i32 s35, s27, 7168'); a('s_add_u32 s34, s34, s35')
    a('s_lshl_b32 s36, s24, 15'); a('s_add_u32 s36, s36, 0x%x' % ZT)
    a('s_waitcnt lgkmcnt(0)')
    a('s_cmp_eq_u32 s26, 1'); a('s_cselect_b32 s4, s10, s8'); a('s_cselect_b32 s5, s11, s9')
    srd(a, 12, 4, 512 * 3584); srd(a, 16, 6, WSZ)
    def dma(sg):
        slot = sg % 5
        if sg < 4: a('s_add_u32 s37, s32, %d' % (sg * 64 * 3584))
        else: a('s_sub_u32 s37, s33, %d' % ((sg - 4) * 64 * 3584))
        for q in range(7):
            a('s_add_u32 m0, s34, %d' % (slot * SLOT4 + q * 1024))
            if sg == 4 and q == 0: a('buffer_load_dwordx4 v18, s[12:15], s30 offen lds')
            else: a('buffer_load_dwordx4 v%d, s[12:15], s37 offen lds' % ((4 if sg < 4 else 11) + q), tag='W%d' % sg)
    def zload(sg):
        a('s_add_u32 s38, s36, %d' % (sg * 4096))
        for k in range(4):
            j = 4 * sg + k
            a('buffer_load_dwordx4 a[%d:%d], v3, s[16:19], s38 offen offset:%d' % (4 * j, 4 * j + 3, 1024 * k), tag='z%d' % j)
    for sg in range(4): dma(sg); zload(sg)
    ACC = 32; WF = [144, 172]
    def rd(n, j):
        sg, ks = divmod(n, 4); r = WF[n & 1] + 4 * j
        for hf in range(2):
            a('ds_read_b64_tr_b16 v[%d:%d], v%d offset:%d' % (r + 2 * hf, r + 2 * hf + 1, 26 + sg % 5, (16 * ks + 4 * hf) * 224 + 32 * j), tag='r%d_%d' % (n, j))
    a.wait_vm('W0'); a('s_barrier')
    for j in range(7): rd(0, j)
    for n in range(32):
        sg, ks = divmod(n, 4)
        if ks == 3 and sg < 7:
            a.wait_vm('W%d' % (sg + 1)); a('s_barrier')
            if sg + 4 < 8: dma(sg + 4); zload(sg + 4)
            if sg == 4:
                a('s_lshl_b32 s39, s24, 12'); a('s_add_u32 s39, s39, 0x%x' % STATS)
                a('v_and_b32 v20, 31, v1'); a('v_lshlrev_b32 v20, 4, v20'); a('v_lshrrev_b32 v21, 5, v1'); a('v_lshl_add_u32 v21, v21, 11, v20')
                for c in range(4): a('buffer_load_dwordx4 v[%d:%d], v21, s[16:19], s39 offen offset:%d' % (200 + 4 * c, 203 + 4 * c, 512 * c), tag='st')
                a('s_mul_i32 s40, s23, 3584'); a('s_add_u32 s40, s40, 0x%x' % CSB)
                for j in range(7): a('buffer_load_dwordx4 a[%d:%d], v20, s[16:19], s40 offen offset:%d' % (128 + 4 * j, 131 + 4 * j, 512 * j), tag='csb')
        a.wait_vm('z%d' % n)
        for j in range(7):
            a.wait_lg('r%d_%d' % (n, j))
            r = WF[n & 1] + 4 * j; acc = ACC + 16 * j
            a('v_mfma_f32_32x32x16_bf16 v[%d:%d], v[%d:%d], a[%d:%d], %s' % (acc, acc + 15, r, r + 3, 4 * n, 4 * n + 3, '0' if n == 0 else 'v[%d:%d]' % (acc, acc + 15)))
            if n < 31: rd(n + 1, j)
    a.wait_vm('st')
    def pk(op, d, x, y): a('%s v[%d:%d], v[%d:%d], v[%d:%d]' % (op, d, d + 1, x, x + 1, y, y + 1))
    for i in (0, 4, 8, 12): pk('v_pk_add_f32', 200 + i, 200 + i, 202 + i)
    pk('v_pk_add_f32', 200, 200, 204); pk('v_pk_add_f32', 208, 208, 212); pk('v_pk_add_f32', 200, 200, 208)
    a('v_mov_b32 v202, v200'); a('v_mov_b32 v203, v201')
    a('v_permlane32_swap_b32 v202, v200'); a('v_permlane32_swap_b32 v203, v201')
    pk('v_pk_add_f32', 200, 200, 202)
    a('v_mul_f32 v204, %s, v200' % fbits(-1.0 / 512))
    a('v_mul_f32 v205, %s, v201' % fbits(1.0 / 512)); a('v_fma_f32 v205, -v204, v204, v205'); a('v_max_f32 v205, 0, v205')
    a('v_add_f32 v205, %s, v205' % fbits(1e-5))
    a('v_rsq_f32 v206, v205'); a('v_sqrt_f32 v207, v205')
    a('s_mov_b32 s46, 0xffff0000')
    for src, dst in ((204, 208), (207, 210)):
        a('v_cvt_pk_bf16_f32 v212, v%d, v%d' % (src, src)); a('v_and_b32 v212, s46, v212'); a('v_sub_f32 v213, v%d, v212' % src)
        a('v_cvt_pk_bf16_f32 v%d, v212, v213' % dst)
    a('v_cmp_gt_u32 vcc, 32, v1'); a('v_cndmask_b32 v208, 0, v208, vcc'); a('v_cndmask_b32 v210, 0, v210, vcc')
    a('v_mov_b32 v209, v208'); a('v_mov_b32 v211, v210')
    a.wait_vm('csb')
    for j in range(7):
        acc = ACC + 16 * j
        a('v_mfma_f32_32x32x16_bf16 v[%d:%d], a[%d:%d], v[208:211], v[%d:%d]' % (acc, acc + 15, 128 + 4 * j, 131 + 4 * j, acc, acc + 15))
    k1c = -2 * 0.7978845608028654 * LOG2E; k2c = k1c * 0.044715
    a('s_mov_b32 s44, %s' % fbits(k2c)); a('v_mov_b32 v214, %s' % fbits(k1c))
    a('s_mul_i32 s40, s24, %d' % (112 * 1024)); a('s_mul_i32 s41, s23, 7168'); a('s_add_u32 s40, s40, s41'); a('s_add_u32 s40, s40, 0x%x' % ACT)
    for j in range(7):
        g = ACC + 16 * j; u = g + 8; t = 144 + 8 * (j & 1) * 2
        for i in range(8): a('v_mul_f32 v%d, v206, v%d' % (g + i, g + i))
        for i in range(8): a('v_mul_f32 v%d, v%d, v%d' % (t + i, g + i, g + i))
        for i in range(8): a('v_fma_f32 v%d, v%d, s44, v214' % (t + i, t + i))
        for i in range(8): a('v_mul_f32 v%d, v%d, v%d' % (t + i, t + i, g + i))
        for i in range(8): a('v_exp_f32 v%d, v%d' % (t + i, t + i))
        for i in range(8): a('v_mul_f32 v%d, v%d, v%d' % (u + i, u + i, g + i))
        for i in range(8): a('v_fma_f32 v%d, v%d, v207, v207' % (t + i, t + i))
        for i in range(8): a('v_rcp_f32 v%d, v%d' % (t + i, t + i))
        for i in range(8): a('v_mul_f32 v%d, v%d, v%d' % (u + i, u + i, t + i))
        for d in range(4): a('v_cvt_pk_bf16_f32 v%d, v%d, v%d' % (g + d, u + 2 * d, u + 2 * d + 1))
        if j == 4: a('s_add_u32 s40, s40, 4096')
        a('buffer_store_dwordx4 v[%d:%d], v3, s[16:19], s40 offen offset:%d' % (g, g + 3, 1024 * (j & 3)))
    a.label(name + '_end'); a('s_endpgm')
    return name, a.text() + kernel_desc(name, 256 + 156, 64, 256), (256, 256, 5 * SLOT4)

def k5():
    a = Asm(); name = 'k5_down_kernel'
    R = 8
    head(a, name, 256)
    a('s_load_dwordx2 s[6:7], s[0:1], 104'); a('s_load_dwordx2 s[4:5], s[0:1], 64'); a('s_load_dwordx2 s[8:9], s[0:1], 88')
    a('v_and_b32 v1, 63, v0'); a('v_lshrrev_b32 v2, 6, v0'); a('v_readfirstlane_b32 s3, v2')
    a('s_and_b32 s20, s2, 7'); a('s_lshr_b32 s21, s2, 3'); a('s_and_b32 s22, s21, 3'); a('s_lshr_b32 s23, s21, 2')
    a('s_lshr_b32 s24, s22, 1'); a('s_lshl_b32 s24, s24, 5'); a('s_lshl_b32 s25, s20, 2'); a('s_add_u32 s24, s24, s25')
    a('s_and_b32 s25, s22, 1'); a('s_lshl_b32 s25, s25, 1'); a('s_add_u32 s24, s24, s25')
    a('s_and_b32 s26, s3, 1'); a('s_lshr_b32 s27, s3, 1'); a('s_add_u32 s28, s24, s27')
    a('v_lshlrev_b32 v3, 4, v1')
    a('v_lshrrev_b32 v4, 3, v1'); a('v_and_b32 v5, 7, v1'); a('v_lshrrev_b32 v6, 2, v1'); a('v_and_b32 v6, 4, v6'); a('v_xor_b32 v5, v5, v6')
    a('v_lshlrev_b32 v4, 10, v4'); a('v_lshl_add_u32 v4, v5, 4, v4')
    a('v_lshrrev_b32 v5, 5, v1'); a('v_lshlrev_b32 v5, 3, v5'); a('v_bfe_u32 v6, v1, 2, 2'); a('v_add_u32 v5, v5, v6'); a('v_lshlrev_b32 v5, 7, v5')
    a('v_bfe_u32 v7, v1, 4, 1'); a('v_lshlrev_b32 v7, 5, v7'); a('v_and_b32 v8, 1, v1'); a('v_lshl_add_u32 v7, v8, 4, v7')
    a('v_bfe_u32 v8, v1, 1, 1'); a('v_lshl_add_u32 v7, v8, 3, v7'); a('s_lshl_b32 s29, s26, 6'); a('v_add_u32 v7, s29, v7')
    a('v_bfe_u32 v8, v1, 3, 1'); a('v_lshlrev_b32 v8, 6, v8'); a('v_xor_b32 v7, v7, v8'); a('v_add_u32 v5, v5, v7')
    a('s_lshl_b32 s29, s27, 12'); a('s_add_u32 s29, s29, 8192'); a('v_add_u32 v6, s29, v3')
    a('s_lshl_b32 s30, s23, 7'); a('s_lshl_b32 s31, s3, 14'); a('s_add_u32 s30, s30, s31')
    a('s_mul_i32 s31, s28, %d' % (112 * 1024)); a('s_lshl_b32 s32, s26, 11'); a('s_add_u32 s31, s31, s32'); a('s_add_u32 s31, s31, 0x%x' % ACT)
    a('s_lshl_b32 s32, s3, 11')
    a('s_add_u32 s33, s32, 8192')
    a('s_mov_b32 s34, 0')
    a('s_mov_b32 s35, 0')
    a('s_waitcnt lgkmcnt(0)')
    srd(a, 12, 4, 1792 * 1024); srd(a, 16, 6, WSZ); srd(a, 40, 8, 2048 * 1024)
    def dma():
        a('s_add_u32 m0, s32, s34'); a('s_add_u32 s36, s30, 8192')
        a('buffer_load_dwordx4 v4, s[12:15], s30 offen lds')
        a('s_add_u32 m0, m0, 1024'); a('s_add_u32 s30, s30, 65536')
        a('buffer_load_dwordx4 v4, s[12:15], s36 offen lds')
        a('s_add_u32 m0, s33, s34'); a('s_add_u32 s34, s34, 16384')
        a('buffer_load_dwordx4 v3, s[16:19], s31 offen lds')
        a('buffer_load_dwordx4 v3, s[16:19], s31 offen offset:1024 lds')
        a('s_and_b32 s34, s34, 0x%x' % (R * 16384 - 1)); a('s_add_u32 s31, s31, 4096')
        a('s_add_u32 s35, s35, 1'); a('s_cmp_ge_u32 s35, 28'); a('s_cselect_b32 s31, 0x70000000, s31')
    for i in range(R - 1): dma()
    a('v_lshrrev_b32 v9, 5, v1'); a('v_and_b32 v10, 31, v1')
    a('s_lshl_b32 s44, s23, 3'); a('s_lshl_b32 s45, s26, 2'); a('s_add_u32 s44, s44, s45')
    a('v_add_u32 v11, s44, v9')
    a('v_lshlrev_b32 v12, 5, v11')
    a('s_mov_b32 s45, %d' % (MODF + 5 * 2048))
    for h in range(2):
        for k in range(2): a('buffer_load_dwordx4 v[%d:%d], v12, s[16:19], s45 offen offset:%d' % (96 + 8 * h + 4 * k, 99 + 8 * h + 4 * k, 64 * h + 16 * k))
    a('s_lshl_b32 s46, s28, 15'); a('s_add_u32 s46, s46, 0x%x' % X1T)
    a('s_cmp_ge_u32 s23, 4'); a('s_cselect_b32 s47, 1, 0')
    for h in range(2):
        a('v_add_u32 v13, %d, v11' % (2 * h)); a('v_sub_u32 v14, 95, v13'); a('v_cmp_gt_u32 vcc, 32, v13'); a('v_cndmask_b32 v14, v14, v13, vcc')
        a('v_lshlrev_b32 v14, 9, v14'); a('v_lshl_add_u32 v14, v10, 4, v14')
        a('buffer_load_dwordx4 v[%d:%d], v14, s[16:19], s46 offen' % (112 + 4 * h, 115 + 4 * h))
        a('v_sub_u32 v15, 64, v13'); a('v_and_b32 v15, 31, v15'); a('v_add_u32 v15, 32, v15'); a('v_lshlrev_b32 v15, 9, v15'); a('v_lshl_add_u32 v15, v10, 4, v15')
        a('buffer_load_ushort v%d, v15, s[16:19], s46 offen' % (120 + h))
    NEXTRA = 8
    FS = [32, 64]
    def reads(fs):
        for ks in range(4):
            for hf in range(2): a('ds_read_b64_tr_b16 v[%d:%d], v7 offset:%d' % (fs + 4 * ks + 2 * hf, fs + 4 * ks + 2 * hf + 1, (16 * ks + 4 * hf) * 128))
            a('ds_read_b128 v[%d:%d], v8 offset:%d' % (fs + 16 + 4 * ks, fs + 19 + 4 * ks, 1024 * ks))
    def adv():
        a('v_add_u32 v7, s37, v5'); a('v_add_u32 v8, s37, v6'); a('s_add_u32 s37, s37, 16384'); a('s_and_b32 s37, s37, 0x%x' % (R * 16384 - 1))
    def mfmas(fs, pending):
        for ks in range(4):
            a('v_mfma_f32_32x32x16_bf16 v[16:31], v[%d:%d], v[%d:%d], v[16:31]' % (fs + 4 * ks, fs + 4 * ks + 3, fs + 16 + 4 * ks, fs + 19 + 4 * ks))
    for r in range(16): a('v_mov_b32 v%d, 0' % (16 + r))
    a('s_mov_b32 s37, 0'); a('s_mov_b32 s38, 0')
    adv()
    a('s_waitcnt vmcnt(%d)' % (4 * (R - 2) + NEXTRA)); a('s_barrier')
    reads(FS[0])
    a.label('k5_loop')
    for half in range(2):
        adv()
        a('s_waitcnt vmcnt(%d)' % (4 * (R - 3))); a('s_barrier')
        dma()
        a('s_waitcnt lgkmcnt(0)')
        reads(FS[1 - half])
        mfmas(FS[half], 15)
    a('s_add_u32 s38, s38, 1'); a('s_cmp_lt_u32 s38, 14'); a('s_cbranch_scc1 k5_loop')
    a.fence()
    a('s_mov_b32 s36, 0xffff0000')
    a('s_cmp_eq_u32 s47, 1'); a('s_cbranch_scc1 k5_up')
    for h in range(2):
        for d in range(4):
            a('v_lshlrev_b32 v%d, 16, v%d' % (128 + 8 * h + 2 * d, 112 + 4 * h + d)); a('v_and_b32 v%d, s36, v%d' % (129 + 8 * h + 2 * d, 112 + 4 * h + d))
    a('s_branch k5_fin')
    a.label('k5_up')
    for h in range(2):
        a('v_lshlrev_b32 v%d, 16, v%d' % (128 + 8 * h, 120 + h))
        for i in range(1, 8):
            el = 8 - i; src = 112 + 4 * h + el // 2
            if el & 1: a('v_and_b32 v%d, s36, v%d' % (128 + 8 * h + i, src))
            else: a('v_lshlrev_b32 v%d, 16, v%d' % (128 + 8 * h + i, src))
    a.label('k5_fin')
    for r in range(16): a('v_fmac_f32 v%d, v%d, v%d' % (128 + r, 96 + r, 16 + r))
    for d in range(8): a('v_cvt_pk_bf16_f32 v%d, v%d, v%d' % (144 + d, 128 + 2 * d, 129 + 2 * d))
    a('s_lshl_b32 s44, s28, 5'); a('v_add_u32 v13, s44, v10'); a('v_sub_u32 v14, 3072, v13')
    a('v_cmp_gt_u32 vcc, 1025, v13'); a('v_cndmask_b32 v13, v14, v13, vcc')
    a('v_lshlrev_b32 v13, 10, v13'); a('v_lshl_add_u32 v13, v11, 4, v13')
    a('buffer_store_dwordx4 v[144:147], v13, s[40:43], 0 offen'); a('buffer_store_dwordx4 v[148:151], v13, s[40:43], 0 offen offset:32')
    a.label(name + '_end'); a('s_endpgm')
    return name, a.text() + kernel_desc(name, 160, 64), (256, 256, R * 16384)

HEADER = open('adaLN_cond__spectral_fnet__geglu_ffn__prompt.s.ref').read().split('; Override launch')[0]

def build(kernels):
    hdr = HEADER
    body = '.amdgcn_target "amdgcn-amd-amdhsa--gfx950"\n.text\n'
    for name, text, (g, b, lds) in kernels:
        hdr += '; @launch kernel=%s grid=(%d,1,1) block=(%d,1,1) lds=%d\n' % (name, g, b, lds)
        body += text
    return hdr + body

if __name__ == '__main__':
    for idx in range(448): assert (idx * 4682) >> 16 == idx // 14
    out = sys.argv[1] if len(sys.argv) > 1 else 'adaLN_cond__spectral_fnet__geglu_ffn__prompt.s'
    open(out, 'w').write(build([k1(), k2(), k3(), k4(), k5()]))
    print('wrote', out)
```

```python
import gen as G
from asmlib import Asm, kernel_desc
def empty():
    a = Asm(); name = 'knop_kernel'
    a.raw('.p2align 8'); a.raw('.globl %s' % name); a.raw('.type %s,@function' % name); a.label(name); a('s_endpgm')
    return name, a.text() + kernel_desc(name, 8, 16), (256, 256, 0)
ks = [G.k1(), G.k2(), G.k3(), G.k4(), G.k5()]
def build(kernels, order):
    hdr = G.HEADER
    body = '.amdgcn_target "amdgcn-amd-amdhsa--gfx950"\n.text\n'
    for i in order:
        name, text, (g, b, lds) = kernels[i]
        hdr += '; @launch kernel=%s grid=(%d,1,1) block=(%d,1,1) lds=%d\n' % (name, g, b, lds)
    for name, text, _ in kernels: body += text
    return hdr + body
e = empty()
open('v_base.s', 'w').write(build(ks, [0,1,2,3,4]))
open('v_nop5.s', 'w').write(build(ks + [e], [0,1,2,3,4,5,5,5,5,5]))
open('v_nop10.s', 'w').write(build(ks + [e], [0,1,2,3,4] + [5]*10))
open('v_twice.s', 'w').write(build(ks, [0,1,2,3,4,0,1,2,3,4]))
open('v_k5x3.s', 'w').write(build(ks, [0,1,2,3,4,4,4]))
open('v_k4x3.s', 'w').write(build(ks, [0,1,2,3,3,3,4]))
```

```python
import sys, struct
from asmlib import Asm, kernel_desc

PART = 0x000000
FLAGB= 0x010000
FLAGC= 0x010800
FLAGS= 0x011800
CSP  = 0x080000
STATS= 0x020000
ZB   = 0x100000
X1T  = 0x300000
ZT   = 0x500000
ACT  = 0x700000
WSZ  = 0x1000000
STAMP = 0xE00000
DEBUG = False
EXP = set()
K4_MAP = '8x4'; K4_ROT = True; K5_ROT = True
PF_CODE = True; PF_W = 128; PF_WD = 2
ZST = ''
SPIN = 1 << 15
PSLEEP = 2
LSLEEP = 1
H_PRIO = 3
W_THR = 35
Z_TOUCH = 1
A_TOUCH = 1
PF_MODE = 'km'
TOUCH_AT = 1
SIDE_AT = 3
W_START = 'iss'
D_PRIO = 0
B_PRIO = 0
D_AHEAD = 10
D_INIT = 4
TAIL_B = 12
E_PRIO = 2
WD_MALL = 1
KA_MALL = 0
D_START = ''
LOG2E = 1.4426950408889634

class XAsm(Asm):
    def __init__(self): super().__init__(); self.nbar = 0; self.reg = ''
    def __call__(self, text, tag=None):
        t = text.strip()
        if self.reg:
            if (self.reg + 'nomfma') in EXP and t.startswith('v_mfma'): return
            if (self.reg + 'nods') in EXP and t.startswith('ds_read'): return
            if (self.reg + 'noload') in EXP and t.startswith('buffer_load'): return
            if (self.reg + 'plain') in EXP and t.startswith('buffer_load'): text = text.replace(' sc1', '')
            if (self.reg + 'novalu') in EXP and t.startswith(('v_mul', 'v_cvt', 'v_dot')): return
        super().__call__(text, tag)
    def pk(self, op, d, x, y, extra=''): self('%s v[%d:%d], v[%d:%d], v[%d:%d]%s' % (op, d, d + 1, x, x + 1, y, y + 1, extra))
    def mfma(self, acc, A, B, first=False):
        self('v_mfma_f32_32x32x16_bf16 v[%d:%d], v[%d:%d], v[%d:%d], %s' % (acc, acc + 15, A, A + 3, B, B + 3, '0' if first else 'v[%d:%d]' % (acc, acc + 15)))
    def bar(self, n=1): self('s_barrier'); self.nbar += n
    def role(self, l): self.label(l); self.hist = []

def fbits(f): return '0x%08x' % struct.unpack('<I', struct.pack('<f', f))[0]
def stamp(a, i):
    if DEBUG: a('s_memrealtime s[%d:%d]' % (64 + 2 * i, 65 + 2 * i))
def cstamp(a, i):
    if DEBUG and 'cyc' in EXP: a('s_memtime s[%d:%d]' % (64 + 2 * i, 65 + 2 * i))
def finish(a, name, kidx, vbase=4):
    a.label(name + '_end')
    if DEBUG:
        a.hist = []
        a('s_waitcnt vmcnt(0)')
        stamp(a, 15)
        a('s_waitcnt lgkmcnt(0)'); a('s_mov_b64 exec, 1')
        for i in range(16): a('v_mov_b32 v%d, s%d' % (vbase + i, 64 + 2 * i))
        a('s_lshl_b32 s60, s2, 4'); a('s_add_u32 s60, s60, s3'); a('s_lshl_b32 s60, s60, 6'); a('s_add_u32 s60, s60, 0x%x' % (STAMP + kidx * 0x80000))
        a('v_mov_b32 v%d, 0' % (vbase + 16))
        for i in range(4): a('buffer_store_dwordx4 v[%d:%d], v%d, s[16:19], s60 offen offset:%d' % (vbase + 4 * i, vbase + 4 * i + 3, vbase + 16, 16 * i))
    a.label(name + '_exit')
    a('s_endpgm')
def srd(a, d, lo, size):
    a('s_mov_b32 s%d, s%d' % (d, lo)); a('s_mov_b32 s%d, s%d' % (d + 1, lo + 1))
    a('s_mov_b32 s%d, 0x%x' % (d + 2, size)); a('s_mov_b32 s%d, 0x20000' % (d + 3))
def head(a, name, nwg):
    a.raw('.p2align 8'); a.raw('.globl %s' % name); a.raw('.type %s,@function' % name); a.label(name)
    a('s_cmp_ge_u32 s2, %d' % nwg); a('s_cbranch_scc1 %s_exit' % name)
    if DEBUG:
        for i in range(16): a('s_mov_b32 s%d, 0' % (64 + 2 * i))
    stamp(a, 0)
def ids(a):
    a('v_and_b32 v1, 63, v0'); a('v_lshrrev_b32 v2, 6, v0'); a('v_readfirstlane_b32 s3, v2'); a('v_lshlrev_b32 v3, 4, v1')
    a('v_lshrrev_b32 v4, 5, v1'); a('v_and_b32 v6, 31, v1')
    a('s_and_b32 s20, s2, 7'); a('s_lshr_b32 s21, s2, 3'); a('s_and_b32 s26, s3, 3')
def swap23_v(a, dst, src, t0):
    a('v_and_b32 v%d, 0x13, v%d' % (dst, src))
    a('v_and_b32 v%d, 4, v%d' % (t0, src)); a('v_lshl_or_b32 v%d, v%d, 1, v%d' % (dst, t0, dst))
    a('v_and_b32 v%d, 8, v%d' % (t0, src)); a('v_lshrrev_b32 v%d, 1, v%d' % (t0, t0)); a('v_or_b32 v%d, v%d, v%d' % (dst, dst, t0))
def half_sum(a, regs, tmp, op='v_permlane32_swap_b32'):
    for i, r in enumerate(regs): a('v_mov_b32 v%d, v%d' % (tmp + i, r))
    for i, r in enumerate(regs): a('%s v%d, v%d' % (op, tmp + i, r))
    for i, r in enumerate(regs): a('v_add_f32 v%d, v%d, v%d' % (r, r, tmp + i))
def unpack(a, dst, src, n, mask):
    for d in range(n):
        a('v_lshlrev_b32 v%d, 16, v%d' % (dst + 2 * d, src + d)); a('v_and_b32 v%d, s%d, v%d' % (dst + 2 * d + 1, mask, src + d))
def unpack_rev(a, dst, src, extra, mask):
    a('v_lshlrev_b32 v%d, 16, v%d' % (dst, extra))
    for i in range(1, 8):
        el = 8 - i
        if el & 1: a('v_and_b32 v%d, s%d, v%d' % (dst + i, mask, src + el // 2))
        else: a('v_lshlrev_b32 v%d, 16, v%d' % (dst + i, src + el // 2))
def token_of(a, dst, tmp, sq):
    a('v_lshlrev_b32 v%d, 6, v6' % dst); a('v_add_u32 v%d, s%d, v%d' % (dst, sq, dst))
    a('v_subrev_u32 v%d, 992, v%d' % (tmp, dst)); a('v_cmp_lt_u32 vcc, 15, v6'); a('s_cmp_eq_u32 s%d, 0' % sq); a('s_cselect_b64 vcc, vcc, 0')
    a('v_cndmask_b32 v%d, v%d, v%d, vcc' % (dst, dst, tmp))
def mirror_if(a, dst, t0, t1):
    a('s_cselect_b64 s[58:59], -1, 0')
    a('v_sub_u32 v%d, 2048, v%d' % (t0, dst)); a('v_cmp_eq_u32 vcc, 0, v%d' % dst); a('v_mov_b32 v%d, 1024' % t1); a('v_cndmask_b32 v%d, v%d, v%d, vcc' % (t0, t0, t1))
    a('v_cndmask_b32 v%d, v%d, v%d, s[58:59]' % (dst, dst, t0))

XP = 1040
def kA():
    a = XAsm(); name = 'ka_lnfft_kernel'
    SA = 64 * XP; GP = SA + 512
    head(a, name, 256)
    a('s_load_dwordx2 s[6:7], s[0:1], 104'); a('s_load_dwordx2 s[4:5], s[0:1], 0'); a('s_load_dwordx4 s[8:11], s[0:1], 72')
    ids(a)
    a('s_cmp_ge_u32 s3, 8'); a('s_cbranch_scc1 ka_gemv')
    a('s_lshr_b32 s23, s21, 3'); a('s_lshl_b32 s22, s20, 2'); a('s_add_u32 s23, s23, s22')
    a('s_and_b32 s24, s21, 7')
    a('s_lshl_b32 s25, s3, 18'); a('s_lshl_b32 s27, s23, 10'); a('s_add_u32 s25, s25, s27')
    a('s_mul_i32 s28, s3, %d' % (8 * XP)); a('s_mov_b32 s27, s24')
    a('v_and_b32 v12, 7, v1'); a('v_mul_u32_u24 v13, %d, v12' % XP); a('v_lshrrev_b32 v14, 3, v1'); a('v_lshl_add_u32 v13, v14, 7, v13'); a('v_add_u32 v13, s28, v13')
    a('s_waitcnt lgkmcnt(0)')
    srd(a, 12, 4, 2048 * 1024); srd(a, 16, 6, WSZ)
    stamp(a, 1)
    for i in range(8):
        a('s_mul_i32 s31, s27, %d' % XP); a('s_add_u32 m0, s31, s28'); a('s_lshl_b32 s32, s27, 15'); a('s_add_u32 s32, s32, s25')
        a('buffer_load_dwordx4 v3, s[12:15], s32 offen lds')
        if i < 7: a('s_add_u32 s27, s27, 1'); a('s_and_b32 s27, s27, 7')
    stamp(a, 2)
    if KA_MALL:
        a('s_sub_u32 s46, s3, 4'); a('s_cmp_ge_u32 s46, 3'); a('s_cbranch_scc1 ka_nm')
        a('s_lshl_b32 s46, s46, 3'); a('s_add_u32 s46, s46, 48'); a('s_load_dwordx2 s[52:53], s[0:1], s46')
        a('s_mov_b32 s54, %d' % (512 * 3584)); a('s_mov_b32 s55, 0x20000'); a('s_mul_i32 s46, s2, 7168'); a('v_min_u32 v8, 27, v1'); a('v_lshlrev_b32 v8, 8, v8')
        a('s_waitcnt lgkmcnt(0)')
        a('buffer_load_dword v160, v8, s[52:55], s46 offen')
        a.label('ka_nm')
    a('s_lshl_b32 s31, s3, 3'); a('v_add_u32 v17, s31, v12'); a('v_lshlrev_b32 v18, 1, v17'); a('v_lshlrev_b32 v17, 2, v17')
    a('v_add_u32 v17, %d, v17' % SA); a('v_add_u32 v18, %d, v18' % SA)
    for r in range(24, 32): a('v_mov_b32 v%d, 0' % r)
    a('v_mov_b32 v21, 0'); a('v_mov_b32 v22, 0x3f803f80'); a('s_mov_b32 s36, 0xffff0000')
    BF = 32
    a('s_cmp_ge_u32 s3, 4'); a('s_cbranch_scc1 ka_nogen')
    a('s_and_b32 s29, s3, 1'); a('s_lshr_b32 s30, s3, 1')
    a('s_lshl_b32 s31, s29, 5'); a('v_add_u32 v7, s31, v6')
    a('v_lshrrev_b32 v8, 1, v7'); a('v_cmp_eq_u32 vcc, 1, v7'); a('v_cndmask_b32 v8, v8, 32, vcc')
    a('v_and_b32 v9, 1, v7'); a('v_cndmask_b32 v9, v9, 0, vcc'); a('v_cvt_f32_u32 v9, v9'); a('v_mul_f32 v9, %s, v9' % fbits(-0.25))
    a('v_cvt_f32_u32 v8, v8'); a('v_mul_f32 v8, %s, v8' % fbits(1 / 64))
    a('v_lshlrev_b32 v10, 3, v4'); a('v_cvt_f32_u32 v10, v10')
    a('v_fma_f32 v%d, v8, v10, v9' % BF); a('v_mul_f32 v11, %s, v8' % fbits(16.0))
    for i in range(1, 8): a('v_add_f32 v%d, v%d, v8' % (BF + i, BF + i - 1))
    for k in range(8, 32): a('v_add_f32 v%d, v%d, v11' % (BF + k, BF + k - 8))
    for k in range(32): a('v_cos_f32 v%d, v%d' % (BF + k, BF + k))
    a('v_bfe_u32 v15, v1, 2, 2'); a('v_lshl_add_u32 v15, v4, 3, v15'); a('v_mul_u32_u24 v15, %d, v15' % XP)
    a('v_and_b32 v16, 1, v1'); a('v_lshl_add_u32 v15, v16, 5, v15'); a('v_bfe_u32 v16, v1, 4, 1'); a('v_lshl_add_u32 v15, v16, 4, v15')
    a('v_bfe_u32 v16, v1, 1, 1'); a('v_lshl_add_u32 v15, v16, 3, v15')
    a('s_lshl_b32 s31, s24, 7'); a('s_lshl_b32 s32, s30, 6'); a('s_add_u32 s31, s31, s32'); a('v_add_u32 v15, s31, v15')
    a('v_lshlrev_b32 v19, 5, v4'); a('v_add_u32 v19, %d, v19' % SA); a('v_lshlrev_b32 v20, 4, v4'); a('v_add_u32 v20, %d, v20' % SA)
    a('v_lshlrev_b32 v21, 6, v7'); a('v_lshl_add_u32 v21, v4, 5, v21')
    a('s_lshl_b32 s33, s24, 1'); a('s_add_u32 s33, s33, s30'); a('s_lshl_b32 s33, s33, 17'); a('s_lshl_b32 s34, s23, 12'); a('s_add_u32 s33, s33, s34'); a('s_add_u32 s33, s33, 0x%x' % ZB)
    a.label('ka_nogen')
    if KA_MALL:
        a('s_sub_u32 s46, s3, 4'); a('s_cmp_ge_u32 s46, 3'); a('s_cbranch_scc1 ka_w0')
        a('s_waitcnt vmcnt(1)'); a('s_branch ka_w1')
        a.label('ka_w0')
    a('s_waitcnt vmcnt(0)')
    a.label('ka_w1')
    stamp(a, 3)
    XR = 64
    for j in range(8): a('ds_read_b128 v[%d:%d], v13 offset:%d' % (XR + 4 * j, XR + 4 * j + 3, 16 * j))
    for j in range(8):
        a('s_waitcnt lgkmcnt(%d)' % (7 - j))
        for d in range(4):
            a('v_dot2c_f32_bf16 v%d, v%d, v22' % (24 + d, XR + 4 * j + d)); a('v_dot2c_f32_bf16 v%d, v%d, v%d' % (28 + d, XR + 4 * j + d, XR + 4 * j + d))
    a('s_nop 2')
    a('v_add_f32 v24, v24, v25'); a('v_add_f32 v26, v26, v27'); a('v_add_f32 v28, v28, v29'); a('v_add_f32 v30, v30, v31')
    a('v_add_f32 v24, v24, v26'); a('v_add_f32 v25, v28, v30')
    a('v_add_f32_dpp v24, v24, v24 row_ror:8'); a('v_add_f32_dpp v25, v25, v25 row_ror:8')
    half_sum(a, [24, 25], 26, 'v_permlane16_swap_b32'); half_sum(a, [24, 25], 26)
    a('v_mul_f32 v24, %s, v24' % fbits(-1.0 / 512)); a('v_mul_f32 v25, %s, v25' % fbits(1.0 / 512))
    a('v_fma_f32 v25, -v24, v24, v25'); a('v_max_f32 v25, 0, v25'); a('v_add_f32 v25, %s, v25' % fbits(1e-5)); a('v_rsq_f32 v25, v25')
    a('v_cvt_pk_bf16_f32 v26, v24, v24'); a('v_and_b32 v27, s36, v26'); a('v_sub_f32 v27, v24, v27'); a('v_cvt_pk_bf16_f32 v27, v27, v27')
    a('ds_write_b32 v17, v25'); a('ds_write_b16 v18, v26 offset:256'); a('ds_write_b16 v18, v27 offset:384')
    a('s_waitcnt lgkmcnt(0)'); a('s_barrier')
    stamp(a, 4)
    a('s_cmp_ge_u32 s3, 4'); a('s_cbranch_scc1 ka_pf')
    RR = 64; AF = 96; MF = 112; ACC = 64
    for j in range(4):
        for k in range(2): a('ds_read_b128 v[%d:%d], v19 offset:%d' % (RR + 8 * j + 4 * k, RR + 8 * j + 4 * k + 3, 64 * j + 16 * k), tag='r%d' % j)
    for j in range(4):
        for hf in range(2): a('ds_read_b64_tr_b16 v[%d:%d], v15 offset:%d' % (AF + 4 * j + 2 * hf, AF + 4 * j + 2 * hf + 1, (16 * j + 4 * hf) * XP), tag='a%d' % j)
    for j in range(4):
        a.wait_lg('r%d' % j)
        for i in range(0, 8, 2): a.pk('v_pk_mul_f32', BF + 8 * j + i, BF + 8 * j + i, RR + 8 * j + i)
        for d in range(4): a('v_cvt_pk_bf16_f32 v%d, v%d, v%d' % (BF + 8 * j + d, BF + 8 * j + 2 * d, BF + 8 * j + 2 * d + 1))
        for k in range(2): a('ds_read_b128 v[%d:%d], v20 offset:%d' % (MF + 8 * j + 4 * k, MF + 8 * j + 4 * k + 3, 256 + 128 * k + 32 * j), tag='m%d' % j)
    for j in range(4):
        a.wait_lg('a%d' % j); a.mfma(ACC, AF + 4 * j, BF + 8 * j, j == 0)
    for j in range(4):
        a.wait_lg('m%d' % j); a.mfma(ACC, MF + 8 * j, BF + 8 * j); a.mfma(ACC, MF + 8 * j + 4, BF + 8 * j)
    for d in range(8): a('v_cvt_pk_bf16_f32 v%d, v%d, v%d' % (80 + d, ACC + 2 * d, ACC + 2 * d + 1))
    a('buffer_store_dwordx4 v[80:83], v21, s[16:19], s33 offen %s' % ZST); a('buffer_store_dwordx4 v[84:87], v21, s[16:19], s33 offen offset:16 %s' % ZST)
    stamp(a, 5)
    a('s_branch %s_end' % name)
    a.role('ka_pf')
    if PF_MODE == 'mall':
        a('s_cmp_eq_u32 s26, 3'); a('s_cbranch_scc1 ka_pf2')
        a('s_lshl_b32 s46, s26, 3'); a('s_add_u32 s46, s46, 48'); a('s_load_dwordx2 s[52:53], s[0:1], s46')
        a('s_mov_b32 s54, %d' % (512 * 3584)); a('s_mov_b32 s55, 0x20000'); a('s_mul_i32 s46, s2, 7168'); a('v_lshlrev_b32 v8, 7, v1')
        a('s_waitcnt lgkmcnt(0)')
        a('s_mov_b32 exec_hi, 0xffffff')
        a('buffer_load_dword v10, v8, s[52:55], s46 offen')
        a('s_mov_b64 exec, -1')
        a.label('ka_pf2')
    if PF_CODE:
        a('s_cmp_ge_u32 s21, 2'); a('s_cbranch_scc1 %s_end' % name)
        a('s_getpc_b64 s[40:41]')
        a.label('ka_pc')
        a('s_add_u32 s40, s40, kb_main_kernel-ka_pc'); a('s_addc_u32 s41, s41, 0')
        a('s_mov_b32 s42, kb_main_kernel_exit-kb_main_kernel'); a('s_mov_b32 s43, 0x20000')
        a('s_lshl_b32 s44, s21, 2'); a('s_add_u32 s44, s44, s26'); a('s_lshl_b32 s44, s44, 12')
        a('v_lshlrev_b32 v8, 6, v1')
        a('buffer_load_dword v9, v8, s[40:43], s44 offen')
    a('s_branch %s_end' % name)
    a.role('ka_gemv')
    a('v_and_b32 v5, 255, v0'); a('v_lshrrev_b32 v7, 3, v5'); a('v_and_b32 v8, 7, v5')
    a('s_lshr_b32 s22, s2, 2'); a('s_and_b32 s23, s2, 3')
    a('v_lshlrev_b32 v9, 3, v7'); a('s_lshl_b32 s24, s23, 8')
    a('v_mul_u32_u24 v10, %d, v7' % (4 * 6144)); a('v_lshl_add_u32 v10, v8, 4, v10')
    a('s_mul_i32 s25, s23, %d' % (128 * 6144)); a('s_lshl_b32 s27, s22, 7'); a('s_add_u32 s25, s25, s27')
    a('v_lshrrev_b32 v30, 4, v5'); a('v_lshlrev_b32 v30, 8, v30'); a('v_lshl_add_u32 v30, v8, 5, v30'); a('v_add_u32 v30, %d, v30' % GP)
    a('s_waitcnt lgkmcnt(0)')
    srd(a, 12, 8, 1024); srd(a, 28, 10, 512 * 6144); srd(a, 16, 6, WSZ)
    stamp(a, 1)
    a('s_cmp_lt_u32 s2, 192'); a('s_cbranch_scc1 ka_job')
    a('s_barrier')
    a('s_cmp_lt_u32 s2, 254'); a('s_cbranch_scc1 %s_end' % name)
    for r in range(12, 16): a('v_mov_b32 v%d, 0' % r)
    a('s_and_b32 s24, s2, 1'); a('s_lshl_b32 s24, s24, 2'); a('s_add_u32 s24, s24, s26'); a('s_lshl_b32 s24, s24, 10'); a('s_add_u32 s24, s24, 0x%x' % FLAGB)
    a('buffer_store_dwordx4 v[12:15], v3, s[16:19], s24 offen')
    a('s_branch %s_end' % name)
    a.role('ka_job')
    a('buffer_load_dwordx2 v[12:13], v9, s[12:15], s24 offen', tag='c')
    for i in range(4):
        a('buffer_load_dwordx4 v[%d:%d], v10, s[28:31], s25 offen' % (32 + 4 * i, 35 + 4 * i), tag='w%d' % i)
        if i < 3: a('s_add_u32 s25, s25, 6144')
    a('s_mov_b32 s36, 0xffff0000'); a('s_mov_b32 s40, 0x05040100'); a('s_mov_b32 s41, 0x07060302')
    for c in range(8): a('v_mov_b32 v%d, 0' % (64 + c))
    a.wait_vm('c')
    stamp(a, 2)
    unpack(a, 16, 12, 2, 36)
    for i in range(4): a('v_mul_f32 v%d, %s, v%d' % (20 + i, fbits(-LOG2E), 16 + i))
    for i in range(4): a('v_exp_f32 v%d, v%d' % (20 + i, 20 + i))
    for i in range(4): a('v_add_f32 v%d, 1.0, v%d' % (20 + i, 20 + i))
    for i in range(4): a('v_rcp_f32 v%d, v%d' % (20 + i, 20 + i))
    for i in range(4): a('v_mul_f32 v%d, v%d, v%d' % (20 + i, 20 + i, 16 + i))
    for d in range(2): a('v_cvt_pk_bf16_f32 v%d, v%d, v%d' % (12 + d, 20 + 2 * d, 21 + 2 * d))
    for ip in range(2):
        a.wait_vm('w%d' % (2 * ip + 1))
        r0 = 32 + 8 * ip; r1 = r0 + 4
        for d in range(4):
            a('v_perm_b32 v%d, v%d, v%d, s40' % (48 + 2 * d, r1 + d, r0 + d)); a('v_perm_b32 v%d, v%d, v%d, s41' % (49 + 2 * d, r1 + d, r0 + d))
        for c in range(8): a('v_dot2c_f32_bf16 v%d, v%d, v%d' % (64 + c, 48 + c, 12 + ip))
        a('s_nop 2')
    for c in range(8): a('v_add_f32_dpp v%d, v%d, v%d row_ror:8' % (64 + c, 64 + c, 64 + c))
    a('ds_write_b128 v30, v[64:67]'); a('ds_write_b128 v30, v[68:71] offset:16')
    a('s_waitcnt lgkmcnt(0)'); a('s_barrier')
    stamp(a, 3)
    a('s_cmp_lg_u32 s3, 8'); a('s_cbranch_scc1 %s_end' % name)
    a('v_lshlrev_b32 v10, 2, v1'); a('v_add_u32 v10, %d, v10' % GP)
    for p in range(8): a('ds_read2st64_b32 v[%d:%d], v10 offset0:%d offset1:%d' % (32 + 2 * p, 33 + 2 * p, 2 * p, 2 * p + 1))
    a('s_lshr_b32 s24, s22, 3')
    a('s_lshl_b32 s25, s22, 6'); a('v_add_u32 v23, s25, v1'); a('v_and_b32 v26, 511, v23')
    a('v_sub_u32 v27, 512, v26'); a('v_and_b32 v27, 255, v27'); a('v_or_b32 v27, 256, v27')
    a('v_cmp_lt_u32 vcc, 255, v26'); a('s_sub_u32 s25, s24, 2'); a('s_cmp_lt_u32 s25, 3'); a('s_cselect_b64 vcc, vcc, 0')
    a('v_cndmask_b32 v27, v26, v27, vcc'); a('v_lshlrev_b32 v27, 2, v27')
    a('s_lshl_b32 s24, s24, 11'); a('s_mul_i32 s25, s23, 12288'); a('s_add_u32 s24, s24, s25')
    a('s_waitcnt lgkmcnt(0)')
    for st in (8, 4, 2, 1):
        for i in range(st): a('v_add_f32 v%d, v%d, v%d' % (32 + i, 32 + i, 32 + st + i))
    a('buffer_store_dword v32, v27, s[16:19], s24 offen %s' % ZST)
    finish(a, name, 0)
    return name, a.text() + kernel_desc(name, 168, 100), (256, 768, GP + 4096)

def cheb(a, dst, p1, p2, K):
    for i in range(0, 8, 2):
        a('v_pk_fma_f32 v[%d:%d], v[%d:%d], v[%d:%d], v[%d:%d] op_sel_hi:[1,0,1] neg_lo:[0,0,1] neg_hi:[0,0,1]' % (
            dst + i, dst + i + 1, p1 + i, p1 + i + 1, K, K + 1, p2 + i, p2 + i + 1))

WSL = 14464; WU = 7296; RW = 8; RZ = 5; NPRE = 5
PS = 156672
def lds_map():
    global ZR0, G2H, SBH, GBH, CSX, CNT, STL, LDS_TOTAL, TB, ZI, B1L, G1L, GAL, G2L, SAL, EXT, YST, DREG, DHALF
    ZR0 = RW * WSL
    assert ZR0 + RZ * 8192 <= PS
    G2H = PS; SBH = PS + 1024; GBH = PS + 2048; CSX = PS + 3072; CNT = PS + 6656; STL = PS
    LDS_TOTAL = PS + 7168
    TB = 5 * WSL
    ZI = TB; B1L = TB + 65536; G1L = B1L + 8192; GAL = G1L + 2048; G2L = GAL + 2048; SAL = CSX; EXT = G2L + 2048
    assert EXT + 2048 <= PS and NPRE <= 5
    YST = CSX + 2048
    DREG = 14336; DHALF = 5 * DREG
lds_map()

def poll(a, lbl, soff, nlanes):
    a('v_lshlrev_b32 v8, 2, v1'); a('s_mov_b32 s57, 0'); a('s_mov_b32 exec_lo, 0x%x' % ((1 << nlanes) - 1)); a('s_mov_b32 exec_hi, 0')
    a.label(lbl)
    a('buffer_load_dword v9, v8, s[16:19], s%d offen sc1' % soff); a('s_waitcnt vmcnt(0)')
    a('v_cmp_ne_u32 vcc, 0, v9'); a('s_cmp_eq_u32 vcc_lo, 0x%x' % ((1 << nlanes) - 1)); a('s_cbranch_scc1 %s_ok' % lbl)
    a('s_sleep %d' % PSLEEP); a('s_add_u32 s57, s57, 1'); a('s_cmp_lt_u32 s57, %d' % SPIN); a('s_cbranch_scc1 %s' % lbl)
    a.label(lbl + '_ok')
    a('s_mov_b64 exec, -1')
def lds_spin(a, lbl, addr, val):
    a('v_mov_b32 v8, %d' % addr); a('s_mov_b32 s57, 0')
    a.label(lbl)
    a('ds_read_b32 v9, v8'); a('s_waitcnt lgkmcnt(0)'); a('v_readfirstlane_b32 s56, v9')
    a('s_cmp_ge_u32 s56, %d' % val); a('s_cbranch_scc1 %s_ok' % lbl)
    a('s_sleep %d' % LSLEEP); a('s_add_u32 s57, s57, 1'); a('s_cmp_lt_u32 s57, %d' % (SPIN * 16)); a('s_cbranch_scc1 %s' % lbl)
    a.label(lbl + '_ok')
def lds_inc(a, addr):
    a('v_mov_b32 v8, %d' % addr); a('v_mov_b32 v9, 1'); a('s_mov_b64 exec, 1'); a('ds_add_u32 v8, v9'); a('s_mov_b64 exec, -1')
def arrive(a, lbl, addr, n, soff, total=0):
    a('s_waitcnt vmcnt(0)')
    a('v_mov_b32 v8, %d' % addr); a('v_mov_b32 v9, 1'); a('s_mov_b64 exec, 1')
    a('ds_add_rtn_u32 v10, v8, v9'); a('s_waitcnt lgkmcnt(0)'); a('v_readfirstlane_b32 s56, v10')
    a('s_cmp_lg_u32 s56, %d' % (n - 1)); a('s_cbranch_scc1 %s' % lbl)
    a('v_mov_b32 v8, 0')
    if total:
        a('v_mov_b32 v10, 1'); a('buffer_atomic_add v10, v8, s[16:19], s%d offen sc0 sc1' % soff); a('s_waitcnt vmcnt(0)'); a('v_readfirstlane_b32 s56, v10')
        a('s_cmp_lg_u32 s56, %d' % (total - 1)); a('s_cbranch_scc1 %s' % lbl)
        a('buffer_store_dword v9, v8, s[16:19], s%d offen offset:128 sc1' % soff)
    else:
        a('buffer_store_dword v9, v8, s[16:19], s%d offen sc1' % soff)
    a.label(lbl)
    a('s_mov_b64 exec, -1')

def gen_a2(a, A2, CH, sphase):
    swap23_v(a, 9, 6, 10); a('s_lshl_b32 s32, s22, 5'); a('v_add_u32 v9, s32, v9')
    a('s_lshl_b32 s32, s25, 5'); a('v_lshl_add_u32 v8, v4, 3, s32')
    a('v_mul_u32_u24 v12, v9, v8'); a('v_and_b32 v12, 511, v12'); a('v_cvt_f32_u32 v12, v12'); a('v_cvt_f32_u32 v13, v9')
    a('v_mul_f32 v13, %s, v13' % fbits(1 / 512)); a('v_mov_b32 v%d, %s' % (CH[0], sphase)); a('v_fmac_f32 v%d, %s, v12' % (CH[0], fbits(1 / 512)))
    a('v_mul_f32 v10, %s, v13' % fbits(16.0))
    for i in range(1, 8): a('v_add_f32 v%d, v%d, v13' % (CH[0] + i, CH[0] + i - 1))
    for i in range(8): a('v_add_f32 v%d, v%d, v10' % (CH[1] + i, CH[0] + i))
    a('v_cos_f32 v10, v10')
    for g in range(2):
        for i in range(8): a('v_cos_f32 v%d, v%d' % (CH[g] + i, CH[g] + i))
    a('v_add_f32 v10, v10, v10')
    for j in range(8):
        c = CH[j % 3]
        if j >= 2: cheb(a, c, CH[(j - 1) % 3], CH[(j - 2) % 3], 10)
        for d in range(4): a('v_cvt_pk_bf16_f32 v%d, v%d, v%d' % (A2 + 4 * j + d, c + 2 * d, c + 2 * d + 1))
def z_bases(a):
    a('v_bfe_u32 v10, v1, 2, 2'); a('v_lshl_add_u32 v10, v4, 3, v10'); a('v_lshlrev_b32 v10, 7, v10')
    a('v_bfe_u32 v11, v1, 4, 1'); a('v_lshl_add_u32 v10, v11, 5, v10'); a('v_and_b32 v11, 1, v1'); a('v_lshl_add_u32 v10, v11, 4, v10')
    a('v_bfe_u32 v11, v1, 1, 1'); a('v_lshl_add_u32 v10, v11, 3, v10'); a('v_bfe_u32 v11, v1, 3, 1'); a('v_lshl_add_u32 v10, v11, 6, v10')
    a('v_xor_b32 v11, 64, v10')
    a('s_lshl_b32 s32, s26, 12'); a('s_add_u32 s32, s32, %d' % ZI); a('v_add_u32 v10, s32, v10'); a('v_add_u32 v11, s32, v11')
    a('v_lshlrev_b32 v12, 5, v4'); a('v_add_u32 v12, %d, v12' % G1L)
    a('v_mov_b32 v14, 0'); a('v_mov_b32 v15, 0xbf803f80')

def kM():
    lds_map()
    a = XAsm(); name = 'kb_main_kernel'
    head(a, name, 256)
    a('s_load_dwordx2 s[6:7], s[0:1], 104')
    ids(a)
    a('s_and_b32 s22, s21, 7'); a('s_lshr_b32 s23, s21, 3'); a('s_lshl_b32 s24, s20, 2'); a('s_add_u32 s23, s23, s24')
    a('s_lshl_b32 s25, s26, 2'); a('s_lshl_b32 s24, s22, 1'); a('s_add_u32 s25, s25, s24')
    lg = {'2x16': 1, '4x8': 2, '8x4': 3, '16x2': 4}[K4_MAP]; gm = (1 << (lg - 1)) - 1
    def cmap():
        a('s_and_b32 s50, s21, %d' % ((1 << lg) - 1)); a('s_lshr_b32 s48, s21, %d' % lg); a('s_and_b32 s51, s20, %d' % gm); a('s_lshl_b32 s51, s51, %d' % (5 - lg)); a('s_add_u32 s48, s48, s51')
        a('s_lshr_b32 s49, s50, %d' % (lg - 1)); a('s_lshl_b32 s49, s49, 3'); a('s_and_b32 s51, s20, %d' % (7 & ~gm)); a('s_add_u32 s49, s49, s51')
        a('s_and_b32 s51, s50, %d' % gm); a('s_add_u32 s49, s49, s51'); a('s_lshl_b32 s49, s49, 2')
        a('s_lshl_b32 s50, s50, %d' % (4 - lg)); a('s_lshl_b32 s51, s48, %d' % (lg - 1)); a('s_add_u32 s50, s50, s51'); a('s_and_b32 s50, s50, 15')
        if not K4_ROT: a('s_mov_b32 s50, 0')
    def dmap():
        a('s_and_b32 s51, s21, 3'); a('s_lshr_b32 s52, s21, 2')
        a('s_lshr_b32 s53, s51, 1'); a('s_lshl_b32 s53, s53, 5'); a('s_lshl_b32 s54, s20, 2'); a('s_add_u32 s53, s53, s54')
        a('s_and_b32 s54, s51, 1'); a('s_lshl_b32 s54, s54, 1'); a('s_add_u32 s53, s53, s54')
        a('s_lshl_b32 s54, s51, 1'); a('s_add_u32 s54, s54, s52'); a('s_and_b32 s54, s54, 7'); a('s_cmp_eq_u32 s54, 7'); a('s_cselect_b32 s54, 3, s54')
        if not K5_ROT: a('s_mov_b32 s54, 0')
    LO, UP, CUR = 136, 144, 152
    uid = [0]
    def w_setup(who, smat, spart, npc):
        a('s_cmp_eq_u32 s%d, 1' % smat); a('s_cselect_b32 s40, s10, s8'); a('s_cselect_b32 s41, s11, s9'); a('s_mov_b32 s42, %d' % (512 * 3584)); a('s_mov_b32 s43, 0x20000')
        a('s_mul_i32 s30, s%d, %d' % (spart, 64 * npc))
        for q in range(min(npc, 7)):
            a('v_add_u32 v8, s30, v1')
            if q: a('v_add_u32 v8, %d, v8' % (64 * q))
            a('v_mul_u32_u24 v9, 4682, v8'); a('v_lshrrev_b32 v9, 16, v9')
            a('v_mul_u32_u24 v10, 14, v9'); a('v_sub_u32 v10, v8, v10'); a('v_lshlrev_b32 v10, 4, v10')
            a('v_mul_u32_u24 v11, 3584, v9'); a('v_add_u32 v%d, v11, v10' % (LO + q))
            a('v_sub_u32 v11, %d, v11' % (287 * 3584)); a('v_add_u32 v%d, v11, v10' % (UP + q))
            if q == 0:
                a('v_subrev_u32 v161, %d, v%d' % (256 * 3584, UP)); a('v_cmp_eq_u32 vcc, 0, v9'); a('v_cndmask_b32 v161, v%d, v161, vcc' % UP)
        a('s_mul_i32 s30, s48, 224'); a('s_add_u32 s31, s30, %d' % (225 * 3584))
        a('s_mul_i32 s44, s%d, %d' % (smat, WU)); a('s_mul_i32 s45, s%d, %d' % (spart, 1024 * npc)); a('s_add_u32 s44, s44, s45'); a('s_add_u32 s45, s44, %d' % ZR0)
        a('s_mov_b32 s47, s44')
        def sethalf(upper):
            if upper:
                a('v_mov_b32 v%d, v161' % CUR); a('v_mov_b32 v160, v%d' % UP)
                for q in range(1, min(npc, 7)): a('v_mov_b32 v%d, v%d' % (CUR + q, UP + q))
                a('s_mov_b32 s60, s31'); a('s_mov_b32 s61, %d' % (-32 * 3584))
            else:
                a('v_mov_b32 v160, v%d' % LO)
                for q in range(min(npc, 7)): a('v_mov_b32 v%d, v%d' % (CUR + q, LO + q))
                a('s_mov_b32 s60, s30'); a('s_mov_b32 s61, %d' % (32 * 3584))
        a('s_cmp_ge_u32 s55, 8'); a('s_cbranch_scc1 km_w_u0%s' % who)
        sethalf(False); a('s_branch km_w_go%s' % who)
        a.label('km_w_u0%s' % who); sethalf(True)
        a('s_cmp_eq_u32 s55, 8'); a('s_cbranch_scc1 km_w_go%s' % who); a('v_mov_b32 v%d, v160' % CUR)
        a.label('km_w_go%s' % who)
        a('s_and_b32 s32, s55, 7'); a('s_mul_i32 s32, s32, s61'); a('s_add_u32 s60, s60, s32')
        def w_issue():
            uid[0] += 1; u = uid[0]
            a('s_mov_b32 m0, s47')
            for q in range(npc - 1):
                a('buffer_load_dwordx4 v%d, s[40:43], s60 offen lds' % (CUR + q)); a('s_add_u32 m0, m0, 1024')
            if npc < 8:
                a('s_cmp_eq_u32 s%d, %d' % (spart, 8 // npc - 1)); a('s_cbranch_scc1 km_w_s%d' % u)
                a('buffer_load_dwordx4 v%d, s[40:43], s60 offen lds' % (CUR + npc - 1))
                a.label('km_w_s%d' % u)
            a('v_mov_b32 v%d, v160' % CUR); a('s_add_u32 s60, s60, s61')
            a('s_add_u32 s47, s47, %d' % WSL); a('s_cmp_eq_u32 s47, s45'); a('s_cselect_b32 s47, s44, s47')
            a('s_add_u32 s24, s24, 1'); a('s_add_u32 s55, s55, 1'); a('s_and_b32 s32, s55, 7')
            a('s_cmp_lg_u32 s32, 0'); a('s_cbranch_scc1 km_w_e%d' % u)
            a('s_cmp_eq_u32 s55, 16'); a('s_cbranch_scc1 km_w_l%d' % u)
            sethalf(True); a('s_branch km_w_e%d' % u)
            a.label('km_w_l%d' % u); sethalf(False); a('s_mov_b32 s55, 0')
            a.label('km_w_e%d' % u)
        return w_issue
    a('s_cmp_lt_u32 s3, 8'); a('s_cbranch_scc1 km_compute')
    a('s_load_dwordx4 s[8:11], s[0:1], 48')
    if H_PRIO: a('s_setprio %d' % H_PRIO)
    a('v_lshrrev_b32 v5, 3, v1'); a('v_lshlrev_b32 v5, 12, v5'); a('v_and_b32 v7, 7, v1'); a('v_lshrrev_b32 v8, 2, v1'); a('v_and_b32 v8, 4, v8'); a('v_xor_b32 v7, v7, v8')
    a('v_lshl_add_u32 v5, v7, 4, v5')
    a('s_lshl_b32 s27, s23, 7'); a('s_add_u32 s27, s27, 0x%x' % ZB)
    a('s_lshl_b32 s28, s26, 12'); a('s_add_u32 s28, s28, %d' % ZI)
    a('s_lshl_b32 s33, s26, 9'); a('v_lshlrev_b32 v16, 4, v6'); a('v_add_u32 v16, s33, v16')
    a('v_lshlrev_b32 v17, 11, v4'); a('v_sub_u32 v17, 2048, v17'); a('v_add_u32 v17, v17, v16')
    a('v_mul_u32_u24 v18, %d, v4' % (SAL - G1L)); a('v_add_u32 v18, v18, v16'); a('v_add_u32 v18, %d, v18' % G1L)
    a('v_cvt_f32_u32 v19, v4'); a('v_sub_f32 v19, 1.0, v19')
    a('s_mov_b32 s46, 0xffff0000'); a('s_mov_b32 s34, 12288'); a('s_mov_b32 s35, 24576'); a('s_mov_b32 s36, 36864')
    a('v_mov_b32 v8, %d' % CNT)
    for r in range(12, 16): a('v_mov_b32 v%d, 0' % r)
    a('ds_write_b128 v8, v[12:15]'); a('ds_write_b128 v8, v[12:15] offset:16'); a('ds_write_b128 v8, v[12:15] offset:32')
    a('s_waitcnt lgkmcnt(0)')
    srd(a, 16, 6, WSZ)
    stamp(a, 1)
    def zdma(i):
        a('s_add_u32 s32, s25, %d' % i); a('s_and_b32 s32, s32, 15'); a('s_lshl_b32 s32, s32, 17'); a('s_add_u32 s32, s32, s27')
        a('s_add_u32 m0, s28, %d' % (16384 * i))
        for k in range(4):
            a('buffer_load_dwordx4 v5, s[16:19], s32 offen lds', tag='z%d' % i)
            if k < 3: a('s_add_u32 m0, m0, 1024'); a('s_add_u32 s32, s32, 32768')
    FP = 32
    zdma(0)
    for p, so in enumerate(('0', 's34', 's35', 's36')): a('buffer_load_dwordx4 v[%d:%d], v17, s[16:19], %s offen' % (FP + 4 * p, FP + 4 * p + 3, so), tag='f1')
    zdma(1); zdma(2); zdma(3)
    a.wait_vm('z0'); a.bar()
    a.wait_vm('f1')
    for i in (0, 2): a.pk('v_pk_add_f32', FP + i, FP + i, FP + 4 + i); a.pk('v_pk_add_f32', FP + 8 + i, FP + 8 + i, FP + 12 + i)
    for i in (0, 2): a.pk('v_pk_add_f32', FP + i, FP + i, FP + 8 + i)
    for d in range(2): a('v_cvt_pk_bf16_f32 v%d, v%d, v%d' % (FP + 4 + d, FP + 2 * d, FP + 2 * d + 1))
    unpack(a, FP, FP + 4, 2, 46)
    for i in range(4): a('v_add_f32 v%d, v19, v%d' % (FP + i, FP + i))
    for d in range(2): a('v_cvt_pk_bf16_f32 v%d, v%d, v%d' % (FP + 4 + d, FP + 2 * d, FP + 2 * d + 1))
    unpack(a, FP, FP + 4, 2, 46)
    a('ds_write_b128 v18, v[%d:%d]' % (FP, FP + 3))
    a('s_waitcnt lgkmcnt(0)')
    a.wait_vm('z1'); a.bar()
    stamp(a, 2)
    a('s_add_u32 s34, s26, 2'); a('s_lshl_b32 s34, s34, 11')
    for p in range(4):
        for k in range(2): a('buffer_load_dwordx4 v[%d:%d], v3, s[16:19], s34 offen offset:%d' % (FP + 8 * p + 4 * k, FP + 8 * p + 4 * k + 3, 1024 * k), tag='f2')
        if p < 3: a('s_add_u32 s34, s34, 12288')
    a.wait_vm('z3'); a.bar()
    a('s_and_b32 s37, s26, 1'); a('s_lshr_b32 s38, s26, 1')
    cmap()
    a.wait_vm('f2')
    for i in range(0, 8, 2): a.pk('v_pk_add_f32', FP + i, FP + i, FP + 8 + i); a.pk('v_pk_add_f32', FP + 16 + i, FP + 16 + i, FP + 24 + i)
    for i in range(0, 8, 2): a.pk('v_pk_add_f32', FP + i, FP + i, FP + 16 + i)
    for d in range(4): a('v_cvt_pk_bf16_f32 v%d, v%d, v%d' % (FP + 8 + d, FP + 2 * d, FP + 2 * d + 1))
    unpack(a, FP, FP + 8, 4, 46)
    a('s_cmp_eq_u32 s26, 2'); a('s_cselect_b32 s35, 1.0, 0')
    for i in range(8): a('v_add_f32 v%d, s35, v%d' % (FP + i, FP + i))
    for d in range(4): a('v_cvt_pk_bf16_f32 v%d, v%d, v%d' % (FP + 8 + d, FP + 2 * d, FP + 2 * d + 1))
    unpack(a, FP, FP + 8, 4, 46)
    a('s_lshl_b32 s32, s26, 3'); a('s_lshr_b32 s33, 0x02000103, s32'); a('s_and_b32 s33, s33, 3'); a('s_lshl_b32 s33, s33, 10'); a('s_add_u32 s33, s33, %d' % PS)
    a('v_lshl_add_u32 v20, v1, 3, s33')
    a('s_cmp_eq_u32 s26, 0'); a('s_cbranch_scc1 km_h_noh')
    a('ds_write_b64 v20, v[%d:%d]' % (FP + 8, FP + 9)); a('ds_write_b64 v20, v[%d:%d] offset:512' % (FP + 10, FP + 11))
    a.label('km_h_noh')
    a('s_cmp_eq_u32 s37, 1'); a('s_cbranch_scc1 km_h_nof')
    a('s_lshl_b32 s32, s38, 11'); a('s_add_u32 s32, s32, %d' % GAL); a('v_add_u32 v8, s32, v3')
    a('ds_write_b128 v8, v[%d:%d]' % (FP, FP + 3)); a('ds_write_b128 v8, v[%d:%d] offset:1024' % (FP + 4, FP + 7))
    a.label('km_h_nof')
    a('s_load_dwordx2 s[4:5], s[0:1], 64')
    a('s_waitcnt lgkmcnt(0)')
    lds_inc(a, CNT + 4)
    stamp(a, 3)
    srd(a, 12, 4, 1792 * 1024)
    def c_iters(p, first, issue, last_issue, nper, look, upto):
        a('s_mov_b32 s29, 0')
        a.label(p + '_loop')
        a('s_cmp_lt_u32 s29, %d' % first); a('s_cbranch_scc1 %s_noi' % p)
        if 'Cnoload' not in EXP: issue()
        a.label(p + '_noi')
        a('s_waitcnt vmcnt(%d)' % (nper * look))
        a('s_barrier')
        a('s_add_u32 s29, s29, 1'); a('s_cmp_lt_u32 s29, %d' % upto); a('s_cbranch_scc1 %s_loop' % p)
    a('s_cmp_eq_u32 s38, 1'); a('s_cbranch_scc1 km_hz')
    a('s_mov_b32 s55, s50'); a('s_mov_b32 s24, 0'); a('s_mov_b32 s39, 0')
    w_issue = w_setup('h', 37, 39, 8)
    NST = 16 >> lg
    if W_START == 'tfree': lds_spin(a, 'km_spinT', CNT + 12, 4)
    elif W_START == 'arr': lds_spin(a, 'km_spinT', CNT, 4)
    elif W_START == 'iss': lds_spin(a, 'km_spinT', CNT + 36, 4)
    stamp(a, 4)
    a.label('km_hw_pre')
    w_issue()
    a('s_cmp_lg_u32 s24, %d' % (NST + 1)); a('s_cbranch_scc1 km_hw_pre1')
    a('s_waitcnt vmcnt(7)'); lds_inc(a, CNT + 16)
    a.label('km_hw_pre1')
    if W_START == 'fin2':
        a('s_cmp_lg_u32 s24, %d' % NPRE); a('s_cbranch_scc1 km_hw_pre2')
        lds_spin(a, 'km_spinT', CNT + 12, 4)
        a.label('km_hw_pre2')
    a('s_cmp_lt_u32 s24, %d' % RW); a('s_cbranch_scc1 km_hw_pre')
    stamp(a, 5)
    a('s_lshl_b32 s33, s37, 1'); a('s_add_u32 s33, s33, s49'); a('s_lshl_b32 s33, s33, 12'); a('s_add_u32 s33, s33, 0x%x' % STATS)
    a('v_lshlrev_b32 v16, 3, v6'); a('v_lshl_add_u32 v16, v4, 12, v16')
    a('s_lshl_b32 s34, s20, 5'); a('s_and_b32 s35, s21, %d' % (31 & ~((1 << lg) - 1))); a('s_add_u32 s34, s34, s35')
    a('s_lshl_b32 s35, s34, 2'); a('s_add_u32 s35, s35, 0x%x' % FLAGS)
    a('s_lshl_b32 s34, s34, 11'); a('s_lshl_b32 s36, s37, 10'); a('s_add_u32 s34, s34, s36'); a('s_add_u32 s34, s34, 0x%x' % CSP)
    a.bar()
    LW = 17 - RW
    c_iters('km_hw', 2, w_issue, LW, 7, RW - 3, LW + 1); a.nbar += LW + 1
    NP = 1 << lg
    a.vm = 0; a.tags = {}
    for st in range(LW + 2, 16): a.vm += 7; a.tags['W%d' % st] = a.vm
    ST = 32
    for b in range(LW + 1, 16):
        if b == LW + 1:
            for c in range(16): a('buffer_load_dwordx2 v[%d:%d], v16, s[16:19], s33 offen offset:%d sc1' % (ST + 2 * c, ST + 2 * c + 1, 256 * c), tag='st')
        if b == TAIL_B:
            poll(a, 'km_pollS', 35, NP)
            for p in range(NP):
                a('buffer_load_dwordx4 v[%d:%d], v3, s[16:19], s34 offen sc1' % (64 + 4 * p, 67 + 4 * p), tag='cp'); a('s_add_u32 s34, s34, 2048')
            for st in (16, 8, 4, 2):
                for i in range(0, st, 2): a.pk('v_pk_add_f32', ST + i, ST + i, ST + st + i)
            a('v_mul_f32 v10, %s, v%d' % (fbits(-1.0 / 512), ST))
            a('v_mul_f32 v11, %s, v%d' % (fbits(1.0 / 512), ST + 1)); a('v_fma_f32 v11, -v10, v10, v11'); a('v_max_f32 v11, 0, v11')
            a('v_add_f32 v11, %s, v11' % fbits(1e-5))
            a('v_rsq_f32 v14, v11'); a('v_sqrt_f32 v15, v11')
            for src, dst in ((10, 12), (15, 13)):
                a('v_cvt_pk_bf16_f32 v%d, v%d, v%d' % (ST, src, src)); a('v_and_b32 v%d, s46, v%d' % (ST, ST)); a('v_sub_f32 v%d, v%d, v%d' % (ST + 1, src, ST))
                a('v_cvt_pk_bf16_f32 v%d, v%d, v%d' % (dst, ST, ST + 1))
            a('s_lshl_b32 s32, s37, 10'); a('s_add_u32 s32, s32, %d' % STL); a('v_add_u32 v8, s32, v3'); a('ds_write_b128 v8, v[12:15]')
        if b == 15:
            a('s_waitcnt vmcnt(0)')
            st = NP // 2
            while st:
                for i in range(0, 4 * st, 2): a.pk('v_pk_add_f32', 64 + i, 64 + i, 64 + 4 * st + i)
                st //= 2
            for i in range(4):
                a('v_cvt_pk_bf16_f32 v%d, v%d, v%d' % (72 + 2 * i, 64 + i, 64 + i)); a('v_and_b32 v80, s46, v%d' % (72 + 2 * i)); a('v_sub_f32 v80, v%d, v80' % (64 + i))
                a('v_cvt_pk_bf16_f32 v%d, v80, v80' % (73 + 2 * i))
            a('v_lshrrev_b32 v8, 4, v1'); a('v_lshlrev_b32 v8, 9, v8'); a('v_and_b32 v9, 3, v1'); a('v_lshl_add_u32 v8, v9, 7, v8')
            a('v_bfe_u32 v9, v1, 2, 1'); a('v_lshl_add_u32 v8, v9, 6, v8'); a('v_bfe_u32 v9, v1, 3, 1'); a('v_lshl_add_u32 v8, v9, 3, v8')
            a('s_lshl_b32 s32, s37, 11'); a('s_add_u32 s32, s32, %d' % CSX); a('v_add_u32 v8, s32, v8')
            a('s_cmp_eq_u32 s37, 1'); a('s_cselect_b32 exec_hi, 0xffff, -1')
            for i in range(4): a('ds_write_b64 v8, v[%d:%d] offset:%d' % (72 + 2 * i, 73 + 2 * i, 16 * i))
            a('s_mov_b64 exec, -1')
        if b + 1 < 16 and b < TAIL_B: a.wait_vm('W%d' % (b + 1))
        if b == 15: a('s_waitcnt lgkmcnt(0)')
        a.bar()
    a('s_branch km_c_done')
    a.role('km_hz')
    a('s_lshr_b32 s63, s49, 2'); a('s_and_b32 s63, s63, 7'); a('s_lshl_b32 s63, s63, 8'); a('s_add_u32 s63, s63, 0x%x' % (FLAGB + 128))
    a('s_lshl_b32 s33, s37, 1'); a('s_add_u32 s33, s33, s49'); a('s_lshl_b32 s33, s33, 15'); a('s_add_u32 s33, s33, 0x%x' % ZT)
    a('s_lshl_b32 s34, s37, 12'); a('s_add_u32 s34, s34, %d' % ZR0); a('s_add_u32 s35, s34, %d' % (RZ * 8192)); a('s_mov_b32 s36, s34')
    a('s_lshl_b32 s39, s50, 11')
    nsh = 32 >> lg; ntch = max(1, 512 // nsh // 64) if Z_TOUCH else 0
    a('s_lshr_b32 s30, s21, %d' % lg); a('s_mul_i32 s30, s30, %d' % (65536 // nsh)); a('s_add_u32 s30, s30, s33'); a('v_lshlrev_b32 v29, 7, v1')
    def z_issue():
        a('s_mov_b32 m0, s36'); a('s_add_u32 s32, s33, s39'); a('s_add_u32 s31, s32, 32768')
        a('buffer_load_dwordx4 v3, s[16:19], s32 offen sc1 lds'); a('buffer_load_dwordx4 v3, s[16:19], s32 offen offset:1024 sc1 lds')
        a('s_add_u32 m0, m0, 2048'); a('s_add_u32 s39, s39, 2048'); a('s_and_b32 s39, s39, 32767')
        a('buffer_load_dwordx4 v3, s[16:19], s31 offen sc1 lds'); a('buffer_load_dwordx4 v3, s[16:19], s31 offen offset:1024 sc1 lds')
        a('s_add_u32 s36, s36, 8192'); a('s_cmp_eq_u32 s36, s35'); a('s_cselect_b32 s36, s34, s36')
    lds_spin(a, 'km_spinZ', CNT, 4)
    stamp(a, 6)
    a('s_cmp_eq_u32 s37, 1'); a('s_cbranch_scc1 km_hz_w')
    poll(a, 'km_pollB', 63, 1)
    lds_inc(a, CNT + 24)
    a('s_branch km_hz_go')
    a.label('km_hz_w')
    lds_spin(a, 'km_spinG', CNT + 24, 1)
    a.label('km_hz_go')
    stamp(a, 7)
    z_issue(); z_issue()
    for k in range(ntch):
        a('buffer_load_dword v31, v29, s[16:19], s30 offen sc1'); a('s_add_u32 s30, s30, 8192')
    a('s_waitcnt vmcnt(%d)' % (4 + ntch)); a('s_barrier')
    n1 = (RZ - 2 + 1) // 2
    for i in range(n1): z_issue()
    a('s_waitcnt vmcnt(%d)' % (4 * n1 + ntch)); a('s_barrier')
    for i in range(RZ - 2 - n1): z_issue()
    a('s_waitcnt vmcnt(%d)' % (4 * (RZ - 3))); a('s_barrier')
    c_iters('km_hz', 0, z_issue, 0, 4, RZ - 3, 16 - RZ)
    nx = 0
    if PF_WD == 2:
        a('s_lshl_b32 s32, s21, 1'); a('s_add_u32 s32, s32, s37'); a('s_mul_i32 s32, s32, 28672')
        a('s_mov_b32 exec_hi, 0xffffff')
        for k in range(4):
            a('buffer_load_dword v31, v29, s[12:15], s32 offen'); a('s_add_u32 s32, s32, 7168'); nx += 1
        a('s_mov_b64 exec, -1')
    for k in range(RZ - 4, -2, -1):
        if k >= 0: a('s_waitcnt vmcnt(%d)' % (4 * k + nx))
        a('s_barrier')
    a.label('km_c_done')
    dmap()
    a('v_lshrrev_b32 v5, 3, v1'); a('v_and_b32 v7, 7, v1'); a('v_lshrrev_b32 v8, 2, v1'); a('v_and_b32 v8, 4, v8'); a('v_xor_b32 v7, v7, v8')
    a('v_lshlrev_b32 v5, 10, v5'); a('v_lshl_add_u32 v5, v7, 4, v5')
    a('s_waitcnt lgkmcnt(0)')
    a('s_setprio %d' % D_PRIO)
    a.bar()
    if D_START == 'iss': lds_spin(a, 'km_spinD', CNT + 40, 8)
    stamp(a, 8)
    a('s_mul_i32 s30, s26, %d' % (448 * 1024)); a('s_lshl_b32 s31, s52, 7'); a('s_add_u32 s30, s30, s31')
    a('s_lshl_b32 s31, s26, 15'); a('v_add_u32 v7, s31, v3'); a('s_mov_b32 s33, 0')
    def next_region():
        a('s_lshl_b32 s32, s54, 16'); a('s_add_u32 s32, s32, s30'); a('s_add_u32 s54, s54, 1'); a('s_cmp_eq_u32 s54, 7'); a('s_cselect_b32 s54, 0, s54')
    a('s_mov_b32 m0, s31')
    a.label('km_d_loop')
    next_region()
    for k in range(8):
        a('buffer_load_dwordx4 v5, s[12:15], s32 offen lds'); a('s_add_u32 m0, m0, 1024')
        if k < 7: a('s_add_u32 s32, s32, 8192')
    a('s_add_u32 s33, s33, 1'); a('s_cmp_lt_u32 s33, 4'); a('s_cbranch_scc1 km_d_loop')
    for g in range(3):
        next_region()
        for k in range(8):
            r = 16 + 32 * g + 4 * k
            a('buffer_load_dwordx4 v[%d:%d], v5, s[12:15], s32 offen' % (r, r + 3))
            if k < 7: a('s_add_u32 s32, s32, 8192')
    a('s_waitcnt vmcnt(24)')
    stamp(a, 9)
    a.bar()
    a('s_waitcnt vmcnt(0)')
    for g in range(3):
        a.bar()
        for k in range(8):
            r = 16 + 32 * g + 4 * k
            a('ds_write_b128 v7, v[%d:%d] offset:%d' % (r, r + 3, g * 8192 + 1024 * k))
        a('s_waitcnt lgkmcnt(0)')
    a.bar()
    nbar_h = a.nbar
    a('s_branch %s_end' % name)
    a.role('km_compute'); a.nbar = 0
    a('s_lshr_b32 s27, s3, 2')
    a('s_load_dwordx2 s[4:5], s[0:1], 0'); a('s_load_dwordx4 s[8:11], s[0:1], 48'); a('s_load_dwordx2 s[60:61], s[0:1], 64')
    A2, B1, AC1, AP, ZF, GG = 16, 48, [64, 80], 96, 112, 128
    token_of(a, 7, 8, 23)
    a('s_mov_b64 s[30:31], vcc')
    a('s_lshr_b32 s28, s26, 1'); a('s_and_b32 s29, s26, 1'); a('s_lshl_b32 s29, s29, 4'); a('v_lshl_add_u32 v8, v4, 3, s29')
    a('s_cmp_eq_u32 s23, 0'); a('s_cselect_b32 s32, 0, s28'); a('s_sub_i32 s32, s32, s27'); a('v_cvt_f32_i32 v9, s32'); a('v_mul_f32 v9, %s, v9' % fbits(0.25))
    a('v_mul_u32_u24 v12, v7, v8'); a('v_and_b32 v12, 2047, v12'); a('v_cvt_f32_u32 v12, v12'); a('v_cvt_f32_u32 v13, v7')
    a('v_mul_f32 v13, %s, v13' % fbits(1 / 2048)); a('v_fmamk_f32 v64, v12, %s, v9' % fbits(1 / 2048))
    for i in range(1, 8): a('v_add_f32 v%d, v%d, v13' % (64 + i, 63 + i))
    for i in range(8): a('v_cos_f32 v%d, v%d' % (64 + i, 64 + i))
    for d in range(4): a('v_cvt_pk_bf16_f32 v%d, v%d, v%d' % (72 + d, 64 + 2 * d, 65 + 2 * d))
    a('s_not_b64 s[32:33], s[30:31]'); a('s_cmp_eq_u32 s28, 1'); a('s_cselect_b64 s[32:33], s[30:31], s[32:33]'); a('s_cmp_eq_u32 s23, 0'); a('s_cselect_b64 s[32:33], s[32:33], -1')
    for d in range(4): a('v_cndmask_b32 v%d, 0, v%d, s[32:33]' % (72 + d, 72 + d))
    a('v_cmp_eq_u32 vcc, 0, v7'); a('s_lshr_b32 s32, s3, 1'); a('s_cmp_eq_u32 s32, 2'); a('s_cselect_b64 vcc, vcc, 0'); a('v_mov_b32 v9, 0xbf803f80')
    for d in range(4): a('v_cndmask_b32 v%d, v%d, v9, vcc' % (72 + d, 72 + d))
    a('s_lshl_b32 s32, s3, 10'); a('s_add_u32 s32, s32, %d' % B1L); a('v_add_u32 v8, s32, v3'); a('ds_write_b128 v8, v[72:75]')
    a('s_cmp_eq_u32 s27, 1'); a('s_cselect_b32 s34, %s, 0' % fbits(-0.25))
    gen_a2(a, A2, [64, 72, 80], 's34'); z_bases(a)
    a('s_lshl_b32 s32, s27, 12'); a('s_add_u32 s32, s32, %d' % B1L); a('v_add_u32 v8, s32, v3')
    a('v_cmp_eq_u32 vcc, 0, v6'); a('v_mov_b32 v9, %s' % fbits(2048.0)); a('v_cndmask_b32 v5, 0, v9, vcc')
    a('s_or_b32 s33, s22, s27'); a('s_or_b32 s35, s23, s27')
    a('s_waitcnt lgkmcnt(0)')
    srd(a, 16, 6, WSZ)
    stamp(a, 1)
    XL, XU, XX = 160, 164, 2
    a('s_and_b32 s37, s26, 1'); a('s_lshr_b32 s38, s26, 1')
    ZFS = [112, 128]
    def zread(i):
        for j in range(4):
            for hf in range(2):
                r = ZFS[i & 1] + 4 * j + 2 * hf
                a('ds_read_b64_tr_b16 v[%d:%d], v%d offset:%d' % (r, r + 1, 10 + (j >> 1), 16384 * i + (16 * (j & 1) + 4 * hf) * 128), tag='zr%d_%d' % (i, j))
    def x_loads(u):
        a('s_cmp_eq_u32 s27, 0'); a('s_cbranch_scc1 km_nox%s' % u)
        srd(a, 12, 4, 2048 * 1024)
        a('s_cmp_eq_u32 s38, 1'); mirror_if(a, 7, 9, 13); a('v_lshlrev_b32 v7, 10, v7')
        a('s_lshl_b32 s39, s22, 6'); a('s_lshl_b32 s30, s37, 5'); a('s_add_u32 s39, s39, s30'); a('v_lshl_add_u32 v9, v4, 4, s39')
        a('v_add_u32 v0, v7, v9'); a('buffer_load_dwordx4 v[%d:%d], v0, s[12:15], 0 offen' % (XL, XL + 3))
        a('v_sub_u32 v0, 1008, v9'); a('v_add_u32 v0, v7, v0'); a('buffer_load_dwordx4 v[%d:%d], v0, s[12:15], 0 offen' % (XU, XU + 3))
        a('v_sub_u32 v0, 1024, v9'); a('v_and_b32 v0, 511, v0'); a('v_add_u32 v0, v7, v0')
        a('buffer_load_ushort v%d, v0, s[12:15], 0 offen offset:512' % XX)
        a('v_lshlrev_b32 v7, 1, v9')
        a.label('km_nox%s' % u)
    def w_touch(u):
        a('s_cmp_lg_u32 s27, 0'); a('s_cbranch_scc1 km_ntw%s' % u)
        span = 3584 >> (lg - 1); nl = span // 128 + (1 if span % 128 else 0)
        magic = -(-65536 // nl)
        a('s_cmp_ge_u32 s21, 16'); a('s_cselect_b32 s12, s10, s8'); a('s_cselect_b32 s13, s11, s9'); a('s_mov_b32 s14, %d' % (512 * 3584)); a('s_mov_b32 s15, 0x20000')
        a('s_and_b32 s40, s21, 15'); a('s_lshl_b32 s40, s40, 2'); a('s_add_u32 s40, s40, s26'); a('s_mul_i32 s40, s40, %d' % (8 * 3584))
        a('s_and_b32 s41, s20, %d' % gm); a('s_mul_i32 s41, s41, %d' % span); a('s_and_b32 s41, s41, 0xffffff80'); a('s_add_u32 s40, s40, s41')
        for k in range(-(-8 * nl // 64)):
            for idx in range(64 * k + 64): assert (idx * magic) >> 16 == idx // nl
            a('v_add_u32 v9, %d, v1' % (64 * k)); a('v_min_u32 v9, %d, v9' % (8 * nl - 1))
            a('v_mul_u32_u24 v7, %d, v9' % magic); a('v_lshrrev_b32 v7, 16, v7'); a('v_mul_u32_u24 v7, %d, v7' % (3584 - nl * 128)); a('v_lshl_add_u32 v7, v9, 7, v7')
            a('buffer_load_dword v164, v7, s[12:15], s40 offen')
        if WD_MALL:
            a('s_cmp_lg_u32 s26, 0'); a('s_cbranch_scc1 km_ntw%s' % u)
            a('s_mov_b32 s12, s60'); a('s_mov_b32 s13, s61'); a('s_mul_i32 s40, s2, 7168'); a('v_min_u32 v9, 27, v1'); a('v_lshlrev_b32 v9, 8, v9')
            a('buffer_load_dword v165, v9, s[12:15], s40 offen')
        a.label('km_ntw%s' % u)
    AY = 112; GG = 144
    def m1(i):
        for j in range(4):
            a.wait_lg('zr%d_%d' % (i, j)); a.mfma(AC1[i & 1], ZFS[i & 1] + 4 * j, B1 + 4 * j, j == 0)
    def gread(i, dst, off, tag):
        for k in range(4): a('ds_read_b128 v[%d:%d], v13 offset:%d' % (dst + 4 * k, dst + 4 * k + 3, off + 64 * (k >> 1) + 16 * (k & 1)), tag=tag)
    def gaddr(i):
        a('s_add_u32 s32, s25, %d' % i); a('s_and_b32 s32, s32, 15'); a('s_lshl_b32 s32, s32, 7'); a('v_add_u32 v13, s32, v12')
    a.bar()
    stamp(a, 2)
    for j in range(4): a('ds_read_b128 v[%d:%d], v8 offset:%d' % (B1 + 4 * j, B1 + 4 * j + 3, 1024 * j))
    a('s_cmp_eq_u32 s35, 0'); a('s_cbranch_scc1 km_sp1')
    a('s_cmp_eq_u32 s23, 0'); a('s_cbranch_scc1 km_sp2')
    save = (a.lg, dict(a.ltags), a.nbar)
    for sp in (0, 1, 2):
        if sp:
            a.role('km_sp%d' % sp); a.lg, a.ltags, a.nbar = save[0], dict(save[1]), save[2]
            a('s_lshl_b32 s32, s26, 8'); a('s_add_u32 s32, s32, %d' % YST); a('v_lshl_add_u32 v8, v4, 4, s32')
            a('v_cmp_eq_u32 s[42:43], 0, v6')
        a.reg = 'B'
        zread(0); gaddr(0); m1(0)
        a.bar(); zread(1); gread(0, GG, 0, 'g0')
        for i in range(4):
            xc = AC1[i & 1]
            if i < 3: m1(i + 1)
            if i == 0: a.bar()
            if i < 2: zread(i + 2)
            a.wait_lg('g%d' % i)
            for r in range(16): a('v_mul_f32 v%d, v%d, v%d' % (xc + r, xc + r, GG + r))
            if sp == 1:
                gread(i, GG, SAL - G1L, 's%d' % i); a.wait_lg('s%d' % i)
                for r in range(16): a('v_fmac_f32 v%d, v5, v%d' % (xc + r, GG + r))
            if i < 3: gaddr(i + 1); gread(i + 1, GG, 0, 'g%d' % (i + 1))
            for d in range(8): a('v_cvt_pk_bf16_f32 v%d, v%d, v%d' % (xc + d, xc + 2 * d, xc + 2 * d + 1))
            if sp == 2:
                a('s_mov_b64 exec, s[42:43]')
                for h in range(2): a('ds_write_b128 v8, v[%d:%d] offset:%d' % (xc + 4 * h, xc + 4 * h + 3, 64 * i + 32 * h))
                a('s_mov_b64 exec, -1')
                for d in range(8): a('v_dot2c_f32_bf16 v14, v%d, v15' % (xc + d))
                for d in range(8): a('v_cndmask_b32 v%d, v%d, 0, s[42:43]' % (xc + 8 + d, xc + d))
                for h in range(2): a.mfma(AP, A2 + 8 * i + 4 * h, xc + 8 + 4 * h, i == 0 and h == 0)
                a('s_waitcnt lgkmcnt(0)')
                if i == 3: lds_inc(a, CNT + 32)
            else:
                for h in range(2): a.mfma(AP, A2 + 8 * i + 4 * h, xc + 4 * h, i == 0 and h == 0)
                a('s_cmp_lg_u32 s33, 0'); a('s_cbranch_scc1 km_nd%d%d' % (sp, i))
                for d in range(8): a('v_dot2c_f32_bf16 v14, v%d, v15' % (xc + d))
                a.label('km_nd%d%d' % (sp, i))
            if i == TOUCH_AT and sp != 2 and PF_MODE == 'km': w_touch(str(sp))
            if i == 0 and sp != 1: x_loads(str(sp))
        if sp == 1:
            a('v_mov_b32 v13, v8')
            lds_spin(a, 'km_spinY', CNT + 32, 4)
            for j in range(8): a('ds_read_b128 v[%d:%d], v13 offset:%d' % (128 + 4 * j, 131 + 4 * j, 32 * j))
            for j in range(8):
                a('s_waitcnt lgkmcnt(%d)' % (7 - j)); a.mfma(AY, A2 + 4 * j, 128 + 4 * j, j == 0)
            a('s_lshl_b32 s32, s26, 7'); a('s_add_u32 s32, s32, %d' % (EXT + 1024)); a('v_lshl_add_u32 v8, v4, 6, s32')
            for k in range(4): a('ds_write_b128 v8, v[%d:%d] offset:%d' % (AY + 4 * k, AY + 4 * k + 3, 16 * k))
        if sp == 2:
            a('s_lshl_b32 s32, s26, 3'); a('s_add_u32 s32, s32, %d' % (EXT + 1536)); a('v_lshl_add_u32 v9, v4, 2, s32')
            a('s_mov_b64 exec, s[42:43]'); a('ds_write_b32 v9, v14'); a('s_mov_b64 exec, -1')
        else:
            a('s_branch km_bjoin')
    a.label('km_bjoin'); a.reg = ''
    stamp(a, 3)
    a('s_load_dwordx2 s[4:5], s[0:1], 64')
    a('s_lshl_b32 s32, s3, 12'); a('s_add_u32 s32, s32, %d' % ZI); a('v_add_u32 v8, s32, v3')
    a('s_lshl_b32 s32, s26, 8'); a('s_add_u32 s32, s32, %d' % EXT); a('v_lshl_add_u32 v9, v1, 2, s32')
    a.fence()
    for k in range(4): a('ds_write_b128 v8, v[%d:%d] offset:%d' % (AP + 4 * k, AP + 4 * k + 3, 1024 * k))
    a('s_cmp_lg_u32 s27, 0'); a('s_cbranch_scc1 km_nopx'); a('ds_write_b32 v9, v14')
    a.label('km_nopx')
    a('s_waitcnt lgkmcnt(0)')
    lds_inc(a, CNT + 4)
    a('s_mov_b32 s46, 0xffff0000')
    cmap()
    a('s_cmp_eq_u32 s27, 0'); a('s_cbranch_scc1 km_csb')
    XLF, XUF = 120, 128
    a('s_waitcnt vmcnt(0)')
    unpack(a, XLF, XL, 4, 46); unpack_rev(a, XUF, XU, XX, 46)
    GA, G2, GAU, G2U = 24, 32, 40, 48
    a('v_add_u32 v21, %d, v7' % GAL)
    a('s_lshl_b32 s32, s37, 11'); a('s_add_u32 s32, s32, %d' % ZI); a('v_add_u32 v11, s32, v3')
    a('s_cmp_eq_u32 s38, 0'); a('s_cselect_b32 s34, -1.0, 1.0'); a('s_mov_b32 s35, s34')
    a('s_lshl_b32 s39, s38, 5'); a('s_add_u32 s39, s39, s23')
    a('s_lshl_b32 s36, s39, 15'); a('s_lshl_b32 s33, s22, 1'); a('s_add_u32 s33, s33, s37'); a('s_lshl_b32 s33, s33, 10'); a('s_add_u32 s36, s36, s33')
    if E_PRIO: a('s_setprio 3')
    lds_spin(a, 'km_spinR', CNT + 4, 12)
    stamp(a, 4)
    RP, RQ, YL, YU = 56, 88, 64, 72
    for R, o in ((RP, 0), (RQ, 16384)):
        for src in range(4):
            for hf in range(2): a('ds_read_b128 v[%d:%d], v11 offset:%d' % (R + 8 * src + 4 * hf, R + 3 + 8 * src + 4 * hf, o + src * 4096 + hf * 1024))
    for n, R in enumerate((RP, RQ)):
        a('s_waitcnt lgkmcnt(8)')
        if n == 0:
            for reg, off in ((GA, 0), (GAU, 1024), (G2, 2048), (G2U, 3072)):
                for k in range(2): a('ds_read_b128 v[%d:%d], v21 offset:%d' % (reg + 4 * k, reg + 4 * k + 3, off + 16 * k))
        for i in range(0, 8, 2): a.pk('v_pk_add_f32', R + i, R + i, R + 8 + i); a.pk('v_pk_add_f32', R + 16 + i, R + 16 + i, R + 24 + i)
        for i in range(0, 8, 2): a.pk('v_pk_add_f32', R + i, R + i, R + 16 + i)
    for i in range(0, 8, 2):
        a('v_pk_fma_f32 v[%d:%d], v[%d:%d], s[34:35], v[%d:%d]' % (YL + i, YL + i + 1, RQ + i, RQ + i + 1, RP + i, RP + i + 1))
        a('v_pk_fma_f32 v[%d:%d], v[%d:%d], s[34:35], v[%d:%d] neg_lo:[1,0,0] neg_hi:[1,0,0]' % (YU + i, YU + i + 1, RQ + i, RQ + i + 1, RP + i, RP + i + 1))
    a('s_or_b32 s33, s22, s37')
    a('s_cmp_lg_u32 s33, 0'); a('s_cbranch_scc1 km_e1')
    a('v_lshlrev_b32 v8, 2, v1'); a('v_add_u32 v8, %d, v8' % EXT)
    a('ds_read2st64_b32 v[96:97], v8 offset0:0 offset1:1'); a('ds_read2st64_b32 v[98:99], v8 offset0:2 offset1:3'); a('s_waitcnt lgkmcnt(0)')
    a.pk('v_pk_add_f32', 96, 96, 98); a('v_add_f32 v96, v96, v97'); half_sum(a, [96], 97)
    a('v_cmp_eq_u32 vcc, 0, v4'); a('v_cndmask_b32 v%d, v%d, v96, vcc' % (YU, YU))
    a.label('km_e1')
    a('s_cmp_lg_u32 s39, 32'); a('s_cbranch_scc1 km_e2')
    a('s_lshl_b32 s32, s37, 5'); a('s_add_u32 s32, s32, %d' % (EXT + 1024)); a('v_lshl_add_u32 v8, v4, 6, s32'); a('v_mov_b32 v9, %d' % (EXT + 1536))
    for src in range(4):
        for k in range(2): a('ds_read_b128 v[%d:%d], v8 offset:%d' % (RQ + 8 * src + 4 * k, RQ + 8 * src + 4 * k + 3, 128 * src + 16 * k))
    a('ds_read_b128 v[80:83], v9'); a('ds_read_b128 v[84:87], v9 offset:16'); a('s_waitcnt lgkmcnt(0)')
    for i in range(0, 8, 2): a.pk('v_pk_add_f32', RQ + i, RQ + i, RQ + 8 + i); a.pk('v_pk_add_f32', RQ + 16 + i, RQ + 16 + i, RQ + 24 + i)
    for i in range(0, 8, 2): a.pk('v_pk_add_f32', RQ + i, RQ + i, RQ + 16 + i)
    a.pk('v_pk_add_f32', 80, 80, 82); a.pk('v_pk_add_f32', 84, 84, 86); a.pk('v_pk_add_f32', 80, 80, 84); a('v_add_f32 v80, v80, v81')
    a('v_cmp_eq_u32 vcc, 0, v6')
    for i in range(8): a('v_cndmask_b32 v%d, v%d, v%d, vcc' % (YL + i, YL + i, RQ + i)); a('v_cndmask_b32 v%d, v%d, v%d, vcc' % (YU + i, YU + i, RQ + i))
    a('v_cmp_eq_u32 vcc, 0, v1'); a('s_cmp_eq_u32 s33, 0'); a('s_cselect_b64 vcc, vcc, 0'); a('v_cndmask_b32 v%d, v%d, v80, vcc' % (YU, YU))
    a.label('km_e2')
    a('s_waitcnt lgkmcnt(0)')
    lds_inc(a, CNT + 12)
    for Y, G, X in ((YL, GA, XLF), (YU, GAU, XUF)):
        for i in range(0, 8, 2): a('v_pk_fma_f32 v[%d:%d], v[%d:%d], v[%d:%d], v[%d:%d]' % (Y + i, Y + i + 1, Y + i, Y + i + 1, G + i, G + i + 1, X + i, X + i + 1))
    for Y, G in ((YL, G2), (YU, G2U)):
        for i in range(0, 8, 2): a.pk('v_pk_mul_f32', G + i, Y + i, G + i)
    a('s_add_u32 s32, s36, 0x%x' % ZT); a('s_add_u32 s33, s32, 16384'); a('s_add_u32 s34, s36, 0x%x' % X1T); a('s_add_u32 s35, s34, 16384')
    for src, dst, so in ((G2, 80, 32), (G2U, 84, 33), (YL, 88, 34), (YU, 92, 35)):
        for d in range(4): a('v_cvt_pk_bf16_f32 v%d, v%d, v%d' % (dst + d, src + 2 * d, src + 2 * d + 1))
        a('buffer_store_dwordx4 v[%d:%d], v3, s[16:19], s%d offen sc1' % (dst, dst + 3, so))
    a.pk('v_pk_add_f32', 96, YL, YL + 2); a.pk('v_pk_mul_f32', 98, YL, YL)
    for i in range(2, 16, 2):
        if i > 2: a.pk('v_pk_add_f32', 96, 96, YL + i)
        a('v_pk_fma_f32 v[98:99], v[%d:%d], v[%d:%d], v[98:99]' % (YL + i, YL + i + 1, YL + i, YL + i + 1))
    a('v_add_f32 v100, v96, v97'); a('v_add_f32 v101, v98, v99')
    half_sum(a, [100, 101], 102)
    a('s_lshl_b32 s32, s39, 12'); a('s_lshl_b32 s33, s22, 9'); a('s_add_u32 s32, s32, s33'); a('s_lshl_b32 s33, s37, 8'); a('s_add_u32 s32, s32, s33'); a('s_add_u32 s32, s32, 0x%x' % STATS)
    a('v_lshlrev_b32 v8, 3, v1')
    a('s_mov_b32 exec_hi, 0')
    a('buffer_store_dwordx2 v[100:101], v8, s[16:19], s32 offen sc1')
    a('s_mov_b64 exec, -1')
    stamp(a, 12)
    a('s_lshl_b32 s32, s20, 8'); a('s_add_u32 s32, s32, 0x%x' % FLAGB)
    lds_inc(a, CNT + 36)
    arrive(a, 'km_arrB', CNT, 4, 32, 32)
    stamp(a, 9)
    a('s_setprio 0')
    a('s_branch km_C')
    a.role('km_csb')
    NST = 16 >> lg
    a('v_bfe_u32 v10, v1, 4, 1'); a('v_mul_u32_u24 v10, %d, v10' % WU)
    a('v_bfe_u32 v11, v1, 2, 2'); a('v_lshl_add_u32 v11, v4, 3, v11'); a('v_mul_u32_u24 v11, 224, v11'); a('v_add_u32 v10, v10, v11')
    a('v_and_b32 v11, 1, v1'); a('v_lshl_add_u32 v10, v11, 4, v10'); a('v_bfe_u32 v12, v1, 1, 1'); a('v_lshl_add_u32 v10, v12, 3, v10')
    a('s_lshl_b32 s32, s26, 5'); a('v_add_u32 v10, s32, v10')
    a('v_lshlrev_b32 v11, 10, v11'); a('v_lshl_add_u32 v11, v4, 4, v11'); a('v_add_u32 v11, %d, v11' % G2H)
    a('s_lshl_b32 s33, s20, 5'); a('s_add_u32 s33, s33, s21'); a('s_lshl_b32 s34, s33, 2'); a('s_add_u32 s34, s34, 0x%x' % FLAGS)
    a('s_lshl_b32 s33, s33, 11'); a('s_lshl_b32 s32, s26, 8'); a('s_add_u32 s33, s33, s32'); a('s_add_u32 s33, s33, 0x%x' % CSP)
    a('v_and_b32 v13, 1, v1'); a('v_lshlrev_b32 v13, 7, v13'); a('v_lshl_add_u32 v13, v4, 6, v13'); a('v_bfe_u32 v12, v1, 1, 2'); a('v_lshl_add_u32 v13, v12, 4, v13')
    lds_spin(a, 'km_spinR2', CNT + 4, 12); lds_spin(a, 'km_spinW', CNT + 16, 2)
    stamp(a, 4)
    for st in range(NST):
        a('s_add_u32 s32, s50, %d' % st); a('s_and_b32 s32, s32, 15'); a('s_lshl_b32 s32, s32, 6'); a('v_add_u32 v12, s32, v11')
        for ks in range(2):
            r = 48 + 24 * (st & 3) + 12 * ks
            a('ds_read_b128 v[%d:%d], v12 offset:%d' % (r, r + 3, 32 * ks))
            for t in range(2):
                for hf in range(2): a('ds_read_b64_tr_b16 v[%d:%d], v10 offset:%d' % (r + 4 + 4 * t + 2 * hf, r + 5 + 4 * t + 2 * hf, st * WSL + (16 * ks + 4 * hf) * 224 + 128 * t), tag='c%d_%d' % (st, ks))
    for st in range(NST):
        for ks in range(2):
            r = 48 + 24 * (st & 3) + 12 * ks
            a.wait_lg('c%d_%d' % (st, ks))
            for t in range(2): a.mfma(16 + 16 * t, r + 4 + 4 * t, r, st == 0 and ks == 0)
    a('v_bfe_u32 v12, v1, 1, 2')
    for k in range(1, 4):
        a('v_cmp_eq_u32 vcc, %d, v12' % k)
        for t in range(2):
            for i in range(4): a('v_cndmask_b32 v%d, v%d, v%d, vcc' % (16 + 16 * t + i, 16 + 16 * t + i, 16 + 16 * t + 4 * k + i))
    a('s_mov_b32 exec_lo, 0xff'); a('s_mov_b32 exec_hi, 0xff')
    for t in range(2): a('buffer_store_dwordx4 v[%d:%d], v13, s[16:19], s33 offen offset:%d sc1' % (16 + 16 * t, 19 + 16 * t, 1024 * t))
    a('s_mov_b64 exec, -1')
    stamp(a, 12)
    a.label('km_C'); a.hist = []
    a('s_add_u32 s49, s49, s26')
    a('v_bfe_u32 v10, v1, 4, 1'); a('v_mul_u32_u24 v10, %d, v10' % WU)
    a('v_bfe_u32 v11, v1, 2, 2'); a('v_lshl_add_u32 v11, v4, 3, v11'); a('v_mul_u32_u24 v11, 224, v11'); a('v_add_u32 v10, v10, v11')
    a('v_and_b32 v11, 1, v1'); a('v_lshl_add_u32 v10, v11, 4, v10'); a('v_bfe_u32 v11, v1, 1, 1'); a('v_lshl_add_u32 v10, v11, 3, v10')
    a('s_lshl_b32 s28, s27, 7'); a('v_add_u32 v12, s28, v10')
    a('s_lshl_b32 s28, s26, 11'); a('s_add_u32 s28, s28, %d' % ZR0); a('v_add_u32 v13, s28, v3')
    a('v_mov_b32 v14, v12'); a('v_mov_b32 v15, v13')
    ACC = 16; WF = [80, 100]; ST = 120
    for r in range(64): a('v_mov_b32 v%d, 0' % (ACC + r))
    a('s_mov_b32 s36, %d' % WSL); a('s_mov_b32 s37, 8192'); a('s_mov_b32 s38, 0')
    a('s_lshl_b32 s39, s26, 9'); a('s_add_u32 s39, s39, %d' % STL); a('v_lshl_add_u32 v5, v6, 4, s39')
    k1c = -2 * 0.7978845608028654 * LOG2E; k2c = k1c * 0.044715
    a('s_mov_b32 s44, %s' % fbits(k2c)); a('s_mov_b32 s46, 0xffff0000')
    a('s_mul_i32 s40, s49, %d' % (112 * 1024)); a('s_mul_i32 s41, s48, 7168'); a('s_add_u32 s40, s40, s41'); a('s_lshl_b32 s41, s27, 12'); a('s_add_u32 s40, s40, s41')
    a('s_add_u32 s40, s40, 0x%x' % ACT)
    a('s_lshr_b32 s41, s49, 2'); a('s_lshl_b32 s41, s41, 8'); a('s_add_u32 s41, s41, 0x%x' % FLAGC)
    a('s_lshl_b32 s42, s27, 11'); a('s_add_u32 s42, s42, %d' % CSX); a('v_lshl_add_u32 v7, v6, 4, s42')
    srd(a, 12, 4, 1792 * 1024); a('s_add_u32 s43, s3, %d' % SIDE_AT)
    a.bar()
    stamp(a, 5); cstamp(a, 3)
    a('s_cmp_eq_u32 s27, 1'); a('s_cbranch_scc1 km_B')
    nb0 = a.nbar
    for grp, NT in (('A', 4), ('B', 3)):
        if grp == 'B': a.role('km_B'); a.nbar = nb0
        def rdz(st, ks): a('ds_read_b128 v[%d:%d], v15 offset:%d' % (WF[st] + 16, WF[st] + 19, 1024 * ks))
        def rdw(st, ks, j):
            r = WF[st] + 4 * j
            for hf in range(2): a('ds_read_b64_tr_b16 v[%d:%d], v14 offset:%d' % (r + 2 * hf, r + 2 * hf + 1, (16 * ks + 4 * hf) * 224 + 32 * j))
        if grp == 'B' and B_PRIO: a('s_setprio %d' % B_PRIO)
        rdz(0, 0)
        for j in range(NT): rdw(0, 0, j)
        a.label('km_loop%s' % grp); a.reg = 'C'
        for st in range(2):
            for j in range(NT):
                a('s_waitcnt lgkmcnt(%d)' % (2 * NT - 2 if j == 0 else 2 * NT - 1))
                a.mfma(ACC + 16 * j, WF[st] + 4 * j, WF[st] + 16)
                if j == 0:
                    if st == 1: a.bar(16)
                    rdz(1 - st, 1 - st)
                rdw(1 - st, 1 - st, j)
                if st == 0 and j == NT - 1: a('v_add_u32 v14, s36, v12'); a('v_add_u32 v15, s37, v13')
                if st == 1 and j == 0:
                    a('s_add_u32 s36, s36, %d' % WSL); a('s_cmp_eq_u32 s36, %d' % ZR0); a('s_cselect_b32 s36, 0, s36')
                if st == 0 and j == 0 and (grp == 'A' or PF_WD == 1):
                    a('s_cmp_eq_u32 s38, s43'); a('s_cbranch_scc1 km_side%s' % grp)
                    a.label('km_back%s' % grp)
                if st == 0 and j == 1 and DEBUG and 'inloop' in EXP:
                    for it, sl in ((4, 13), (8, 14), (12, 1)):
                        a('s_cmp_lg_u32 s38, %d' % it); a('s_cbranch_scc1 km_st%s%d' % (grp, it)); stamp(a, sl); a.label('km_st%s%d' % (grp, it))
                if st == 1 and j == 1:
                    a('s_add_u32 s37, s37, 8192'); a('s_cmp_eq_u32 s37, %d' % (RZ * 8192)); a('s_cselect_b32 s37, 0, s37')
                    a('s_add_u32 s38, s38, 1'); a('s_cmp_lt_u32 s38, 16')
        a('s_cbranch_scc1 km_loop%s' % grp)
        a('s_branch km_post%s' % grp)
        a.role('km_side%s' % grp)
        if grp == 'A':
            arrive(a, 'km_arrS', CNT + 20, 4, 34)
        if PF_WD == 1:
            a('s_lshl_b32 s32, s21, 3'); a('s_add_u32 s32, s32, s3'); a('s_mul_i32 s32, s32, 7168'); a('v_lshlrev_b32 v8, 7, v1')
            a('s_mov_b32 exec_hi, 0xffffff'); a('buffer_load_dword v9, v8, s[12:15], s32 offen'); a('s_mov_b64 exec, -1')
        if grp == 'A' or PF_WD == 1: a('s_branch km_back%s' % grp)
        a.role('km_post%s' % grp)
        a.reg = ''
        stamp(a, 6); cstamp(a, 4)
        a('ds_read_b128 v[120:123], v5')
        for j in range(NT): a('ds_read_b128 v[%d:%d], v7 offset:%d' % (124 + 4 * j, 127 + 4 * j, 512 * j))
        a('v_cmp_gt_u32 vcc, 32, v1'); a('v_mov_b32 v10, %s' % fbits(k1c))
        a('s_waitcnt lgkmcnt(%d)' % NT)
        a('v_cndmask_b32 v12, 0, v120, vcc'); a('v_cndmask_b32 v13, 0, v120, vcc'); a('v_cndmask_b32 v14, 0, v121, vcc'); a('v_cndmask_b32 v15, 0, v121, vcc')
        a('s_waitcnt vmcnt(0)')
        a('v_mov_b32 v8, v122'); a('v_mov_b32 v9, v123')
        a('s_waitcnt lgkmcnt(0)')
        if E_PRIO: a('s_setprio %d' % E_PRIO)
        a.bar()
        for j in range(NT): a.mfma(ACC + 16 * j, 124 + 4 * j, 12)
        for j in range(NT):
            g = ACC + 16 * j; u = g + 8; t = 80 + 8 * (j & 1)
            for i in range(8): a('v_mul_f32 v%d, v8, v%d' % (g + i, g + i))
            for i in range(8): a('v_mul_f32 v%d, v%d, v%d' % (t + i, g + i, g + i))
            for i in range(8): a('v_fma_f32 v%d, v%d, s44, v10' % (t + i, t + i))
            for i in range(8): a('v_mul_f32 v%d, v%d, v%d' % (t + i, t + i, g + i))
            for i in range(8): a('v_exp_f32 v%d, v%d' % (t + i, t + i))
            for i in range(8): a('v_mul_f32 v%d, v%d, v%d' % (u + i, u + i, g + i))
            for i in range(8): a('v_fma_f32 v%d, v%d, v9, v9' % (t + i, t + i))
            for i in range(8): a('v_rcp_f32 v%d, v%d' % (t + i, t + i))
            for i in range(8): a('v_mul_f32 v%d, v%d, v%d' % (u + i, u + i, t + i))
            for d in range(4): a('v_cvt_pk_bf16_f32 v%d, v%d, v%d' % (g + d, u + 2 * d, u + 2 * d + 1))
            a('buffer_store_dwordx4 v[%d:%d], v3, s[16:19], s40 offen offset:%d sc1' % (g, g + 3, 1024 * j))
        stamp(a, 7)
        if D_START == 'iss': lds_inc(a, CNT + 40)
        arrive(a, 'km_arrC%s' % grp, CNT + 8, 8, 41, 16)
        stamp(a, 8)
        if grp == 'A': a('s_branch km_D')
    a.label('km_D'); a.hist = []
    if E_PRIO: a('s_setprio 0')
    dmap()
    a('s_load_dwordx2 s[8:9], s[0:1], 88')
    a('s_and_b32 s27, s3, 1'); a('s_lshr_b32 s28, s3, 1'); a('s_add_u32 s53, s53, s27')
    a('v_bfe_u32 v14, v1, 2, 2'); a('v_lshl_add_u32 v14, v4, 3, v14'); a('v_lshlrev_b32 v14, 7, v14')
    a('v_bfe_u32 v15, v1, 4, 1'); a('v_lshl_add_u32 v14, v15, 5, v14'); a('v_and_b32 v15, 1, v1'); a('v_lshl_add_u32 v14, v15, 4, v14')
    a('v_bfe_u32 v15, v1, 1, 1'); a('v_lshl_add_u32 v14, v15, 3, v14'); a('v_bfe_u32 v15, v1, 3, 1'); a('v_lshl_add_u32 v14, v15, 6, v14')
    a('s_lshl_b32 s29, s28, 5'); a('v_xor_b32 v14, s29, v14'); a('v_xor_b32 v15, 64, v14')
    a('s_lshl_b32 s29, s28, 15'); a('v_add_u32 v14, s29, v14'); a('v_add_u32 v15, s29, v15')
    a('s_mul_i32 s30, s53, %d' % (112 * 1024)); a('s_mul_i32 s31, s28, %d' % (28 * 1024)); a('s_add_u32 s30, s30, s31'); a('s_add_u32 s30, s30, 0x%x' % ACT)
    for g in range(7):
        a('s_lshl_b32 s%d, s54, 12' % (33 + g)); a('s_add_u32 s%d, s%d, s30' % (33 + g, 33 + g)); a('s_add_u32 s54, s54, 1'); a('s_cmp_eq_u32 s54, 7'); a('s_cselect_b32 s54, 0, s54')
    a('s_lshr_b32 s32, s53, 2'); a('s_lshl_b32 s32, s32, 8'); a('s_add_u32 s32, s32, 0x%x' % (FLAGC + 128))
    AD = [16, 32]; AF = 48; NR = 16; WD = [112, 120, 128, 136]; X1R = 144; GBR = 152; XA = 12
    a('s_lshl_b32 s44, s52, 3'); a('s_lshl_b32 s45, s28, 1'); a('s_add_u32 s44, s44, s45'); a('v_add_u32 v11, s44, v4')
    a('s_and_b32 s47, s53, 31'); token_of(a, 5, 8, 47); a('s_cmp_ge_u32 s53, 32'); mirror_if(a, 5, 8, 9)
    a('v_lshlrev_b32 v5, 10, v5'); a('v_lshl_add_u32 v5, v11, 4, v5')
    a('v_lshlrev_b32 v8, 4, v11'); a('v_add_u32 v8, %d, v8' % GBH)
    a('ds_read_b128 v[%d:%d], v8' % (GBR, GBR + 3))
    a('v_sub_u32 v9, 95, v11'); a('v_cmp_gt_u32 vcc, 32, v11'); a('v_cndmask_b32 v9, v9, v11, vcc')
    a('v_lshlrev_b32 v9, 9, v9'); a('v_lshl_add_u32 v%d, v6, 4, v9' % XA)
    a('v_sub_u32 v9, 64, v11'); a('v_and_b32 v9, 31, v9'); a('v_add_u32 v9, 32, v9'); a('v_lshlrev_b32 v9, 9, v9'); a('v_lshl_add_u32 v%d, v6, 4, v9' % (XA + 1))
    a('s_lshl_b32 s45, s53, 15'); a('s_add_u32 s45, s45, 0x%x' % X1T)
    a('s_mul_i32 s31, s52, 3584'); a('s_add_u32 s31, s31, s30'); a('v_min_u32 v7, 27, v1'); a('v_lshlrev_b32 v7, 7, v7')
    a('s_waitcnt lgkmcnt(0)')
    srd(a, 40, 8, 2048 * 1024)
    def act_load(n):
        r = AF + 4 * (n % NR)
        a('buffer_load_dwordx4 v[%d:%d], v3, s[16:19], s%d offen offset:%d sc1' % (r, r + 3, 33 + n // 4, 1024 * (n & 3)), tag='a%d' % n)
    def wd_read(n):
        for t in range(2):
            for hf in range(2):
                r = WD[n & 3] + 4 * t + 2 * hf
                a('ds_read_b64_tr_b16 v[%d:%d], v%d offset:%d' % (r, r + 1, 14 + t, (16 * (n & 15) + 4 * hf) * 128), tag='w%d' % n)
    a.bar()
    stamp(a, 2)
    a('s_cmp_lg_u32 s3, 0'); a('s_cbranch_scc1 km_d_w')
    poll(a, 'km_pollC', 32, 1)
    lds_inc(a, CNT + 28)
    a('s_branch km_d_go')
    a.label('km_d_w')
    lds_spin(a, 'km_spinH', CNT + 28, 1)
    a.label('km_d_go')
    stamp(a, 9)
    a.reg = 'D'
    act_load(0); act_load(1)
    if A_TOUCH: a('buffer_load_dword v10, v7, s[16:19], s31 offen sc1')
    for k in range(3): wd_read(k)
    nxt = 2
    while nxt < D_INIT: act_load(nxt); nxt += 1
    xdone = False
    for n in range(28):
        if n in (4, 8, 12, 20):
            a.bar()
            if 'cyc' not in EXP: stamp(a, {4: 3, 8: 4, 12: 12, 20: 13}[n])
        if n + 3 < 28: wd_read(n + 3)
        if 'Dnoload' not in EXP: a.wait_vm('a%d' % n)
        a.wait_lg('w%d' % n)
        for t in range(2):
            a.mfma(AD[t], WD[n & 3] + 4 * t, AF + 4 * (n % NR), n == 0)
            if nxt < 28 and nxt < n + D_AHEAD + t: act_load(nxt); nxt += 1
        if nxt == 28 and not xdone:
            xdone = True
            a('buffer_load_dwordx4 v[%d:%d], v%d, s[16:19], s45 offen sc1' % (X1R, X1R + 3, XA))
            a('buffer_load_ushort v%d, v%d, s[16:19], s45 offen sc1' % (X1R + 4, XA + 1))
    a.reg = ''
    stamp(a, 10)
    def slot(dst, src):
        a('s_and_b32 s34, s%d, 3' % src); a('s_mul_i32 s35, s34, 6144'); a('s_add_u32 s35, s35, 131072'); a('s_lshl_b32 s34, s34, 15'); a('s_add_u32 s34, s34, 24576')
        a('s_cmp_lt_u32 s%d, 4' % src); a('s_cselect_b32 s34, s35, s34'); a('v_add_u32 v%d, s34, v3' % dst)
    for k in range(1, 4):
        a('s_xor_b32 s33, s3, %d' % (2 * k)); slot(7 + k, 33)
    for k in range(1, 4):
        for hf in range(2): a('ds_write_b128 v%d, v[%d:%d] offset:%d' % (7 + k, 16 + 8 * k + 4 * hf, 19 + 8 * k + 4 * hf, 2048 * (k - 1) + 1024 * hf))
    X = 64; GF = 72
    a('s_waitcnt vmcnt(0)')
    unpack(a, GF, GBR, 4, 46)
    a('s_cmp_ge_u32 s52, 4'); a('s_cbranch_scc1 km_up')
    unpack(a, X, X1R, 4, 46)
    a('s_branch km_fin')
    a.label('km_up')
    unpack_rev(a, X, X1R, X1R + 4, 46)
    a.label('km_fin')
    slot(9, 3)
    a('s_waitcnt lgkmcnt(0)'); a('s_barrier')
    for k in range(6): a('ds_read_b128 v[%d:%d], v9 offset:%d' % (80 + 4 * k, 83 + 4 * k, 1024 * k))
    for k in range(3):
        a('s_waitcnt lgkmcnt(%d)' % (4 - 2 * k))
        for i in range(0, 8, 2): a.pk('v_pk_add_f32', 16 + i, 16 + i, 80 + 8 * k + i)
    for r in range(8): a('v_fmac_f32 v%d, v%d, v%d' % (X + r, GF + r, 16 + r))
    for d in range(4): a('v_cvt_pk_bf16_f32 v%d, v%d, v%d' % (104 + d, X + 2 * d, X + 1 + 2 * d))
    a('buffer_store_dwordx4 v[104:107], v5, s[40:43], 0 offen')
    stamp(a, 11)
    assert nbar_h == 3 + 17 + 1 + 5, nbar_h
    assert a.nbar == nbar_h, (nbar_h, a.nbar)
    finish(a, name, 1)
    return name, a.text() + kernel_desc(name, 168, 100), (256, 768, LDS_TOTAL)

HEADER = open('adaLN_cond__spectral_fnet__geglu_ffn__prompt.s.ref').read().split('; Override launch')[0]
def all_kernels(): return [kA(), kM()]
GROUPS = {}
def build(kernels):
    hdr = HEADER
    body = '.amdgcn_target "amdgcn-amd-amdhsa--gfx950"\n.text\n'
    for name, text, (g, b, lds) in kernels:
        hdr += '; @launch kernel=%s grid=(%d,1,1) block=(%d,1,1) lds=%d\n' % (name, g, b, lds)
        body += text
    return hdr + body

if __name__ == '__main__':
    if len(sys.argv) > 2 and sys.argv[2] == 'debug': DEBUG = True
    for idx in range(512): assert (idx * 4682) >> 16 == idx // 14
    out = sys.argv[1] if len(sys.argv) > 1 else 'adaLN_cond__spectral_fnet__geglu_ffn__prompt.s'
    open(out, 'w').write(build(all_kernels()))
    print('wrote', out)
```

```python
import sys, struct
from asmlib import Asm, kernel_desc

PART = 0x000000
FLAGB= 0x010000
FLAGC= 0x010800
FLAGS= 0x011800
CSP  = 0x080000
STATS= 0x020000
ZB   = 0x100000
X1T  = 0x300000
ZT   = 0x500000
ACT  = 0x700000
WSZ  = 0x1000000
STAMP = 0xE00000
DEBUG = False
EXP = set()
K4_MAP = '8x4'; K4_ROT = True; K5_ROT = True
PF_CODE = True; PF_W = 128; PF_WD = 2
ZST = ''
SPIN = 1 << 15
PSLEEP = 2
LSLEEP = 1
H_PRIO = 3
W_THR = 35
Z_TOUCH = 1
A_TOUCH = 1
PF_MODE = 'km'
TOUCH_AT = 1
SIDE_AT = 3
W_START = 'iss'
D_PRIO = 0
B_PRIO = 0
D_AHEAD = 10
D_INIT = 4
TAIL_B = 12
E_PRIO = 2
WD_MALL = 1
KA_MALL = 0
D_START = ''
LOG2E = 1.4426950408889634

class XAsm(Asm):
    def __init__(self): super().__init__(); self.nbar = 0; self.reg = ''
    def __call__(self, text, tag=None):
        t = text.strip()
        if self.reg:
            if (self.reg + 'nomfma') in EXP and t.startswith('v_mfma'): return
            if (self.reg + 'nods') in EXP and t.startswith('ds_read'): return
            if (self.reg + 'noload') in EXP and t.startswith('buffer_load'): return
            if (self.reg + 'plain') in EXP and t.startswith('buffer_load'): text = text.replace(' sc1', '')
            if (self.reg + 'novalu') in EXP and t.startswith(('v_mul', 'v_cvt', 'v_dot')): return
        super().__call__(text, tag)
    def pk(self, op, d, x, y, extra=''): self('%s v[%d:%d], v[%d:%d], v[%d:%d]%s' % (op, d, d + 1, x, x + 1, y, y + 1, extra))
    def mfma(self, acc, A, B, first=False):
        self('v_mfma_f32_32x32x16_bf16 v[%d:%d], v[%d:%d], v[%d:%d], %s' % (acc, acc + 15, A, A + 3, B, B + 3, '0' if first else 'v[%d:%d]' % (acc, acc + 15)))
    def bar(self, n=1): self('s_barrier'); self.nbar += n
    def role(self, l): self.label(l); self.hist = []

def fbits(f): return '0x%08x' % struct.unpack('<I', struct.pack('<f', f))[0]
def stamp(a, i):
    if DEBUG: a('s_memrealtime s[%d:%d]' % (64 + 2 * i, 65 + 2 * i))
def cstamp(a, i):
    if DEBUG and 'cyc' in EXP: a('s_memtime s[%d:%d]' % (64 + 2 * i, 65 + 2 * i))
def finish(a, name, kidx, vbase=4):
    a.label(name + '_end')
    if DEBUG:
        a.hist = []
        a('s_waitcnt vmcnt(0)')
        stamp(a, 15)
        a('s_waitcnt lgkmcnt(0)'); a('s_mov_b64 exec, 1')
        for i in range(16): a('v_mov_b32 v%d, s%d' % (vbase + i, 64 + 2 * i))
        a('s_lshl_b32 s60, s2, 4'); a('s_add_u32 s60, s60, s3'); a('s_lshl_b32 s60, s60, 6'); a('s_add_u32 s60, s60, 0x%x' % (STAMP + kidx * 0x80000))
        a('v_mov_b32 v%d, 0' % (vbase + 16))
        for i in range(4): a('buffer_store_dwordx4 v[%d:%d], v%d, s[16:19], s60 offen offset:%d' % (vbase + 4 * i, vbase + 4 * i + 3, vbase + 16, 16 * i))
        if 'dbgout' in EXP:
            a('s_cmp_lg_u32 s2, 37'); a('s_cbranch_scc1 %s_exit' % name)
            a('s_load_dwordx2 s[56:57], s[0:1], 96'); a('s_waitcnt lgkmcnt(0)')
            if kidx == 0: a('s_add_u32 s56, s56, 512'); a('s_addc_u32 s57, s57, 0')
            a('s_mov_b32 s58, 256'); a('s_mov_b32 s59, 0x20000')
            sel = {0: {0: [(0, 0), (3, 1), (4, 2), (15, 3)]}, 1: {4: [(0, 4), (14, 5), (12, 6), (5, 7), (6, 8), (7, 9), (8, 10), (9, 11), (10, 12), (15, 13)], 10: [(2, 14), (7, 15)]}}[kidx]
            for w, lst in sel.items():
                a('s_cmp_lg_u32 s3, %d' % w); a('s_cbranch_scc1 %s_dn%d' % (name, w))
                for st, pos in lst: a('buffer_store_dword v%d, v%d, s[56:59], 0 offen offset:%d' % (vbase + st, vbase + 16, 4 * pos))
                a.label('%s_dn%d' % (name, w))
    a.label(name + '_exit')
    a('s_endpgm')
def srd(a, d, lo, size):
    a('s_mov_b32 s%d, s%d' % (d, lo)); a('s_mov_b32 s%d, s%d' % (d + 1, lo + 1))
    a('s_mov_b32 s%d, 0x%x' % (d + 2, size)); a('s_mov_b32 s%d, 0x20000' % (d + 3))
def head(a, name, nwg):
    a.raw('.p2align 8'); a.raw('.globl %s' % name); a.raw('.type %s,@function' % name); a.label(name)
    a('s_cmp_ge_u32 s2, %d' % nwg); a('s_cbranch_scc1 %s_exit' % name)
    if DEBUG:
        for i in range(16): a('s_mov_b32 s%d, 0' % (64 + 2 * i))
    stamp(a, 0)
def ids(a):
    a('v_and_b32 v1, 63, v0'); a('v_lshrrev_b32 v2, 6, v0'); a('v_readfirstlane_b32 s3, v2'); a('v_lshlrev_b32 v3, 4, v1')
    a('v_lshrrev_b32 v4, 5, v1'); a('v_and_b32 v6, 31, v1')
    a('s_and_b32 s20, s2, 7'); a('s_lshr_b32 s21, s2, 3'); a('s_and_b32 s26, s3, 3')
def swap23_v(a, dst, src, t0):
    a('v_and_b32 v%d, 0x13, v%d' % (dst, src))
    a('v_and_b32 v%d, 4, v%d' % (t0, src)); a('v_lshl_or_b32 v%d, v%d, 1, v%d' % (dst, t0, dst))
    a('v_and_b32 v%d, 8, v%d' % (t0, src)); a('v_lshrrev_b32 v%d, 1, v%d' % (t0, t0)); a('v_or_b32 v%d, v%d, v%d' % (dst, dst, t0))
def half_sum(a, regs, tmp, op='v_permlane32_swap_b32'):
    for i, r in enumerate(regs): a('v_mov_b32 v%d, v%d' % (tmp + i, r))
    for i, r in enumerate(regs): a('%s v%d, v%d' % (op, tmp + i, r))
    for i, r in enumerate(regs): a('v_add_f32 v%d, v%d, v%d' % (r, r, tmp + i))
def unpack(a, dst, src, n, mask):
    for d in range(n):
        a('v_lshlrev_b32 v%d, 16, v%d' % (dst + 2 * d, src + d)); a('v_and_b32 v%d, s%d, v%d' % (dst + 2 * d + 1, mask, src + d))
def unpack_rev(a, dst, src, extra, mask):
    a('v_lshlrev_b32 v%d, 16, v%d' % (dst, extra))
    for i in range(1, 8):
        el = 8 - i
        if el & 1: a('v_and_b32 v%d, s%d, v%d' % (dst + i, mask, src + el // 2))
        else: a('v_lshlrev_b32 v%d, 16, v%d' % (dst + i, src + el // 2))
def token_of(a, dst, tmp, sq):
    a('v_lshlrev_b32 v%d, 6, v6' % dst); a('v_add_u32 v%d, s%d, v%d' % (dst, sq, dst))
    a('v_subrev_u32 v%d, 992, v%d' % (tmp, dst)); a('v_cmp_lt_u32 vcc, 15, v6'); a('s_cmp_eq_u32 s%d, 0' % sq); a('s_cselect_b64 vcc, vcc, 0')
    a('v_cndmask_b32 v%d, v%d, v%d, vcc' % (dst, dst, tmp))
def mirror_if(a, dst, t0, t1):
    a('s_cselect_b64 s[58:59], -1, 0')
    a('v_sub_u32 v%d, 2048, v%d' % (t0, dst)); a('v_cmp_eq_u32 vcc, 0, v%d' % dst); a('v_mov_b32 v%d, 1024' % t1); a('v_cndmask_b32 v%d, v%d, v%d, vcc' % (t0, t0, t1))
    a('v_cndmask_b32 v%d, v%d, v%d, s[58:59]' % (dst, dst, t0))

XP = 1040
def kA():
    a = XAsm(); name = 'ka_lnfft_kernel'
    SA = 64 * XP; GP = SA + 512
    head(a, name, 256)
    a('s_load_dwordx2 s[6:7], s[0:1], 104'); a('s_load_dwordx2 s[4:5], s[0:1], 0'); a('s_load_dwordx4 s[8:11], s[0:1], 72')
    ids(a)
    a('s_cmp_ge_u32 s3, 8'); a('s_cbranch_scc1 ka_gemv')
    a('s_lshr_b32 s23, s21, 3'); a('s_lshl_b32 s22, s20, 2'); a('s_add_u32 s23, s23, s22')
    a('s_and_b32 s24, s21, 7')
    a('s_lshl_b32 s25, s3, 18'); a('s_lshl_b32 s27, s23, 10'); a('s_add_u32 s25, s25, s27')
    a('s_mul_i32 s28, s3, %d' % (8 * XP)); a('s_mov_b32 s27, s24')
    a('v_and_b32 v12, 7, v1'); a('v_mul_u32_u24 v13, %d, v12' % XP); a('v_lshrrev_b32 v14, 3, v1'); a('v_lshl_add_u32 v13, v14, 7, v13'); a('v_add_u32 v13, s28, v13')
    a('s_waitcnt lgkmcnt(0)')
    srd(a, 12, 4, 2048 * 1024); srd(a, 16, 6, WSZ)
    stamp(a, 1)
    for i in range(8):
        a('s_mul_i32 s31, s27, %d' % XP); a('s_add_u32 m0, s31, s28'); a('s_lshl_b32 s32, s27, 15'); a('s_add_u32 s32, s32, s25')
        a('buffer_load_dwordx4 v3, s[12:15], s32 offen lds')
        if i < 7: a('s_add_u32 s27, s27, 1'); a('s_and_b32 s27, s27, 7')
    stamp(a, 2)
    if KA_MALL:
        a('s_sub_u32 s46, s3, 4'); a('s_cmp_ge_u32 s46, 3'); a('s_cbranch_scc1 ka_nm')
        a('s_lshl_b32 s46, s46, 3'); a('s_add_u32 s46, s46, 48'); a('s_load_dwordx2 s[52:53], s[0:1], s46')
        a('s_mov_b32 s54, %d' % (512 * 3584)); a('s_mov_b32 s55, 0x20000'); a('s_mul_i32 s46, s2, 7168'); a('v_min_u32 v8, 27, v1'); a('v_lshlrev_b32 v8, 8, v8')
        a('s_waitcnt lgkmcnt(0)')
        a('buffer_load_dword v160, v8, s[52:55], s46 offen')
        a.label('ka_nm')
    a('s_lshl_b32 s31, s3, 3'); a('v_add_u32 v17, s31, v12'); a('v_lshlrev_b32 v18, 1, v17'); a('v_lshlrev_b32 v17, 2, v17')
    a('v_add_u32 v17, %d, v17' % SA); a('v_add_u32 v18, %d, v18' % SA)
    for r in range(24, 32): a('v_mov_b32 v%d, 0' % r)
    a('v_mov_b32 v21, 0'); a('v_mov_b32 v22, 0x3f803f80'); a('s_mov_b32 s36, 0xffff0000')
    BF = 32
    a('s_cmp_ge_u32 s3, 4'); a('s_cbranch_scc1 ka_nogen')
    a('s_and_b32 s29, s3, 1'); a('s_lshr_b32 s30, s3, 1')
    a('s_lshl_b32 s31, s29, 5'); a('v_add_u32 v7, s31, v6')
    a('v_lshrrev_b32 v8, 1, v7'); a('v_cmp_eq_u32 vcc, 1, v7'); a('v_cndmask_b32 v8, v8, 32, vcc')
    a('v_and_b32 v9, 1, v7'); a('v_cndmask_b32 v9, v9, 0, vcc'); a('v_cvt_f32_u32 v9, v9'); a('v_mul_f32 v9, %s, v9' % fbits(-0.25))
    a('v_cvt_f32_u32 v8, v8'); a('v_mul_f32 v8, %s, v8' % fbits(1 / 64))
    a('v_lshlrev_b32 v10, 3, v4'); a('v_cvt_f32_u32 v10, v10')
    a('v_fma_f32 v%d, v8, v10, v9' % BF); a('v_mul_f32 v11, %s, v8' % fbits(16.0))
    for i in range(1, 8): a('v_add_f32 v%d, v%d, v8' % (BF + i, BF + i - 1))
    for k in range(8, 32): a('v_add_f32 v%d, v%d, v11' % (BF + k, BF + k - 8))
    for k in range(32): a('v_cos_f32 v%d, v%d' % (BF + k, BF + k))
    a('v_bfe_u32 v15, v1, 2, 2'); a('v_lshl_add_u32 v15, v4, 3, v15'); a('v_mul_u32_u24 v15, %d, v15' % XP)
    a('v_and_b32 v16, 1, v1'); a('v_lshl_add_u32 v15, v16, 5, v15'); a('v_bfe_u32 v16, v1, 4, 1'); a('v_lshl_add_u32 v15, v16, 4, v15')
    a('v_bfe_u32 v16, v1, 1, 1'); a('v_lshl_add_u32 v15, v16, 3, v15')
    a('s_lshl_b32 s31, s24, 7'); a('s_lshl_b32 s32, s30, 6'); a('s_add_u32 s31, s31, s32'); a('v_add_u32 v15, s31, v15')
    a('v_lshlrev_b32 v19, 5, v4'); a('v_add_u32 v19, %d, v19' % SA); a('v_lshlrev_b32 v20, 4, v4'); a('v_add_u32 v20, %d, v20' % SA)
    a('v_lshlrev_b32 v21, 6, v7'); a('v_lshl_add_u32 v21, v4, 5, v21')
    a('s_lshl_b32 s33, s24, 1'); a('s_add_u32 s33, s33, s30'); a('s_lshl_b32 s33, s33, 17'); a('s_lshl_b32 s34, s23, 12'); a('s_add_u32 s33, s33, s34'); a('s_add_u32 s33, s33, 0x%x' % ZB)
    a.label('ka_nogen')
    if KA_MALL:
        a('s_sub_u32 s46, s3, 4'); a('s_cmp_ge_u32 s46, 3'); a('s_cbranch_scc1 ka_w0')
        a('s_waitcnt vmcnt(1)'); a('s_branch ka_w1')
        a.label('ka_w0')
    a('s_waitcnt vmcnt(0)')
    a.label('ka_w1')
    stamp(a, 3)
    XR = 64
    for j in range(8): a('ds_read_b128 v[%d:%d], v13 offset:%d' % (XR + 4 * j, XR + 4 * j + 3, 16 * j))
    for j in range(8):
        a('s_waitcnt lgkmcnt(%d)' % (7 - j))
        for d in range(4):
            a('v_dot2c_f32_bf16 v%d, v%d, v22' % (24 + d, XR + 4 * j + d)); a('v_dot2c_f32_bf16 v%d, v%d, v%d' % (28 + d, XR + 4 * j + d, XR + 4 * j + d))
    a('s_nop 2')
    a('v_add_f32 v24, v24, v25'); a('v_add_f32 v26, v26, v27'); a('v_add_f32 v28, v28, v29'); a('v_add_f32 v30, v30, v31')
    a('v_add_f32 v24, v24, v26'); a('v_add_f32 v25, v28, v30')
    a('v_add_f32_dpp v24, v24, v24 row_ror:8'); a('v_add_f32_dpp v25, v25, v25 row_ror:8')
    half_sum(a, [24, 25], 26, 'v_permlane16_swap_b32'); half_sum(a, [24, 25], 26)
    a('v_mul_f32 v24, %s, v24' % fbits(-1.0 / 512)); a('v_mul_f32 v25, %s, v25' % fbits(1.0 / 512))
    a('v_fma_f32 v25, -v24, v24, v25'); a('v_max_f32 v25, 0, v25'); a('v_add_f32 v25, %s, v25' % fbits(1e-5)); a('v_rsq_f32 v25, v25')
    a('v_cvt_pk_bf16_f32 v26, v24, v24'); a('v_and_b32 v27, s36, v26'); a('v_sub_f32 v27, v24, v27'); a('v_cvt_pk_bf16_f32 v27, v27, v27')
    a('ds_write_b32 v17, v25'); a('ds_write_b16 v18, v26 offset:256'); a('ds_write_b16 v18, v27 offset:384')
    a('s_waitcnt lgkmcnt(0)'); a('s_barrier')
    stamp(a, 4)
    a('s_cmp_ge_u32 s3, 4'); a('s_cbranch_scc1 ka_pf')
    RR = 64; AF = 96; MF = 112; ACC = 64
    for j in range(4):
        for k in range(2): a('ds_read_b128 v[%d:%d], v19 offset:%d' % (RR + 8 * j + 4 * k, RR + 8 * j + 4 * k + 3, 64 * j + 16 * k), tag='r%d' % j)
    for j in range(4):
        for hf in range(2): a('ds_read_b64_tr_b16 v[%d:%d], v15 offset:%d' % (AF + 4 * j + 2 * hf, AF + 4 * j + 2 * hf + 1, (16 * j + 4 * hf) * XP), tag='a%d' % j)
    for j in range(4):
        a.wait_lg('r%d' % j)
        for i in range(0, 8, 2): a.pk('v_pk_mul_f32', BF + 8 * j + i, BF + 8 * j + i, RR + 8 * j + i)
        for d in range(4): a('v_cvt_pk_bf16_f32 v%d, v%d, v%d' % (BF + 8 * j + d, BF + 8 * j + 2 * d, BF + 8 * j + 2 * d + 1))
        for k in range(2): a('ds_read_b128 v[%d:%d], v20 offset:%d' % (MF + 8 * j + 4 * k, MF + 8 * j + 4 * k + 3, 256 + 128 * k + 32 * j), tag='m%d' % j)
    for j in range(4):
        a.wait_lg('a%d' % j); a.mfma(ACC, AF + 4 * j, BF + 8 * j, j == 0)
    for j in range(4):
        a.wait_lg('m%d' % j); a.mfma(ACC, MF + 8 * j, BF + 8 * j); a.mfma(ACC, MF + 8 * j + 4, BF + 8 * j)
    for d in range(8): a('v_cvt_pk_bf16_f32 v%d, v%d, v%d' % (80 + d, ACC + 2 * d, ACC + 2 * d + 1))
    a('buffer_store_dwordx4 v[80:83], v21, s[16:19], s33 offen %s' % ZST); a('buffer_store_dwordx4 v[84:87], v21, s[16:19], s33 offen offset:16 %s' % ZST)
    stamp(a, 5)
    a('s_branch %s_end' % name)
    a.role('ka_pf')
    if PF_MODE == 'mall':
        a('s_cmp_eq_u32 s26, 3'); a('s_cbranch_scc1 ka_pf2')
        a('s_lshl_b32 s46, s26, 3'); a('s_add_u32 s46, s46, 48'); a('s_load_dwordx2 s[52:53], s[0:1], s46')
        a('s_mov_b32 s54, %d' % (512 * 3584)); a('s_mov_b32 s55, 0x20000'); a('s_mul_i32 s46, s2, 7168'); a('v_lshlrev_b32 v8, 7, v1')
        a('s_waitcnt lgkmcnt(0)')
        a('s_mov_b32 exec_hi, 0xffffff')
        a('buffer_load_dword v10, v8, s[52:55], s46 offen')
        a('s_mov_b64 exec, -1')
        a.label('ka_pf2')
    if PF_CODE:
        a('s_cmp_ge_u32 s21, 2'); a('s_cbranch_scc1 %s_end' % name)
        a('s_getpc_b64 s[40:41]')
        a.label('ka_pc')
        a('s_add_u32 s40, s40, kb_main_kernel-ka_pc'); a('s_addc_u32 s41, s41, 0')
        a('s_mov_b32 s42, kb_main_kernel_exit-kb_main_kernel'); a('s_mov_b32 s43, 0x20000')
        a('s_lshl_b32 s44, s21, 2'); a('s_add_u32 s44, s44, s26'); a('s_lshl_b32 s44, s44, 12')
        a('v_lshlrev_b32 v8, 6, v1')
        a('buffer_load_dword v9, v8, s[40:43], s44 offen')
    a('s_branch %s_end' % name)
    a.role('ka_gemv')
    a('v_and_b32 v5, 255, v0'); a('v_lshrrev_b32 v7, 3, v5'); a('v_and_b32 v8, 7, v5')
    a('s_lshr_b32 s22, s2, 2'); a('s_and_b32 s23, s2, 3')
    a('v_lshlrev_b32 v9, 3, v7'); a('s_lshl_b32 s24, s23, 8')
    a('v_mul_u32_u24 v10, %d, v7' % (4 * 6144)); a('v_lshl_add_u32 v10, v8, 4, v10')
    a('s_mul_i32 s25, s23, %d' % (128 * 6144)); a('s_lshl_b32 s27, s22, 7'); a('s_add_u32 s25, s25, s27')
    a('v_lshrrev_b32 v30, 4, v5'); a('v_lshlrev_b32 v30, 8, v30'); a('v_lshl_add_u32 v30, v8, 5, v30'); a('v_add_u32 v30, %d, v30' % GP)
    a('s_waitcnt lgkmcnt(0)')
    srd(a, 12, 8, 1024); srd(a, 28, 10, 512 * 6144); srd(a, 16, 6, WSZ)
    stamp(a, 1)
    a('s_cmp_lt_u32 s2, 192'); a('s_cbranch_scc1 ka_job')
    a('s_barrier')
    a('s_cmp_lt_u32 s2, 254'); a('s_cbranch_scc1 %s_end' % name)
    for r in range(12, 16): a('v_mov_b32 v%d, 0' % r)
    a('s_and_b32 s24, s2, 1'); a('s_lshl_b32 s24, s24, 2'); a('s_add_u32 s24, s24, s26'); a('s_lshl_b32 s24, s24, 10'); a('s_add_u32 s24, s24, 0x%x' % FLAGB)
    a('buffer_store_dwordx4 v[12:15], v3, s[16:19], s24 offen')
    a('s_branch %s_end' % name)
    a.role('ka_job')
    a('buffer_load_dwordx2 v[12:13], v9, s[12:15], s24 offen', tag='c')
    for i in range(4):
        a('buffer_load_dwordx4 v[%d:%d], v10, s[28:31], s25 offen' % (32 + 4 * i, 35 + 4 * i), tag='w%d' % i)
        if i < 3: a('s_add_u32 s25, s25, 6144')
    a('s_mov_b32 s36, 0xffff0000'); a('s_mov_b32 s40, 0x05040100'); a('s_mov_b32 s41, 0x07060302')
    for c in range(8): a('v_mov_b32 v%d, 0' % (64 + c))
    a.wait_vm('c')
    stamp(a, 2)
    unpack(a, 16, 12, 2, 36)
    for i in range(4): a('v_mul_f32 v%d, %s, v%d' % (20 + i, fbits(-LOG2E), 16 + i))
    for i in range(4): a('v_exp_f32 v%d, v%d' % (20 + i, 20 + i))
    for i in range(4): a('v_add_f32 v%d, 1.0, v%d' % (20 + i, 20 + i))
    for i in range(4): a('v_rcp_f32 v%d, v%d' % (20 + i, 20 + i))
    for i in range(4): a('v_mul_f32 v%d, v%d, v%d' % (20 + i, 20 + i, 16 + i))
    for d in range(2): a('v_cvt_pk_bf16_f32 v%d, v%d, v%d' % (12 + d, 20 + 2 * d, 21 + 2 * d))
    for ip in range(2):
        a.wait_vm('w%d' % (2 * ip + 1))
        r0 = 32 + 8 * ip; r1 = r0 + 4
        for d in range(4):
            a('v_perm_b32 v%d, v%d, v%d, s40' % (48 + 2 * d, r1 + d, r0 + d)); a('v_perm_b32 v%d, v%d, v%d, s41' % (49 + 2 * d, r1 + d, r0 + d))
        for c in range(8): a('v_dot2c_f32_bf16 v%d, v%d, v%d' % (64 + c, 48 + c, 12 + ip))
        a('s_nop 2')
    for c in range(8): a('v_add_f32_dpp v%d, v%d, v%d row_ror:8' % (64 + c, 64 + c, 64 + c))
    a('ds_write_b128 v30, v[64:67]'); a('ds_write_b128 v30, v[68:71] offset:16')
    a('s_waitcnt lgkmcnt(0)'); a('s_barrier')
    stamp(a, 3)
    a('s_cmp_lg_u32 s3, 8'); a('s_cbranch_scc1 %s_end' % name)
    a('v_lshlrev_b32 v10, 2, v1'); a('v_add_u32 v10, %d, v10' % GP)
    for p in range(8): a('ds_read2st64_b32 v[%d:%d], v10 offset0:%d offset1:%d' % (32 + 2 * p, 33 + 2 * p, 2 * p, 2 * p + 1))
    a('s_lshr_b32 s24, s22, 3')
    a('s_lshl_b32 s25, s22, 6'); a('v_add_u32 v23, s25, v1'); a('v_and_b32 v26, 511, v23')
    a('v_sub_u32 v27, 512, v26'); a('v_and_b32 v27, 255, v27'); a('v_or_b32 v27, 256, v27')
    a('v_cmp_lt_u32 vcc, 255, v26'); a('s_sub_u32 s25, s24, 2'); a('s_cmp_lt_u32 s25, 3'); a('s_cselect_b64 vcc, vcc, 0')
    a('v_cndmask_b32 v27, v26, v27, vcc'); a('v_lshlrev_b32 v27, 2, v27')
    a('s_lshl_b32 s24, s24, 11'); a('s_mul_i32 s25, s23, 12288'); a('s_add_u32 s24, s24, s25')
    a('s_waitcnt lgkmcnt(0)')
    for st in (8, 4, 2, 1):
        for i in range(st): a('v_add_f32 v%d, v%d, v%d' % (32 + i, 32 + i, 32 + st + i))
    a('buffer_store_dword v32, v27, s[16:19], s24 offen %s' % ZST)
    finish(a, name, 0)
    return name, a.text() + kernel_desc(name, 168, 100), (256, 768, GP + 4096)

def cheb(a, dst, p1, p2, K):
    for i in range(0, 8, 2):
        a('v_pk_fma_f32 v[%d:%d], v[%d:%d], v[%d:%d], v[%d:%d] op_sel_hi:[1,0,1] neg_lo:[0,0,1] neg_hi:[0,0,1]' % (
            dst + i, dst + i + 1, p1 + i, p1 + i + 1, K, K + 1, p2 + i, p2 + i + 1))

WSL = 14464; WU = 7296; RW = 8; RZ = 5; NPRE = 5
PS = 156672
def lds_map():
    global ZR0, G2H, SBH, GBH, CSX, CNT, STL, LDS_TOTAL, TB, ZI, B1L, G1L, GAL, G2L, SAL, EXT, YST, DREG, DHALF
    ZR0 = RW * WSL
    assert ZR0 + RZ * 8192 <= PS
    G2H = PS; SBH = PS + 1024; GBH = PS + 2048; CSX = PS + 3072; CNT = PS + 6656; STL = PS
    LDS_TOTAL = PS + 7168
    TB = 5 * WSL
    ZI = TB; B1L = TB + 65536; G1L = B1L + 8192; GAL = G1L + 2048; G2L = GAL + 2048; SAL = CSX; EXT = G2L + 2048
    assert EXT + 2048 <= PS and NPRE <= 5
    YST = CSX + 2048
    DREG = 14336; DHALF = 5 * DREG
lds_map()

def poll(a, lbl, soff, nlanes):
    a('v_lshlrev_b32 v8, 2, v1'); a('s_mov_b32 s57, 0'); a('s_mov_b32 exec_lo, 0x%x' % ((1 << nlanes) - 1)); a('s_mov_b32 exec_hi, 0')
    a.label(lbl)
    a('buffer_load_dword v9, v8, s[16:19], s%d offen sc1' % soff); a('s_waitcnt vmcnt(0)')
    a('v_cmp_ne_u32 vcc, 0, v9'); a('s_cmp_eq_u32 vcc_lo, 0x%x' % ((1 << nlanes) - 1)); a('s_cbranch_scc1 %s_ok' % lbl)
    a('s_sleep %d' % PSLEEP); a('s_add_u32 s57, s57, 1'); a('s_cmp_lt_u32 s57, %d' % SPIN); a('s_cbranch_scc1 %s' % lbl)
    a.label(lbl + '_ok')
    a('s_mov_b64 exec, -1')
def lds_spin(a, lbl, addr, val):
    a('v_mov_b32 v8, %d' % addr); a('s_mov_b32 s57, 0')
    a.label(lbl)
    a('ds_read_b32 v9, v8'); a('s_waitcnt lgkmcnt(0)'); a('v_readfirstlane_b32 s56, v9')
    a('s_cmp_ge_u32 s56, %d' % val); a('s_cbranch_scc1 %s_ok' % lbl)
    a('s_sleep %d' % LSLEEP); a('s_add_u32 s57, s57, 1'); a('s_cmp_lt_u32 s57, %d' % (SPIN * 16)); a('s_cbranch_scc1 %s' % lbl)
    a.label(lbl + '_ok')
def lds_inc(a, addr):
    a('v_mov_b32 v8, %d' % addr); a('v_mov_b32 v9, 1'); a('s_mov_b64 exec, 1'); a('ds_add_u32 v8, v9'); a('s_mov_b64 exec, -1')
def arrive(a, lbl, addr, n, soff, total=0):
    a('s_waitcnt vmcnt(0)')
    a('v_mov_b32 v8, %d' % addr); a('v_mov_b32 v9, 1'); a('s_mov_b64 exec, 1')
    a('ds_add_rtn_u32 v10, v8, v9'); a('s_waitcnt lgkmcnt(0)'); a('v_readfirstlane_b32 s56, v10')
    a('s_cmp_lg_u32 s56, %d' % (n - 1)); a('s_cbranch_scc1 %s' % lbl)
    a('v_mov_b32 v8, 0')
    if total:
        a('v_mov_b32 v10, 1'); a('buffer_atomic_add v10, v8, s[16:19], s%d offen sc0 sc1' % soff); a('s_waitcnt vmcnt(0)'); a('v_readfirstlane_b32 s56, v10')
        a('s_cmp_lg_u32 s56, %d' % (total - 1)); a('s_cbranch_scc1 %s' % lbl)
        a('buffer_store_dword v9, v8, s[16:19], s%d offen offset:128 sc1' % soff)
    else:
        a('buffer_store_dword v9, v8, s[16:19], s%d offen sc1' % soff)
    a.label(lbl)
    a('s_mov_b64 exec, -1')

def gen_a2(a, A2, CH, sphase):
    swap23_v(a, 9, 6, 10); a('s_lshl_b32 s32, s22, 5'); a('v_add_u32 v9, s32, v9')
    a('s_lshl_b32 s32, s25, 5'); a('v_lshl_add_u32 v8, v4, 3, s32')
    a('v_mul_u32_u24 v12, v9, v8'); a('v_and_b32 v12, 511, v12'); a('v_cvt_f32_u32 v12, v12'); a('v_cvt_f32_u32 v13, v9')
    a('v_mul_f32 v13, %s, v13' % fbits(1 / 512)); a('v_mov_b32 v%d, %s' % (CH[0], sphase)); a('v_fmac_f32 v%d, %s, v12' % (CH[0], fbits(1 / 512)))
    a('v_mul_f32 v10, %s, v13' % fbits(16.0))
    for i in range(1, 8): a('v_add_f32 v%d, v%d, v13' % (CH[0] + i, CH[0] + i - 1))
    for i in range(8): a('v_add_f32 v%d, v%d, v10' % (CH[1] + i, CH[0] + i))
    a('v_cos_f32 v10, v10')
    for g in range(2):
        for i in range(8): a('v_cos_f32 v%d, v%d' % (CH[g] + i, CH[g] + i))
    a('v_add_f32 v10, v10, v10')
    for j in range(8):
        c = CH[j % 3]
        if j >= 2: cheb(a, c, CH[(j - 1) % 3], CH[(j - 2) % 3], 10)
        for d in range(4): a('v_cvt_pk_bf16_f32 v%d, v%d, v%d' % (A2 + 4 * j + d, c + 2 * d, c + 2 * d + 1))
def z_bases(a):
    a('v_bfe_u32 v10, v1, 2, 2'); a('v_lshl_add_u32 v10, v4, 3, v10'); a('v_lshlrev_b32 v10, 7, v10')
    a('v_bfe_u32 v11, v1, 4, 1'); a('v_lshl_add_u32 v10, v11, 5, v10'); a('v_and_b32 v11, 1, v1'); a('v_lshl_add_u32 v10, v11, 4, v10')
    a('v_bfe_u32 v11, v1, 1, 1'); a('v_lshl_add_u32 v10, v11, 3, v10'); a('v_bfe_u32 v11, v1, 3, 1'); a('v_lshl_add_u32 v10, v11, 6, v10')
    a('v_xor_b32 v11, 64, v10')
    a('s_lshl_b32 s32, s26, 12'); a('s_add_u32 s32, s32, %d' % ZI); a('v_add_u32 v10, s32, v10'); a('v_add_u32 v11, s32, v11')
    a('v_lshlrev_b32 v12, 5, v4'); a('v_add_u32 v12, %d, v12' % G1L)
    a('v_mov_b32 v14, 0'); a('v_mov_b32 v15, 0xbf803f80')

def kM():
    lds_map()
    a = XAsm(); name = 'kb_main_kernel'
    head(a, name, 256)
    a('s_load_dwordx2 s[6:7], s[0:1], 104')
    ids(a)
    a('s_and_b32 s22, s21, 7'); a('s_lshr_b32 s23, s21, 3'); a('s_lshl_b32 s24, s20, 2'); a('s_add_u32 s23, s23, s24')
    a('s_lshl_b32 s25, s26, 2'); a('s_lshl_b32 s24, s22, 1'); a('s_add_u32 s25, s25, s24')
    lg = {'2x16': 1, '4x8': 2, '8x4': 3, '16x2': 4}[K4_MAP]; gm = (1 << (lg - 1)) - 1
    def cmap():
        a('s_and_b32 s50, s21, %d' % ((1 << lg) - 1)); a('s_lshr_b32 s48, s21, %d' % lg); a('s_and_b32 s51, s20, %d' % gm); a('s_lshl_b32 s51, s51, %d' % (5 - lg)); a('s_add_u32 s48, s48, s51')
        a('s_lshr_b32 s49, s50, %d' % (lg - 1)); a('s_lshl_b32 s49, s49, 3'); a('s_and_b32 s51, s20, %d' % (7 & ~gm)); a('s_add_u32 s49, s49, s51')
        a('s_and_b32 s51, s50, %d' % gm); a('s_add_u32 s49, s49, s51'); a('s_lshl_b32 s49, s49, 2')
        a('s_lshl_b32 s50, s50, %d' % (4 - lg)); a('s_lshl_b32 s51, s48, %d' % (lg - 1)); a('s_add_u32 s50, s50, s51'); a('s_and_b32 s50, s50, 15')
        if not K4_ROT: a('s_mov_b32 s50, 0')
    def dmap():
        a('s_and_b32 s51, s21, 3'); a('s_lshr_b32 s52, s21, 2')
        a('s_lshr_b32 s53, s51, 1'); a('s_lshl_b32 s53, s53, 5'); a('s_lshl_b32 s54, s20, 2'); a('s_add_u32 s53, s53, s54')
        a('s_and_b32 s54, s51, 1'); a('s_lshl_b32 s54, s54, 1'); a('s_add_u32 s53, s53, s54')
        a('s_lshl_b32 s54, s51, 1'); a('s_add_u32 s54, s54, s52'); a('s_and_b32 s54, s54, 7'); a('s_cmp_eq_u32 s54, 7'); a('s_cselect_b32 s54, 3, s54')
        if not K5_ROT: a('s_mov_b32 s54, 0')
    LO, UP, CUR = 136, 144, 152
    uid = [0]
    def w_setup(who, smat, spart, npc):
        a('s_cmp_eq_u32 s%d, 1' % smat); a('s_cselect_b32 s40, s10, s8'); a('s_cselect_b32 s41, s11, s9'); a('s_mov_b32 s42, %d' % (512 * 3584)); a('s_mov_b32 s43, 0x20000')
        a('s_mul_i32 s30, s%d, %d' % (spart, 64 * npc))
        for q in range(min(npc, 7)):
            a('v_add_u32 v8, s30, v1')
            if q: a('v_add_u32 v8, %d, v8' % (64 * q))
            a('v_mul_u32_u24 v9, 4682, v8'); a('v_lshrrev_b32 v9, 16, v9')
            a('v_mul_u32_u24 v10, 14, v9'); a('v_sub_u32 v10, v8, v10'); a('v_lshlrev_b32 v10, 4, v10')
            a('v_mul_u32_u24 v11, 3584, v9'); a('v_add_u32 v%d, v11, v10' % (LO + q))
            a('v_sub_u32 v11, %d, v11' % (287 * 3584)); a('v_add_u32 v%d, v11, v10' % (UP + q))
            if q == 0:
                a('v_subrev_u32 v161, %d, v%d' % (256 * 3584, UP)); a('v_cmp_eq_u32 vcc, 0, v9'); a('v_cndmask_b32 v161, v%d, v161, vcc' % UP)
        a('s_mul_i32 s30, s48, 224'); a('s_add_u32 s31, s30, %d' % (225 * 3584))
        a('s_mul_i32 s44, s%d, %d' % (smat, WU)); a('s_mul_i32 s45, s%d, %d' % (spart, 1024 * npc)); a('s_add_u32 s44, s44, s45'); a('s_add_u32 s45, s44, %d' % ZR0)
        a('s_mov_b32 s47, s44')
        def sethalf(upper):
            if upper:
                a('v_mov_b32 v%d, v161' % CUR); a('v_mov_b32 v160, v%d' % UP)
                for q in range(1, min(npc, 7)): a('v_mov_b32 v%d, v%d' % (CUR + q, UP + q))
                a('s_mov_b32 s60, s31'); a('s_mov_b32 s61, %d' % (-32 * 3584))
            else:
                a('v_mov_b32 v160, v%d' % LO)
                for q in range(min(npc, 7)): a('v_mov_b32 v%d, v%d' % (CUR + q, LO + q))
                a('s_mov_b32 s60, s30'); a('s_mov_b32 s61, %d' % (32 * 3584))
        a('s_cmp_ge_u32 s55, 8'); a('s_cbranch_scc1 km_w_u0%s' % who)
        sethalf(False); a('s_branch km_w_go%s' % who)
        a.label('km_w_u0%s' % who); sethalf(True)
        a('s_cmp_eq_u32 s55, 8'); a('s_cbranch_scc1 km_w_go%s' % who); a('v_mov_b32 v%d, v160' % CUR)
        a.label('km_w_go%s' % who)
        a('s_and_b32 s32, s55, 7'); a('s_mul_i32 s32, s32, s61'); a('s_add_u32 s60, s60, s32')
        def w_issue():
            uid[0] += 1; u = uid[0]
            a('s_mov_b32 m0, s47')
            for q in range(npc - 1):
                a('buffer_load_dwordx4 v%d, s[40:43], s60 offen lds' % (CUR + q)); a('s_add_u32 m0, m0, 1024')
            if npc < 8:
                a('s_cmp_eq_u32 s%d, %d' % (spart, 8 // npc - 1)); a('s_cbranch_scc1 km_w_s%d' % u)
                a('buffer_load_dwordx4 v%d, s[40:43], s60 offen lds' % (CUR + npc - 1))
                a.label('km_w_s%d' % u)
            a('v_mov_b32 v%d, v160' % CUR); a('s_add_u32 s60, s60, s61')
            a('s_add_u32 s47, s47, %d' % WSL); a('s_cmp_eq_u32 s47, s45'); a('s_cselect_b32 s47, s44, s47')
            a('s_add_u32 s24, s24, 1'); a('s_add_u32 s55, s55, 1'); a('s_and_b32 s32, s55, 7')
            a('s_cmp_lg_u32 s32, 0'); a('s_cbranch_scc1 km_w_e%d' % u)
            a('s_cmp_eq_u32 s55, 16'); a('s_cbranch_scc1 km_w_l%d' % u)
            sethalf(True); a('s_branch km_w_e%d' % u)
            a.label('km_w_l%d' % u); sethalf(False); a('s_mov_b32 s55, 0')
            a.label('km_w_e%d' % u)
        return w_issue
    a('s_cmp_lt_u32 s3, 8'); a('s_cbranch_scc1 km_compute')
    a('s_load_dwordx4 s[8:11], s[0:1], 48')
    if H_PRIO: a('s_setprio %d' % H_PRIO)
    a('v_lshrrev_b32 v5, 3, v1'); a('v_lshlrev_b32 v5, 12, v5'); a('v_and_b32 v7, 7, v1'); a('v_lshrrev_b32 v8, 2, v1'); a('v_and_b32 v8, 4, v8'); a('v_xor_b32 v7, v7, v8')
    a('v_lshl_add_u32 v5, v7, 4, v5')
    a('s_lshl_b32 s27, s23, 7'); a('s_add_u32 s27, s27, 0x%x' % ZB)
    a('s_lshl_b32 s28, s26, 12'); a('s_add_u32 s28, s28, %d' % ZI)
    a('s_lshl_b32 s33, s26, 9'); a('v_lshlrev_b32 v16, 4, v6'); a('v_add_u32 v16, s33, v16')
    a('v_lshlrev_b32 v17, 11, v4'); a('v_sub_u32 v17, 2048, v17'); a('v_add_u32 v17, v17, v16')
    a('v_mul_u32_u24 v18, %d, v4' % (SAL - G1L)); a('v_add_u32 v18, v18, v16'); a('v_add_u32 v18, %d, v18' % G1L)
    a('v_cvt_f32_u32 v19, v4'); a('v_sub_f32 v19, 1.0, v19')
    a('s_mov_b32 s46, 0xffff0000'); a('s_mov_b32 s34, 12288'); a('s_mov_b32 s35, 24576'); a('s_mov_b32 s36, 36864')
    a('v_mov_b32 v8, %d' % CNT)
    for r in range(12, 16): a('v_mov_b32 v%d, 0' % r)
    a('ds_write_b128 v8, v[12:15]'); a('ds_write_b128 v8, v[12:15] offset:16'); a('ds_write_b128 v8, v[12:15] offset:32')
    a('s_waitcnt lgkmcnt(0)')
    srd(a, 16, 6, WSZ)
    stamp(a, 1)
    def zdma(i):
        a('s_add_u32 s32, s25, %d' % i); a('s_and_b32 s32, s32, 15'); a('s_lshl_b32 s32, s32, 17'); a('s_add_u32 s32, s32, s27')
        a('s_add_u32 m0, s28, %d' % (16384 * i))
        for k in range(4):
            a('buffer_load_dwordx4 v5, s[16:19], s32 offen lds', tag='z%d' % i)
            if k < 3: a('s_add_u32 m0, m0, 1024'); a('s_add_u32 s32, s32, 32768')
    FP = 32
    zdma(0)
    for p, so in enumerate(('0', 's34', 's35', 's36')): a('buffer_load_dwordx4 v[%d:%d], v17, s[16:19], %s offen' % (FP + 4 * p, FP + 4 * p + 3, so), tag='f1')
    zdma(1); zdma(2); zdma(3)
    a.wait_vm('z0'); a.bar()
    a.wait_vm('f1')
    for i in (0, 2): a.pk('v_pk_add_f32', FP + i, FP + i, FP + 4 + i); a.pk('v_pk_add_f32', FP + 8 + i, FP + 8 + i, FP + 12 + i)
    for i in (0, 2): a.pk('v_pk_add_f32', FP + i, FP + i, FP + 8 + i)
    for d in range(2): a('v_cvt_pk_bf16_f32 v%d, v%d, v%d' % (FP + 4 + d, FP + 2 * d, FP + 2 * d + 1))
    unpack(a, FP, FP + 4, 2, 46)
    for i in range(4): a('v_add_f32 v%d, v19, v%d' % (FP + i, FP + i))
    for d in range(2): a('v_cvt_pk_bf16_f32 v%d, v%d, v%d' % (FP + 4 + d, FP + 2 * d, FP + 2 * d + 1))
    unpack(a, FP, FP + 4, 2, 46)
    a('ds_write_b128 v18, v[%d:%d]' % (FP, FP + 3))
    a('s_waitcnt lgkmcnt(0)')
    a.wait_vm('z1'); a.bar()
    stamp(a, 2)
    a('s_add_u32 s34, s26, 2'); a('s_lshl_b32 s34, s34, 11')
    for p in range(4):
        for k in range(2): a('buffer_load_dwordx4 v[%d:%d], v3, s[16:19], s34 offen offset:%d' % (FP + 8 * p + 4 * k, FP + 8 * p + 4 * k + 3, 1024 * k), tag='f2')
        if p < 3: a('s_add_u32 s34, s34, 12288')
    a.wait_vm('z3'); a.bar()
    a('s_and_b32 s37, s26, 1'); a('s_lshr_b32 s38, s26, 1')
    cmap()
    a.wait_vm('f2')
    for i in range(0, 8, 2): a.pk('v_pk_add_f32', FP + i, FP + i, FP + 8 + i); a.pk('v_pk_add_f32', FP + 16 + i, FP + 16 + i, FP + 24 + i)
    for i in range(0, 8, 2): a.pk('v_pk_add_f32', FP + i, FP + i, FP + 16 + i)
    for d in range(4): a('v_cvt_pk_bf16_f32 v%d, v%d, v%d' % (FP + 8 + d, FP + 2 * d, FP + 2 * d + 1))
    unpack(a, FP, FP + 8, 4, 46)
    a('s_cmp_eq_u32 s26, 2'); a('s_cselect_b32 s35, 1.0, 0')
    for i in range(8): a('v_add_f32 v%d, s35, v%d' % (FP + i, FP + i))
    for d in range(4): a('v_cvt_pk_bf16_f32 v%d, v%d, v%d' % (FP + 8 + d, FP + 2 * d, FP + 2 * d + 1))
    unpack(a, FP, FP + 8, 4, 46)
    a('s_lshl_b32 s32, s26, 3'); a('s_lshr_b32 s33, 0x02000103, s32'); a('s_and_b32 s33, s33, 3'); a('s_lshl_b32 s33, s33, 10'); a('s_add_u32 s33, s33, %d' % PS)
    a('v_lshl_add_u32 v20, v1, 3, s33')
    a('s_cmp_eq_u32 s26, 0'); a('s_cbranch_scc1 km_h_noh')
    a('ds_write_b64 v20, v[%d:%d]' % (FP + 8, FP + 9)); a('ds_write_b64 v20, v[%d:%d] offset:512' % (FP + 10, FP + 11))
    a.label('km_h_noh')
    a('s_cmp_eq_u32 s37, 1'); a('s_cbranch_scc1 km_h_nof')
    a('s_lshl_b32 s32, s38, 11'); a('s_add_u32 s32, s32, %d' % GAL); a('v_add_u32 v8, s32, v3')
    a('ds_write_b128 v8, v[%d:%d]' % (FP, FP + 3)); a('ds_write_b128 v8, v[%d:%d] offset:1024' % (FP + 4, FP + 7))
    a.label('km_h_nof')
    a('s_load_dwordx2 s[4:5], s[0:1], 64')
    a('s_waitcnt lgkmcnt(0)')
    lds_inc(a, CNT + 4)
    stamp(a, 3)
    srd(a, 12, 4, 1792 * 1024)
    def c_iters(p, first, issue, last_issue, nper, look, upto):
        a('s_mov_b32 s29, 0')
        a.label(p + '_loop')
        a('s_cmp_lt_u32 s29, %d' % first); a('s_cbranch_scc1 %s_noi' % p)
        if 'Cnoload' not in EXP: issue()
        a.label(p + '_noi')
        a('s_waitcnt vmcnt(%d)' % (nper * look))
        a('s_barrier')
        a('s_add_u32 s29, s29, 1'); a('s_cmp_lt_u32 s29, %d' % upto); a('s_cbranch_scc1 %s_loop' % p)
    a('s_cmp_eq_u32 s38, 1'); a('s_cbranch_scc1 km_hz')
    a('s_mov_b32 s55, s50'); a('s_mov_b32 s24, 0'); a('s_mov_b32 s39, 0')
    w_issue = w_setup('h', 37, 39, 8)
    NST = 16 >> lg
    if W_START == 'tfree': lds_spin(a, 'km_spinT', CNT + 12, 4)
    elif W_START == 'arr': lds_spin(a, 'km_spinT', CNT, 4)
    elif W_START == 'iss': lds_spin(a, 'km_spinT', CNT + 36, 4)
    stamp(a, 4)
    a.label('km_hw_pre')
    w_issue()
    a('s_cmp_lg_u32 s24, %d' % (NST + 1)); a('s_cbranch_scc1 km_hw_pre1')
    a('s_waitcnt vmcnt(7)'); lds_inc(a, CNT + 16)
    a.label('km_hw_pre1')
    if W_START == 'fin2':
        a('s_cmp_lg_u32 s24, %d' % NPRE); a('s_cbranch_scc1 km_hw_pre2')
        lds_spin(a, 'km_spinT', CNT + 12, 4)
        a.label('km_hw_pre2')
    a('s_cmp_lt_u32 s24, %d' % RW); a('s_cbranch_scc1 km_hw_pre')
    stamp(a, 5)
    a('s_lshl_b32 s33, s37, 1'); a('s_add_u32 s33, s33, s49'); a('s_lshl_b32 s33, s33, 12'); a('s_add_u32 s33, s33, 0x%x' % STATS)
    a('v_lshlrev_b32 v16, 3, v6'); a('v_lshl_add_u32 v16, v4, 12, v16')
    a('s_lshl_b32 s34, s20, 5'); a('s_and_b32 s35, s21, %d' % (31 & ~((1 << lg) - 1))); a('s_add_u32 s34, s34, s35')
    a('s_lshl_b32 s35, s34, 2'); a('s_add_u32 s35, s35, 0x%x' % FLAGS)
    a('s_lshl_b32 s34, s34, 11'); a('s_lshl_b32 s36, s37, 10'); a('s_add_u32 s34, s34, s36'); a('s_add_u32 s34, s34, 0x%x' % CSP)
    a.bar()
    LW = 17 - RW
    c_iters('km_hw', 2, w_issue, LW, 7, RW - 3, LW + 1); a.nbar += LW + 1
    NP = 1 << lg
    a.vm = 0; a.tags = {}
    for st in range(LW + 2, 16): a.vm += 7; a.tags['W%d' % st] = a.vm
    ST = 32
    for b in range(LW + 1, 16):
        if b == LW + 1:
            for c in range(16): a('buffer_load_dwordx2 v[%d:%d], v16, s[16:19], s33 offen offset:%d sc1' % (ST + 2 * c, ST + 2 * c + 1, 256 * c), tag='st')
        if b == TAIL_B:
            poll(a, 'km_pollS', 35, NP)
            for p in range(NP):
                a('buffer_load_dwordx4 v[%d:%d], v3, s[16:19], s34 offen sc1' % (64 + 4 * p, 67 + 4 * p), tag='cp'); a('s_add_u32 s34, s34, 2048')
            for st in (16, 8, 4, 2):
                for i in range(0, st, 2): a.pk('v_pk_add_f32', ST + i, ST + i, ST + st + i)
            a('v_mul_f32 v10, %s, v%d' % (fbits(-1.0 / 512), ST))
            a('v_mul_f32 v11, %s, v%d' % (fbits(1.0 / 512), ST + 1)); a('v_fma_f32 v11, -v10, v10, v11'); a('v_max_f32 v11, 0, v11')
            a('v_add_f32 v11, %s, v11' % fbits(1e-5))
            a('v_rsq_f32 v14, v11'); a('v_sqrt_f32 v15, v11')
            for src, dst in ((10, 12), (15, 13)):
                a('v_cvt_pk_bf16_f32 v%d, v%d, v%d' % (ST, src, src)); a('v_and_b32 v%d, s46, v%d' % (ST, ST)); a('v_sub_f32 v%d, v%d, v%d' % (ST + 1, src, ST))
                a('v_cvt_pk_bf16_f32 v%d, v%d, v%d' % (dst, ST, ST + 1))
            a('s_lshl_b32 s32, s37, 10'); a('s_add_u32 s32, s32, %d' % STL); a('v_add_u32 v8, s32, v3'); a('ds_write_b128 v8, v[12:15]')
        if b == 15:
            a('s_waitcnt vmcnt(0)')
            st = NP // 2
            while st:
                for i in range(0, 4 * st, 2): a.pk('v_pk_add_f32', 64 + i, 64 + i, 64 + 4 * st + i)
                st //= 2
            for i in range(4):
                a('v_cvt_pk_bf16_f32 v%d, v%d, v%d' % (72 + 2 * i, 64 + i, 64 + i)); a('v_and_b32 v80, s46, v%d' % (72 + 2 * i)); a('v_sub_f32 v80, v%d, v80' % (64 + i))
                a('v_cvt_pk_bf16_f32 v%d, v80, v80' % (73 + 2 * i))
            a('v_lshrrev_b32 v8, 4, v1'); a('v_lshlrev_b32 v8, 9, v8'); a('v_and_b32 v9, 3, v1'); a('v_lshl_add_u32 v8, v9, 7, v8')
            a('v_bfe_u32 v9, v1, 2, 1'); a('v_lshl_add_u32 v8, v9, 6, v8'); a('v_bfe_u32 v9, v1, 3, 1'); a('v_lshl_add_u32 v8, v9, 3, v8')
            a('s_lshl_b32 s32, s37, 11'); a('s_add_u32 s32, s32, %d' % CSX); a('v_add_u32 v8, s32, v8')
            a('s_cmp_eq_u32 s37, 1'); a('s_cselect_b32 exec_hi, 0xffff, -1')
            for i in range(4): a('ds_write_b64 v8, v[%d:%d] offset:%d' % (72 + 2 * i, 73 + 2 * i, 16 * i))
            a('s_mov_b64 exec, -1')
        if b + 1 < 16 and b < TAIL_B: a.wait_vm('W%d' % (b + 1))
        if b == 15: a('s_waitcnt lgkmcnt(0)')
        a.bar()
    a('s_branch km_c_done')
    a.role('km_hz')
    a('s_lshr_b32 s63, s49, 2'); a('s_and_b32 s63, s63, 7'); a('s_lshl_b32 s63, s63, 8'); a('s_add_u32 s63, s63, 0x%x' % (FLAGB + 128))
    a('s_lshl_b32 s33, s37, 1'); a('s_add_u32 s33, s33, s49'); a('s_lshl_b32 s33, s33, 15'); a('s_add_u32 s33, s33, 0x%x' % ZT)
    a('s_lshl_b32 s34, s37, 12'); a('s_add_u32 s34, s34, %d' % ZR0); a('s_add_u32 s35, s34, %d' % (RZ * 8192)); a('s_mov_b32 s36, s34')
    a('s_lshl_b32 s39, s50, 11')
    nsh = 32 >> lg; ntch = max(1, 512 // nsh // 64) if Z_TOUCH else 0
    a('s_lshr_b32 s30, s21, %d' % lg); a('s_mul_i32 s30, s30, %d' % (65536 // nsh)); a('s_add_u32 s30, s30, s33'); a('v_lshlrev_b32 v29, 7, v1')
    def z_issue():
        a('s_mov_b32 m0, s36'); a('s_add_u32 s32, s33, s39'); a('s_add_u32 s31, s32, 32768')
        a('buffer_load_dwordx4 v3, s[16:19], s32 offen sc1 lds'); a('buffer_load_dwordx4 v3, s[16:19], s32 offen offset:1024 sc1 lds')
        a('s_add_u32 m0, m0, 2048'); a('s_add_u32 s39, s39, 2048'); a('s_and_b32 s39, s39, 32767')
        a('buffer_load_dwordx4 v3, s[16:19], s31 offen sc1 lds'); a('buffer_load_dwordx4 v3, s[16:19], s31 offen offset:1024 sc1 lds')
        a('s_add_u32 s36, s36, 8192'); a('s_cmp_eq_u32 s36, s35'); a('s_cselect_b32 s36, s34, s36')
    lds_spin(a, 'km_spinZ', CNT, 4)
    stamp(a, 6)
    a('s_cmp_eq_u32 s37, 1'); a('s_cbranch_scc1 km_hz_w')
    poll(a, 'km_pollB', 63, 1)
    lds_inc(a, CNT + 24)
    a('s_branch km_hz_go')
    a.label('km_hz_w')
    lds_spin(a, 'km_spinG', CNT + 24, 1)
    a.label('km_hz_go')
    stamp(a, 7)
    z_issue(); z_issue()
    for k in range(ntch):
        a('buffer_load_dword v31, v29, s[16:19], s30 offen sc1'); a('s_add_u32 s30, s30, 8192')
    a('s_waitcnt vmcnt(%d)' % (4 + ntch)); a('s_barrier')
    n1 = (RZ - 2 + 1) // 2
    for i in range(n1): z_issue()
    a('s_waitcnt vmcnt(%d)' % (4 * n1 + ntch)); a('s_barrier')
    for i in range(RZ - 2 - n1): z_issue()
    a('s_waitcnt vmcnt(%d)' % (4 * (RZ - 3))); a('s_barrier')
    c_iters('km_hz', 0, z_issue, 0, 4, RZ - 3, 16 - RZ)
    nx = 0
    if PF_WD == 2:
        a('s_lshl_b32 s32, s21, 1'); a('s_add_u32 s32, s32, s37'); a('s_mul_i32 s32, s32, 28672')
        a('s_mov_b32 exec_hi, 0xffffff')
        for k in range(4):
            a('buffer_load_dword v31, v29, s[12:15], s32 offen'); a('s_add_u32 s32, s32, 7168'); nx += 1
        a('s_mov_b64 exec, -1')
    for k in range(RZ - 4, -2, -1):
        if k >= 0: a('s_waitcnt vmcnt(%d)' % (4 * k + nx))
        a('s_barrier')
    a.label('km_c_done')
    dmap()
    a('v_lshrrev_b32 v5, 3, v1'); a('v_and_b32 v7, 7, v1'); a('v_lshrrev_b32 v8, 2, v1'); a('v_and_b32 v8, 4, v8'); a('v_xor_b32 v7, v7, v8')
    a('v_lshlrev_b32 v5, 10, v5'); a('v_lshl_add_u32 v5, v7, 4, v5')
    a('s_waitcnt lgkmcnt(0)')
    a('s_setprio %d' % D_PRIO)
    a.bar()
    if D_START == 'iss': lds_spin(a, 'km_spinD', CNT + 40, 8)
    stamp(a, 8)
    a('s_mul_i32 s30, s26, %d' % (448 * 1024)); a('s_lshl_b32 s31, s52, 7'); a('s_add_u32 s30, s30, s31')
    a('s_lshl_b32 s31, s26, 15'); a('v_add_u32 v7, s31, v3'); a('s_mov_b32 s33, 0')
    def next_region():
        a('s_lshl_b32 s32, s54, 16'); a('s_add_u32 s32, s32, s30'); a('s_add_u32 s54, s54, 1'); a('s_cmp_eq_u32 s54, 7'); a('s_cselect_b32 s54, 0, s54')
    a('s_mov_b32 m0, s31')
    a.label('km_d_loop')
    next_region()
    for k in range(8):
        a('buffer_load_dwordx4 v5, s[12:15], s32 offen lds'); a('s_add_u32 m0, m0, 1024')
        if k < 7: a('s_add_u32 s32, s32, 8192')
    a('s_add_u32 s33, s33, 1'); a('s_cmp_lt_u32 s33, 4'); a('s_cbranch_scc1 km_d_loop')
    for g in range(3):
        next_region()
        for k in range(8):
            r = 16 + 32 * g + 4 * k
            a('buffer_load_dwordx4 v[%d:%d], v5, s[12:15], s32 offen' % (r, r + 3))
            if k < 7: a('s_add_u32 s32, s32, 8192')
    a('s_waitcnt vmcnt(24)')
    stamp(a, 9)
    a.bar()
    a('s_waitcnt vmcnt(0)')
    for g in range(3):
        a.bar()
        for k in range(8):
            r = 16 + 32 * g + 4 * k
            a('ds_write_b128 v7, v[%d:%d] offset:%d' % (r, r + 3, g * 8192 + 1024 * k))
        a('s_waitcnt lgkmcnt(0)')
    a.bar()
    nbar_h = a.nbar
    a('s_branch %s_end' % name)
    a.role('km_compute'); a.nbar = 0
    a('s_lshr_b32 s27, s3, 2')
    a('s_load_dwordx2 s[4:5], s[0:1], 0'); a('s_load_dwordx4 s[8:11], s[0:1], 48'); a('s_load_dwordx2 s[60:61], s[0:1], 64')
    A2, B1, AC1, AP, ZF, GG = 16, 48, [64, 80], 96, 112, 128
    token_of(a, 7, 8, 23)
    a('s_mov_b64 s[30:31], vcc')
    a('s_lshr_b32 s28, s26, 1'); a('s_and_b32 s29, s26, 1'); a('s_lshl_b32 s29, s29, 4'); a('v_lshl_add_u32 v8, v4, 3, s29')
    a('s_cmp_eq_u32 s23, 0'); a('s_cselect_b32 s32, 0, s28'); a('s_sub_i32 s32, s32, s27'); a('v_cvt_f32_i32 v9, s32'); a('v_mul_f32 v9, %s, v9' % fbits(0.25))
    a('v_mul_u32_u24 v12, v7, v8'); a('v_and_b32 v12, 2047, v12'); a('v_cvt_f32_u32 v12, v12'); a('v_cvt_f32_u32 v13, v7')
    a('v_mul_f32 v13, %s, v13' % fbits(1 / 2048)); a('v_fmamk_f32 v64, v12, %s, v9' % fbits(1 / 2048))
    for i in range(1, 8): a('v_add_f32 v%d, v%d, v13' % (64 + i, 63 + i))
    for i in range(8): a('v_cos_f32 v%d, v%d' % (64 + i, 64 + i))
    for d in range(4): a('v_cvt_pk_bf16_f32 v%d, v%d, v%d' % (72 + d, 64 + 2 * d, 65 + 2 * d))
    a('s_not_b64 s[32:33], s[30:31]'); a('s_cmp_eq_u32 s28, 1'); a('s_cselect_b64 s[32:33], s[30:31], s[32:33]'); a('s_cmp_eq_u32 s23, 0'); a('s_cselect_b64 s[32:33], s[32:33], -1')
    for d in range(4): a('v_cndmask_b32 v%d, 0, v%d, s[32:33]' % (72 + d, 72 + d))
    a('v_cmp_eq_u32 vcc, 0, v7'); a('s_lshr_b32 s32, s3, 1'); a('s_cmp_eq_u32 s32, 2'); a('s_cselect_b64 vcc, vcc, 0'); a('v_mov_b32 v9, 0xbf803f80')
    for d in range(4): a('v_cndmask_b32 v%d, v%d, v9, vcc' % (72 + d, 72 + d))
    a('s_lshl_b32 s32, s3, 10'); a('s_add_u32 s32, s32, %d' % B1L); a('v_add_u32 v8, s32, v3'); a('ds_write_b128 v8, v[72:75]')
    a('s_cmp_eq_u32 s27, 1'); a('s_cselect_b32 s34, %s, 0' % fbits(-0.25))
    gen_a2(a, A2, [64, 72, 80], 's34'); z_bases(a)
    a('s_lshl_b32 s32, s27, 12'); a('s_add_u32 s32, s32, %d' % B1L); a('v_add_u32 v8, s32, v3')
    a('v_cmp_eq_u32 vcc, 0, v6'); a('v_mov_b32 v9, %s' % fbits(2048.0)); a('v_cndmask_b32 v5, 0, v9, vcc')
    a('s_or_b32 s33, s22, s27'); a('s_or_b32 s35, s23, s27')
    a('s_waitcnt lgkmcnt(0)')
    srd(a, 16, 6, WSZ)
    stamp(a, 1)
    XL, XU, XX = 160, 164, 2
    a('s_and_b32 s37, s26, 1'); a('s_lshr_b32 s38, s26, 1')
    ZFS = [112, 128]
    def zread(i):
        for j in range(4):
            for hf in range(2):
                r = ZFS[i & 1] + 4 * j + 2 * hf
                a('ds_read_b64_tr_b16 v[%d:%d], v%d offset:%d' % (r, r + 1, 10 + (j >> 1), 16384 * i + (16 * (j & 1) + 4 * hf) * 128), tag='zr%d_%d' % (i, j))
    def x_loads(u):
        a('s_cmp_eq_u32 s27, 0'); a('s_cbranch_scc1 km_nox%s' % u)
        srd(a, 12, 4, 2048 * 1024)
        a('s_cmp_eq_u32 s38, 1'); mirror_if(a, 7, 9, 13); a('v_lshlrev_b32 v7, 10, v7')
        a('s_lshl_b32 s39, s22, 6'); a('s_lshl_b32 s30, s37, 5'); a('s_add_u32 s39, s39, s30'); a('v_lshl_add_u32 v9, v4, 4, s39')
        a('v_add_u32 v0, v7, v9'); a('buffer_load_dwordx4 v[%d:%d], v0, s[12:15], 0 offen' % (XL, XL + 3))
        a('v_sub_u32 v0, 1008, v9'); a('v_add_u32 v0, v7, v0'); a('buffer_load_dwordx4 v[%d:%d], v0, s[12:15], 0 offen' % (XU, XU + 3))
        a('v_sub_u32 v0, 1024, v9'); a('v_and_b32 v0, 511, v0'); a('v_add_u32 v0, v7, v0')
        a('buffer_load_ushort v%d, v0, s[12:15], 0 offen offset:512' % XX)
        a('v_lshlrev_b32 v7, 1, v9')
        a.label('km_nox%s' % u)
    def w_touch(u):
        a('s_cmp_lg_u32 s27, 0'); a('s_cbranch_scc1 km_ntw%s' % u)
        span = 3584 >> (lg - 1); nl = span // 128 + (1 if span % 128 else 0)
        magic = -(-65536 // nl)
        a('s_cmp_ge_u32 s21, 16'); a('s_cselect_b32 s12, s10, s8'); a('s_cselect_b32 s13, s11, s9'); a('s_mov_b32 s14, %d' % (512 * 3584)); a('s_mov_b32 s15, 0x20000')
        a('s_and_b32 s40, s21, 15'); a('s_lshl_b32 s40, s40, 2'); a('s_add_u32 s40, s40, s26'); a('s_mul_i32 s40, s40, %d' % (8 * 3584))
        a('s_and_b32 s41, s20, %d' % gm); a('s_mul_i32 s41, s41, %d' % span); a('s_and_b32 s41, s41, 0xffffff80'); a('s_add_u32 s40, s40, s41')
        for k in range(-(-8 * nl // 64)):
            for idx in range(64 * k + 64): assert (idx * magic) >> 16 == idx // nl
            a('v_add_u32 v9, %d, v1' % (64 * k)); a('v_min_u32 v9, %d, v9' % (8 * nl - 1))
            a('v_mul_u32_u24 v7, %d, v9' % magic); a('v_lshrrev_b32 v7, 16, v7'); a('v_mul_u32_u24 v7, %d, v7' % (3584 - nl * 128)); a('v_lshl_add_u32 v7, v9, 7, v7')
            a('buffer_load_dword v164, v7, s[12:15], s40 offen')
        if WD_MALL:
            a('s_cmp_lg_u32 s26, 0'); a('s_cbranch_scc1 km_ntw%s' % u)
            a('s_mov_b32 s12, s60'); a('s_mov_b32 s13, s61'); a('s_mul_i32 s40, s2, 7168'); a('v_min_u32 v9, 27, v1'); a('v_lshlrev_b32 v9, 8, v9')
            a('buffer_load_dword v165, v9, s[12:15], s40 offen')
        a.label('km_ntw%s' % u)
    AY = 112; GG = 144
    def m1(i):
        for j in range(4):
            a.wait_lg('zr%d_%d' % (i, j)); a.mfma(AC1[i & 1], ZFS[i & 1] + 4 * j, B1 + 4 * j, j == 0)
    def gread(i, dst, off, tag):
        for k in range(4): a('ds_read_b128 v[%d:%d], v13 offset:%d' % (dst + 4 * k, dst + 4 * k + 3, off + 64 * (k >> 1) + 16 * (k & 1)), tag=tag)
    def gaddr(i):
        a('s_add_u32 s32, s25, %d' % i); a('s_and_b32 s32, s32, 15'); a('s_lshl_b32 s32, s32, 7'); a('v_add_u32 v13, s32, v12')
    a.bar()
    stamp(a, 2)
    for j in range(4): a('ds_read_b128 v[%d:%d], v8 offset:%d' % (B1 + 4 * j, B1 + 4 * j + 3, 1024 * j))
    a('s_cmp_eq_u32 s35, 0'); a('s_cbranch_scc1 km_sp1')
    a('s_cmp_eq_u32 s23, 0'); a('s_cbranch_scc1 km_sp2')
    save = (a.lg, dict(a.ltags), a.nbar)
    for sp in (0, 1, 2):
        if sp:
            a.role('km_sp%d' % sp); a.lg, a.ltags, a.nbar = save[0], dict(save[1]), save[2]
            a('s_lshl_b32 s32, s26, 8'); a('s_add_u32 s32, s32, %d' % YST); a('v_lshl_add_u32 v8, v4, 4, s32')
            a('v_cmp_eq_u32 s[42:43], 0, v6')
        a.reg = 'B'
        zread(0); gaddr(0); m1(0)
        a.bar(); zread(1); gread(0, GG, 0, 'g0')
        for i in range(4):
            xc = AC1[i & 1]
            if i < 3: m1(i + 1)
            if i == 0: a.bar()
            if i < 2: zread(i + 2)
            a.wait_lg('g%d' % i)
            for r in range(16): a('v_mul_f32 v%d, v%d, v%d' % (xc + r, xc + r, GG + r))
            if sp == 1:
                gread(i, GG, SAL - G1L, 's%d' % i); a.wait_lg('s%d' % i)
                for r in range(16): a('v_fmac_f32 v%d, v5, v%d' % (xc + r, GG + r))
            if i < 3: gaddr(i + 1); gread(i + 1, GG, 0, 'g%d' % (i + 1))
            for d in range(8): a('v_cvt_pk_bf16_f32 v%d, v%d, v%d' % (xc + d, xc + 2 * d, xc + 2 * d + 1))
            if sp == 2:
                a('s_mov_b64 exec, s[42:43]')
                for h in range(2): a('ds_write_b128 v8, v[%d:%d] offset:%d' % (xc + 4 * h, xc + 4 * h + 3, 64 * i + 32 * h))
                a('s_mov_b64 exec, -1')
                for d in range(8): a('v_dot2c_f32_bf16 v14, v%d, v15' % (xc + d))
                for d in range(8): a('v_cndmask_b32 v%d, v%d, 0, s[42:43]' % (xc + 8 + d, xc + d))
                for h in range(2): a.mfma(AP, A2 + 8 * i + 4 * h, xc + 8 + 4 * h, i == 0 and h == 0)
                a('s_waitcnt lgkmcnt(0)')
                if i == 3: lds_inc(a, CNT + 32)
            else:
                for h in range(2): a.mfma(AP, A2 + 8 * i + 4 * h, xc + 4 * h, i == 0 and h == 0)
                a('s_cmp_lg_u32 s33, 0'); a('s_cbranch_scc1 km_nd%d%d' % (sp, i))
                for d in range(8): a('v_dot2c_f32_bf16 v14, v%d, v15' % (xc + d))
                a.label('km_nd%d%d' % (sp, i))
            if i == TOUCH_AT and sp != 2 and PF_MODE == 'km': w_touch(str(sp))
            if i == 0 and sp != 1: x_loads(str(sp))
        if sp == 1:
            a('v_mov_b32 v13, v8')
            lds_spin(a, 'km_spinY', CNT + 32, 4)
            for j in range(8): a('ds_read_b128 v[%d:%d], v13 offset:%d' % (128 + 4 * j, 131 + 4 * j, 32 * j))
            for j in range(8):
                a('s_waitcnt lgkmcnt(%d)' % (7 - j)); a.mfma(AY, A2 + 4 * j, 128 + 4 * j, j == 0)
            a('s_lshl_b32 s32, s26, 7'); a('s_add_u32 s32, s32, %d' % (EXT + 1024)); a('v_lshl_add_u32 v8, v4, 6, s32')
            for k in range(4): a('ds_write_b128 v8, v[%d:%d] offset:%d' % (AY + 4 * k, AY + 4 * k + 3, 16 * k))
        if sp == 2:
            a('s_lshl_b32 s32, s26, 3'); a('s_add_u32 s32, s32, %d' % (EXT + 1536)); a('v_lshl_add_u32 v9, v4, 2, s32')
            a('s_mov_b64 exec, s[42:43]'); a('ds_write_b32 v9, v14'); a('s_mov_b64 exec, -1')
        else:
            a('s_branch km_bjoin')
    a.label('km_bjoin'); a.reg = ''
    stamp(a, 3); stamp(a, 14)
    a('s_load_dwordx2 s[4:5], s[0:1], 64')
    a('s_lshl_b32 s32, s3, 12'); a('s_add_u32 s32, s32, %d' % ZI); a('v_add_u32 v8, s32, v3')
    a('s_lshl_b32 s32, s26, 8'); a('s_add_u32 s32, s32, %d' % EXT); a('v_lshl_add_u32 v9, v1, 2, s32')
    a.fence()
    for k in range(4): a('ds_write_b128 v8, v[%d:%d] offset:%d' % (AP + 4 * k, AP + 4 * k + 3, 1024 * k))
    a('s_cmp_lg_u32 s27, 0'); a('s_cbranch_scc1 km_nopx'); a('ds_write_b32 v9, v14')
    a.label('km_nopx')
    a('s_waitcnt lgkmcnt(0)')
    lds_inc(a, CNT + 4)
    a('s_mov_b32 s46, 0xffff0000')
    cmap()
    a('s_cmp_eq_u32 s27, 0'); a('s_cbranch_scc1 km_csb')
    XLF, XUF = 120, 128
    a('s_waitcnt vmcnt(0)')
    unpack(a, XLF, XL, 4, 46); unpack_rev(a, XUF, XU, XX, 46)
    GA, G2, GAU, G2U = 24, 32, 40, 48
    a('v_add_u32 v21, %d, v7' % GAL)
    a('s_lshl_b32 s32, s37, 11'); a('s_add_u32 s32, s32, %d' % ZI); a('v_add_u32 v11, s32, v3')
    a('s_cmp_eq_u32 s38, 0'); a('s_cselect_b32 s34, -1.0, 1.0'); a('s_mov_b32 s35, s34')
    a('s_lshl_b32 s39, s38, 5'); a('s_add_u32 s39, s39, s23')
    a('s_lshl_b32 s36, s39, 15'); a('s_lshl_b32 s33, s22, 1'); a('s_add_u32 s33, s33, s37'); a('s_lshl_b32 s33, s33, 10'); a('s_add_u32 s36, s36, s33')
    if E_PRIO: a('s_setprio 3')
    lds_spin(a, 'km_spinR', CNT + 4, 12)
    stamp(a, 4)
    RP, RQ, YL, YU = 56, 88, 64, 72
    for R, o in ((RP, 0), (RQ, 16384)):
        for src in range(4):
            for hf in range(2): a('ds_read_b128 v[%d:%d], v11 offset:%d' % (R + 8 * src + 4 * hf, R + 3 + 8 * src + 4 * hf, o + src * 4096 + hf * 1024))
    for n, R in enumerate((RP, RQ)):
        a('s_waitcnt lgkmcnt(8)')
        if n == 0:
            for reg, off in ((GA, 0), (GAU, 1024), (G2, 2048), (G2U, 3072)):
                for k in range(2): a('ds_read_b128 v[%d:%d], v21 offset:%d' % (reg + 4 * k, reg + 4 * k + 3, off + 16 * k))
        for i in range(0, 8, 2): a.pk('v_pk_add_f32', R + i, R + i, R + 8 + i); a.pk('v_pk_add_f32', R + 16 + i, R + 16 + i, R + 24 + i)
        for i in range(0, 8, 2): a.pk('v_pk_add_f32', R + i, R + i, R + 16 + i)
    for i in range(0, 8, 2):
        a('v_pk_fma_f32 v[%d:%d], v[%d:%d], s[34:35], v[%d:%d]' % (YL + i, YL + i + 1, RQ + i, RQ + i + 1, RP + i, RP + i + 1))
        a('v_pk_fma_f32 v[%d:%d], v[%d:%d], s[34:35], v[%d:%d] neg_lo:[1,0,0] neg_hi:[1,0,0]' % (YU + i, YU + i + 1, RQ + i, RQ + i + 1, RP + i, RP + i + 1))
    a('s_or_b32 s33, s22, s37')
    a('s_cmp_lg_u32 s33, 0'); a('s_cbranch_scc1 km_e1')
    a('v_lshlrev_b32 v8, 2, v1'); a('v_add_u32 v8, %d, v8' % EXT)
    a('ds_read2st64_b32 v[96:97], v8 offset0:0 offset1:1'); a('ds_read2st64_b32 v[98:99], v8 offset0:2 offset1:3'); a('s_waitcnt lgkmcnt(0)')
    a.pk('v_pk_add_f32', 96, 96, 98); a('v_add_f32 v96, v96, v97'); half_sum(a, [96], 97)
    a('v_cmp_eq_u32 vcc, 0, v4'); a('v_cndmask_b32 v%d, v%d, v96, vcc' % (YU, YU))
    a.label('km_e1')
    a('s_cmp_lg_u32 s39, 32'); a('s_cbranch_scc1 km_e2')
    a('s_lshl_b32 s32, s37, 5'); a('s_add_u32 s32, s32, %d' % (EXT + 1024)); a('v_lshl_add_u32 v8, v4, 6, s32'); a('v_mov_b32 v9, %d' % (EXT + 1536))
    for src in range(4):
        for k in range(2): a('ds_read_b128 v[%d:%d], v8 offset:%d' % (RQ + 8 * src + 4 * k, RQ + 8 * src + 4 * k + 3, 128 * src + 16 * k))
    a('ds_read_b128 v[80:83], v9'); a('ds_read_b128 v[84:87], v9 offset:16'); a('s_waitcnt lgkmcnt(0)')
    for i in range(0, 8, 2): a.pk('v_pk_add_f32', RQ + i, RQ + i, RQ + 8 + i); a.pk('v_pk_add_f32', RQ + 16 + i, RQ + 16 + i, RQ + 24 + i)
    for i in range(0, 8, 2): a.pk('v_pk_add_f32', RQ + i, RQ + i, RQ + 16 + i)
    a.pk('v_pk_add_f32', 80, 80, 82); a.pk('v_pk_add_f32', 84, 84, 86); a.pk('v_pk_add_f32', 80, 80, 84); a('v_add_f32 v80, v80, v81')
    a('v_cmp_eq_u32 vcc, 0, v6')
    for i in range(8): a('v_cndmask_b32 v%d, v%d, v%d, vcc' % (YL + i, YL + i, RQ + i)); a('v_cndmask_b32 v%d, v%d, v%d, vcc' % (YU + i, YU + i, RQ + i))
    a('v_cmp_eq_u32 vcc, 0, v1'); a('s_cmp_eq_u32 s33, 0'); a('s_cselect_b64 vcc, vcc, 0'); a('v_cndmask_b32 v%d, v%d, v80, vcc' % (YU, YU))
    a.label('km_e2')
    a('s_waitcnt lgkmcnt(0)')
    lds_inc(a, CNT + 12)
    for Y, G, X in ((YL, GA, XLF), (YU, GAU, XUF)):
        for i in range(0, 8, 2): a('v_pk_fma_f32 v[%d:%d], v[%d:%d], v[%d:%d], v[%d:%d]' % (Y + i, Y + i + 1, Y + i, Y + i + 1, G + i, G + i + 1, X + i, X + i + 1))
    for Y, G in ((YL, G2), (YU, G2U)):
        for i in range(0, 8, 2): a.pk('v_pk_mul_f32', G + i, Y + i, G + i)
    a('s_add_u32 s32, s36, 0x%x' % ZT); a('s_add_u32 s33, s32, 16384'); a('s_add_u32 s34, s36, 0x%x' % X1T); a('s_add_u32 s35, s34, 16384')
    for src, dst, so in ((G2, 80, 32), (G2U, 84, 33), (YL, 88, 34), (YU, 92, 35)):
        for d in range(4): a('v_cvt_pk_bf16_f32 v%d, v%d, v%d' % (dst + d, src + 2 * d, src + 2 * d + 1))
        a('buffer_store_dwordx4 v[%d:%d], v3, s[16:19], s%d offen sc1' % (dst, dst + 3, so))
    a.pk('v_pk_add_f32', 96, YL, YL + 2); a.pk('v_pk_mul_f32', 98, YL, YL)
    for i in range(2, 16, 2):
        if i > 2: a.pk('v_pk_add_f32', 96, 96, YL + i)
        a('v_pk_fma_f32 v[98:99], v[%d:%d], v[%d:%d], v[98:99]' % (YL + i, YL + i + 1, YL + i, YL + i + 1))
    a('v_add_f32 v100, v96, v97'); a('v_add_f32 v101, v98, v99')
    half_sum(a, [100, 101], 102)
    a('s_lshl_b32 s32, s39, 12'); a('s_lshl_b32 s33, s22, 9'); a('s_add_u32 s32, s32, s33'); a('s_lshl_b32 s33, s37, 8'); a('s_add_u32 s32, s32, s33'); a('s_add_u32 s32, s32, 0x%x' % STATS)
    a('v_lshlrev_b32 v8, 3, v1')
    a('s_mov_b32 exec_hi, 0')
    a('buffer_store_dwordx2 v[100:101], v8, s[16:19], s32 offen sc1')
    a('s_mov_b64 exec, -1')
    stamp(a, 12)
    a('s_lshl_b32 s32, s20, 8'); a('s_add_u32 s32, s32, 0x%x' % FLAGB)
    lds_inc(a, CNT + 36)
    arrive(a, 'km_arrB', CNT, 4, 32, 32)
    stamp(a, 9)
    a('s_setprio 0')
    a('s_branch km_C')
    a.role('km_csb')
    NST = 16 >> lg
    a('v_bfe_u32 v10, v1, 4, 1'); a('v_mul_u32_u24 v10, %d, v10' % WU)
    a('v_bfe_u32 v11, v1, 2, 2'); a('v_lshl_add_u32 v11, v4, 3, v11'); a('v_mul_u32_u24 v11, 224, v11'); a('v_add_u32 v10, v10, v11')
    a('v_and_b32 v11, 1, v1'); a('v_lshl_add_u32 v10, v11, 4, v10'); a('v_bfe_u32 v12, v1, 1, 1'); a('v_lshl_add_u32 v10, v12, 3, v10')
    a('s_lshl_b32 s32, s26, 5'); a('v_add_u32 v10, s32, v10')
    a('v_lshlrev_b32 v11, 10, v11'); a('v_lshl_add_u32 v11, v4, 4, v11'); a('v_add_u32 v11, %d, v11' % G2H)
    a('s_lshl_b32 s33, s20, 5'); a('s_add_u32 s33, s33, s21'); a('s_lshl_b32 s34, s33, 2'); a('s_add_u32 s34, s34, 0x%x' % FLAGS)
    a('s_lshl_b32 s33, s33, 11'); a('s_lshl_b32 s32, s26, 8'); a('s_add_u32 s33, s33, s32'); a('s_add_u32 s33, s33, 0x%x' % CSP)
    a('v_and_b32 v13, 1, v1'); a('v_lshlrev_b32 v13, 7, v13'); a('v_lshl_add_u32 v13, v4, 6, v13'); a('v_bfe_u32 v12, v1, 1, 2'); a('v_lshl_add_u32 v13, v12, 4, v13')
    lds_spin(a, 'km_spinR2', CNT + 4, 12); lds_spin(a, 'km_spinW', CNT + 16, 2)
    stamp(a, 4)
    for st in range(NST):
        a('s_add_u32 s32, s50, %d' % st); a('s_and_b32 s32, s32, 15'); a('s_lshl_b32 s32, s32, 6'); a('v_add_u32 v12, s32, v11')
        for ks in range(2):
            r = 48 + 24 * (st & 3) + 12 * ks
            a('ds_read_b128 v[%d:%d], v12 offset:%d' % (r, r + 3, 32 * ks))
            for t in range(2):
                for hf in range(2): a('ds_read_b64_tr_b16 v[%d:%d], v10 offset:%d' % (r + 4 + 4 * t + 2 * hf, r + 5 + 4 * t + 2 * hf, st * WSL + (16 * ks + 4 * hf) * 224 + 128 * t), tag='c%d_%d' % (st, ks))
    for st in range(NST):
        for ks in range(2):
            r = 48 + 24 * (st & 3) + 12 * ks
            a.wait_lg('c%d_%d' % (st, ks))
            for t in range(2): a.mfma(16 + 16 * t, r + 4 + 4 * t, r, st == 0 and ks == 0)
    a('v_bfe_u32 v12, v1, 1, 2')
    for k in range(1, 4):
        a('v_cmp_eq_u32 vcc, %d, v12' % k)
        for t in range(2):
            for i in range(4): a('v_cndmask_b32 v%d, v%d, v%d, vcc' % (16 + 16 * t + i, 16 + 16 * t + i, 16 + 16 * t + 4 * k + i))
    a('s_mov_b32 exec_lo, 0xff'); a('s_mov_b32 exec_hi, 0xff')
    for t in range(2): a('buffer_store_dwordx4 v[%d:%d], v13, s[16:19], s33 offen offset:%d sc1' % (16 + 16 * t, 19 + 16 * t, 1024 * t))
    a('s_mov_b64 exec, -1')
    stamp(a, 12)
    a.label('km_C'); a.hist = []
    a('s_add_u32 s49, s49, s26')
    a('v_bfe_u32 v10, v1, 4, 1'); a('v_mul_u32_u24 v10, %d, v10' % WU)
    a('v_bfe_u32 v11, v1, 2, 2'); a('v_lshl_add_u32 v11, v4, 3, v11'); a('v_mul_u32_u24 v11, 224, v11'); a('v_add_u32 v10, v10, v11')
    a('v_and_b32 v11, 1, v1'); a('v_lshl_add_u32 v10, v11, 4, v10'); a('v_bfe_u32 v11, v1, 1, 1'); a('v_lshl_add_u32 v10, v11, 3, v10')
    a('s_lshl_b32 s28, s27, 7'); a('v_add_u32 v12, s28, v10')
    a('s_lshl_b32 s28, s26, 11'); a('s_add_u32 s28, s28, %d' % ZR0); a('v_add_u32 v13, s28, v3')
    a('v_mov_b32 v14, v12'); a('v_mov_b32 v15, v13')
    ACC = 16; WF = [80, 100]; ST = 120
    for r in range(64): a('v_mov_b32 v%d, 0' % (ACC + r))
    a('s_mov_b32 s36, %d' % WSL); a('s_mov_b32 s37, 8192'); a('s_mov_b32 s38, 0')
    a('s_lshl_b32 s39, s26, 9'); a('s_add_u32 s39, s39, %d' % STL); a('v_lshl_add_u32 v5, v6, 4, s39')
    k1c = -2 * 0.7978845608028654 * LOG2E; k2c = k1c * 0.044715
    a('s_mov_b32 s44, %s' % fbits(k2c)); a('s_mov_b32 s46, 0xffff0000')
    a('s_mul_i32 s40, s49, %d' % (112 * 1024)); a('s_mul_i32 s41, s48, 7168'); a('s_add_u32 s40, s40, s41'); a('s_lshl_b32 s41, s27, 12'); a('s_add_u32 s40, s40, s41')
    a('s_add_u32 s40, s40, 0x%x' % ACT)
    a('s_lshr_b32 s41, s49, 2'); a('s_lshl_b32 s41, s41, 8'); a('s_add_u32 s41, s41, 0x%x' % FLAGC)
    a('s_lshl_b32 s42, s27, 11'); a('s_add_u32 s42, s42, %d' % CSX); a('v_lshl_add_u32 v7, v6, 4, s42')
    srd(a, 12, 4, 1792 * 1024); a('s_add_u32 s43, s3, %d' % SIDE_AT)
    a.bar()
    stamp(a, 5); cstamp(a, 3)
    a('s_cmp_eq_u32 s27, 1'); a('s_cbranch_scc1 km_B')
    nb0 = a.nbar
    for grp, NT in (('A', 4), ('B', 3)):
        if grp == 'B': a.role('km_B'); a.nbar = nb0
        def rdz(st, ks): a('ds_read_b128 v[%d:%d], v15 offset:%d' % (WF[st] + 16, WF[st] + 19, 1024 * ks))
        def rdw(st, ks, j):
            r = WF[st] + 4 * j
            for hf in range(2): a('ds_read_b64_tr_b16 v[%d:%d], v14 offset:%d' % (r + 2 * hf, r + 2 * hf + 1, (16 * ks + 4 * hf) * 224 + 32 * j))
        if grp == 'B' and B_PRIO: a('s_setprio %d' % B_PRIO)
        rdz(0, 0)
        for j in range(NT): rdw(0, 0, j)
        a.label('km_loop%s' % grp); a.reg = 'C'
        for st in range(2):
            for j in range(NT):
                a('s_waitcnt lgkmcnt(%d)' % (2 * NT - 2 if j == 0 else 2 * NT - 1))
                a.mfma(ACC + 16 * j, WF[st] + 4 * j, WF[st] + 16)
                if j == 0:
                    if st == 1: a.bar(16)
                    rdz(1 - st, 1 - st)
                rdw(1 - st, 1 - st, j)
                if st == 0 and j == NT - 1: a('v_add_u32 v14, s36, v12'); a('v_add_u32 v15, s37, v13')
                if st == 1 and j == 0:
                    a('s_add_u32 s36, s36, %d' % WSL); a('s_cmp_eq_u32 s36, %d' % ZR0); a('s_cselect_b32 s36, 0, s36')
                if st == 0 and j == 0 and (grp == 'A' or PF_WD == 1):
                    a('s_cmp_eq_u32 s38, s43'); a('s_cbranch_scc1 km_side%s' % grp)
                    a.label('km_back%s' % grp)
                if st == 0 and j == 1 and DEBUG and 'inloop' in EXP:
                    for it, sl in ((4, 13), (8, 14), (12, 1)):
                        a('s_cmp_lg_u32 s38, %d' % it); a('s_cbranch_scc1 km_st%s%d' % (grp, it)); stamp(a, sl); a.label('km_st%s%d' % (grp, it))
                if st == 1 and j == 1:
                    a('s_add_u32 s37, s37, 8192'); a('s_cmp_eq_u32 s37, %d' % (RZ * 8192)); a('s_cselect_b32 s37, 0, s37')
                    a('s_add_u32 s38, s38, 1'); a('s_cmp_lt_u32 s38, 16')
        a('s_cbranch_scc1 km_loop%s' % grp)
        a('s_branch km_post%s' % grp)
        a.role('km_side%s' % grp)
        if grp == 'A':
            arrive(a, 'km_arrS', CNT + 20, 4, 34)
        if PF_WD == 1:
            a('s_lshl_b32 s32, s21, 3'); a('s_add_u32 s32, s32, s3'); a('s_mul_i32 s32, s32, 7168'); a('v_lshlrev_b32 v8, 7, v1')
            a('s_mov_b32 exec_hi, 0xffffff'); a('buffer_load_dword v9, v8, s[12:15], s32 offen'); a('s_mov_b64 exec, -1')
        if grp == 'A' or PF_WD == 1: a('s_branch km_back%s' % grp)
        a.role('km_post%s' % grp)
        a.reg = ''
        stamp(a, 6); cstamp(a, 4)
        a('ds_read_b128 v[120:123], v5')
        for j in range(NT): a('ds_read_b128 v[%d:%d], v7 offset:%d' % (124 + 4 * j, 127 + 4 * j, 512 * j))
        a('v_cmp_gt_u32 vcc, 32, v1'); a('v_mov_b32 v10, %s' % fbits(k1c))
        a('s_waitcnt lgkmcnt(%d)' % NT)
        a('v_cndmask_b32 v12, 0, v120, vcc'); a('v_cndmask_b32 v13, 0, v120, vcc'); a('v_cndmask_b32 v14, 0, v121, vcc'); a('v_cndmask_b32 v15, 0, v121, vcc')
        a('s_waitcnt vmcnt(0)')
        a('v_mov_b32 v8, v122'); a('v_mov_b32 v9, v123')
        a('s_waitcnt lgkmcnt(0)')
        if E_PRIO: a('s_setprio %d' % E_PRIO)
        a.bar()
        for j in range(NT): a.mfma(ACC + 16 * j, 124 + 4 * j, 12)
        for j in range(NT):
            g = ACC + 16 * j; u = g + 8; t = 80 + 8 * (j & 1)
            for i in range(8): a('v_mul_f32 v%d, v8, v%d' % (g + i, g + i))
            for i in range(8): a('v_mul_f32 v%d, v%d, v%d' % (t + i, g + i, g + i))
            for i in range(8): a('v_fma_f32 v%d, v%d, s44, v10' % (t + i, t + i))
            for i in range(8): a('v_mul_f32 v%d, v%d, v%d' % (t + i, t + i, g + i))
            for i in range(8): a('v_exp_f32 v%d, v%d' % (t + i, t + i))
            for i in range(8): a('v_mul_f32 v%d, v%d, v%d' % (u + i, u + i, g + i))
            for i in range(8): a('v_fma_f32 v%d, v%d, v9, v9' % (t + i, t + i))
            for i in range(8): a('v_rcp_f32 v%d, v%d' % (t + i, t + i))
            for i in range(8): a('v_mul_f32 v%d, v%d, v%d' % (u + i, u + i, t + i))
            for d in range(4): a('v_cvt_pk_bf16_f32 v%d, v%d, v%d' % (g + d, u + 2 * d, u + 2 * d + 1))
            a('buffer_store_dwordx4 v[%d:%d], v3, s[16:19], s40 offen offset:%d sc1' % (g, g + 3, 1024 * j))
        stamp(a, 7)
        if D_START == 'iss': lds_inc(a, CNT + 40)
        arrive(a, 'km_arrC%s' % grp, CNT + 8, 8, 41, 16)
        stamp(a, 8)
        if grp == 'A': a('s_branch km_D')
    a.label('km_D'); a.hist = []
    if E_PRIO: a('s_setprio 0')
    dmap()
    a('s_load_dwordx2 s[8:9], s[0:1], 88')
    a('s_and_b32 s27, s3, 1'); a('s_lshr_b32 s28, s3, 1'); a('s_add_u32 s53, s53, s27')
    a('v_bfe_u32 v14, v1, 2, 2'); a('v_lshl_add_u32 v14, v4, 3, v14'); a('v_lshlrev_b32 v14, 7, v14')
    a('v_bfe_u32 v15, v1, 4, 1'); a('v_lshl_add_u32 v14, v15, 5, v14'); a('v_and_b32 v15, 1, v1'); a('v_lshl_add_u32 v14, v15, 4, v14')
    a('v_bfe_u32 v15, v1, 1, 1'); a('v_lshl_add_u32 v14, v15, 3, v14'); a('v_bfe_u32 v15, v1, 3, 1'); a('v_lshl_add_u32 v14, v15, 6, v14')
    a('s_lshl_b32 s29, s28, 5'); a('v_xor_b32 v14, s29, v14'); a('v_xor_b32 v15, 64, v14')
    a('s_lshl_b32 s29, s28, 15'); a('v_add_u32 v14, s29, v14'); a('v_add_u32 v15, s29, v15')
    a('s_mul_i32 s30, s53, %d' % (112 * 1024)); a('s_mul_i32 s31, s28, %d' % (28 * 1024)); a('s_add_u32 s30, s30, s31'); a('s_add_u32 s30, s30, 0x%x' % ACT)
    for g in range(7):
        a('s_lshl_b32 s%d, s54, 12' % (33 + g)); a('s_add_u32 s%d, s%d, s30' % (33 + g, 33 + g)); a('s_add_u32 s54, s54, 1'); a('s_cmp_eq_u32 s54, 7'); a('s_cselect_b32 s54, 0, s54')
    a('s_lshr_b32 s32, s53, 2'); a('s_lshl_b32 s32, s32, 8'); a('s_add_u32 s32, s32, 0x%x' % (FLAGC + 128))
    AD = [16, 32]; AF = 48; NR = 16; WD = [112, 120, 128, 136]; X1R = 144; GBR = 152; XA = 12
    a('s_lshl_b32 s44, s52, 3'); a('s_lshl_b32 s45, s28, 1'); a('s_add_u32 s44, s44, s45'); a('v_add_u32 v11, s44, v4')
    a('s_and_b32 s47, s53, 31'); token_of(a, 5, 8, 47); a('s_cmp_ge_u32 s53, 32'); mirror_if(a, 5, 8, 9)
    a('v_lshlrev_b32 v5, 10, v5'); a('v_lshl_add_u32 v5, v11, 4, v5')
    a('v_lshlrev_b32 v8, 4, v11'); a('v_add_u32 v8, %d, v8' % GBH)
    a('ds_read_b128 v[%d:%d], v8' % (GBR, GBR + 3))
    a('v_sub_u32 v9, 95, v11'); a('v_cmp_gt_u32 vcc, 32, v11'); a('v_cndmask_b32 v9, v9, v11, vcc')
    a('v_lshlrev_b32 v9, 9, v9'); a('v_lshl_add_u32 v%d, v6, 4, v9' % XA)
    a('v_sub_u32 v9, 64, v11'); a('v_and_b32 v9, 31, v9'); a('v_add_u32 v9, 32, v9'); a('v_lshlrev_b32 v9, 9, v9'); a('v_lshl_add_u32 v%d, v6, 4, v9' % (XA + 1))
    a('s_lshl_b32 s45, s53, 15'); a('s_add_u32 s45, s45, 0x%x' % X1T)
    a('s_mul_i32 s31, s52, 3584'); a('s_add_u32 s31, s31, s30'); a('v_min_u32 v7, 27, v1'); a('v_lshlrev_b32 v7, 7, v7')
    a('s_waitcnt lgkmcnt(0)')
    srd(a, 40, 8, 2048 * 1024)
    def act_load(n):
        r = AF + 4 * (n % NR)
        a('buffer_load_dwordx4 v[%d:%d], v3, s[16:19], s%d offen offset:%d sc1' % (r, r + 3, 33 + n // 4, 1024 * (n & 3)), tag='a%d' % n)
    def wd_read(n):
        for t in range(2):
            for hf in range(2):
                r = WD[n & 3] + 4 * t + 2 * hf
                a('ds_read_b64_tr_b16 v[%d:%d], v%d offset:%d' % (r, r + 1, 14 + t, (16 * (n & 15) + 4 * hf) * 128), tag='w%d' % n)
    a.bar()
    stamp(a, 2)
    a('s_cmp_lg_u32 s3, 0'); a('s_cbranch_scc1 km_d_w')
    poll(a, 'km_pollC', 32, 1)
    lds_inc(a, CNT + 28)
    a('s_branch km_d_go')
    a.label('km_d_w')
    lds_spin(a, 'km_spinH', CNT + 28, 1)
    a.label('km_d_go')
    stamp(a, 9)
    a.reg = 'D'
    act_load(0); act_load(1)
    if A_TOUCH: a('buffer_load_dword v10, v7, s[16:19], s31 offen sc1')
    for k in range(3): wd_read(k)
    nxt = 2
    while nxt < D_INIT: act_load(nxt); nxt += 1
    xdone = False
    for n in range(28):
        if n in (4, 8, 12, 20):
            a.bar()
            if 'cyc' not in EXP: stamp(a, {4: 3, 8: 4, 12: 12, 20: 13}[n])
        if n + 3 < 28: wd_read(n + 3)
        if 'Dnoload' not in EXP: a.wait_vm('a%d' % n)
        a.wait_lg('w%d' % n)
        for t in range(2):
            a.mfma(AD[t], WD[n & 3] + 4 * t, AF + 4 * (n % NR), n == 0)
            if nxt < 28 and nxt < n + D_AHEAD + t: act_load(nxt); nxt += 1
        if nxt == 28 and not xdone:
            xdone = True
            a('buffer_load_dwordx4 v[%d:%d], v%d, s[16:19], s45 offen sc1' % (X1R, X1R + 3, XA))
            a('buffer_load_ushort v%d, v%d, s[16:19], s45 offen sc1' % (X1R + 4, XA + 1))
    a.reg = ''
    stamp(a, 10)
    def slot(dst, src):
        a('s_and_b32 s34, s%d, 3' % src); a('s_mul_i32 s35, s34, 6144'); a('s_add_u32 s35, s35, 131072'); a('s_lshl_b32 s34, s34, 15'); a('s_add_u32 s34, s34, 24576')
        a('s_cmp_lt_u32 s%d, 4' % src); a('s_cselect_b32 s34, s35, s34'); a('v_add_u32 v%d, s34, v3' % dst)
    for k in range(1, 4):
        a('s_xor_b32 s33, s3, %d' % (2 * k)); slot(7 + k, 33)
    for k in range(1, 4):
        for hf in range(2): a('ds_write_b128 v%d, v[%d:%d] offset:%d' % (7 + k, 16 + 8 * k + 4 * hf, 19 + 8 * k + 4 * hf, 2048 * (k - 1) + 1024 * hf))
    X = 64; GF = 72
    a('s_waitcnt vmcnt(0)')
    unpack(a, GF, GBR, 4, 46)
    a('s_cmp_ge_u32 s52, 4'); a('s_cbranch_scc1 km_up')
    unpack(a, X, X1R, 4, 46)
    a('s_branch km_fin')
    a.label('km_up')
    unpack_rev(a, X, X1R, X1R + 4, 46)
    a.label('km_fin')
    slot(9, 3)
    a('s_waitcnt lgkmcnt(0)'); a('s_barrier')
    for k in range(6): a('ds_read_b128 v[%d:%d], v9 offset:%d' % (80 + 4 * k, 83 + 4 * k, 1024 * k))
    for k in range(3):
        a('s_waitcnt lgkmcnt(%d)' % (4 - 2 * k))
        for i in range(0, 8, 2): a.pk('v_pk_add_f32', 16 + i, 16 + i, 80 + 8 * k + i)
    for r in range(8): a('v_fmac_f32 v%d, v%d, v%d' % (X + r, GF + r, 16 + r))
    for d in range(4): a('v_cvt_pk_bf16_f32 v%d, v%d, v%d' % (104 + d, X + 2 * d, X + 1 + 2 * d))
    a('buffer_store_dwordx4 v[104:107], v5, s[40:43], 0 offen')
    stamp(a, 11)
    assert nbar_h == 3 + 17 + 1 + 5, nbar_h
    assert a.nbar == nbar_h, (nbar_h, a.nbar)
    finish(a, name, 1)
    return name, a.text() + kernel_desc(name, 168, 100), (256, 768, LDS_TOTAL)

HEADER = open('adaLN_cond__spectral_fnet__geglu_ffn__prompt.s.ref').read().split('; Override launch')[0]
def all_kernels(): return [kA(), kM()]
GROUPS = {}
def build(kernels):
    hdr = HEADER
    body = '.amdgcn_target "amdgcn-amd-amdhsa--gfx950"\n.text\n'
    for name, text, (g, b, lds) in kernels:
        hdr += '; @launch kernel=%s grid=(%d,1,1) block=(%d,1,1) lds=%d\n' % (name, g, b, lds)
        body += text
    return hdr + body

if __name__ == '__main__':
    if len(sys.argv) > 2 and sys.argv[2] == 'debug': DEBUG = True
    for idx in range(512): assert (idx * 4682) >> 16 == idx // 14
    out = sys.argv[1] if len(sys.argv) > 1 else 'adaLN_cond__spectral_fnet__geglu_ffn__prompt.s'
    open(out, 'w').write(build(all_kernels()))
    print('wrote', out)
```

```python
import sys, gen6 as G
def build(kernels, order):
    hdr = G.HEADER
    body = '.amdgcn_target "amdgcn-amd-amdhsa--gfx950"\n.text\n'
    for i in order:
        name, text, (g, b, lds) = kernels[i]
        hdr += '; @launch kernel=%s grid=(%d,1,1) block=(%d,1,1) lds=%d\n' % (name, g, b, lds)
    for name, text, _ in kernels: body += text
    return hdr + body
for spec in sys.argv[1:]:
    nm, order, flags = (spec.split(':') + ['', ''])[:3]
    fl = flags.split(',') if flags else []
    G.EXP = set(f for f in fl if '=' not in f)
    saved = {}
    for f in fl:
        if '=' in f:
            k, v = f.split('='); saved[k] = getattr(G, k); setattr(G, k, eval(v) if v and v[0].isdigit() and 'x' not in v else v.replace('_', ' '))
    G.DEBUG = True
    open('dv_%s.s' % nm, 'w').write(build(G.all_kernels(), [int(c) for c in order]))
    G.DEBUG = False
    open('v_%s.s' % nm, 'w').write(build(G.all_kernels(), [int(c) for c in order]))
    for k, v in saved.items(): setattr(G, k, v)
```

```python
import sys, struct
from asmlib import Asm, kernel_desc

PART = 0x000000
FLAGB= 0x010000
FLAGC= 0x010800
FLAGS= 0x011800
CSP  = 0x080000
STATS= 0x020000
ZB   = 0x100000
X1T  = 0x300000
ZT   = 0x500000
ACT  = 0x700000
WSZ  = 0x1000000
STAMP = 0xE00000
DEBUG = False
EXP = set()
K4_MAP = '8x4'; K4_ROT = True; K5_ROT = True
PF_CODE = True; PF_W = 128; PF_WD = 2
ZST = ''
SPIN = 1 << 15
PSLEEP = 2
LSLEEP = 1
H_PRIO = 3
W_THR = 35
Z_TOUCH = 0
A_TOUCH = 1
PF_MODE = 'km'
TOUCH_AT = 1
SIDE_AT = 3
W_START = 'iss'
D_PRIO = 0
B_PRIO = 0
D_AHEAD = 10
D_INIT = 4
TAIL_B = 12
EPI_PK = 1
KA_BAR = 7
KA_GLATE = 1
PAD = 6000
E_PRIO = 2
WD_MALL = 1
KA_MALL = 0
D_START = ''
LOG2E = 1.4426950408889634

class XAsm(Asm):
    def __init__(self): super().__init__(); self.nbar = 0; self.reg = ''
    def __call__(self, text, tag=None):
        t = text.strip()
        if self.reg:
            if (self.reg + 'nomfma') in EXP and t.startswith('v_mfma'): return
            if (self.reg + 'nods') in EXP and t.startswith('ds_read'): return
            if (self.reg + 'noload') in EXP and t.startswith('buffer_load'): return
            if (self.reg + 'plain') in EXP and t.startswith('buffer_load'): text = text.replace(' sc1', '')
            if (self.reg + 'novalu') in EXP and t.startswith(('v_mul', 'v_cvt', 'v_dot')): return
        super().__call__(text, tag)
    def pk(self, op, d, x, y, extra=''): self('%s v[%d:%d], v[%d:%d], v[%d:%d]%s' % (op, d, d + 1, x, x + 1, y, y + 1, extra))
    def mfma(self, acc, A, B, first=False):
        self('v_mfma_f32_32x32x16_bf16 v[%d:%d], v[%d:%d], v[%d:%d], %s' % (acc, acc + 15, A, A + 3, B, B + 3, '0' if first else 'v[%d:%d]' % (acc, acc + 15)))
    def bar(self, n=1): self('s_barrier'); self.nbar += n
    def role(self, l): self.label(l); self.hist = []

def fbits(f): return '0x%08x' % struct.unpack('<I', struct.pack('<f', f))[0]
def stamp(a, i):
    if DEBUG: a('s_memrealtime s[%d:%d]' % (64 + 2 * i, 65 + 2 * i))
def cstamp(a, i):
    if DEBUG and 'cyc' in EXP: a('s_memtime s[%d:%d]' % (64 + 2 * i, 65 + 2 * i))
def finish(a, name, kidx, vbase=4):
    a.label(name + '_end')
    if 'pad' in EXP:
        a.hist = []
        a('s_cmp_lg_u32 s2, 0'); a('s_cbranch_scc1 %s_exit' % name); a('s_cmp_lg_u32 s3, 0'); a('s_cbranch_scc1 %s_exit' % name)
        a('s_mov_b64 exec, 1'); a('v_mov_b32 v8, 0'); a('s_mov_b32 s62, 0x1f000')
        if kidx == 0:
            a('s_waitcnt lgkmcnt(0)'); a('v_mov_b32 v9, s64'); a('buffer_store_dword v9, v8, s[16:19], s62 offen')
        else:
            a('buffer_load_dword v9, v8, s[16:19], s62 offen'); a('s_waitcnt vmcnt(0)'); a('v_readfirstlane_b32 s63, v9'); a('s_mov_b32 s61, 0')
            a.label('km_padloop')
            a('s_memrealtime s[64:65]'); a('s_waitcnt lgkmcnt(0)'); a('s_sub_u32 s66, s64, s63'); a('s_cmp_ge_u32 s66, %d' % PAD); a('s_cbranch_scc1 %s_exit' % name)
            a('s_add_u32 s61, s61, 1'); a('s_cmp_lt_u32 s61, 100000'); a('s_cbranch_scc1 km_padloop')
    if DEBUG:
        a.hist = []
        a('s_waitcnt vmcnt(0)')
        stamp(a, 15)
        a('s_waitcnt lgkmcnt(0)'); a('s_mov_b64 exec, 1')
        for i in range(16): a('v_mov_b32 v%d, s%d' % (vbase + i, 64 + 2 * i))
        a('s_lshl_b32 s60, s2, 4'); a('s_add_u32 s60, s60, s3'); a('s_lshl_b32 s60, s60, 6'); a('s_add_u32 s60, s60, 0x%x' % (STAMP + kidx * 0x80000))
        a('v_mov_b32 v%d, 0' % (vbase + 16))
        for i in range(4): a('buffer_store_dwordx4 v[%d:%d], v%d, s[16:19], s60 offen offset:%d' % (vbase + 4 * i, vbase + 4 * i + 3, vbase + 16, 16 * i))
        if 'dbgout' in EXP:
            a('s_cmp_lg_u32 s2, 37'); a('s_cbranch_scc1 %s_exit' % name)
            a('s_load_dwordx2 s[56:57], s[0:1], 96'); a('s_waitcnt lgkmcnt(0)')
            if kidx == 0: a('s_add_u32 s56, s56, 512'); a('s_addc_u32 s57, s57, 0')
            a('s_mov_b32 s58, 256'); a('s_mov_b32 s59, 0x20000')
            sel = {0: {0: [(0, 0), (3, 1), (4, 2), (15, 3)]}, 1: {4: [(0, 4), (14, 5), (12, 6), (5, 7), (6, 8), (7, 9), (8, 10), (9, 11), (10, 12), (15, 13)], 10: [(2, 14), (7, 15)]}}[kidx]
            for w, lst in sel.items():
                a('s_cmp_lg_u32 s3, %d' % w); a('s_cbranch_scc1 %s_dn%d' % (name, w))
                for st, pos in lst: a('buffer_store_dword v%d, v%d, s[56:59], 0 offen offset:%d' % (vbase + st, vbase + 16, 4 * pos))
                a.label('%s_dn%d' % (name, w))
    a.label(name + '_exit')
    a('s_endpgm')
def srd(a, d, lo, size):
    a('s_mov_b32 s%d, s%d' % (d, lo)); a('s_mov_b32 s%d, s%d' % (d + 1, lo + 1))
    a('s_mov_b32 s%d, 0x%x' % (d + 2, size)); a('s_mov_b32 s%d, 0x20000' % (d + 3))
def head(a, name, nwg):
    a.raw('.p2align 8'); a.raw('.globl %s' % name); a.raw('.type %s,@function' % name); a.label(name)
    a('s_cmp_ge_u32 s2, %d' % nwg); a('s_cbranch_scc1 %s_exit' % name)
    if DEBUG:
        for i in range(16): a('s_mov_b32 s%d, 0' % (64 + 2 * i))
    stamp(a, 0)
    if 'pad' in EXP: a('s_memrealtime s[64:65]')
def ids(a):
    a('v_and_b32 v1, 63, v0'); a('v_lshrrev_b32 v2, 6, v0'); a('v_readfirstlane_b32 s3, v2'); a('v_lshlrev_b32 v3, 4, v1')
    a('v_lshrrev_b32 v4, 5, v1'); a('v_and_b32 v6, 31, v1')
    a('s_and_b32 s20, s2, 7'); a('s_lshr_b32 s21, s2, 3'); a('s_and_b32 s26, s3, 3')
def swap23_v(a, dst, src, t0):
    a('v_and_b32 v%d, 0x13, v%d' % (dst, src))
    a('v_and_b32 v%d, 4, v%d' % (t0, src)); a('v_lshl_or_b32 v%d, v%d, 1, v%d' % (dst, t0, dst))
    a('v_and_b32 v%d, 8, v%d' % (t0, src)); a('v_lshrrev_b32 v%d, 1, v%d' % (t0, t0)); a('v_or_b32 v%d, v%d, v%d' % (dst, dst, t0))
def half_sum(a, regs, tmp, op='v_permlane32_swap_b32'):
    for i, r in enumerate(regs): a('v_mov_b32 v%d, v%d' % (tmp + i, r))
    for i, r in enumerate(regs): a('%s v%d, v%d' % (op, tmp + i, r))
    for i, r in enumerate(regs): a('v_add_f32 v%d, v%d, v%d' % (r, r, tmp + i))
def unpack(a, dst, src, n, mask):
    for d in range(n):
        a('v_lshlrev_b32 v%d, 16, v%d' % (dst + 2 * d, src + d)); a('v_and_b32 v%d, s%d, v%d' % (dst + 2 * d + 1, mask, src + d))
def unpack_rev(a, dst, src, extra, mask):
    a('v_lshlrev_b32 v%d, 16, v%d' % (dst, extra))
    for i in range(1, 8):
        el = 8 - i
        if el & 1: a('v_and_b32 v%d, s%d, v%d' % (dst + i, mask, src + el // 2))
        else: a('v_lshlrev_b32 v%d, 16, v%d' % (dst + i, src + el // 2))
def token_of(a, dst, tmp, sq):
    a('v_lshlrev_b32 v%d, 6, v6' % dst); a('v_add_u32 v%d, s%d, v%d' % (dst, sq, dst))
    a('v_subrev_u32 v%d, 992, v%d' % (tmp, dst)); a('v_cmp_lt_u32 vcc, 15, v6'); a('s_cmp_eq_u32 s%d, 0' % sq); a('s_cselect_b64 vcc, vcc, 0')
    a('v_cndmask_b32 v%d, v%d, v%d, vcc' % (dst, dst, tmp))
def mirror_if(a, dst, t0, t1):
    a('s_cselect_b64 s[58:59], -1, 0')
    a('v_sub_u32 v%d, 2048, v%d' % (t0, dst)); a('v_cmp_eq_u32 vcc, 0, v%d' % dst); a('v_mov_b32 v%d, 1024' % t1); a('v_cndmask_b32 v%d, v%d, v%d, vcc' % (t0, t0, t1))
    a('v_cndmask_b32 v%d, v%d, v%d, s[58:59]' % (dst, dst, t0))

XP = 1040
def kA():
    a = XAsm(); name = 'ka_lnfft_kernel'
    SA = 64 * XP; GP = SA + 512
    head(a, name, 256)
    a('s_load_dwordx2 s[6:7], s[0:1], 104'); a('s_load_dwordx2 s[4:5], s[0:1], 0'); a('s_load_dwordx4 s[8:11], s[0:1], 72')
    ids(a)
    KC = GP + 4096
    a('v_mov_b32 v8, %d' % KC); a('v_mov_b32 v10, 0'); a('v_mov_b32 v11, 0'); a('ds_write_b64 v8, v[10:11]')
    a('s_cmp_ge_u32 s3, 8'); a('s_cbranch_scc1 ka_gemv')
    a('s_lshr_b32 s23, s21, 3'); a('s_lshl_b32 s22, s20, 2'); a('s_add_u32 s23, s23, s22')
    a('s_and_b32 s24, s21, 7')
    a('s_lshl_b32 s25, s3, 18'); a('s_lshl_b32 s27, s23, 10'); a('s_add_u32 s25, s25, s27')
    a('s_mul_i32 s28, s3, %d' % (8 * XP)); a('s_mov_b32 s27, s24')
    a('v_and_b32 v12, 7, v1'); a('v_mul_u32_u24 v13, %d, v12' % XP); a('v_lshrrev_b32 v14, 3, v1'); a('v_lshl_add_u32 v13, v14, 7, v13'); a('v_add_u32 v13, s28, v13')
    a('s_waitcnt lgkmcnt(0)')
    srd(a, 12, 4, 2048 * 1024); srd(a, 16, 6, WSZ)
    stamp(a, 1)
    for i in range(8):
        a('s_mul_i32 s31, s27, %d' % XP); a('s_add_u32 m0, s31, s28'); a('s_lshl_b32 s32, s27, 15'); a('s_add_u32 s32, s32, s25')
        a('buffer_load_dwordx4 v3, s[12:15], s32 offen lds')
        if i == KA_BAR: a('s_barrier')
        if i < 7: a('s_add_u32 s27, s27, 1'); a('s_and_b32 s27, s27, 7')
    stamp(a, 2)
    if KA_MALL:
        a('s_sub_u32 s46, s3, 4'); a('s_cmp_ge_u32 s46, 3'); a('s_cbranch_scc1 ka_nm')
        a('s_lshl_b32 s46, s46, 3'); a('s_add_u32 s46, s46, 48'); a('s_load_dwordx2 s[52:53], s[0:1], s46')
        a('s_mov_b32 s54, %d' % (512 * 3584)); a('s_mov_b32 s55, 0x20000'); a('s_mul_i32 s46, s2, 7168'); a('v_min_u32 v8, 27, v1'); a('v_lshlrev_b32 v8, 8, v8')
        a('s_waitcnt lgkmcnt(0)')
        a('buffer_load_dword v160, v8, s[52:55], s46 offen')
        a.label('ka_nm')
    a('s_lshl_b32 s31, s3, 3'); a('v_add_u32 v17, s31, v12'); a('v_lshlrev_b32 v18, 1, v17'); a('v_lshlrev_b32 v17, 2, v17')
    a('v_add_u32 v17, %d, v17' % SA); a('v_add_u32 v18, %d, v18' % SA)
    for r in range(24, 32): a('v_mov_b32 v%d, 0' % r)
    a('v_mov_b32 v21, 0'); a('v_mov_b32 v22, 0x3f803f80'); a('s_mov_b32 s36, 0xffff0000')
    BF = 32
    a('s_cmp_ge_u32 s3, 4'); a('s_cbranch_scc1 ka_nogen')
    a('s_and_b32 s29, s3, 1'); a('s_lshr_b32 s30, s3, 1')
    a('s_lshl_b32 s31, s29, 5'); a('v_add_u32 v7, s31, v6')
    a('v_lshrrev_b32 v8, 1, v7'); a('v_cmp_eq_u32 vcc, 1, v7'); a('v_cndmask_b32 v8, v8, 32, vcc')
    a('v_and_b32 v9, 1, v7'); a('v_cndmask_b32 v9, v9, 0, vcc'); a('v_cvt_f32_u32 v9, v9'); a('v_mul_f32 v9, %s, v9' % fbits(-0.25))
    a('v_cvt_f32_u32 v8, v8'); a('v_mul_f32 v8, %s, v8' % fbits(1 / 64))
    a('v_lshlrev_b32 v10, 3, v4'); a('v_cvt_f32_u32 v10, v10')
    a('v_fma_f32 v%d, v8, v10, v9' % BF); a('v_mul_f32 v11, %s, v8' % fbits(16.0))
    for i in range(1, 8): a('v_add_f32 v%d, v%d, v8' % (BF + i, BF + i - 1))
    for k in range(8, 32): a('v_add_f32 v%d, v%d, v11' % (BF + k, BF + k - 8))
    for k in range(32): a('v_cos_f32 v%d, v%d' % (BF + k, BF + k))
    a('v_bfe_u32 v15, v1, 2, 2'); a('v_lshl_add_u32 v15, v4, 3, v15'); a('v_mul_u32_u24 v15, %d, v15' % XP)
    a('v_and_b32 v16, 1, v1'); a('v_lshl_add_u32 v15, v16, 5, v15'); a('v_bfe_u32 v16, v1, 4, 1'); a('v_lshl_add_u32 v15, v16, 4, v15')
    a('v_bfe_u32 v16, v1, 1, 1'); a('v_lshl_add_u32 v15, v16, 3, v15')
    a('s_lshl_b32 s31, s24, 7'); a('s_lshl_b32 s32, s30, 6'); a('s_add_u32 s31, s31, s32'); a('v_add_u32 v15, s31, v15')
    a('v_lshlrev_b32 v19, 5, v4'); a('v_add_u32 v19, %d, v19' % SA); a('v_lshlrev_b32 v20, 4, v4'); a('v_add_u32 v20, %d, v20' % SA)
    a('v_lshlrev_b32 v21, 6, v7'); a('v_lshl_add_u32 v21, v4, 5, v21')
    a('s_lshl_b32 s33, s24, 1'); a('s_add_u32 s33, s33, s30'); a('s_lshl_b32 s33, s33, 17'); a('s_lshl_b32 s34, s23, 12'); a('s_add_u32 s33, s33, s34'); a('s_add_u32 s33, s33, 0x%x' % ZB)
    a.label('ka_nogen')
    if KA_MALL:
        a('s_sub_u32 s46, s3, 4'); a('s_cmp_ge_u32 s46, 3'); a('s_cbranch_scc1 ka_w0')
        a('s_waitcnt vmcnt(1)'); a('s_branch ka_w1')
        a.label('ka_w0')
    a('s_waitcnt vmcnt(0)')
    a.label('ka_w1')
    stamp(a, 3)
    XR = 64
    for j in range(8): a('ds_read_b128 v[%d:%d], v13 offset:%d' % (XR + 4 * j, XR + 4 * j + 3, 16 * j))
    for j in range(8):
        a('s_waitcnt lgkmcnt(%d)' % (7 - j))
        for d in range(4):
            a('v_dot2c_f32_bf16 v%d, v%d, v22' % (24 + d, XR + 4 * j + d)); a('v_dot2c_f32_bf16 v%d, v%d, v%d' % (28 + d, XR + 4 * j + d, XR + 4 * j + d))
    a('s_nop 2')
    a('v_add_f32 v24, v24, v25'); a('v_add_f32 v26, v26, v27'); a('v_add_f32 v28, v28, v29'); a('v_add_f32 v30, v30, v31')
    a('v_add_f32 v24, v24, v26'); a('v_add_f32 v25, v28, v30')
    a('v_add_f32_dpp v24, v24, v24 row_ror:8'); a('v_add_f32_dpp v25, v25, v25 row_ror:8')
    half_sum(a, [24, 25], 26, 'v_permlane16_swap_b32'); half_sum(a, [24, 25], 26)
    a('v_mul_f32 v24, %s, v24' % fbits(-1.0 / 512)); a('v_mul_f32 v25, %s, v25' % fbits(1.0 / 512))
    a('v_fma_f32 v25, -v24, v24, v25'); a('v_max_f32 v25, 0, v25'); a('v_add_f32 v25, %s, v25' % fbits(1e-5)); a('v_rsq_f32 v25, v25')
    a('v_cvt_pk_bf16_f32 v26, v24, v24'); a('v_and_b32 v27, s36, v26'); a('v_sub_f32 v27, v24, v27'); a('v_cvt_pk_bf16_f32 v27, v27, v27')
    a('ds_write_b32 v17, v25'); a('ds_write_b16 v18, v26 offset:256'); a('ds_write_b16 v18, v27 offset:384')
    a('s_waitcnt lgkmcnt(0)')
    lds_inc(a, KC)
    a('s_cmp_ge_u32 s3, 4'); a('s_cbranch_scc1 ka_pf')
    lds_spin(a, 'ka_spin', KC, 8)
    stamp(a, 4)
    RR = 64; AF = 96; MF = 112; ACC = 64
    for j in range(4):
        for k in range(2): a('ds_read_b128 v[%d:%d], v19 offset:%d' % (RR + 8 * j + 4 * k, RR + 8 * j + 4 * k + 3, 64 * j + 16 * k), tag='r%d' % j)
    for j in range(4):
        for hf in range(2): a('ds_read_b64_tr_b16 v[%d:%d], v15 offset:%d' % (AF + 4 * j + 2 * hf, AF + 4 * j + 2 * hf + 1, (16 * j + 4 * hf) * XP), tag='a%d' % j)
    for j in range(4):
        a.wait_lg('r%d' % j)
        for i in range(0, 8, 2): a.pk('v_pk_mul_f32', BF + 8 * j + i, BF + 8 * j + i, RR + 8 * j + i)
        for d in range(4): a('v_cvt_pk_bf16_f32 v%d, v%d, v%d' % (BF + 8 * j + d, BF + 8 * j + 2 * d, BF + 8 * j + 2 * d + 1))
        for k in range(2): a('ds_read_b128 v[%d:%d], v20 offset:%d' % (MF + 8 * j + 4 * k, MF + 8 * j + 4 * k + 3, 256 + 128 * k + 32 * j), tag='m%d' % j)
    for j in range(4):
        a.wait_lg('a%d' % j); a.mfma(ACC, AF + 4 * j, BF + 8 * j, j == 0)
    for j in range(4):
        a.wait_lg('m%d' % j); a.mfma(ACC, MF + 8 * j, BF + 8 * j); a.mfma(ACC, MF + 8 * j + 4, BF + 8 * j)
    for d in range(8): a('v_cvt_pk_bf16_f32 v%d, v%d, v%d' % (80 + d, ACC + 2 * d, ACC + 2 * d + 1))
    a('buffer_store_dwordx4 v[80:83], v21, s[16:19], s33 offen %s' % ZST); a('buffer_store_dwordx4 v[84:87], v21, s[16:19], s33 offen offset:16 %s' % ZST)
    stamp(a, 5)
    a('s_branch %s_end' % name)
    a.role('ka_pf')
    if PF_MODE == 'mall':
        a('s_cmp_eq_u32 s26, 3'); a('s_cbranch_scc1 ka_pf2')
        a('s_lshl_b32 s46, s26, 3'); a('s_add_u32 s46, s46, 48'); a('s_load_dwordx2 s[52:53], s[0:1], s46')
        a('s_mov_b32 s54, %d' % (512 * 3584)); a('s_mov_b32 s55, 0x20000'); a('s_mul_i32 s46, s2, 7168'); a('v_lshlrev_b32 v8, 7, v1')
        a('s_waitcnt lgkmcnt(0)')
        a('s_mov_b32 exec_hi, 0xffffff')
        a('buffer_load_dword v10, v8, s[52:55], s46 offen')
        a('s_mov_b64 exec, -1')
        a.label('ka_pf2')
    if PF_CODE:
        a('s_cmp_ge_u32 s21, 2'); a('s_cbranch_scc1 %s_end' % name)
        a('s_getpc_b64 s[40:41]')
        a.label('ka_pc')
        a('s_add_u32 s40, s40, kb_main_kernel-ka_pc'); a('s_addc_u32 s41, s41, 0')
        a('s_mov_b32 s42, kb_main_kernel_exit-kb_main_kernel'); a('s_mov_b32 s43, 0x20000')
        a('s_lshl_b32 s44, s21, 2'); a('s_add_u32 s44, s44, s26'); a('s_lshl_b32 s44, s44, 12')
        a('v_lshlrev_b32 v8, 6, v1')
        a('buffer_load_dword v9, v8, s[40:43], s44 offen')
    a('s_branch %s_end' % name)
    a.role('ka_gemv')
    a('v_and_b32 v5, 255, v0'); a('v_lshrrev_b32 v7, 3, v5'); a('v_and_b32 v8, 7, v5')
    a('s_lshr_b32 s22, s2, 2'); a('s_and_b32 s23, s2, 3')
    a('v_lshlrev_b32 v9, 3, v7'); a('s_lshl_b32 s24, s23, 8')
    a('v_mul_u32_u24 v10, %d, v7' % (4 * 6144)); a('v_lshl_add_u32 v10, v8, 4, v10')
    a('s_mul_i32 s25, s23, %d' % (128 * 6144)); a('s_lshl_b32 s27, s22, 7'); a('s_add_u32 s25, s25, s27')
    a('v_lshrrev_b32 v30, 4, v5'); a('v_lshlrev_b32 v30, 8, v30'); a('v_lshl_add_u32 v30, v8, 5, v30'); a('v_add_u32 v30, %d, v30' % GP)
    a('s_waitcnt lgkmcnt(0)')
    srd(a, 12, 8, 1024); srd(a, 28, 10, 512 * 6144); srd(a, 16, 6, WSZ)
    stamp(a, 1)
    a('s_cmp_lt_u32 s2, 192'); a('s_cbranch_scc1 ka_job')
    a('s_barrier')
    a('s_cmp_lt_u32 s2, 254'); a('s_cbranch_scc1 %s_end' % name)
    for r in range(12, 16): a('v_mov_b32 v%d, 0' % r)
    a('s_and_b32 s24, s2, 1'); a('s_lshl_b32 s24, s24, 2'); a('s_add_u32 s24, s24, s26'); a('s_lshl_b32 s24, s24, 10'); a('s_add_u32 s24, s24, 0x%x' % FLAGB)
    a('buffer_store_dwordx4 v[12:15], v3, s[16:19], s24 offen')
    a('s_branch %s_end' % name)
    a.role('ka_job')
    a('buffer_load_dwordx2 v[12:13], v9, s[12:15], s24 offen', tag='c')
    if KA_GLATE: a('s_barrier')
    for i in range(4):
        a('buffer_load_dwordx4 v[%d:%d], v10, s[28:31], s25 offen' % (32 + 4 * i, 35 + 4 * i), tag='w%d' % i)
        if i < 3: a('s_add_u32 s25, s25, 6144')
    if not KA_GLATE: a('s_barrier')
    a('s_mov_b32 s36, 0xffff0000'); a('s_mov_b32 s40, 0x05040100'); a('s_mov_b32 s41, 0x07060302')
    for c in range(8): a('v_mov_b32 v%d, 0' % (64 + c))
    a.wait_vm('c')
    stamp(a, 2)
    unpack(a, 16, 12, 2, 36)
    for i in range(4): a('v_mul_f32 v%d, %s, v%d' % (20 + i, fbits(-LOG2E), 16 + i))
    for i in range(4): a('v_exp_f32 v%d, v%d' % (20 + i, 20 + i))
    for i in range(4): a('v_add_f32 v%d, 1.0, v%d' % (20 + i, 20 + i))
    for i in range(4): a('v_rcp_f32 v%d, v%d' % (20 + i, 20 + i))
    for i in range(4): a('v_mul_f32 v%d, v%d, v%d' % (20 + i, 20 + i, 16 + i))
    for d in range(2): a('v_cvt_pk_bf16_f32 v%d, v%d, v%d' % (12 + d, 20 + 2 * d, 21 + 2 * d))
    for ip in range(2):
        a.wait_vm('w%d' % (2 * ip + 1))
        r0 = 32 + 8 * ip; r1 = r0 + 4
        for d in range(4):
            a('v_perm_b32 v%d, v%d, v%d, s40' % (48 + 2 * d, r1 + d, r0 + d)); a('v_perm_b32 v%d, v%d, v%d, s41' % (49 + 2 * d, r1 + d, r0 + d))
        for c in range(8): a('v_dot2c_f32_bf16 v%d, v%d, v%d' % (64 + c, 48 + c, 12 + ip))
        a('s_nop 2')
    for c in range(8): a('v_add_f32_dpp v%d, v%d, v%d row_ror:8' % (64 + c, 64 + c, 64 + c))
    a('ds_write_b128 v30, v[64:67]'); a('ds_write_b128 v30, v[68:71] offset:16')
    a('s_waitcnt lgkmcnt(0)')
    a('v_mov_b32 v8, %d' % (KC + 4)); a('v_mov_b32 v9, 1'); a('s_mov_b64 exec, 1')
    a('ds_add_rtn_u32 v10, v8, v9'); a('s_waitcnt lgkmcnt(0)'); a('v_readfirstlane_b32 s56, v10'); a('s_mov_b64 exec, -1')
    stamp(a, 3)
    a('s_cmp_lg_u32 s56, 3'); a('s_cbranch_scc1 %s_end' % name)
    a('v_lshlrev_b32 v10, 2, v1'); a('v_add_u32 v10, %d, v10' % GP)
    for p in range(8): a('ds_read2st64_b32 v[%d:%d], v10 offset0:%d offset1:%d' % (32 + 2 * p, 33 + 2 * p, 2 * p, 2 * p + 1))
    a('s_lshr_b32 s24, s22, 3')
    a('s_lshl_b32 s25, s22, 6'); a('v_add_u32 v23, s25, v1'); a('v_and_b32 v26, 511, v23')
    a('v_sub_u32 v27, 512, v26'); a('v_and_b32 v27, 255, v27'); a('v_or_b32 v27, 256, v27')
    a('v_cmp_lt_u32 vcc, 255, v26'); a('s_sub_u32 s25, s24, 2'); a('s_cmp_lt_u32 s25, 3'); a('s_cselect_b64 vcc, vcc, 0')
    a('v_cndmask_b32 v27, v26, v27, vcc'); a('v_lshlrev_b32 v27, 2, v27')
    a('s_lshl_b32 s24, s24, 11'); a('s_mul_i32 s25, s23, 12288'); a('s_add_u32 s24, s24, s25')
    a('s_waitcnt lgkmcnt(0)')
    for st in (8, 4, 2, 1):
        for i in range(st): a('v_add_f32 v%d, v%d, v%d' % (32 + i, 32 + i, 32 + st + i))
    a('buffer_store_dword v32, v27, s[16:19], s24 offen %s' % ZST)
    finish(a, name, 0)
    return name, a.text() + kernel_desc(name, 168, 100), (256, 768, GP + 4096 + 64)

def cheb(a, dst, p1, p2, K):
    for i in range(0, 8, 2):
        a('v_pk_fma_f32 v[%d:%d], v[%d:%d], v[%d:%d], v[%d:%d] op_sel_hi:[1,0,1] neg_lo:[0,0,1] neg_hi:[0,0,1]' % (
            dst + i, dst + i + 1, p1 + i, p1 + i + 1, K, K + 1, p2 + i, p2 + i + 1))

WSL = 14464; WU = 7296; RW = 8; RZ = 5; NPRE = 5
PS = 156672
def lds_map():
    global ZR0, G2H, SBH, GBH, CSX, CNT, STL, LDS_TOTAL, TB, ZI, B1L, G1L, GAL, G2L, SAL, EXT, YST, DREG, DHALF
    ZR0 = RW * WSL
    assert ZR0 + RZ * 8192 <= PS
    G2H = PS; SBH = PS + 1024; GBH = PS + 2048; CSX = PS + 3072; CNT = PS + 6656; STL = PS
    LDS_TOTAL = PS + 7168
    TB = 5 * WSL
    ZI = TB; B1L = TB + 65536; G1L = B1L + 8192; GAL = G1L + 2048; G2L = GAL + 2048; SAL = CSX; EXT = G2L + 2048
    assert EXT + 2048 <= PS and NPRE <= 5
    YST = CSX + 1024
    DREG = 14336; DHALF = 5 * DREG
lds_map()

def poll(a, lbl, soff, nlanes):
    a('v_lshlrev_b32 v8, 2, v1'); a('s_mov_b32 s57, 0'); a('s_mov_b32 exec_lo, 0x%x' % ((1 << nlanes) - 1)); a('s_mov_b32 exec_hi, 0')
    a.label(lbl)
    a('buffer_load_dword v9, v8, s[16:19], s%d offen sc1' % soff); a('s_waitcnt vmcnt(0)')
    a('v_cmp_ne_u32 vcc, 0, v9'); a('s_cmp_eq_u32 vcc_lo, 0x%x' % ((1 << nlanes) - 1)); a('s_cbranch_scc1 %s_ok' % lbl)
    a('s_sleep %d' % PSLEEP); a('s_add_u32 s57, s57, 1'); a('s_cmp_lt_u32 s57, %d' % SPIN); a('s_cbranch_scc1 %s' % lbl)
    a.label(lbl + '_ok')
    a('s_mov_b64 exec, -1')
def lds_spin(a, lbl, addr, val):
    a('v_mov_b32 v8, %d' % addr); a('s_mov_b32 s57, 0')
    a.label(lbl)
    a('ds_read_b32 v9, v8'); a('s_waitcnt lgkmcnt(0)'); a('v_readfirstlane_b32 s56, v9')
    a('s_cmp_ge_u32 s56, %d' % val); a('s_cbranch_scc1 %s_ok' % lbl)
    a('s_sleep %d' % LSLEEP); a('s_add_u32 s57, s57, 1'); a('s_cmp_lt_u32 s57, %d' % (SPIN * 16)); a('s_cbranch_scc1 %s' % lbl)
    a.label(lbl + '_ok')
def lds_inc(a, addr):
    a('v_mov_b32 v8, %d' % addr); a('v_mov_b32 v9, 1'); a('s_mov_b64 exec, 1'); a('ds_add_u32 v8, v9'); a('s_mov_b64 exec, -1')
def arrive(a, lbl, addr, n, soff, total=0):
    a('s_waitcnt vmcnt(0)')
    a('v_mov_b32 v8, %d' % addr); a('v_mov_b32 v9, 1'); a('s_mov_b64 exec, 1')
    a('ds_add_rtn_u32 v10, v8, v9'); a('s_waitcnt lgkmcnt(0)'); a('v_readfirstlane_b32 s56, v10')
    a('s_cmp_lg_u32 s56, %d' % (n - 1)); a('s_cbranch_scc1 %s' % lbl)
    a('v_mov_b32 v8, 0')
    if total:
        a('v_mov_b32 v10, 1'); a('buffer_atomic_add v10, v8, s[16:19], s%d offen sc0 sc1' % soff); a('s_waitcnt vmcnt(0)'); a('v_readfirstlane_b32 s56, v10')
        a('s_cmp_lg_u32 s56, %d' % (total - 1)); a('s_cbranch_scc1 %s' % lbl)
        a('buffer_store_dword v9, v8, s[16:19], s%d offen offset:128 sc1' % soff)
    else:
        a('buffer_store_dword v9, v8, s[16:19], s%d offen sc1' % soff)
    a.label(lbl)
    a('s_mov_b64 exec, -1')

def gen_a2(a, A2, CH, sphase):
    swap23_v(a, 9, 6, 10); a('s_lshl_b32 s32, s22, 5'); a('v_add_u32 v9, s32, v9')
    a('s_lshl_b32 s32, s25, 5'); a('v_lshl_add_u32 v8, v4, 3, s32')
    a('v_mul_u32_u24 v12, v9, v8'); a('v_and_b32 v12, 511, v12'); a('v_cvt_f32_u32 v12, v12'); a('v_cvt_f32_u32 v13, v9')
    a('v_mul_f32 v13, %s, v13' % fbits(1 / 512)); a('v_mov_b32 v%d, %s' % (CH[0], sphase)); a('v_fmac_f32 v%d, %s, v12' % (CH[0], fbits(1 / 512)))
    a('v_mul_f32 v10, %s, v13' % fbits(16.0))
    for i in range(1, 8): a('v_add_f32 v%d, v%d, v13' % (CH[0] + i, CH[0] + i - 1))
    for i in range(8): a('v_add_f32 v%d, v%d, v10' % (CH[1] + i, CH[0] + i))
    a('v_cos_f32 v10, v10')
    for g in range(2):
        for i in range(8): a('v_cos_f32 v%d, v%d' % (CH[g] + i, CH[g] + i))
    a('v_add_f32 v10, v10, v10')
    for j in range(8):
        c = CH[j % 3]
        if j >= 2: cheb(a, c, CH[(j - 1) % 3], CH[(j - 2) % 3], 10)
        for d in range(4): a('v_cvt_pk_bf16_f32 v%d, v%d, v%d' % (A2 + 4 * j + d, c + 2 * d, c + 2 * d + 1))
def z_bases(a):
    a('v_bfe_u32 v10, v1, 2, 2'); a('v_lshl_add_u32 v10, v4, 3, v10'); a('v_lshlrev_b32 v10, 7, v10')
    a('v_bfe_u32 v11, v1, 4, 1'); a('v_lshl_add_u32 v10, v11, 5, v10'); a('v_and_b32 v11, 1, v1'); a('v_lshl_add_u32 v10, v11, 4, v10')
    a('v_bfe_u32 v11, v1, 1, 1'); a('v_lshl_add_u32 v10, v11, 3, v10'); a('v_bfe_u32 v11, v1, 3, 1'); a('v_lshl_add_u32 v10, v11, 6, v10')
    a('v_xor_b32 v11, 64, v10')
    a('s_lshl_b32 s32, s26, 12'); a('s_add_u32 s32, s32, %d' % ZI); a('v_add_u32 v10, s32, v10'); a('v_add_u32 v11, s32, v11')
    a('v_lshlrev_b32 v12, 5, v4'); a('v_add_u32 v12, %d, v12' % G1L)
    a('v_mov_b32 v14, 0'); a('v_mov_b32 v15, 0xbf803f80')

def kM():
    lds_map()
    a = XAsm(); name = 'kb_main_kernel'
    head(a, name, 256)
    a('s_load_dwordx2 s[6:7], s[0:1], 104')
    ids(a)
    a('s_and_b32 s22, s21, 7'); a('s_lshr_b32 s23, s21, 3'); a('s_lshl_b32 s24, s20, 2'); a('s_add_u32 s23, s23, s24')
    a('s_lshl_b32 s25, s26, 2'); a('s_lshl_b32 s24, s22, 1'); a('s_add_u32 s25, s25, s24')
    lg = {'2x16': 1, '4x8': 2, '8x4': 3, '16x2': 4}[K4_MAP]; gm = (1 << (lg - 1)) - 1
    def cmap():
        a('s_and_b32 s50, s21, %d' % ((1 << lg) - 1)); a('s_lshr_b32 s48, s21, %d' % lg); a('s_and_b32 s51, s20, %d' % gm); a('s_lshl_b32 s51, s51, %d' % (5 - lg)); a('s_add_u32 s48, s48, s51')
        a('s_lshr_b32 s49, s50, %d' % (lg - 1)); a('s_lshl_b32 s49, s49, 3'); a('s_and_b32 s51, s20, %d' % (7 & ~gm)); a('s_add_u32 s49, s49, s51')
        a('s_and_b32 s51, s50, %d' % gm); a('s_add_u32 s49, s49, s51'); a('s_lshl_b32 s49, s49, 2')
        a('s_lshl_b32 s50, s50, %d' % (4 - lg)); a('s_lshl_b32 s51, s48, %d' % (lg - 1)); a('s_add_u32 s50, s50, s51'); a('s_and_b32 s50, s50, 15')
        if not K4_ROT: a('s_mov_b32 s50, 0')
    def dmap():
        a('s_and_b32 s51, s21, 3'); a('s_lshr_b32 s52, s21, 2')
        a('s_lshr_b32 s53, s51, 1'); a('s_lshl_b32 s53, s53, 5'); a('s_lshl_b32 s54, s20, 2'); a('s_add_u32 s53, s53, s54')
        a('s_and_b32 s54, s51, 1'); a('s_lshl_b32 s54, s54, 1'); a('s_add_u32 s53, s53, s54')
        a('s_lshl_b32 s54, s51, 1'); a('s_add_u32 s54, s54, s52'); a('s_and_b32 s54, s54, 7'); a('s_cmp_eq_u32 s54, 7'); a('s_cselect_b32 s54, 3, s54')
        if not K5_ROT: a('s_mov_b32 s54, 0')
    LO, UP, CUR = 136, 144, 152
    uid = [0]
    def w_setup(who, smat, spart, npc):
        a('s_cmp_eq_u32 s%d, 1' % smat); a('s_cselect_b32 s40, s10, s8'); a('s_cselect_b32 s41, s11, s9'); a('s_mov_b32 s42, %d' % (512 * 3584)); a('s_mov_b32 s43, 0x20000')
        a('s_mul_i32 s30, s%d, %d' % (spart, 64 * npc))
        for q in range(min(npc, 7)):
            a('v_add_u32 v8, s30, v1')
            if q: a('v_add_u32 v8, %d, v8' % (64 * q))
            a('v_mul_u32_u24 v9, 4682, v8'); a('v_lshrrev_b32 v9, 16, v9')
            a('v_mul_u32_u24 v10, 14, v9'); a('v_sub_u32 v10, v8, v10'); a('v_lshlrev_b32 v10, 4, v10')
            a('v_mul_u32_u24 v11, 3584, v9'); a('v_add_u32 v%d, v11, v10' % (LO + q))
            a('v_sub_u32 v11, %d, v11' % (287 * 3584)); a('v_add_u32 v%d, v11, v10' % (UP + q))
            if q == 0:
                a('v_subrev_u32 v161, %d, v%d' % (256 * 3584, UP)); a('v_cmp_eq_u32 vcc, 0, v9'); a('v_cndmask_b32 v161, v%d, v161, vcc' % UP)
        a('s_mul_i32 s30, s48, 224'); a('s_add_u32 s31, s30, %d' % (225 * 3584))
        a('s_mul_i32 s44, s%d, %d' % (smat, WU)); a('s_mul_i32 s45, s%d, %d' % (spart, 1024 * npc)); a('s_add_u32 s44, s44, s45'); a('s_add_u32 s45, s44, %d' % ZR0)
        a('s_mov_b32 s47, s44')
        def sethalf(upper):
            if upper:
                a('v_mov_b32 v%d, v161' % CUR); a('v_mov_b32 v160, v%d' % UP)
                for q in range(1, min(npc, 7)): a('v_mov_b32 v%d, v%d' % (CUR + q, UP + q))
                a('s_mov_b32 s60, s31'); a('s_mov_b32 s61, %d' % (-32 * 3584))
            else:
                a('v_mov_b32 v160, v%d' % LO)
                for q in range(min(npc, 7)): a('v_mov_b32 v%d, v%d' % (CUR + q, LO + q))
                a('s_mov_b32 s60, s30'); a('s_mov_b32 s61, %d' % (32 * 3584))
        a('s_cmp_ge_u32 s55, 8'); a('s_cbranch_scc1 km_w_u0%s' % who)
        sethalf(False); a('s_branch km_w_go%s' % who)
        a.label('km_w_u0%s' % who); sethalf(True)
        a('s_cmp_eq_u32 s55, 8'); a('s_cbranch_scc1 km_w_go%s' % who); a('v_mov_b32 v%d, v160' % CUR)
        a.label('km_w_go%s' % who)
        a('s_and_b32 s32, s55, 7'); a('s_mul_i32 s32, s32, s61'); a('s_add_u32 s60, s60, s32')
        def w_issue():
            uid[0] += 1; u = uid[0]
            a('s_mov_b32 m0, s47')
            for q in range(npc - 1):
                a('buffer_load_dwordx4 v%d, s[40:43], s60 offen lds' % (CUR + q)); a('s_add_u32 m0, m0, 1024')
            if npc < 8:
                a('s_cmp_eq_u32 s%d, %d' % (spart, 8 // npc - 1)); a('s_cbranch_scc1 km_w_s%d' % u)
                a('buffer_load_dwordx4 v%d, s[40:43], s60 offen lds' % (CUR + npc - 1))
                a.label('km_w_s%d' % u)
            a('v_mov_b32 v%d, v160' % CUR); a('s_add_u32 s60, s60, s61')
            a('s_add_u32 s47, s47, %d' % WSL); a('s_cmp_eq_u32 s47, s45'); a('s_cselect_b32 s47, s44, s47')
            a('s_add_u32 s24, s24, 1'); a('s_add_u32 s55, s55, 1'); a('s_and_b32 s32, s55, 7')
            a('s_cmp_lg_u32 s32, 0'); a('s_cbranch_scc1 km_w_e%d' % u)
            a('s_cmp_eq_u32 s55, 16'); a('s_cbranch_scc1 km_w_l%d' % u)
            sethalf(True); a('s_branch km_w_e%d' % u)
            a.label('km_w_l%d' % u); sethalf(False); a('s_mov_b32 s55, 0')
            a.label('km_w_e%d' % u)
        return w_issue
    a('s_cmp_lt_u32 s3, 8'); a('s_cbranch_scc1 km_compute')
    a('s_load_dwordx4 s[8:11], s[0:1], 48')
    if H_PRIO: a('s_setprio %d' % H_PRIO)
    a('v_lshrrev_b32 v5, 3, v1'); a('v_lshlrev_b32 v5, 12, v5'); a('v_and_b32 v7, 7, v1'); a('v_lshrrev_b32 v8, 2, v1'); a('v_and_b32 v8, 4, v8'); a('v_xor_b32 v7, v7, v8')
    a('v_lshl_add_u32 v5, v7, 4, v5')
    a('s_lshl_b32 s27, s23, 7'); a('s_add_u32 s27, s27, 0x%x' % ZB)
    a('s_lshl_b32 s28, s26, 12'); a('s_add_u32 s28, s28, %d' % ZI)
    a('s_lshl_b32 s33, s26, 9'); a('v_lshlrev_b32 v16, 4, v6'); a('v_add_u32 v16, s33, v16')
    a('v_lshlrev_b32 v17, 11, v4'); a('v_sub_u32 v17, 2048, v17'); a('v_add_u32 v17, v17, v16')
    a('v_add_u32 v18, %d, v16' % G1L); a('v_lshrrev_b32 v20, 1, v16'); a('v_add_u32 v20, %d, v20' % SAL)
    a('v_cvt_f32_u32 v19, v4'); a('v_mul_f32 v21, %s, v19' % fbits(2047.0)); a('v_add_f32 v21, 1.0, v21'); a('v_sub_f32 v19, 1.0, v19')
    a('s_mov_b32 s46, 0xffff0000'); a('s_mov_b32 s34, 12288'); a('s_mov_b32 s35, 24576'); a('s_mov_b32 s36, 36864')
    a('v_mov_b32 v8, %d' % CNT)
    for r in range(12, 16): a('v_mov_b32 v%d, 0' % r)
    a('ds_write_b128 v8, v[12:15]'); a('ds_write_b128 v8, v[12:15] offset:16'); a('ds_write_b128 v8, v[12:15] offset:32')
    a('s_waitcnt lgkmcnt(0)')
    srd(a, 16, 6, WSZ)
    stamp(a, 1)
    def zdma(i):
        a('s_add_u32 s32, s25, %d' % i); a('s_and_b32 s32, s32, 15'); a('s_lshl_b32 s32, s32, 17'); a('s_add_u32 s32, s32, s27')
        a('s_add_u32 m0, s28, %d' % (16384 * i))
        for k in range(4):
            a('buffer_load_dwordx4 v5, s[16:19], s32 offen lds', tag='z%d' % i)
            if k < 3: a('s_add_u32 m0, m0, 1024'); a('s_add_u32 s32, s32, 32768')
    FP = 32
    zdma(0)
    for p, so in enumerate(('0', 's34', 's35', 's36')): a('buffer_load_dwordx4 v[%d:%d], v17, s[16:19], %s offen' % (FP + 4 * p, FP + 4 * p + 3, so), tag='f1')
    zdma(1); zdma(2); zdma(3)
    a.wait_vm('z0'); a.bar()
    a.wait_vm('f1')
    for i in (0, 2): a.pk('v_pk_add_f32', FP + i, FP + i, FP + 4 + i); a.pk('v_pk_add_f32', FP + 8 + i, FP + 8 + i, FP + 12 + i)
    for i in (0, 2): a.pk('v_pk_add_f32', FP + i, FP + i, FP + 8 + i)
    for d in range(2): a('v_cvt_pk_bf16_f32 v%d, v%d, v%d' % (FP + 4 + d, FP + 2 * d, FP + 2 * d + 1))
    unpack(a, FP, FP + 4, 2, 46)
    for i in range(4): a('v_fma_f32 v%d, v%d, v21, v19' % (FP + i, FP + i))
    for d in range(2): a('v_cvt_pk_bf16_f32 v%d, v%d, v%d' % (FP + 4 + d, FP + 2 * d, FP + 2 * d + 1))
    unpack(a, FP, FP + 4, 2, 46)
    a('s_mov_b32 exec_hi, 0'); a('ds_write_b128 v18, v[%d:%d]' % (FP, FP + 3))
    a('s_not_b64 exec, exec'); a('ds_write_b64 v20, v[%d:%d]' % (FP + 4, FP + 5)); a('s_mov_b64 exec, -1')
    a('s_waitcnt lgkmcnt(0)')
    a.wait_vm('z1'); a.bar()
    stamp(a, 2)
    a('s_add_u32 s34, s26, 2'); a('s_lshl_b32 s34, s34, 11')
    for p in range(4):
        for k in range(2): a('buffer_load_dwordx4 v[%d:%d], v3, s[16:19], s34 offen offset:%d' % (FP + 8 * p + 4 * k, FP + 8 * p + 4 * k + 3, 1024 * k), tag='f2')
        if p < 3: a('s_add_u32 s34, s34, 12288')
    a.wait_vm('z3'); a.bar()
    a('s_cmp_lg_u32 s23, 0'); a('s_cbranch_scc1 km_h_nq')
    z_bases(a)
    for d in range(4): a('v_mov_b32 v%d, v15' % (64 + d))
    a('v_lshlrev_b32 v22, 4, v4'); a('v_add_u32 v22, %d, v22' % YST)
    for i in range(4):
        for j in range(2):
            for hf in range(2): a('ds_read_b64_tr_b16 v[%d:%d], v10 offset:%d' % (68 + 8 * i + 4 * j + 2 * hf, 69 + 8 * i + 4 * j + 2 * hf, 16384 * i + (16 * j + 4 * hf) * 128))
    for i in range(4):
        a('s_add_u32 s32, s25, %d' % i); a('s_and_b32 s32, s32, 15'); a('s_lshl_b32 s33, s32, 6'); a('s_lshl_b32 s32, s32, 7'); a('v_add_u32 v13, s32, v12'); a('v_add_u32 v9, s33, v22')
        for k in range(4): a('ds_read_b128 v[%d:%d], v13 offset:%d' % (116 + 4 * k, 119 + 4 * k, 64 * (k >> 1) + 16 * (k & 1)))
        a('s_waitcnt lgkmcnt(4)')
        a.mfma(100, 68 + 8 * i, 64, True); a.mfma(100, 72 + 8 * i, 64)
        a('s_waitcnt lgkmcnt(0)')
        for r in range(0, 16, 2): a.pk('v_pk_mul_f32', 100 + r, 100 + r, 116 + r)
        for d in range(8): a('v_cvt_pk_bf16_f32 v%d, v%d, v%d' % (132 + d, 100 + 2 * d, 101 + 2 * d))
        for h in range(2): a('ds_write_b128 v9, v[%d:%d] offset:%d' % (132 + 4 * h, 135 + 4 * h, 32 * h))
    a('s_waitcnt lgkmcnt(0)')
    lds_inc(a, CNT + 32)
    a.label('km_h_nq')
    a('s_and_b32 s37, s26, 1'); a('s_lshr_b32 s38, s26, 1')
    cmap()
    a.wait_vm('f2')
    for i in range(0, 8, 2): a.pk('v_pk_add_f32', FP + i, FP + i, FP + 8 + i); a.pk('v_pk_add_f32', FP + 16 + i, FP + 16 + i, FP + 24 + i)
    for i in range(0, 8, 2): a.pk('v_pk_add_f32', FP + i, FP + i, FP + 16 + i)
    for d in range(4): a('v_cvt_pk_bf16_f32 v%d, v%d, v%d' % (FP + 8 + d, FP + 2 * d, FP + 2 * d + 1))
    unpack(a, FP, FP + 8, 4, 46)
    a('s_cmp_eq_u32 s26, 2'); a('s_cselect_b32 s35, 1.0, 0')
    for i in range(8): a('v_add_f32 v%d, s35, v%d' % (FP + i, FP + i))
    for d in range(4): a('v_cvt_pk_bf16_f32 v%d, v%d, v%d' % (FP + 8 + d, FP + 2 * d, FP + 2 * d + 1))
    unpack(a, FP, FP + 8, 4, 46)
    a('s_lshl_b32 s32, s26, 3'); a('s_lshr_b32 s33, 0x02000103, s32'); a('s_and_b32 s33, s33, 3'); a('s_lshl_b32 s33, s33, 10'); a('s_add_u32 s33, s33, %d' % PS)
    a('v_lshl_add_u32 v20, v1, 3, s33')
    a('s_cmp_eq_u32 s26, 0'); a('s_cbranch_scc1 km_h_noh')
    a('ds_write_b64 v20, v[%d:%d]' % (FP + 8, FP + 9)); a('ds_write_b64 v20, v[%d:%d] offset:512' % (FP + 10, FP + 11))
    a.label('km_h_noh')
    a('s_cmp_eq_u32 s37, 1'); a('s_cbranch_scc1 km_h_nof')
    a('s_lshl_b32 s32, s38, 11'); a('s_add_u32 s32, s32, %d' % GAL); a('v_add_u32 v8, s32, v3')
    a('ds_write_b128 v8, v[%d:%d]' % (FP, FP + 3)); a('ds_write_b128 v8, v[%d:%d] offset:1024' % (FP + 4, FP + 7))
    a.label('km_h_nof')
    a('s_load_dwordx2 s[4:5], s[0:1], 64')
    a('s_waitcnt lgkmcnt(0)')
    lds_inc(a, CNT + 4)
    stamp(a, 3)
    srd(a, 12, 4, 1792 * 1024)
    def c_iters(p, first, issue, last_issue, nper, look, upto):
        a('s_mov_b32 s29, 0')
        a.label(p + '_loop')
        a('s_cmp_lt_u32 s29, %d' % first); a('s_cbranch_scc1 %s_noi' % p)
        if 'Cnoload' not in EXP: issue()
        a.label(p + '_noi')
        a('s_waitcnt vmcnt(%d)' % (nper * look))
        a('s_barrier')
        a('s_add_u32 s29, s29, 1'); a('s_cmp_lt_u32 s29, %d' % upto); a('s_cbranch_scc1 %s_loop' % p)
    a('s_cmp_eq_u32 s38, 1'); a('s_cbranch_scc1 km_hz')
    a('s_mov_b32 s55, s50'); a('s_mov_b32 s24, 0'); a('s_mov_b32 s39, 0')
    w_issue = w_setup('h', 37, 39, 8)
    NST = 16 >> lg
    if W_START == 'tfree': lds_spin(a, 'km_spinT', CNT + 12, 4)
    elif W_START == 'arr': lds_spin(a, 'km_spinT', CNT, 4)
    elif W_START == 'iss': lds_spin(a, 'km_spinT', CNT + 36, 4)
    stamp(a, 4)
    a.label('km_hw_pre')
    w_issue()
    a('s_cmp_lg_u32 s24, %d' % (NST + 1)); a('s_cbranch_scc1 km_hw_pre1')
    a('s_waitcnt vmcnt(7)'); lds_inc(a, CNT + 16)
    a.label('km_hw_pre1')
    if W_START == 'fin2':
        a('s_cmp_lg_u32 s24, %d' % NPRE); a('s_cbranch_scc1 km_hw_pre2')
        lds_spin(a, 'km_spinT', CNT + 12, 4)
        a.label('km_hw_pre2')
    a('s_cmp_lt_u32 s24, %d' % RW); a('s_cbranch_scc1 km_hw_pre')
    stamp(a, 5)
    a('s_lshl_b32 s33, s37, 1'); a('s_add_u32 s33, s33, s49'); a('s_lshl_b32 s33, s33, 12'); a('s_add_u32 s33, s33, 0x%x' % STATS)
    a('v_lshlrev_b32 v16, 3, v6'); a('v_lshl_add_u32 v16, v4, 12, v16')
    a('s_lshl_b32 s34, s20, 5'); a('s_and_b32 s35, s21, %d' % (31 & ~((1 << lg) - 1))); a('s_add_u32 s34, s34, s35')
    a('s_lshl_b32 s35, s34, 2'); a('s_add_u32 s35, s35, 0x%x' % FLAGS)
    a('s_lshl_b32 s34, s34, 11'); a('s_lshl_b32 s36, s37, 10'); a('s_add_u32 s34, s34, s36'); a('s_add_u32 s34, s34, 0x%x' % CSP)
    a.bar()
    LW = 17 - RW
    c_iters('km_hw', 2, w_issue, LW, 7, RW - 3, LW + 1); a.nbar += LW + 1
    NP = 1 << lg
    a.vm = 0; a.tags = {}
    for st in range(LW + 2, 16): a.vm += 7; a.tags['W%d' % st] = a.vm
    ST = 32
    for b in range(LW + 1, 16):
        if b == LW + 1:
            for c in range(16): a('buffer_load_dwordx2 v[%d:%d], v16, s[16:19], s33 offen offset:%d sc1' % (ST + 2 * c, ST + 2 * c + 1, 256 * c), tag='st')
        if b == TAIL_B:
            poll(a, 'km_pollS', 35, NP)
            for p in range(NP):
                a('buffer_load_dwordx4 v[%d:%d], v3, s[16:19], s34 offen sc1' % (64 + 4 * p, 67 + 4 * p), tag='cp'); a('s_add_u32 s34, s34, 2048')
            for st in (16, 8, 4, 2):
                for i in range(0, st, 2): a.pk('v_pk_add_f32', ST + i, ST + i, ST + st + i)
            a('v_mul_f32 v10, %s, v%d' % (fbits(-1.0 / 512), ST))
            a('v_mul_f32 v11, %s, v%d' % (fbits(1.0 / 512), ST + 1)); a('v_fma_f32 v11, -v10, v10, v11'); a('v_max_f32 v11, 0, v11')
            a('v_add_f32 v11, %s, v11' % fbits(1e-5))
            a('v_rsq_f32 v14, v11'); a('v_sqrt_f32 v15, v11')
            for src, dst in ((10, 12), (15, 13)):
                a('v_cvt_pk_bf16_f32 v%d, v%d, v%d' % (ST, src, src)); a('v_and_b32 v%d, s46, v%d' % (ST, ST)); a('v_sub_f32 v%d, v%d, v%d' % (ST + 1, src, ST))
                a('v_cvt_pk_bf16_f32 v%d, v%d, v%d' % (dst, ST, ST + 1))
            a('s_lshl_b32 s32, s37, 10'); a('s_add_u32 s32, s32, %d' % STL); a('v_add_u32 v8, s32, v3'); a('ds_write_b128 v8, v[12:15]')
        if b == 15:
            a('s_waitcnt vmcnt(0)')
            st = NP // 2
            while st:
                for i in range(0, 4 * st, 2): a.pk('v_pk_add_f32', 64 + i, 64 + i, 64 + 4 * st + i)
                st //= 2
            for i in range(4):
                a('v_cvt_pk_bf16_f32 v%d, v%d, v%d' % (72 + 2 * i, 64 + i, 64 + i)); a('v_and_b32 v80, s46, v%d' % (72 + 2 * i)); a('v_sub_f32 v80, v%d, v80' % (64 + i))
                a('v_cvt_pk_bf16_f32 v%d, v80, v80' % (73 + 2 * i))
            a('v_lshrrev_b32 v8, 4, v1'); a('v_lshlrev_b32 v8, 9, v8'); a('v_and_b32 v9, 3, v1'); a('v_lshl_add_u32 v8, v9, 7, v8')
            a('v_bfe_u32 v9, v1, 2, 1'); a('v_lshl_add_u32 v8, v9, 6, v8'); a('v_bfe_u32 v9, v1, 3, 1'); a('v_lshl_add_u32 v8, v9, 3, v8')
            a('s_lshl_b32 s32, s37, 11'); a('s_add_u32 s32, s32, %d' % CSX); a('v_add_u32 v8, s32, v8')
            a('s_cmp_eq_u32 s37, 1'); a('s_cselect_b32 exec_hi, 0xffff, -1')
            for i in range(4): a('ds_write_b64 v8, v[%d:%d] offset:%d' % (72 + 2 * i, 73 + 2 * i, 16 * i))
            a('s_mov_b64 exec, -1')
        if b + 1 < 16 and b < TAIL_B: a.wait_vm('W%d' % (b + 1))
        if b == 15: a('s_waitcnt lgkmcnt(0)')
        a.bar()
    a('s_branch km_c_done')
    a.role('km_hz')
    a('s_lshr_b32 s63, s49, 2'); a('s_and_b32 s63, s63, 7'); a('s_lshl_b32 s63, s63, 8'); a('s_add_u32 s63, s63, 0x%x' % (FLAGB + 128))
    a('s_lshl_b32 s33, s37, 1'); a('s_add_u32 s33, s33, s49'); a('s_lshl_b32 s33, s33, 15'); a('s_add_u32 s33, s33, 0x%x' % ZT)
    a('s_lshl_b32 s34, s37, 12'); a('s_add_u32 s34, s34, %d' % ZR0); a('s_add_u32 s35, s34, %d' % (RZ * 8192)); a('s_mov_b32 s36, s34')
    a('s_lshl_b32 s39, s50, 11')
    nsh = 32 >> lg; ntch = max(1, 512 // nsh // 64) if Z_TOUCH else 0
    a('s_lshr_b32 s30, s21, %d' % lg); a('s_mul_i32 s30, s30, %d' % (65536 // nsh)); a('s_add_u32 s30, s30, s33'); a('v_lshlrev_b32 v29, 7, v1')
    def z_issue():
        a('s_mov_b32 m0, s36'); a('s_add_u32 s32, s33, s39'); a('s_add_u32 s31, s32, 32768')
        a('buffer_load_dwordx4 v3, s[16:19], s32 offen sc1 lds'); a('buffer_load_dwordx4 v3, s[16:19], s32 offen offset:1024 sc1 lds')
        a('s_add_u32 m0, m0, 2048'); a('s_add_u32 s39, s39, 2048'); a('s_and_b32 s39, s39, 32767')
        a('buffer_load_dwordx4 v3, s[16:19], s31 offen sc1 lds'); a('buffer_load_dwordx4 v3, s[16:19], s31 offen offset:1024 sc1 lds')
        a('s_add_u32 s36, s36, 8192'); a('s_cmp_eq_u32 s36, s35'); a('s_cselect_b32 s36, s34, s36')
    lds_spin(a, 'km_spinZ', CNT, 4)
    stamp(a, 6)
    a('s_cmp_eq_u32 s37, 1'); a('s_cbranch_scc1 km_hz_w')
    poll(a, 'km_pollB', 63, 1)
    lds_inc(a, CNT + 24)
    a('s_branch km_hz_go')
    a.label('km_hz_w')
    lds_spin(a, 'km_spinG', CNT + 24, 1)
    a.label('km_hz_go')
    stamp(a, 7)
    z_issue(); z_issue()
    for k in range(ntch):
        a('buffer_load_dword v31, v29, s[16:19], s30 offen sc1'); a('s_add_u32 s30, s30, 8192')
    a('s_waitcnt vmcnt(%d)' % (4 + ntch)); a('s_barrier')
    n1 = (RZ - 2 + 1) // 2
    for i in range(n1): z_issue()
    a('s_waitcnt vmcnt(%d)' % (4 * n1 + ntch)); a('s_barrier')
    for i in range(RZ - 2 - n1): z_issue()
    a('s_waitcnt vmcnt(%d)' % (4 * (RZ - 3))); a('s_barrier')
    c_iters('km_hz', 0, z_issue, 0, 4, RZ - 3, 16 - RZ)
    nx = 0
    if PF_WD == 2:
        a('s_lshl_b32 s32, s21, 1'); a('s_add_u32 s32, s32, s37'); a('s_mul_i32 s32, s32, 28672')
        a('s_mov_b32 exec_hi, 0xffffff')
        for k in range(4):
            a('buffer_load_dword v31, v29, s[12:15], s32 offen'); a('s_add_u32 s32, s32, 7168'); nx += 1
        a('s_mov_b64 exec, -1')
    for k in range(RZ - 4, -2, -1):
        if k >= 0: a('s_waitcnt vmcnt(%d)' % (4 * k + nx))
        a('s_barrier')
    a.label('km_c_done')
    dmap()
    a('v_lshrrev_b32 v5, 3, v1'); a('v_and_b32 v7, 7, v1'); a('v_lshrrev_b32 v8, 2, v1'); a('v_and_b32 v8, 4, v8'); a('v_xor_b32 v7, v7, v8')
    a('v_lshlrev_b32 v5, 10, v5'); a('v_lshl_add_u32 v5, v7, 4, v5')
    a('s_waitcnt lgkmcnt(0)')
    a('s_setprio %d' % D_PRIO)
    a.bar()
    if D_START == 'iss': lds_spin(a, 'km_spinD', CNT + 40, 8)
    stamp(a, 8)
    a('s_mul_i32 s30, s26, %d' % (448 * 1024)); a('s_lshl_b32 s31, s52, 7'); a('s_add_u32 s30, s30, s31')
    a('s_lshl_b32 s31, s26, 15'); a('v_add_u32 v7, s31, v3'); a('s_mov_b32 s33, 0')
    def next_region():
        a('s_lshl_b32 s32, s54, 16'); a('s_add_u32 s32, s32, s30'); a('s_add_u32 s54, s54, 1'); a('s_cmp_eq_u32 s54, 7'); a('s_cselect_b32 s54, 0, s54')
    a('s_mov_b32 m0, s31')
    a.label('km_d_loop')
    next_region()
    for k in range(8):
        a('buffer_load_dwordx4 v5, s[12:15], s32 offen lds'); a('s_add_u32 m0, m0, 1024')
        if k < 7: a('s_add_u32 s32, s32, 8192')
    a('s_add_u32 s33, s33, 1'); a('s_cmp_lt_u32 s33, 4'); a('s_cbranch_scc1 km_d_loop')
    for g in range(3):
        next_region()
        for k in range(8):
            r = 16 + 32 * g + 4 * k
            a('buffer_load_dwordx4 v[%d:%d], v5, s[12:15], s32 offen' % (r, r + 3))
            if k < 7: a('s_add_u32 s32, s32, 8192')
    a('s_waitcnt vmcnt(24)')
    stamp(a, 9)
    a.bar()
    a('s_waitcnt vmcnt(0)')
    for g in range(3):
        a.bar()
        for k in range(8):
            r = 16 + 32 * g + 4 * k
            a('ds_write_b128 v7, v[%d:%d] offset:%d' % (r, r + 3, g * 8192 + 1024 * k))
        a('s_waitcnt lgkmcnt(0)')
    a.bar()
    nbar_h = a.nbar
    a('s_branch %s_end' % name)
    a.role('km_compute'); a.nbar = 0
    a('s_lshr_b32 s27, s3, 2')
    a('s_load_dwordx2 s[4:5], s[0:1], 0'); a('s_load_dwordx4 s[8:11], s[0:1], 48'); a('s_load_dwordx2 s[60:61], s[0:1], 64')
    A2, B1, AC1, AP, ZF, GG = 16, 48, [64, 80], 96, 112, 128
    token_of(a, 7, 8, 23)
    a('s_mov_b64 s[30:31], vcc')
    a('s_lshr_b32 s28, s26, 1'); a('s_and_b32 s29, s26, 1'); a('s_lshl_b32 s29, s29, 4'); a('v_lshl_add_u32 v8, v4, 3, s29')
    a('s_cmp_eq_u32 s23, 0'); a('s_cselect_b32 s32, 0, s28'); a('s_sub_i32 s32, s32, s27'); a('v_cvt_f32_i32 v9, s32'); a('v_mul_f32 v9, %s, v9' % fbits(0.25))
    a('v_mul_u32_u24 v12, v7, v8'); a('v_and_b32 v12, 2047, v12'); a('v_cvt_f32_u32 v12, v12'); a('v_cvt_f32_u32 v13, v7')
    a('v_mul_f32 v13, %s, v13' % fbits(1 / 2048)); a('v_fmamk_f32 v64, v12, %s, v9' % fbits(1 / 2048))
    for i in range(1, 8): a('v_add_f32 v%d, v%d, v13' % (64 + i, 63 + i))
    for i in range(8): a('v_cos_f32 v%d, v%d' % (64 + i, 64 + i))
    for d in range(4): a('v_cvt_pk_bf16_f32 v%d, v%d, v%d' % (72 + d, 64 + 2 * d, 65 + 2 * d))
    a('s_not_b64 s[32:33], s[30:31]'); a('s_cmp_eq_u32 s28, 1'); a('s_cselect_b64 s[32:33], s[30:31], s[32:33]'); a('s_cmp_eq_u32 s23, 0'); a('s_cselect_b64 s[32:33], s[32:33], -1')
    for d in range(4): a('v_cndmask_b32 v%d, 0, v%d, s[32:33]' % (72 + d, 72 + d))
    a('s_lshl_b32 s32, s3, 10'); a('s_add_u32 s32, s32, %d' % B1L); a('v_add_u32 v8, s32, v3'); a('ds_write_b128 v8, v[72:75]')
    a('s_cmp_eq_u32 s27, 1'); a('s_cselect_b32 s34, %s, 0' % fbits(-0.25))
    gen_a2(a, A2, [64, 72, 80], 's34'); z_bases(a)
    a('s_lshl_b32 s32, s27, 12'); a('s_add_u32 s32, s32, %d' % B1L); a('v_add_u32 v8, s32, v3')
    a('v_cmp_eq_u32 s[42:43], 0, v7'); a('s_cmp_eq_u32 s27, 1'); a('s_cselect_b64 s[44:45], s[42:43], 0')
    a('v_lshlrev_b32 v5, 4, v4'); a('v_add_u32 v5, %d, v5' % YST); a('s_or_b32 s33, s22, s27')
    for r in range(160, 164): a('v_mov_b32 v%d, 0' % r)
    a('s_waitcnt lgkmcnt(0)')
    srd(a, 16, 6, WSZ)
    stamp(a, 1)
    XL, XU, XX = 160, 164, 2
    a('s_and_b32 s37, s26, 1'); a('s_lshr_b32 s38, s26, 1')
    ZFS = [112, 128]
    def zread(i):
        for j in range(4):
            for hf in range(2):
                r = ZFS[i & 1] + 4 * j + 2 * hf
                a('ds_read_b64_tr_b16 v[%d:%d], v%d offset:%d' % (r, r + 1, 10 + (j >> 1), 16384 * i + (16 * (j & 1) + 4 * hf) * 128), tag='zr%d_%d' % (i, j))
    def x_loads(u):
        a('s_cmp_eq_u32 s27, 0'); a('s_cbranch_scc1 km_nox%s' % u)
        srd(a, 12, 4, 2048 * 1024)
        a('s_cmp_eq_u32 s38, 1'); mirror_if(a, 7, 9, 13); a('v_lshlrev_b32 v7, 10, v7')
        a('s_lshl_b32 s39, s22, 6'); a('s_lshl_b32 s30, s37, 5'); a('s_add_u32 s39, s39, s30'); a('v_lshl_add_u32 v9, v4, 4, s39')
        a('v_add_u32 v0, v7, v9'); a('buffer_load_dwordx4 v[%d:%d], v0, s[12:15], 0 offen' % (XL, XL + 3))
        a('v_sub_u32 v0, 1008, v9'); a('v_add_u32 v0, v7, v0'); a('buffer_load_dwordx4 v[%d:%d], v0, s[12:15], 0 offen' % (XU, XU + 3))
        a('v_sub_u32 v0, 1024, v9'); a('v_and_b32 v0, 511, v0'); a('v_add_u32 v0, v7, v0')
        a('buffer_load_ushort v%d, v0, s[12:15], 0 offen offset:512' % XX)
        a('v_lshlrev_b32 v7, 1, v9')
        a.label('km_nox%s' % u)
    def w_touch(u):
        a('s_cmp_lg_u32 s27, 0'); a('s_cbranch_scc1 km_ntw%s' % u)
        span = 3584 >> (lg - 1); nl = span // 128 + (1 if span % 128 else 0)
        magic = -(-65536 // nl)
        a('s_cmp_ge_u32 s21, 16'); a('s_cselect_b32 s12, s10, s8'); a('s_cselect_b32 s13, s11, s9'); a('s_mov_b32 s14, %d' % (512 * 3584)); a('s_mov_b32 s15, 0x20000')
        a('s_and_b32 s40, s21, 15'); a('s_lshl_b32 s40, s40, 2'); a('s_add_u32 s40, s40, s26'); a('s_mul_i32 s40, s40, %d' % (8 * 3584))
        a('s_and_b32 s41, s20, %d' % gm); a('s_mul_i32 s41, s41, %d' % span); a('s_and_b32 s41, s41, 0xffffff80'); a('s_add_u32 s40, s40, s41')
        for k in range(-(-8 * nl // 64)):
            for idx in range(64 * k + 64): assert (idx * magic) >> 16 == idx // nl
            a('v_add_u32 v9, %d, v1' % (64 * k)); a('v_min_u32 v9, %d, v9' % (8 * nl - 1))
            a('v_mul_u32_u24 v7, %d, v9' % magic); a('v_lshrrev_b32 v7, 16, v7'); a('v_mul_u32_u24 v7, %d, v7' % (3584 - nl * 128)); a('v_lshl_add_u32 v7, v9, 7, v7')
            a('buffer_load_dword v164, v7, s[12:15], s40 offen')
        if WD_MALL:
            a('s_cmp_lg_u32 s26, 0'); a('s_cbranch_scc1 km_ntw%s' % u)
            a('s_mov_b32 s12, s60'); a('s_mov_b32 s13, s61'); a('s_mul_i32 s40, s2, 7168'); a('v_min_u32 v9, 27, v1'); a('v_lshlrev_b32 v9, 8, v9')
            a('buffer_load_dword v165, v9, s[12:15], s40 offen')
        a.label('km_ntw%s' % u)
    AY = 112; GG = 144
    def gread(i):
        a('s_add_u32 s32, s25, %d' % i); a('s_and_b32 s32, s32, 15'); a('s_lshl_b32 s32, s32, 7'); a('v_add_u32 v13, s32, v12')
        for k in range(4): a('ds_read_b128 v[%d:%d], v13 offset:%d' % (GG + 4 * k, GG + 4 * k + 3, 64 * (k >> 1) + 16 * (k & 1)), tag='g%d' % i)
    a.bar()
    stamp(a, 2)
    for j in range(4): a('ds_read_b128 v[%d:%d], v8 offset:%d' % (B1 + 4 * j, B1 + 4 * j + 3, 1024 * j))
    a.reg = 'B'
    zread(0)
    for j in range(4):
        a.wait_lg('zr0_%d' % j); a.mfma(AC1[0], ZFS[0] + 4 * j, B1 + 4 * j, j == 0)
    a.bar(); zread(1); gread(0)
    for i in range(4):
        xc = AC1[i & 1]
        V = ['v_mul_f32 v%d, v%d, v%d' % (xc + r, xc + r, GG + r) for r in range(16)] + ['G'] + \
            ['v_cvt_pk_bf16_f32 v%d, v%d, v%d' % (xc + d, xc + 2 * d, xc + 2 * d + 1) for d in range(8)]
        def emit(n):
            for _ in range(n):
                if not V: return
                t = V.pop(0)
                if t == 'G':
                    if i < 3: gread(i + 1)
                else: a(t)
        if i < 3:
            for j in range(4):
                a.wait_lg('zr%d_%d' % (i + 1, j)); a.mfma(AC1[(i + 1) & 1], ZFS[(i + 1) & 1] + 4 * j, B1 + 4 * j, j == 0)
                if j == 3 and i == 0: a.bar(); zread(2)
                if j == 0 and i == 1: zread(3)
                if j == 0: a.wait_lg('g%d' % i)
                emit(6)
        else:
            a.wait_lg('g3')
        emit(99)
        a('s_cmp_lg_u32 s33, 0')
        for h in range(2): a.mfma(AP, A2 + 8 * i + 4 * h, xc + 4 * h, i == 0 and h == 0)
        a('s_cbranch_scc1 km_nd%d' % i)
        for d in range(8): a('v_dot2c_f32_bf16 v%d, v%d, v15' % (160 + (d & 3), xc + d))
        if i == 3:
            a('s_nop 2'); a('v_add_f32 v160, v160, v161'); a('v_add_f32 v162, v162, v163'); a('v_add_f32 v14, v160, v162')
        a.label('km_nd%d' % i)
        if i == TOUCH_AT and PF_MODE == 'km': w_touch('')
        if i == 0: x_loads('')
    a.reg = ''
    stamp(a, 3); stamp(a, 14)
    a('s_load_dwordx2 s[4:5], s[0:1], 64')
    a('s_lshl_b32 s32, s3, 12'); a('s_add_u32 s32, s32, %d' % ZI); a('v_add_u32 v11, s32, v3')
    a('s_lshl_b32 s32, s26, 8'); a('s_add_u32 s32, s32, %d' % EXT); a('v_lshl_add_u32 v12, v1, 2, s32')
    a('s_cmp_eq_u32 s27, 0'); a('s_cselect_b64 s[30:31], -1, 0'); a('s_andn2_b64 s[34:35], s[30:31], s[42:43]')
    a('s_cmp_eq_u32 s23, 0'); a('s_cbranch_scc1 km_q0tail')
    a.label('km_q0back')
    a('s_nop 3')
    a('s_andn2_b64 exec, -1, s[44:45]')
    for k in range(4): a('ds_write_b128 v11, v[%d:%d] offset:%d' % (AP + 4 * k, AP + 4 * k + 3, 1024 * k))
    a('s_mov_b64 exec, s[30:31]'); a('ds_write_b32 v12, v14'); a('s_mov_b64 exec, s[34:35]'); a('ds_write_b32 v12, v14 offset:1024')
    a('s_mov_b64 exec, -1')
    a('s_waitcnt lgkmcnt(0)')
    lds_inc(a, CNT + 4)
    a('s_mov_b32 s46, 0xffff0000')
    cmap()
    a('s_cmp_eq_u32 s27, 0'); a('s_cbranch_scc1 km_csb')
    XLF, XUF = 120, 128
    a('s_waitcnt vmcnt(0)')
    unpack(a, XLF, XL, 4, 46); unpack_rev(a, XUF, XU, XX, 46)
    GA, G2, GAU, G2U = 24, 32, 40, 48
    a('v_add_u32 v21, %d, v7' % GAL)
    a('s_lshl_b32 s32, s37, 11'); a('s_add_u32 s32, s32, %d' % ZI); a('v_add_u32 v11, s32, v3')
    a('s_cmp_eq_u32 s38, 0'); a('s_cselect_b32 s34, -1.0, 1.0'); a('s_cselect_b32 s35, 0, 1.0')
    a('v_mov_b32 v16, s34'); a('v_mov_b32 v17, s35'); a('v_sub_f32 v18, 0, v16'); a('v_sub_f32 v22, 1.0, v17')
    a('v_cndmask_b32 v16, v16, v17, s[42:43]'); a('v_cndmask_b32 v18, v18, v17, s[42:43]'); a('v_cndmask_b32 v22, 1.0, v22, s[42:43]')
    a('s_lshl_b32 s39, s38, 5'); a('s_add_u32 s39, s39, s23')
    a('s_lshl_b32 s36, s39, 15'); a('s_lshl_b32 s33, s22, 1'); a('s_add_u32 s33, s33, s37'); a('s_lshl_b32 s33, s33, 10'); a('s_add_u32 s36, s36, s33')
    a('s_lshl_b32 s32, s38, 10'); a('s_add_u32 s32, s32, %d' % EXT); a('v_lshl_add_u32 v20, v1, 2, s32')
    a('s_or_b32 s33, s22, s37'); a('s_cmp_eq_u32 s33, 0'); a('s_cselect_b32 s30, -1, 0'); a('s_mov_b32 s31, 0')
    if E_PRIO: a('s_setprio 3')
    lds_spin(a, 'km_spinR', CNT + 4, 12)
    stamp(a, 4)
    RP, RQ, YL, YU = 56, 88, 64, 72
    for R, o in ((RP, 0), (RQ, 16384)):
        for src in range(4):
            for hf in range(2): a('ds_read_b128 v[%d:%d], v11 offset:%d' % (R + 8 * src + 4 * hf, R + 3 + 8 * src + 4 * hf, o + src * 4096 + hf * 1024))
    for n, R in enumerate((RP, RQ)):
        a('s_waitcnt lgkmcnt(%d)' % (8 if n == 0 else 10))
        if n == 0:
            for reg, off in ((GA, 0), (GAU, 1024), (G2, 2048), (G2U, 3072)):
                for k in range(2): a('ds_read_b128 v[%d:%d], v21 offset:%d' % (reg + 4 * k, reg + 4 * k + 3, off + 16 * k))
            a('ds_read2st64_b32 v[136:137], v20 offset0:0 offset1:1'); a('ds_read2st64_b32 v[138:139], v20 offset0:2 offset1:3')
        for i in range(0, 8, 2): a.pk('v_pk_add_f32', R + i, R + i, R + 8 + i); a.pk('v_pk_add_f32', R + 16 + i, R + 16 + i, R + 24 + i)
        for i in range(0, 8, 2): a.pk('v_pk_add_f32', R + i, R + i, R + 16 + i)
    for i in range(0, 8, 2): a('v_pk_mul_f32 v[%d:%d], v[%d:%d], v[22:23] op_sel_hi:[1,0]' % (RP + i, RP + i + 1, RP + i, RP + i + 1))
    for i in range(0, 8, 2):
        a('v_pk_fma_f32 v[%d:%d], v[%d:%d], v[16:17], v[%d:%d] op_sel_hi:[1,0,1]' % (YL + i, YL + i + 1, RQ + i, RQ + i + 1, RP + i, RP + i + 1))
        a('v_pk_fma_f32 v[%d:%d], v[%d:%d], v[18:19], v[%d:%d] op_sel_hi:[1,0,1]' % (YU + i, YU + i + 1, RQ + i, RQ + i + 1, RP + i, RP + i + 1))
    a('s_waitcnt lgkmcnt(0)')
    a.pk('v_pk_add_f32', 136, 136, 138); a('v_add_f32 v136, v136, v137'); half_sum(a, [136], 137)
    a('v_cndmask_b32 v%d, v%d, v136, s[30:31]' % (YU, YU))
    lds_inc(a, CNT + 12)
    for Y, G, X in ((YL, GA, XLF), (YU, GAU, XUF)):
        for i in range(0, 8, 2): a('v_pk_fma_f32 v[%d:%d], v[%d:%d], v[%d:%d], v[%d:%d]' % (Y + i, Y + i + 1, Y + i, Y + i + 1, G + i, G + i + 1, X + i, X + i + 1))
    for Y, G in ((YL, G2), (YU, G2U)):
        for i in range(0, 8, 2): a.pk('v_pk_mul_f32', G + i, Y + i, G + i)
    a('s_add_u32 s32, s36, 0x%x' % ZT); a('s_add_u32 s33, s32, 16384'); a('s_add_u32 s34, s36, 0x%x' % X1T); a('s_add_u32 s35, s34, 16384')
    for src, dst, so in ((G2, 80, 32), (G2U, 84, 33), (YL, 88, 34), (YU, 92, 35)):
        for d in range(4): a('v_cvt_pk_bf16_f32 v%d, v%d, v%d' % (dst + d, src + 2 * d, src + 2 * d + 1))
        a('buffer_store_dwordx4 v[%d:%d], v3, s[16:19], s%d offen sc1' % (dst, dst + 3, so))
    a.pk('v_pk_add_f32', 96, YL, YL + 2); a.pk('v_pk_mul_f32', 98, YL, YL)
    for i in range(2, 16, 2):
        if i > 2: a.pk('v_pk_add_f32', 96, 96, YL + i)
        a('v_pk_fma_f32 v[98:99], v[%d:%d], v[%d:%d], v[98:99]' % (YL + i, YL + i + 1, YL + i, YL + i + 1))
    a('v_add_f32 v100, v96, v97'); a('v_add_f32 v101, v98, v99')
    half_sum(a, [100, 101], 102)
    a('s_lshl_b32 s32, s39, 12'); a('s_lshl_b32 s33, s22, 9'); a('s_add_u32 s32, s32, s33'); a('s_lshl_b32 s33, s37, 8'); a('s_add_u32 s32, s32, s33'); a('s_add_u32 s32, s32, 0x%x' % STATS)
    a('v_lshlrev_b32 v8, 3, v1')
    a('s_mov_b32 exec_hi, 0')
    a('buffer_store_dwordx2 v[100:101], v8, s[16:19], s32 offen sc1')
    a('s_mov_b64 exec, -1')
    stamp(a, 12)
    a('s_lshl_b32 s32, s20, 8'); a('s_add_u32 s32, s32, 0x%x' % FLAGB)
    lds_inc(a, CNT + 36)
    arrive(a, 'km_arrB', CNT, 4, 32, 32)
    stamp(a, 9)
    a('s_setprio 0')
    a('s_branch km_C')
    a.role('km_q0tail')
    a('v_subrev_u32 v9, 1024, v5'); a('v_cndmask_b32 v5, v5, v9, s[42:43]')
    lds_spin(a, 'km_spinY', CNT + 32, 4)
    a('s_cmp_lg_u32 s27, 0'); a('s_cbranch_scc1 km_q0back')
    for i in range(4):
        a('s_add_u32 s32, s25, %d' % i); a('s_and_b32 s32, s32, 15'); a('s_lshl_b32 s32, s32, 6'); a('v_add_u32 v9, s32, v5')
        for h in range(2): a('ds_read_b128 v[%d:%d], v9 offset:%d' % (128 + 8 * i + 4 * h, 131 + 8 * i + 4 * h, 32 * h))
    a('v_mov_b32 v13, 0')
    for j in range(8):
        a('s_waitcnt lgkmcnt(%d)' % (7 - j)); a.mfma(AY, A2 + 4 * j, 128 + 4 * j, j == 0)
        for d in range(4): a('v_dot2c_f32_bf16 v13, v%d, v15' % (128 + 4 * j + d))
    a('s_nop 2')
    a('s_mov_b64 exec, s[42:43]')
    a('v_add_f32 v14, v14, v13')
    for r in range(0, 16, 2): a.pk('v_pk_add_f32', AP + r, AP + r, AY + r)
    a('s_lshl_b64 exec, s[42:43], 1')
    for k in range(4): a('ds_write_b128 v11, v[%d:%d] offset:%d' % (AY + 4 * k, AY + 4 * k + 3, 16384 - 16 + 1024 * k))
    a('ds_write_b32 v12, v13 offset:1020')
    a('s_mov_b64 exec, -1')
    a('s_branch km_q0back')
    a.role('km_csb')
    NST = 16 >> lg
    a('v_bfe_u32 v10, v1, 4, 1'); a('v_mul_u32_u24 v10, %d, v10' % WU)
    a('v_bfe_u32 v11, v1, 2, 2'); a('v_lshl_add_u32 v11, v4, 3, v11'); a('v_mul_u32_u24 v11, 224, v11'); a('v_add_u32 v10, v10, v11')
    a('v_and_b32 v11, 1, v1'); a('v_lshl_add_u32 v10, v11, 4, v10'); a('v_bfe_u32 v12, v1, 1, 1'); a('v_lshl_add_u32 v10, v12, 3, v10')
    a('s_lshl_b32 s32, s26, 5'); a('v_add_u32 v10, s32, v10')
    a('v_lshlrev_b32 v11, 10, v11'); a('v_lshl_add_u32 v11, v4, 4, v11'); a('v_add_u32 v11, %d, v11' % G2H)
    a('s_lshl_b32 s33, s20, 5'); a('s_add_u32 s33, s33, s21'); a('s_lshl_b32 s34, s33, 2'); a('s_add_u32 s34, s34, 0x%x' % FLAGS)
    a('s_lshl_b32 s33, s33, 11'); a('s_lshl_b32 s32, s26, 8'); a('s_add_u32 s33, s33, s32'); a('s_add_u32 s33, s33, 0x%x' % CSP)
    a('v_and_b32 v13, 1, v1'); a('v_lshlrev_b32 v13, 7, v13'); a('v_lshl_add_u32 v13, v4, 6, v13'); a('v_bfe_u32 v12, v1, 1, 2'); a('v_lshl_add_u32 v13, v12, 4, v13')
    lds_spin(a, 'km_spinR2', CNT + 4, 12); lds_spin(a, 'km_spinW', CNT + 16, 2)
    stamp(a, 4)
    for st in range(NST):
        a('s_add_u32 s32, s50, %d' % st); a('s_and_b32 s32, s32, 15'); a('s_lshl_b32 s32, s32, 6'); a('v_add_u32 v12, s32, v11')
        for ks in range(2):
            r = 48 + 24 * (st & 3) + 12 * ks
            a('ds_read_b128 v[%d:%d], v12 offset:%d' % (r, r + 3, 32 * ks))
            for t in range(2):
                for hf in range(2): a('ds_read_b64_tr_b16 v[%d:%d], v10 offset:%d' % (r + 4 + 4 * t + 2 * hf, r + 5 + 4 * t + 2 * hf, st * WSL + (16 * ks + 4 * hf) * 224 + 128 * t), tag='c%d_%d' % (st, ks))
    for st in range(NST):
        for ks in range(2):
            r = 48 + 24 * (st & 3) + 12 * ks
            a.wait_lg('c%d_%d' % (st, ks))
            for t in range(2): a.mfma(16 + 16 * t, r + 4 + 4 * t, r, st == 0 and ks == 0)
    a('v_bfe_u32 v12, v1, 1, 2')
    for k in range(1, 4):
        a('v_cmp_eq_u32 vcc, %d, v12' % k)
        for t in range(2):
            for i in range(4): a('v_cndmask_b32 v%d, v%d, v%d, vcc' % (16 + 16 * t + i, 16 + 16 * t + i, 16 + 16 * t + 4 * k + i))
    a('s_mov_b32 exec_lo, 0xff'); a('s_mov_b32 exec_hi, 0xff')
    for t in range(2): a('buffer_store_dwordx4 v[%d:%d], v13, s[16:19], s33 offen offset:%d sc1' % (16 + 16 * t, 19 + 16 * t, 1024 * t))
    a('s_mov_b64 exec, -1')
    stamp(a, 12)
    a.label('km_C'); a.hist = []
    a('s_add_u32 s49, s49, s26')
    a('v_bfe_u32 v10, v1, 4, 1'); a('v_mul_u32_u24 v10, %d, v10' % WU)
    a('v_bfe_u32 v11, v1, 2, 2'); a('v_lshl_add_u32 v11, v4, 3, v11'); a('v_mul_u32_u24 v11, 224, v11'); a('v_add_u32 v10, v10, v11')
    a('v_and_b32 v11, 1, v1'); a('v_lshl_add_u32 v10, v11, 4, v10'); a('v_bfe_u32 v11, v1, 1, 1'); a('v_lshl_add_u32 v10, v11, 3, v10')
    a('s_lshl_b32 s28, s27, 7'); a('v_add_u32 v12, s28, v10')
    a('s_lshl_b32 s28, s26, 11'); a('s_add_u32 s28, s28, %d' % ZR0); a('v_add_u32 v13, s28, v3')
    a('v_mov_b32 v14, v12'); a('v_mov_b32 v15, v13')
    ACC = 16; WF = [80, 100]; ST = 120
    for r in range(64): a('v_mov_b32 v%d, 0' % (ACC + r))
    a('s_mov_b32 s36, %d' % WSL); a('s_mov_b32 s37, 8192'); a('s_mov_b32 s38, 0')
    a('s_lshl_b32 s39, s26, 9'); a('s_add_u32 s39, s39, %d' % STL); a('v_lshl_add_u32 v5, v6, 4, s39')
    k1c = -2 * 0.7978845608028654 * LOG2E; k2c = k1c * 0.044715
    a('s_mov_b32 s44, %s' % fbits(k2c)); a('s_mov_b32 s46, 0xffff0000')
    a('s_mul_i32 s40, s49, %d' % (112 * 1024)); a('s_mul_i32 s41, s48, 7168'); a('s_add_u32 s40, s40, s41'); a('s_lshl_b32 s41, s27, 12'); a('s_add_u32 s40, s40, s41')
    a('s_add_u32 s40, s40, 0x%x' % ACT)
    a('s_lshr_b32 s41, s49, 2'); a('s_lshl_b32 s41, s41, 8'); a('s_add_u32 s41, s41, 0x%x' % FLAGC)
    a('s_lshl_b32 s42, s27, 11'); a('s_add_u32 s42, s42, %d' % CSX); a('v_lshl_add_u32 v7, v6, 4, s42')
    srd(a, 12, 4, 1792 * 1024); a('s_add_u32 s43, s3, %d' % SIDE_AT)
    a.bar()
    stamp(a, 5); cstamp(a, 3)
    a('s_cmp_eq_u32 s27, 1'); a('s_cbranch_scc1 km_B')
    nb0 = a.nbar
    for grp, NT in (('A', 4), ('B', 3)):
        if grp == 'B': a.role('km_B'); a.nbar = nb0
        def rdz(st, ks): a('ds_read_b128 v[%d:%d], v15 offset:%d' % (WF[st] + 16, WF[st] + 19, 1024 * ks))
        def rdw(st, ks, j):
            r = WF[st] + 4 * j
            for hf in range(2): a('ds_read_b64_tr_b16 v[%d:%d], v14 offset:%d' % (r + 2 * hf, r + 2 * hf + 1, (16 * ks + 4 * hf) * 224 + 32 * j))
        if grp == 'B' and B_PRIO: a('s_setprio %d' % B_PRIO)
        rdz(0, 0)
        for j in range(NT): rdw(0, 0, j)
        a.label('km_loop%s' % grp); a.reg = 'C'
        for st in range(2):
            for j in range(NT):
                a('s_waitcnt lgkmcnt(%d)' % (2 * NT - 2 if j == 0 else 2 * NT - 1))
                a.mfma(ACC + 16 * j, WF[st] + 4 * j, WF[st] + 16)
                if j == 0:
                    if st == 1: a.bar(16)
                    rdz(1 - st, 1 - st)
                rdw(1 - st, 1 - st, j)
                if st == 0 and j == NT - 1: a('v_add_u32 v14, s36, v12'); a('v_add_u32 v15, s37, v13')
                if st == 1 and j == 0:
                    a('s_add_u32 s36, s36, %d' % WSL); a('s_cmp_eq_u32 s36, %d' % ZR0); a('s_cselect_b32 s36, 0, s36')
                if st == 0 and j == 0 and (grp == 'A' or PF_WD == 1):
                    a('s_cmp_eq_u32 s38, s43'); a('s_cbranch_scc1 km_side%s' % grp)
                    a.label('km_back%s' % grp)
                if st == 0 and j == 1 and DEBUG and 'inloop' in EXP:
                    for it, sl in ((4, 13), (8, 14), (12, 1)):
                        a('s_cmp_lg_u32 s38, %d' % it); a('s_cbranch_scc1 km_st%s%d' % (grp, it)); stamp(a, sl); a.label('km_st%s%d' % (grp, it))
                if st == 1 and j == 1:
                    a('s_add_u32 s37, s37, 8192'); a('s_cmp_eq_u32 s37, %d' % (RZ * 8192)); a('s_cselect_b32 s37, 0, s37')
                    a('s_add_u32 s38, s38, 1'); a('s_cmp_lt_u32 s38, 16')
        a('s_cbranch_scc1 km_loop%s' % grp)
        a('s_branch km_post%s' % grp)
        a.role('km_side%s' % grp)
        if grp == 'A':
            arrive(a, 'km_arrS', CNT + 20, 4, 34)
        if PF_WD == 1:
            a('s_lshl_b32 s32, s21, 3'); a('s_add_u32 s32, s32, s3'); a('s_mul_i32 s32, s32, 7168'); a('v_lshlrev_b32 v8, 7, v1')
            a('s_mov_b32 exec_hi, 0xffffff'); a('buffer_load_dword v9, v8, s[12:15], s32 offen'); a('s_mov_b64 exec, -1')
        if grp == 'A' or PF_WD == 1: a('s_branch km_back%s' % grp)
        a.role('km_post%s' % grp)
        a.reg = ''
        stamp(a, 6); cstamp(a, 4)
        a('ds_read_b128 v[120:123], v5')
        for j in range(NT): a('ds_read_b128 v[%d:%d], v7 offset:%d' % (124 + 4 * j, 127 + 4 * j, 512 * j))
        a('v_cmp_gt_u32 vcc, 32, v1'); a('v_mov_b32 v10, %s' % fbits(k1c)); a('v_mov_b32 v11, s44')
        a('s_waitcnt lgkmcnt(%d)' % NT)
        a('v_cndmask_b32 v12, 0, v120, vcc'); a('v_cndmask_b32 v13, 0, v120, vcc'); a('v_cndmask_b32 v14, 0, v121, vcc'); a('v_cndmask_b32 v15, 0, v121, vcc')
        a('s_waitcnt vmcnt(0)')
        a('v_mov_b32 v8, v122'); a('v_mov_b32 v9, v123')
        a('s_waitcnt lgkmcnt(0)')
        if E_PRIO: a('s_setprio %d' % E_PRIO)
        a.bar()
        for j in range(NT): a.mfma(ACC + 16 * j, 124 + 4 * j, 12)
        for j in range(NT):
            g = ACC + 16 * j; u = g + 8; t = 80 + 8 * (j & 1)
            if EPI_PK:
                P = range(0, 8, 2)
                for i in P: a('v_pk_mul_f32 v[%d:%d], v[%d:%d], v[8:9] op_sel_hi:[1,0]' % (g + i, g + i + 1, g + i, g + i + 1))
                for i in P: a.pk('v_pk_mul_f32', t + i, g + i, g + i)
                for i in P: a('v_pk_fma_f32 v[%d:%d], v[%d:%d], v[10:11], v[10:11] op_sel:[0,1,0] op_sel_hi:[1,1,0]' % (t + i, t + i + 1, t + i, t + i + 1))
                for i in P: a.pk('v_pk_mul_f32', t + i, t + i, g + i)
                for i in range(8): a('v_exp_f32 v%d, v%d' % (t + i, t + i))
                for i in P: a.pk('v_pk_mul_f32', u + i, u + i, g + i)
                for i in P: a('v_pk_fma_f32 v[%d:%d], v[%d:%d], v[8:9], v[8:9] op_sel:[0,1,1] op_sel_hi:[1,1,1]' % (t + i, t + i + 1, t + i, t + i + 1))
                for i in range(8): a('v_rcp_f32 v%d, v%d' % (t + i, t + i))
                for i in P: a.pk('v_pk_mul_f32', u + i, u + i, t + i)
            else:
                for i in range(8): a('v_mul_f32 v%d, v8, v%d' % (g + i, g + i))
                for i in range(8): a('v_mul_f32 v%d, v%d, v%d' % (t + i, g + i, g + i))
                for i in range(8): a('v_fma_f32 v%d, v%d, s44, v10' % (t + i, t + i))
                for i in range(8): a('v_mul_f32 v%d, v%d, v%d' % (t + i, t + i, g + i))
                for i in range(8): a('v_exp_f32 v%d, v%d' % (t + i, t + i))
                for i in range(8): a('v_mul_f32 v%d, v%d, v%d' % (u + i, u + i, g + i))
                for i in range(8): a('v_fma_f32 v%d, v%d, v9, v9' % (t + i, t + i))
                for i in range(8): a('v_rcp_f32 v%d, v%d' % (t + i, t + i))
                for i in range(8): a('v_mul_f32 v%d, v%d, v%d' % (u + i, u + i, t + i))
            for d in range(4): a('v_cvt_pk_bf16_f32 v%d, v%d, v%d' % (g + d, u + 2 * d, u + 2 * d + 1))
            a('buffer_store_dwordx4 v[%d:%d], v3, s[16:19], s40 offen offset:%d sc1' % (g, g + 3, 1024 * j))
        stamp(a, 7)
        if D_START == 'iss': lds_inc(a, CNT + 40)
        arrive(a, 'km_arrC%s' % grp, CNT + 8, 8, 41, 16)
        stamp(a, 8)
        if grp == 'A': a('s_branch km_D')
    a.label('km_D'); a.hist = []
    if E_PRIO: a('s_setprio 0')
    dmap()
    a('s_load_dwordx2 s[8:9], s[0:1], 88')
    a('s_and_b32 s27, s3, 1'); a('s_lshr_b32 s28, s3, 1'); a('s_add_u32 s53, s53, s27')
    a('v_bfe_u32 v14, v1, 2, 2'); a('v_lshl_add_u32 v14, v4, 3, v14'); a('v_lshlrev_b32 v14, 7, v14')
    a('v_bfe_u32 v15, v1, 4, 1'); a('v_lshl_add_u32 v14, v15, 5, v14'); a('v_and_b32 v15, 1, v1'); a('v_lshl_add_u32 v14, v15, 4, v14')
    a('v_bfe_u32 v15, v1, 1, 1'); a('v_lshl_add_u32 v14, v15, 3, v14'); a('v_bfe_u32 v15, v1, 3, 1'); a('v_lshl_add_u32 v14, v15, 6, v14')
    a('s_lshl_b32 s29, s28, 5'); a('v_xor_b32 v14, s29, v14'); a('v_xor_b32 v15, 64, v14')
    a('s_lshl_b32 s29, s28, 15'); a('v_add_u32 v14, s29, v14'); a('v_add_u32 v15, s29, v15')
    a('s_mul_i32 s30, s53, %d' % (112 * 1024)); a('s_mul_i32 s31, s28, %d' % (28 * 1024)); a('s_add_u32 s30, s30, s31'); a('s_add_u32 s30, s30, 0x%x' % ACT)
    for g in range(7):
        a('s_lshl_b32 s%d, s54, 12' % (33 + g)); a('s_add_u32 s%d, s%d, s30' % (33 + g, 33 + g)); a('s_add_u32 s54, s54, 1'); a('s_cmp_eq_u32 s54, 7'); a('s_cselect_b32 s54, 0, s54')
    a('s_lshr_b32 s32, s53, 2'); a('s_lshl_b32 s32, s32, 8'); a('s_add_u32 s32, s32, 0x%x' % (FLAGC + 128))
    AD = [16, 32]; AF = 48; NR = 16; WD = [112, 120, 128, 136]; X1R = 144; GBR = 152; XA = 12
    a('s_lshl_b32 s44, s52, 3'); a('s_lshl_b32 s45, s28, 1'); a('s_add_u32 s44, s44, s45'); a('v_add_u32 v11, s44, v4')
    a('s_and_b32 s47, s53, 31'); token_of(a, 5, 8, 47); a('s_cmp_ge_u32 s53, 32'); mirror_if(a, 5, 8, 9)
    a('v_lshlrev_b32 v5, 10, v5'); a('v_lshl_add_u32 v5, v11, 4, v5')
    a('v_lshlrev_b32 v8, 4, v11'); a('v_add_u32 v8, %d, v8' % GBH)
    a('ds_read_b128 v[%d:%d], v8' % (GBR, GBR + 3))
    a('v_sub_u32 v9, 95, v11'); a('v_cmp_gt_u32 vcc, 32, v11'); a('v_cndmask_b32 v9, v9, v11, vcc')
    a('v_lshlrev_b32 v9, 9, v9'); a('v_lshl_add_u32 v%d, v6, 4, v9' % XA)
    a('v_sub_u32 v9, 64, v11'); a('v_and_b32 v9, 31, v9'); a('v_add_u32 v9, 32, v9'); a('v_lshlrev_b32 v9, 9, v9'); a('v_lshl_add_u32 v%d, v6, 4, v9' % (XA + 1))
    a('s_lshl_b32 s45, s53, 15'); a('s_add_u32 s45, s45, 0x%x' % X1T)
    a('s_mul_i32 s31, s52, 3584'); a('s_add_u32 s31, s31, s30'); a('v_min_u32 v7, 27, v1'); a('v_lshlrev_b32 v7, 7, v7')
    a('s_waitcnt lgkmcnt(0)')
    srd(a, 40, 8, 2048 * 1024)
    def act_load(n):
        r = AF + 4 * (n % NR)
        a('buffer_load_dwordx4 v[%d:%d], v3, s[16:19], s%d offen offset:%d sc1' % (r, r + 3, 33 + n // 4, 1024 * (n & 3)), tag='a%d' % n)
    def wd_read(n):
        for t in range(2):
            for hf in range(2):
                r = WD[n & 3] + 4 * t + 2 * hf
                a('ds_read_b64_tr_b16 v[%d:%d], v%d offset:%d' % (r, r + 1, 14 + t, (16 * (n & 15) + 4 * hf) * 128), tag='w%d' % n)
    a.bar()
    stamp(a, 2)
    a('s_cmp_lg_u32 s3, 0'); a('s_cbranch_scc1 km_d_w')
    poll(a, 'km_pollC', 32, 1)
    lds_inc(a, CNT + 28)
    a('s_branch km_d_go')
    a.label('km_d_w')
    lds_spin(a, 'km_spinH', CNT + 28, 1)
    a.label('km_d_go')
    stamp(a, 9)
    a.reg = 'D'
    act_load(0); act_load(1)
    if A_TOUCH: a('buffer_load_dword v10, v7, s[16:19], s31 offen sc1')
    for k in range(3): wd_read(k)
    nxt = 2
    while nxt < D_INIT: act_load(nxt); nxt += 1
    xdone = False
    for n in range(28):
        if n in (4, 8, 12, 20):
            a.bar()
            if 'cyc' not in EXP: stamp(a, {4: 3, 8: 4, 12: 12, 20: 13}[n])
        if n + 3 < 28: wd_read(n + 3)
        if 'Dnoload' not in EXP: a.wait_vm('a%d' % n)
        a.wait_lg('w%d' % n)
        for t in range(2):
            a.mfma(AD[t], WD[n & 3] + 4 * t, AF + 4 * (n % NR), n == 0)
            if nxt < 28 and nxt < n + D_AHEAD + t: act_load(nxt); nxt += 1
        if nxt == 28 and not xdone:
            xdone = True
            a('buffer_load_dwordx4 v[%d:%d], v%d, s[16:19], s45 offen sc1' % (X1R, X1R + 3, XA))
            a('buffer_load_ushort v%d, v%d, s[16:19], s45 offen sc1' % (X1R + 4, XA + 1))
    a.reg = ''
    stamp(a, 10)
    def slot(dst, src):
        a('s_and_b32 s34, s%d, 3' % src); a('s_mul_i32 s35, s34, 6144'); a('s_add_u32 s35, s35, 131072'); a('s_lshl_b32 s34, s34, 15'); a('s_add_u32 s34, s34, 24576')
        a('s_cmp_lt_u32 s%d, 4' % src); a('s_cselect_b32 s34, s35, s34'); a('v_add_u32 v%d, s34, v3' % dst)
    for k in range(1, 4):
        a('s_xor_b32 s33, s3, %d' % (2 * k)); slot(7 + k, 33)
    for k in range(1, 4):
        for hf in range(2): a('ds_write_b128 v%d, v[%d:%d] offset:%d' % (7 + k, 16 + 8 * k + 4 * hf, 19 + 8 * k + 4 * hf, 2048 * (k - 1) + 1024 * hf))
    X = 64; GF = 72
    a('s_waitcnt vmcnt(0)')
    unpack(a, GF, GBR, 4, 46)
    a('s_cmp_ge_u32 s52, 4'); a('s_cbranch_scc1 km_up')
    unpack(a, X, X1R, 4, 46)
    a('s_branch km_fin')
    a.label('km_up')
    unpack_rev(a, X, X1R, X1R + 4, 46)
    a.label('km_fin')
    slot(9, 3)
    a('s_waitcnt lgkmcnt(0)'); a('s_barrier')
    for k in range(6): a('ds_read_b128 v[%d:%d], v9 offset:%d' % (80 + 4 * k, 83 + 4 * k, 1024 * k))
    for k in range(3):
        a('s_waitcnt lgkmcnt(%d)' % (4 - 2 * k))
        for i in range(0, 8, 2): a.pk('v_pk_add_f32', 16 + i, 16 + i, 80 + 8 * k + i)
    for r in range(8): a('v_fmac_f32 v%d, v%d, v%d' % (X + r, GF + r, 16 + r))
    for d in range(4): a('v_cvt_pk_bf16_f32 v%d, v%d, v%d' % (104 + d, X + 2 * d, X + 1 + 2 * d))
    a('buffer_store_dwordx4 v[104:107], v5, s[40:43], 0 offen')
    stamp(a, 11)
    assert nbar_h == 3 + 17 + 1 + 5, nbar_h
    assert a.nbar == nbar_h, (nbar_h, a.nbar)
    finish(a, name, 1)
    return name, a.text() + kernel_desc(name, 168, 100), (256, 768, LDS_TOTAL)

HEADER = open('adaLN_cond__spectral_fnet__geglu_ffn__prompt.s.ref').read().split('; Override launch')[0]
def all_kernels(): return [kA(), kM()]
GROUPS = {}
def build(kernels):
    hdr = HEADER
    body = '.amdgcn_target "amdgcn-amd-amdhsa--gfx950"\n.text\n'
    for name, text, (g, b, lds) in kernels:
        hdr += '; @launch kernel=%s grid=(%d,1,1) block=(%d,1,1) lds=%d\n' % (name, g, b, lds)
        body += text
    return hdr + body

if __name__ == '__main__':
    if len(sys.argv) > 2 and sys.argv[2] == 'debug': DEBUG = True
    for idx in range(512): assert (idx * 4682) >> 16 == idx // 14
    out = sys.argv[1] if len(sys.argv) > 1 else 'adaLN_cond__spectral_fnet__geglu_ffn__prompt.s'
    open(out, 'w').write(build(all_kernels()))
    print('wrote', out)
```

```python
import sys, struct
from asmlib import Asm, kernel_desc

PART = 0x000000
FLAGB= 0x010000
FLAGC= 0x010800
FLAGS= 0x011800
CSP  = 0x080000
STATS= 0x020000
ZB   = 0x100000
X1T  = 0x300000
ZT   = 0x500000
ACT  = 0x700000
WSZ  = 0x1000000
STAMP = 0xE00000
DEBUG = False
EXP = set()
K4_MAP = '8x4'; K4_ROT = True; K5_ROT = True
PF_CODE = True; PF_W = 128; PF_WD = 2
ZST = ''
SPIN = 1 << 15
PSLEEP = 2
LSLEEP = 1
H_PRIO = 3
W_THR = 35
Z_TOUCH = 0
A_TOUCH = 1
PF_MODE = 'km'
TOUCH_AT = 1
SIDE_AT = 3
W_START = 'iss'
D_PRIO = 0
B_PRIO = 0
D_AHEAD = 10
D_INIT = 4
TAIL_B = 12
EPI_PK = 1
KA_BAR = 7
KA_GLATE = 1
E_PRIO = 2
WD_MALL = 1
KA_MALL = 0
D_START = ''
LOG2E = 1.4426950408889634

class XAsm(Asm):
    def __init__(self): super().__init__(); self.nbar = 0; self.reg = ''
    def __call__(self, text, tag=None):
        t = text.strip()
        if self.reg:
            if (self.reg + 'nomfma') in EXP and t.startswith('v_mfma'): return
            if (self.reg + 'nods') in EXP and t.startswith('ds_read'): return
            if (self.reg + 'noload') in EXP and t.startswith('buffer_load'): return
            if (self.reg + 'plain') in EXP and t.startswith('buffer_load'): text = text.replace(' sc1', '')
            if (self.reg + 'novalu') in EXP and t.startswith(('v_mul', 'v_cvt', 'v_dot')): return
        super().__call__(text, tag)
    def pk(self, op, d, x, y, extra=''): self('%s v[%d:%d], v[%d:%d], v[%d:%d]%s' % (op, d, d + 1, x, x + 1, y, y + 1, extra))
    def mfma(self, acc, A, B, first=False):
        self('v_mfma_f32_32x32x16_bf16 v[%d:%d], v[%d:%d], v[%d:%d], %s' % (acc, acc + 15, A, A + 3, B, B + 3, '0' if first else 'v[%d:%d]' % (acc, acc + 15)))
    def bar(self, n=1): self('s_barrier'); self.nbar += n
    def role(self, l): self.label(l); self.hist = []

def fbits(f): return '0x%08x' % struct.unpack('<I', struct.pack('<f', f))[0]
def stamp(a, i):
    if DEBUG: a('s_memrealtime s[%d:%d]' % (64 + 2 * i, 65 + 2 * i))
def cstamp(a, i):
    if DEBUG and 'cyc' in EXP: a('s_memtime s[%d:%d]' % (64 + 2 * i, 65 + 2 * i))
def finish(a, name, kidx, vbase=4):
    a.label(name + '_end')
    if DEBUG:
        a.hist = []
        a('s_waitcnt vmcnt(0)')
        stamp(a, 15)
        a('s_waitcnt lgkmcnt(0)'); a('s_mov_b64 exec, 1')
        for i in range(16): a('v_mov_b32 v%d, s%d' % (vbase + i, 64 + 2 * i))
        a('s_lshl_b32 s60, s2, 4'); a('s_add_u32 s60, s60, s3'); a('s_lshl_b32 s60, s60, 6'); a('s_add_u32 s60, s60, 0x%x' % (STAMP + kidx * 0x80000))
        a('v_mov_b32 v%d, 0' % (vbase + 16))
        for i in range(4): a('buffer_store_dwordx4 v[%d:%d], v%d, s[16:19], s60 offen offset:%d' % (vbase + 4 * i, vbase + 4 * i + 3, vbase + 16, 16 * i))
        if 'dbgout' in EXP:
            a('s_cmp_lg_u32 s2, 37'); a('s_cbranch_scc1 %s_exit' % name)
            a('s_load_dwordx2 s[56:57], s[0:1], 96'); a('s_waitcnt lgkmcnt(0)')
            if kidx == 0: a('s_add_u32 s56, s56, 512'); a('s_addc_u32 s57, s57, 0')
            a('s_mov_b32 s58, 256'); a('s_mov_b32 s59, 0x20000')
            sel = {0: {0: [(0, 0), (3, 1), (4, 2), (15, 3)]}, 1: {4: [(0, 4), (14, 5), (12, 6), (5, 7), (6, 8), (7, 9), (8, 10), (9, 11), (10, 12), (15, 13)], 10: [(2, 14), (7, 15)]}}[kidx]
            for w, lst in sel.items():
                a('s_cmp_lg_u32 s3, %d' % w); a('s_cbranch_scc1 %s_dn%d' % (name, w))
                for st, pos in lst: a('buffer_store_dword v%d, v%d, s[56:59], 0 offen offset:%d' % (vbase + st, vbase + 16, 4 * pos))
                a.label('%s_dn%d' % (name, w))
    a.label(name + '_exit')
    a('s_endpgm')
def srd(a, d, lo, size):
    a('s_mov_b32 s%d, s%d' % (d, lo)); a('s_mov_b32 s%d, s%d' % (d + 1, lo + 1))
    a('s_mov_b32 s%d, 0x%x' % (d + 2, size)); a('s_mov_b32 s%d, 0x20000' % (d + 3))
def head(a, name, nwg):
    a.raw('.p2align 8'); a.raw('.globl %s' % name); a.raw('.type %s,@function' % name); a.label(name)
    a('s_cmp_ge_u32 s2, %d' % nwg); a('s_cbranch_scc1 %s_exit' % name)
    if DEBUG:
        for i in range(16): a('s_mov_b32 s%d, 0' % (64 + 2 * i))
    stamp(a, 0)
def ids(a):
    a('v_and_b32 v1, 63, v0'); a('v_lshrrev_b32 v2, 6, v0'); a('v_readfirstlane_b32 s3, v2'); a('v_lshlrev_b32 v3, 4, v1')
    a('v_lshrrev_b32 v4, 5, v1'); a('v_and_b32 v6, 31, v1')
    a('s_and_b32 s20, s2, 7'); a('s_lshr_b32 s21, s2, 3'); a('s_and_b32 s26, s3, 3')
def swap23_v(a, dst, src, t0):
    a('v_and_b32 v%d, 0x13, v%d' % (dst, src))
    a('v_and_b32 v%d, 4, v%d' % (t0, src)); a('v_lshl_or_b32 v%d, v%d, 1, v%d' % (dst, t0, dst))
    a('v_and_b32 v%d, 8, v%d' % (t0, src)); a('v_lshrrev_b32 v%d, 1, v%d' % (t0, t0)); a('v_or_b32 v%d, v%d, v%d' % (dst, dst, t0))
def half_sum(a, regs, tmp, op='v_permlane32_swap_b32'):
    for i, r in enumerate(regs): a('v_mov_b32 v%d, v%d' % (tmp + i, r))
    for i, r in enumerate(regs): a('%s v%d, v%d' % (op, tmp + i, r))
    for i, r in enumerate(regs): a('v_add_f32 v%d, v%d, v%d' % (r, r, tmp + i))
def unpack(a, dst, src, n, mask):
    for d in range(n):
        a('v_lshlrev_b32 v%d, 16, v%d' % (dst + 2 * d, src + d)); a('v_and_b32 v%d, s%d, v%d' % (dst + 2 * d + 1, mask, src + d))
def unpack_rev(a, dst, src, extra, mask):
    a('v_lshlrev_b32 v%d, 16, v%d' % (dst, extra))
    for i in range(1, 8):
        el = 8 - i
        if el & 1: a('v_and_b32 v%d, s%d, v%d' % (dst + i, mask, src + el // 2))
        else: a('v_lshlrev_b32 v%d, 16, v%d' % (dst + i, src + el // 2))
def token_of(a, dst, tmp, sq):
    a('v_lshlrev_b32 v%d, 6, v6' % dst); a('v_add_u32 v%d, s%d, v%d' % (dst, sq, dst))
    a('v_subrev_u32 v%d, 992, v%d' % (tmp, dst)); a('v_cmp_lt_u32 vcc, 15, v6'); a('s_cmp_eq_u32 s%d, 0' % sq); a('s_cselect_b64 vcc, vcc, 0')
    a('v_cndmask_b32 v%d, v%d, v%d, vcc' % (dst, dst, tmp))
def mirror_if(a, dst, t0, t1):
    a('s_cselect_b64 s[58:59], -1, 0')
    a('v_sub_u32 v%d, 2048, v%d' % (t0, dst)); a('v_cmp_eq_u32 vcc, 0, v%d' % dst); a('v_mov_b32 v%d, 1024' % t1); a('v_cndmask_b32 v%d, v%d, v%d, vcc' % (t0, t0, t1))
    a('v_cndmask_b32 v%d, v%d, v%d, s[58:59]' % (dst, dst, t0))

XP = 1040
def kA():
    a = XAsm(); name = 'ka_lnfft_kernel'
    SA = 64 * XP; GP = SA + 512
    head(a, name, 256)
    a('s_load_dwordx2 s[6:7], s[0:1], 104'); a('s_load_dwordx2 s[4:5], s[0:1], 0'); a('s_load_dwordx4 s[8:11], s[0:1], 72')
    ids(a)
    KC = GP + 4096
    a('v_mov_b32 v8, %d' % KC); a('v_mov_b32 v10, 0'); a('v_mov_b32 v11, 0'); a('ds_write_b64 v8, v[10:11]')
    a('s_cmp_ge_u32 s3, 8'); a('s_cbranch_scc1 ka_gemv')
    a('s_lshr_b32 s23, s21, 3'); a('s_lshl_b32 s22, s20, 2'); a('s_add_u32 s23, s23, s22')
    a('s_and_b32 s24, s21, 7')
    a('s_lshl_b32 s25, s3, 18'); a('s_lshl_b32 s27, s23, 10'); a('s_add_u32 s25, s25, s27')
    a('s_mul_i32 s28, s3, %d' % (8 * XP)); a('s_mov_b32 s27, s24')
    a('v_and_b32 v12, 7, v1'); a('v_mul_u32_u24 v13, %d, v12' % XP); a('v_lshrrev_b32 v14, 3, v1'); a('v_lshl_add_u32 v13, v14, 7, v13'); a('v_add_u32 v13, s28, v13')
    a('s_waitcnt lgkmcnt(0)')
    srd(a, 12, 4, 2048 * 1024); srd(a, 16, 6, WSZ)
    stamp(a, 1)
    for i in range(8):
        a('s_mul_i32 s31, s27, %d' % XP); a('s_add_u32 m0, s31, s28'); a('s_lshl_b32 s32, s27, 15'); a('s_add_u32 s32, s32, s25')
        a('buffer_load_dwordx4 v3, s[12:15], s32 offen lds')
        if i == KA_BAR: a('s_barrier')
        if i < 7: a('s_add_u32 s27, s27, 1'); a('s_and_b32 s27, s27, 7')
    stamp(a, 2)
    if KA_MALL:
        a('s_sub_u32 s46, s3, 4'); a('s_cmp_ge_u32 s46, 3'); a('s_cbranch_scc1 ka_nm')
        a('s_lshl_b32 s46, s46, 3'); a('s_add_u32 s46, s46, 48'); a('s_load_dwordx2 s[52:53], s[0:1], s46')
        a('s_mov_b32 s54, %d' % (512 * 3584)); a('s_mov_b32 s55, 0x20000'); a('s_mul_i32 s46, s2, 7168'); a('v_min_u32 v8, 27, v1'); a('v_lshlrev_b32 v8, 8, v8')
        a('s_waitcnt lgkmcnt(0)')
        a('buffer_load_dword v160, v8, s[52:55], s46 offen')
        a.label('ka_nm')
    a('s_lshl_b32 s31, s3, 3'); a('v_add_u32 v17, s31, v12'); a('v_lshlrev_b32 v18, 1, v17'); a('v_lshlrev_b32 v17, 2, v17')
    a('v_add_u32 v17, %d, v17' % SA); a('v_add_u32 v18, %d, v18' % SA)
    for r in range(24, 32): a('v_mov_b32 v%d, 0' % r)
    a('v_mov_b32 v21, 0'); a('v_mov_b32 v22, 0x3f803f80'); a('s_mov_b32 s36, 0xffff0000')
    BF = 32
    a('s_cmp_ge_u32 s3, 4'); a('s_cbranch_scc1 ka_nogen')
    a('s_and_b32 s29, s3, 1'); a('s_lshr_b32 s30, s3, 1')
    a('s_lshl_b32 s31, s29, 5'); a('v_add_u32 v7, s31, v6')
    a('v_lshrrev_b32 v8, 1, v7'); a('v_cmp_eq_u32 vcc, 1, v7'); a('v_cndmask_b32 v8, v8, 32, vcc')
    a('v_and_b32 v9, 1, v7'); a('v_cndmask_b32 v9, v9, 0, vcc'); a('v_cvt_f32_u32 v9, v9'); a('v_mul_f32 v9, %s, v9' % fbits(-0.25))
    a('v_cvt_f32_u32 v8, v8'); a('v_mul_f32 v8, %s, v8' % fbits(1 / 64))
    a('v_lshlrev_b32 v10, 3, v4'); a('v_cvt_f32_u32 v10, v10')
    a('v_fma_f32 v%d, v8, v10, v9' % BF); a('v_mul_f32 v11, %s, v8' % fbits(16.0))
    for i in range(1, 8): a('v_add_f32 v%d, v%d, v8' % (BF + i, BF + i - 1))
    for k in range(8, 32): a('v_add_f32 v%d, v%d, v11' % (BF + k, BF + k - 8))
    for k in range(32): a('v_cos_f32 v%d, v%d' % (BF + k, BF + k))
    a('v_bfe_u32 v15, v1, 2, 2'); a('v_lshl_add_u32 v15, v4, 3, v15'); a('v_mul_u32_u24 v15, %d, v15' % XP)
    a('v_and_b32 v16, 1, v1'); a('v_lshl_add_u32 v15, v16, 5, v15'); a('v_bfe_u32 v16, v1, 4, 1'); a('v_lshl_add_u32 v15, v16, 4, v15')
    a('v_bfe_u32 v16, v1, 1, 1'); a('v_lshl_add_u32 v15, v16, 3, v15')
    a('s_lshl_b32 s31, s24, 7'); a('s_lshl_b32 s32, s30, 6'); a('s_add_u32 s31, s31, s32'); a('v_add_u32 v15, s31, v15')
    a('v_lshlrev_b32 v19, 5, v4'); a('v_add_u32 v19, %d, v19' % SA); a('v_lshlrev_b32 v20, 4, v4'); a('v_add_u32 v20, %d, v20' % SA)
    a('v_lshlrev_b32 v21, 6, v7'); a('v_lshl_add_u32 v21, v4, 5, v21')
    a('s_lshl_b32 s33, s24, 1'); a('s_add_u32 s33, s33, s30'); a('s_lshl_b32 s33, s33, 17'); a('s_lshl_b32 s34, s23, 12'); a('s_add_u32 s33, s33, s34'); a('s_add_u32 s33, s33, 0x%x' % ZB)
    a.label('ka_nogen')
    if KA_MALL:
        a('s_sub_u32 s46, s3, 4'); a('s_cmp_ge_u32 s46, 3'); a('s_cbranch_scc1 ka_w0')
        a('s_waitcnt vmcnt(1)'); a('s_branch ka_w1')
        a.label('ka_w0')
    a('s_waitcnt vmcnt(0)')
    a.label('ka_w1')
    stamp(a, 3)
    XR = 64
    for j in range(8): a('ds_read_b128 v[%d:%d], v13 offset:%d' % (XR + 4 * j, XR + 4 * j + 3, 16 * j))
    for j in range(8):
        a('s_waitcnt lgkmcnt(%d)' % (7 - j))
        for d in range(4):
            a('v_dot2c_f32_bf16 v%d, v%d, v22' % (24 + d, XR + 4 * j + d)); a('v_dot2c_f32_bf16 v%d, v%d, v%d' % (28 + d, XR + 4 * j + d, XR + 4 * j + d))
    a('s_nop 2')
    a('v_add_f32 v24, v24, v25'); a('v_add_f32 v26, v26, v27'); a('v_add_f32 v28, v28, v29'); a('v_add_f32 v30, v30, v31')
    a('v_add_f32 v24, v24, v26'); a('v_add_f32 v25, v28, v30')
    a('v_add_f32_dpp v24, v24, v24 row_ror:8'); a('v_add_f32_dpp v25, v25, v25 row_ror:8')
    half_sum(a, [24, 25], 26, 'v_permlane16_swap_b32'); half_sum(a, [24, 25], 26)
    a('v_mul_f32 v24, %s, v24' % fbits(-1.0 / 512)); a('v_mul_f32 v25, %s, v25' % fbits(1.0 / 512))
    a('v_fma_f32 v25, -v24, v24, v25'); a('v_max_f32 v25, 0, v25'); a('v_add_f32 v25, %s, v25' % fbits(1e-5)); a('v_rsq_f32 v25, v25')
    a('v_cvt_pk_bf16_f32 v26, v24, v24'); a('v_and_b32 v27, s36, v26'); a('v_sub_f32 v27, v24, v27'); a('v_cvt_pk_bf16_f32 v27, v27, v27')
    a('ds_write_b32 v17, v25'); a('ds_write_b16 v18, v26 offset:256'); a('ds_write_b16 v18, v27 offset:384')
    a('s_waitcnt lgkmcnt(0)')
    lds_inc(a, KC)
    a('s_cmp_ge_u32 s3, 4'); a('s_cbranch_scc1 ka_pf')
    lds_spin(a, 'ka_spin', KC, 8)
    stamp(a, 4)
    RR = 64; AF = 96; MF = 112; ACC = 64
    for j in range(4):
        for k in range(2): a('ds_read_b128 v[%d:%d], v19 offset:%d' % (RR + 8 * j + 4 * k, RR + 8 * j + 4 * k + 3, 64 * j + 16 * k), tag='r%d' % j)
    for j in range(4):
        for hf in range(2): a('ds_read_b64_tr_b16 v[%d:%d], v15 offset:%d' % (AF + 4 * j + 2 * hf, AF + 4 * j + 2 * hf + 1, (16 * j + 4 * hf) * XP), tag='a%d' % j)
    for j in range(4):
        a.wait_lg('r%d' % j)
        for i in range(0, 8, 2): a.pk('v_pk_mul_f32', BF + 8 * j + i, BF + 8 * j + i, RR + 8 * j + i)
        for d in range(4): a('v_cvt_pk_bf16_f32 v%d, v%d, v%d' % (BF + 8 * j + d, BF + 8 * j + 2 * d, BF + 8 * j + 2 * d + 1))
        for k in range(2): a('ds_read_b128 v[%d:%d], v20 offset:%d' % (MF + 8 * j + 4 * k, MF + 8 * j + 4 * k + 3, 256 + 128 * k + 32 * j), tag='m%d' % j)
    for j in range(4):
        a.wait_lg('a%d' % j); a.mfma(ACC, AF + 4 * j, BF + 8 * j, j == 0)
    for j in range(4):
        a.wait_lg('m%d' % j); a.mfma(ACC, MF + 8 * j, BF + 8 * j); a.mfma(ACC, MF + 8 * j + 4, BF + 8 * j)
    for d in range(8): a('v_cvt_pk_bf16_f32 v%d, v%d, v%d' % (80 + d, ACC + 2 * d, ACC + 2 * d + 1))
    a('buffer_store_dwordx4 v[80:83], v21, s[16:19], s33 offen %s' % ZST); a('buffer_store_dwordx4 v[84:87], v21, s[16:19], s33 offen offset:16 %s' % ZST)
    stamp(a, 5)
    a('s_branch %s_end' % name)
    a.role('ka_pf')
    if PF_MODE == 'mall':
        a('s_cmp_eq_u32 s26, 3'); a('s_cbranch_scc1 ka_pf2')
        a('s_lshl_b32 s46, s26, 3'); a('s_add_u32 s46, s46, 48'); a('s_load_dwordx2 s[52:53], s[0:1], s46')
        a('s_mov_b32 s54, %d' % (512 * 3584)); a('s_mov_b32 s55, 0x20000'); a('s_mul_i32 s46, s2, 7168'); a('v_lshlrev_b32 v8, 7, v1')
        a('s_waitcnt lgkmcnt(0)')
        a('s_mov_b32 exec_hi, 0xffffff')
        a('buffer_load_dword v10, v8, s[52:55], s46 offen')
        a('s_mov_b64 exec, -1')
        a.label('ka_pf2')
    if PF_CODE:
        a('s_cmp_ge_u32 s21, 2'); a('s_cbranch_scc1 %s_end' % name)
        a('s_getpc_b64 s[40:41]')
        a.label('ka_pc')
        a('s_add_u32 s40, s40, kb_main_kernel-ka_pc'); a('s_addc_u32 s41, s41, 0')
        a('s_mov_b32 s42, kb_main_kernel_exit-kb_main_kernel'); a('s_mov_b32 s43, 0x20000')
        a('s_lshl_b32 s44, s21, 2'); a('s_add_u32 s44, s44, s26'); a('s_lshl_b32 s44, s44, 12')
        a('v_lshlrev_b32 v8, 6, v1')
        a('buffer_load_dword v9, v8, s[40:43], s44 offen')
    a('s_branch %s_end' % name)
    a.role('ka_gemv')
    a('v_and_b32 v5, 255, v0'); a('v_lshrrev_b32 v7, 3, v5'); a('v_and_b32 v8, 7, v5')
    a('s_lshr_b32 s22, s2, 2'); a('s_and_b32 s23, s2, 3')
    a('v_lshlrev_b32 v9, 3, v7'); a('s_lshl_b32 s24, s23, 8')
    a('v_mul_u32_u24 v10, %d, v7' % (4 * 6144)); a('v_lshl_add_u32 v10, v8, 4, v10')
    a('s_mul_i32 s25, s23, %d' % (128 * 6144)); a('s_lshl_b32 s27, s22, 7'); a('s_add_u32 s25, s25, s27')
    a('v_lshrrev_b32 v30, 4, v5'); a('v_lshlrev_b32 v30, 8, v30'); a('v_lshl_add_u32 v30, v8, 5, v30'); a('v_add_u32 v30, %d, v30' % GP)
    a('s_waitcnt lgkmcnt(0)')
    srd(a, 12, 8, 1024); srd(a, 28, 10, 512 * 6144); srd(a, 16, 6, WSZ)
    stamp(a, 1)
    a('s_cmp_lt_u32 s2, 192'); a('s_cbranch_scc1 ka_job')
    a('s_barrier')
    a('s_cmp_lt_u32 s2, 254'); a('s_cbranch_scc1 %s_end' % name)
    for r in range(12, 16): a('v_mov_b32 v%d, 0' % r)
    a('s_and_b32 s24, s2, 1'); a('s_lshl_b32 s24, s24, 2'); a('s_add_u32 s24, s24, s26'); a('s_lshl_b32 s24, s24, 10'); a('s_add_u32 s24, s24, 0x%x' % FLAGB)
    a('buffer_store_dwordx4 v[12:15], v3, s[16:19], s24 offen')
    a('s_branch %s_end' % name)
    a.role('ka_job')
    a('buffer_load_dwordx2 v[12:13], v9, s[12:15], s24 offen', tag='c')
    if KA_GLATE: a('s_barrier')
    for i in range(4):
        a('buffer_load_dwordx4 v[%d:%d], v10, s[28:31], s25 offen' % (32 + 4 * i, 35 + 4 * i), tag='w%d' % i)
        if i < 3: a('s_add_u32 s25, s25, 6144')
    if not KA_GLATE: a('s_barrier')
    a('s_mov_b32 s36, 0xffff0000'); a('s_mov_b32 s40, 0x05040100'); a('s_mov_b32 s41, 0x07060302')
    for c in range(8): a('v_mov_b32 v%d, 0' % (64 + c))
    a.wait_vm('c')
    stamp(a, 2)
    unpack(a, 16, 12, 2, 36)
    for i in range(4): a('v_mul_f32 v%d, %s, v%d' % (20 + i, fbits(-LOG2E), 16 + i))
    for i in range(4): a('v_exp_f32 v%d, v%d' % (20 + i, 20 + i))
    for i in range(4): a('v_add_f32 v%d, 1.0, v%d' % (20 + i, 20 + i))
    for i in range(4): a('v_rcp_f32 v%d, v%d' % (20 + i, 20 + i))
    for i in range(4): a('v_mul_f32 v%d, v%d, v%d' % (20 + i, 20 + i, 16 + i))
    for d in range(2): a('v_cvt_pk_bf16_f32 v%d, v%d, v%d' % (12 + d, 20 + 2 * d, 21 + 2 * d))
    for ip in range(2):
        a.wait_vm('w%d' % (2 * ip + 1))
        r0 = 32 + 8 * ip; r1 = r0 + 4
        for d in range(4):
            a('v_perm_b32 v%d, v%d, v%d, s40' % (48 + 2 * d, r1 + d, r0 + d)); a('v_perm_b32 v%d, v%d, v%d, s41' % (49 + 2 * d, r1 + d, r0 + d))
        for c in range(8): a('v_dot2c_f32_bf16 v%d, v%d, v%d' % (64 + c, 48 + c, 12 + ip))
        a('s_nop 2')
    for c in range(8): a('v_add_f32_dpp v%d, v%d, v%d row_ror:8' % (64 + c, 64 + c, 64 + c))
    a('ds_write_b128 v30, v[64:67]'); a('ds_write_b128 v30, v[68:71] offset:16')
    a('s_waitcnt lgkmcnt(0)')
    a('v_mov_b32 v8, %d' % (KC + 4)); a('v_mov_b32 v9, 1'); a('s_mov_b64 exec, 1')
    a('ds_add_rtn_u32 v10, v8, v9'); a('s_waitcnt lgkmcnt(0)'); a('v_readfirstlane_b32 s56, v10'); a('s_mov_b64 exec, -1')
    stamp(a, 3)
    a('s_cmp_lg_u32 s56, 3'); a('s_cbranch_scc1 %s_end' % name)
    a('v_lshlrev_b32 v10, 2, v1'); a('v_add_u32 v10, %d, v10' % GP)
    for p in range(8): a('ds_read2st64_b32 v[%d:%d], v10 offset0:%d offset1:%d' % (32 + 2 * p, 33 + 2 * p, 2 * p, 2 * p + 1))
    a('s_lshr_b32 s24, s22, 3')
    a('s_lshl_b32 s25, s22, 6'); a('v_add_u32 v23, s25, v1'); a('v_and_b32 v26, 511, v23')
    a('v_sub_u32 v27, 512, v26'); a('v_and_b32 v27, 255, v27'); a('v_or_b32 v27, 256, v27')
    a('v_cmp_lt_u32 vcc, 255, v26'); a('s_sub_u32 s25, s24, 2'); a('s_cmp_lt_u32 s25, 3'); a('s_cselect_b64 vcc, vcc, 0')
    a('v_cndmask_b32 v27, v26, v27, vcc'); a('v_lshlrev_b32 v27, 2, v27')
    a('s_lshl_b32 s24, s24, 11'); a('s_mul_i32 s25, s23, 12288'); a('s_add_u32 s24, s24, s25')
    a('s_waitcnt lgkmcnt(0)')
    for st in (8, 4, 2, 1):
        for i in range(st): a('v_add_f32 v%d, v%d, v%d' % (32 + i, 32 + i, 32 + st + i))
    a('buffer_store_dword v32, v27, s[16:19], s24 offen %s' % ZST)
    finish(a, name, 0)
    return name, a.text() + kernel_desc(name, 168, 100), (256, 768, GP + 4096 + 64)

def cheb(a, dst, p1, p2, K):
    for i in range(0, 8, 2):
        a('v_pk_fma_f32 v[%d:%d], v[%d:%d], v[%d:%d], v[%d:%d] op_sel_hi:[1,0,1] neg_lo:[0,0,1] neg_hi:[0,0,1]' % (
            dst + i, dst + i + 1, p1 + i, p1 + i + 1, K, K + 1, p2 + i, p2 + i + 1))

WSL = 14464; WU = 7296; RW = 8; RZ = 5; NPRE = 5
PS = 156672
def lds_map():
    global ZR0, G2H, SBH, GBH, CSX, CNT, STL, LDS_TOTAL, TB, ZI, B1L, G1L, GAL, G2L, SAL, EXT, YST, DREG, DHALF
    ZR0 = RW * WSL
    assert ZR0 + RZ * 8192 <= PS
    G2H = PS; SBH = PS + 1024; GBH = PS + 2048; CSX = PS + 3072; CNT = PS + 6656; STL = PS
    LDS_TOTAL = PS + 7168
    TB = 5 * WSL
    ZI = TB; B1L = TB + 65536; G1L = B1L + 8192; GAL = G1L + 2048; G2L = GAL + 2048; SAL = CSX; EXT = G2L + 2048
    assert EXT + 2048 <= PS and NPRE <= 5
    YST = CSX + 1024
    DREG = 14336; DHALF = 5 * DREG
lds_map()

def poll(a, lbl, soff, nlanes):
    a('v_lshlrev_b32 v8, 2, v1'); a('s_mov_b32 s57, 0'); a('s_mov_b32 exec_lo, 0x%x' % ((1 << nlanes) - 1)); a('s_mov_b32 exec_hi, 0')
    a.label(lbl)
    a('buffer_load_dword v9, v8, s[16:19], s%d offen sc1' % soff); a('s_waitcnt vmcnt(0)')
    a('v_cmp_ne_u32 vcc, 0, v9'); a('s_cmp_eq_u32 vcc_lo, 0x%x' % ((1 << nlanes) - 1)); a('s_cbranch_scc1 %s_ok' % lbl)
    a('s_sleep %d' % PSLEEP); a('s_add_u32 s57, s57, 1'); a('s_cmp_lt_u32 s57, %d' % SPIN); a('s_cbranch_scc1 %s' % lbl)
    a.label(lbl + '_ok')
    a('s_mov_b64 exec, -1')
def lds_spin(a, lbl, addr, val):
    a('v_mov_b32 v8, %d' % addr); a('s_mov_b32 s57, 0')
    a.label(lbl)
    a('ds_read_b32 v9, v8'); a('s_waitcnt lgkmcnt(0)'); a('v_readfirstlane_b32 s56, v9')
    a('s_cmp_ge_u32 s56, %d' % val); a('s_cbranch_scc1 %s_ok' % lbl)
    a('s_sleep %d' % LSLEEP); a('s_add_u32 s57, s57, 1'); a('s_cmp_lt_u32 s57, %d' % (SPIN * 16)); a('s_cbranch_scc1 %s' % lbl)
    a.label(lbl + '_ok')
def lds_inc(a, addr):
    a('v_mov_b32 v8, %d' % addr); a('v_mov_b32 v9, 1'); a('s_mov_b64 exec, 1'); a('ds_add_u32 v8, v9'); a('s_mov_b64 exec, -1')
def arrive(a, lbl, addr, n, soff, total=0):
    a('s_waitcnt vmcnt(0)')
    a('v_mov_b32 v8, %d' % addr); a('v_mov_b32 v9, 1'); a('s_mov_b64 exec, 1')
    a('ds_add_rtn_u32 v10, v8, v9'); a('s_waitcnt lgkmcnt(0)'); a('v_readfirstlane_b32 s56, v10')
    a('s_cmp_lg_u32 s56, %d' % (n - 1)); a('s_cbranch_scc1 %s' % lbl)
    a('v_mov_b32 v8, 0')
    if total:
        a('v_mov_b32 v10, 1'); a('buffer_atomic_add v10, v8, s[16:19], s%d offen sc0 sc1' % soff); a('s_waitcnt vmcnt(0)'); a('v_readfirstlane_b32 s56, v10')
        a('s_cmp_lg_u32 s56, %d' % (total - 1)); a('s_cbranch_scc1 %s' % lbl)
        a('buffer_store_dword v9, v8, s[16:19], s%d offen offset:128 sc1' % soff)
    else:
        a('buffer_store_dword v9, v8, s[16:19], s%d offen sc1' % soff)
    a.label(lbl)
    a('s_mov_b64 exec, -1')

def gen_a2(a, A2, CH, sphase):
    swap23_v(a, 9, 6, 10); a('s_lshl_b32 s32, s22, 5'); a('v_add_u32 v9, s32, v9')
    a('s_lshl_b32 s32, s25, 5'); a('v_lshl_add_u32 v8, v4, 3, s32')
    a('v_mul_u32_u24 v12, v9, v8'); a('v_and_b32 v12, 511, v12'); a('v_cvt_f32_u32 v12, v12'); a('v_cvt_f32_u32 v13, v9')
    a('v_mul_f32 v13, %s, v13' % fbits(1 / 512)); a('v_mov_b32 v%d, %s' % (CH[0], sphase)); a('v_fmac_f32 v%d, %s, v12' % (CH[0], fbits(1 / 512)))
    a('v_mul_f32 v10, %s, v13' % fbits(16.0))
    for i in range(1, 8): a('v_add_f32 v%d, v%d, v13' % (CH[0] + i, CH[0] + i - 1))
    for i in range(8): a('v_add_f32 v%d, v%d, v10' % (CH[1] + i, CH[0] + i))
    a('v_cos_f32 v10, v10')
    for g in range(2):
        for i in range(8): a('v_cos_f32 v%d, v%d' % (CH[g] + i, CH[g] + i))
    a('v_add_f32 v10, v10, v10')
    for j in range(8):
        c = CH[j % 3]
        if j >= 2: cheb(a, c, CH[(j - 1) % 3], CH[(j - 2) % 3], 10)
        for d in range(4): a('v_cvt_pk_bf16_f32 v%d, v%d, v%d' % (A2 + 4 * j + d, c + 2 * d, c + 2 * d + 1))
def z_bases(a):
    a('v_bfe_u32 v10, v1, 2, 2'); a('v_lshl_add_u32 v10, v4, 3, v10'); a('v_lshlrev_b32 v10, 7, v10')
    a('v_bfe_u32 v11, v1, 4, 1'); a('v_lshl_add_u32 v10, v11, 5, v10'); a('v_and_b32 v11, 1, v1'); a('v_lshl_add_u32 v10, v11, 4, v10')
    a('v_bfe_u32 v11, v1, 1, 1'); a('v_lshl_add_u32 v10, v11, 3, v10'); a('v_bfe_u32 v11, v1, 3, 1'); a('v_lshl_add_u32 v10, v11, 6, v10')
    a('v_xor_b32 v11, 64, v10')
    a('s_lshl_b32 s32, s26, 12'); a('s_add_u32 s32, s32, %d' % ZI); a('v_add_u32 v10, s32, v10'); a('v_add_u32 v11, s32, v11')
    a('v_lshlrev_b32 v12, 5, v4'); a('v_add_u32 v12, %d, v12' % G1L)
    a('v_mov_b32 v14, 0'); a('v_mov_b32 v15, 0xbf803f80')

def kM():
    lds_map()
    a = XAsm(); name = 'kb_main_kernel'
    head(a, name, 256)
    a('s_load_dwordx2 s[6:7], s[0:1], 104')
    ids(a)
    a('s_and_b32 s22, s21, 7'); a('s_lshr_b32 s23, s21, 3'); a('s_lshl_b32 s24, s20, 2'); a('s_add_u32 s23, s23, s24')
    a('s_lshl_b32 s25, s26, 2'); a('s_lshl_b32 s24, s22, 1'); a('s_add_u32 s25, s25, s24')
    lg = {'2x16': 1, '4x8': 2, '8x4': 3, '16x2': 4}[K4_MAP]; gm = (1 << (lg - 1)) - 1
    def cmap():
        a('s_and_b32 s50, s21, %d' % ((1 << lg) - 1)); a('s_lshr_b32 s48, s21, %d' % lg); a('s_and_b32 s51, s20, %d' % gm); a('s_lshl_b32 s51, s51, %d' % (5 - lg)); a('s_add_u32 s48, s48, s51')
        a('s_lshr_b32 s49, s50, %d' % (lg - 1)); a('s_lshl_b32 s49, s49, 3'); a('s_and_b32 s51, s20, %d' % (7 & ~gm)); a('s_add_u32 s49, s49, s51')
        a('s_and_b32 s51, s50, %d' % gm); a('s_add_u32 s49, s49, s51'); a('s_lshl_b32 s49, s49, 2')
        a('s_lshl_b32 s50, s50, %d' % (4 - lg)); a('s_lshl_b32 s51, s48, %d' % (lg - 1)); a('s_add_u32 s50, s50, s51'); a('s_and_b32 s50, s50, 15')
        if not K4_ROT: a('s_mov_b32 s50, 0')
    def dmap():
        a('s_and_b32 s51, s21, 3'); a('s_lshr_b32 s52, s21, 2')
        a('s_lshr_b32 s53, s51, 1'); a('s_lshl_b32 s53, s53, 5'); a('s_lshl_b32 s54, s20, 2'); a('s_add_u32 s53, s53, s54')
        a('s_and_b32 s54, s51, 1'); a('s_lshl_b32 s54, s54, 1'); a('s_add_u32 s53, s53, s54')
        a('s_lshl_b32 s54, s51, 1'); a('s_add_u32 s54, s54, s52'); a('s_and_b32 s54, s54, 7'); a('s_cmp_eq_u32 s54, 7'); a('s_cselect_b32 s54, 3, s54')
        if not K5_ROT: a('s_mov_b32 s54, 0')
    LO, UP, CUR = 136, 144, 152
    uid = [0]
    def w_setup(who, smat, spart, npc):
        a('s_cmp_eq_u32 s%d, 1' % smat); a('s_cselect_b32 s40, s10, s8'); a('s_cselect_b32 s41, s11, s9'); a('s_mov_b32 s42, %d' % (512 * 3584)); a('s_mov_b32 s43, 0x20000')
        a('s_mul_i32 s30, s%d, %d' % (spart, 64 * npc))
        for q in range(min(npc, 7)):
            a('v_add_u32 v8, s30, v1')
            if q: a('v_add_u32 v8, %d, v8' % (64 * q))
            a('v_mul_u32_u24 v9, 4682, v8'); a('v_lshrrev_b32 v9, 16, v9')
            a('v_mul_u32_u24 v10, 14, v9'); a('v_sub_u32 v10, v8, v10'); a('v_lshlrev_b32 v10, 4, v10')
            a('v_mul_u32_u24 v11, 3584, v9'); a('v_add_u32 v%d, v11, v10' % (LO + q))
            a('v_sub_u32 v11, %d, v11' % (287 * 3584)); a('v_add_u32 v%d, v11, v10' % (UP + q))
            if q == 0:
                a('v_subrev_u32 v161, %d, v%d' % (256 * 3584, UP)); a('v_cmp_eq_u32 vcc, 0, v9'); a('v_cndmask_b32 v161, v%d, v161, vcc' % UP)
        a('s_mul_i32 s30, s48, 224'); a('s_add_u32 s31, s30, %d' % (225 * 3584))
        a('s_mul_i32 s44, s%d, %d' % (smat, WU)); a('s_mul_i32 s45, s%d, %d' % (spart, 1024 * npc)); a('s_add_u32 s44, s44, s45'); a('s_add_u32 s45, s44, %d' % ZR0)
        a('s_mov_b32 s47, s44')
        def sethalf(upper):
            if upper:
                a('v_mov_b32 v%d, v161' % CUR); a('v_mov_b32 v160, v%d' % UP)
                for q in range(1, min(npc, 7)): a('v_mov_b32 v%d, v%d' % (CUR + q, UP + q))
                a('s_mov_b32 s60, s31'); a('s_mov_b32 s61, %d' % (-32 * 3584))
            else:
                a('v_mov_b32 v160, v%d' % LO)
                for q in range(min(npc, 7)): a('v_mov_b32 v%d, v%d' % (CUR + q, LO + q))
                a('s_mov_b32 s60, s30'); a('s_mov_b32 s61, %d' % (32 * 3584))
        a('s_cmp_ge_u32 s55, 8'); a('s_cbranch_scc1 km_w_u0%s' % who)
        sethalf(False); a('s_branch km_w_go%s' % who)
        a.label('km_w_u0%s' % who); sethalf(True)
        a('s_cmp_eq_u32 s55, 8'); a('s_cbranch_scc1 km_w_go%s' % who); a('v_mov_b32 v%d, v160' % CUR)
        a.label('km_w_go%s' % who)
        a('s_and_b32 s32, s55, 7'); a('s_mul_i32 s32, s32, s61'); a('s_add_u32 s60, s60, s32')
        def w_issue():
            uid[0] += 1; u = uid[0]
            a('s_mov_b32 m0, s47')
            for q in range(npc - 1):
                a('buffer_load_dwordx4 v%d, s[40:43], s60 offen lds' % (CUR + q)); a('s_add_u32 m0, m0, 1024')
            if npc < 8:
                a('s_cmp_eq_u32 s%d, %d' % (spart, 8 // npc - 1)); a('s_cbranch_scc1 km_w_s%d' % u)
                a('buffer_load_dwordx4 v%d, s[40:43], s60 offen lds' % (CUR + npc - 1))
                a.label('km_w_s%d' % u)
            a('v_mov_b32 v%d, v160' % CUR); a('s_add_u32 s60, s60, s61')
            a('s_add_u32 s47, s47, %d' % WSL); a('s_cmp_eq_u32 s47, s45'); a('s_cselect_b32 s47, s44, s47')
            a('s_add_u32 s24, s24, 1'); a('s_add_u32 s55, s55, 1'); a('s_and_b32 s32, s55, 7')
            a('s_cmp_lg_u32 s32, 0'); a('s_cbranch_scc1 km_w_e%d' % u)
            a('s_cmp_eq_u32 s55, 16'); a('s_cbranch_scc1 km_w_l%d' % u)
            sethalf(True); a('s_branch km_w_e%d' % u)
            a.label('km_w_l%d' % u); sethalf(False); a('s_mov_b32 s55, 0')
            a.label('km_w_e%d' % u)
        return w_issue
    a('s_cmp_lt_u32 s3, 8'); a('s_cbranch_scc1 km_compute')
    a('s_load_dwordx4 s[8:11], s[0:1], 48')
    if H_PRIO: a('s_setprio %d' % H_PRIO)
    a('v_lshrrev_b32 v5, 3, v1'); a('v_lshlrev_b32 v5, 12, v5'); a('v_and_b32 v7, 7, v1'); a('v_lshrrev_b32 v8, 2, v1'); a('v_and_b32 v8, 4, v8'); a('v_xor_b32 v7, v7, v8')
    a('v_lshl_add_u32 v5, v7, 4, v5')
    a('s_lshl_b32 s27, s23, 7'); a('s_add_u32 s27, s27, 0x%x' % ZB)
    a('s_lshl_b32 s28, s26, 12'); a('s_add_u32 s28, s28, %d' % ZI)
    a('s_lshl_b32 s33, s26, 9'); a('v_lshlrev_b32 v16, 4, v6'); a('v_add_u32 v16, s33, v16')
    a('v_lshlrev_b32 v17, 11, v4'); a('v_sub_u32 v17, 2048, v17'); a('v_add_u32 v17, v17, v16')
    a('v_add_u32 v18, %d, v16' % G1L); a('v_lshrrev_b32 v20, 1, v16'); a('v_add_u32 v20, %d, v20' % SAL)
    a('v_cvt_f32_u32 v19, v4'); a('v_mul_f32 v21, %s, v19' % fbits(2047.0)); a('v_add_f32 v21, 1.0, v21'); a('v_sub_f32 v19, 1.0, v19')
    a('s_mov_b32 s46, 0xffff0000'); a('s_mov_b32 s34, 12288'); a('s_mov_b32 s35, 24576'); a('s_mov_b32 s36, 36864')
    a('v_mov_b32 v8, %d' % CNT)
    for r in range(12, 16): a('v_mov_b32 v%d, 0' % r)
    a('ds_write_b128 v8, v[12:15]'); a('ds_write_b128 v8, v[12:15] offset:16'); a('ds_write_b128 v8, v[12:15] offset:32')
    a('s_waitcnt lgkmcnt(0)')
    srd(a, 16, 6, WSZ)
    stamp(a, 1)
    def zdma(i):
        a('s_add_u32 s32, s25, %d' % i); a('s_and_b32 s32, s32, 15'); a('s_lshl_b32 s32, s32, 17'); a('s_add_u32 s32, s32, s27')
        a('s_add_u32 m0, s28, %d' % (16384 * i))
        for k in range(4):
            a('buffer_load_dwordx4 v5, s[16:19], s32 offen lds', tag='z%d' % i)
            if k < 3: a('s_add_u32 m0, m0, 1024'); a('s_add_u32 s32, s32, 32768')
    FP = 32
    zdma(0)
    for p, so in enumerate(('0', 's34', 's35', 's36')): a('buffer_load_dwordx4 v[%d:%d], v17, s[16:19], %s offen' % (FP + 4 * p, FP + 4 * p + 3, so), tag='f1')
    zdma(1); zdma(2); zdma(3)
    a.wait_vm('z0'); a.bar()
    a.wait_vm('f1')
    for i in (0, 2): a.pk('v_pk_add_f32', FP + i, FP + i, FP + 4 + i); a.pk('v_pk_add_f32', FP + 8 + i, FP + 8 + i, FP + 12 + i)
    for i in (0, 2): a.pk('v_pk_add_f32', FP + i, FP + i, FP + 8 + i)
    for d in range(2): a('v_cvt_pk_bf16_f32 v%d, v%d, v%d' % (FP + 4 + d, FP + 2 * d, FP + 2 * d + 1))
    unpack(a, FP, FP + 4, 2, 46)
    for i in range(4): a('v_fma_f32 v%d, v%d, v21, v19' % (FP + i, FP + i))
    for d in range(2): a('v_cvt_pk_bf16_f32 v%d, v%d, v%d' % (FP + 4 + d, FP + 2 * d, FP + 2 * d + 1))
    unpack(a, FP, FP + 4, 2, 46)
    a('s_mov_b32 exec_hi, 0'); a('ds_write_b128 v18, v[%d:%d]' % (FP, FP + 3))
    a('s_not_b64 exec, exec'); a('ds_write_b64 v20, v[%d:%d]' % (FP + 4, FP + 5)); a('s_mov_b64 exec, -1')
    a('s_waitcnt lgkmcnt(0)')
    a.wait_vm('z1'); a.bar()
    stamp(a, 2)
    a('s_add_u32 s34, s26, 2'); a('s_lshl_b32 s34, s34, 11')
    for p in range(4):
        for k in range(2): a('buffer_load_dwordx4 v[%d:%d], v3, s[16:19], s34 offen offset:%d' % (FP + 8 * p + 4 * k, FP + 8 * p + 4 * k + 3, 1024 * k), tag='f2')
        if p < 3: a('s_add_u32 s34, s34, 12288')
    a.wait_vm('z3'); a.bar()
    a('s_cmp_lg_u32 s23, 0'); a('s_cbranch_scc1 km_h_nq')
    z_bases(a)
    for d in range(4): a('v_mov_b32 v%d, v15' % (64 + d))
    a('v_lshlrev_b32 v22, 4, v4'); a('v_add_u32 v22, %d, v22' % YST)
    for i in range(4):
        for j in range(2):
            for hf in range(2): a('ds_read_b64_tr_b16 v[%d:%d], v10 offset:%d' % (68 + 8 * i + 4 * j + 2 * hf, 69 + 8 * i + 4 * j + 2 * hf, 16384 * i + (16 * j + 4 * hf) * 128))
    for i in range(4):
        a('s_add_u32 s32, s25, %d' % i); a('s_and_b32 s32, s32, 15'); a('s_lshl_b32 s33, s32, 6'); a('s_lshl_b32 s32, s32, 7'); a('v_add_u32 v13, s32, v12'); a('v_add_u32 v9, s33, v22')
        for k in range(4): a('ds_read_b128 v[%d:%d], v13 offset:%d' % (116 + 4 * k, 119 + 4 * k, 64 * (k >> 1) + 16 * (k & 1)))
        a('s_waitcnt lgkmcnt(4)')
        a.mfma(100, 68 + 8 * i, 64, True); a.mfma(100, 72 + 8 * i, 64)
        a('s_waitcnt lgkmcnt(0)')
        for r in range(0, 16, 2): a.pk('v_pk_mul_f32', 100 + r, 100 + r, 116 + r)
        for d in range(8): a('v_cvt_pk_bf16_f32 v%d, v%d, v%d' % (132 + d, 100 + 2 * d, 101 + 2 * d))
        for h in range(2): a('ds_write_b128 v9, v[%d:%d] offset:%d' % (132 + 4 * h, 135 + 4 * h, 32 * h))
    a('s_waitcnt lgkmcnt(0)')
    lds_inc(a, CNT + 32)
    a.label('km_h_nq')
    a('s_and_b32 s37, s26, 1'); a('s_lshr_b32 s38, s26, 1')
    cmap()
    a.wait_vm('f2')
    for i in range(0, 8, 2): a.pk('v_pk_add_f32', FP + i, FP + i, FP + 8 + i); a.pk('v_pk_add_f32', FP + 16 + i, FP + 16 + i, FP + 24 + i)
    for i in range(0, 8, 2): a.pk('v_pk_add_f32', FP + i, FP + i, FP + 16 + i)
    for d in range(4): a('v_cvt_pk_bf16_f32 v%d, v%d, v%d' % (FP + 8 + d, FP + 2 * d, FP + 2 * d + 1))
    unpack(a, FP, FP + 8, 4, 46)
    a('s_cmp_eq_u32 s26, 2'); a('s_cselect_b32 s35, 1.0, 0')
    for i in range(8): a('v_add_f32 v%d, s35, v%d' % (FP + i, FP + i))
    for d in range(4): a('v_cvt_pk_bf16_f32 v%d, v%d, v%d' % (FP + 8 + d, FP + 2 * d, FP + 2 * d + 1))
    unpack(a, FP, FP + 8, 4, 46)
    a('s_lshl_b32 s32, s26, 3'); a('s_lshr_b32 s33, 0x02000103, s32'); a('s_and_b32 s33, s33, 3'); a('s_lshl_b32 s33, s33, 10'); a('s_add_u32 s33, s33, %d' % PS)
    a('v_lshl_add_u32 v20, v1, 3, s33')
    a('s_cmp_eq_u32 s26, 0'); a('s_cbranch_scc1 km_h_noh')
    a('ds_write_b64 v20, v[%d:%d]' % (FP + 8, FP + 9)); a('ds_write_b64 v20, v[%d:%d] offset:512' % (FP + 10, FP + 11))
    a.label('km_h_noh')
    a('s_cmp_eq_u32 s37, 1'); a('s_cbranch_scc1 km_h_nof')
    a('s_lshl_b32 s32, s38, 11'); a('s_add_u32 s32, s32, %d' % GAL); a('v_add_u32 v8, s32, v3')
    a('ds_write_b128 v8, v[%d:%d]' % (FP, FP + 3)); a('ds_write_b128 v8, v[%d:%d] offset:1024' % (FP + 4, FP + 7))
    a.label('km_h_nof')
    a('s_load_dwordx2 s[4:5], s[0:1], 64')
    a('s_waitcnt lgkmcnt(0)')
    lds_inc(a, CNT + 4)
    stamp(a, 3)
    srd(a, 12, 4, 1792 * 1024)
    def c_iters(p, first, issue, last_issue, nper, look, upto):
        a('s_mov_b32 s29, 0')
        a.label(p + '_loop')
        a('s_cmp_lt_u32 s29, %d' % first); a('s_cbranch_scc1 %s_noi' % p)
        if 'Cnoload' not in EXP: issue()
        a.label(p + '_noi')
        a('s_waitcnt vmcnt(%d)' % (nper * look))
        a('s_barrier')
        a('s_add_u32 s29, s29, 1'); a('s_cmp_lt_u32 s29, %d' % upto); a('s_cbranch_scc1 %s_loop' % p)
    a('s_cmp_eq_u32 s38, 1'); a('s_cbranch_scc1 km_hz')
    a('s_mov_b32 s55, s50'); a('s_mov_b32 s24, 0'); a('s_mov_b32 s39, 0')
    w_issue = w_setup('h', 37, 39, 8)
    NST = 16 >> lg
    if W_START == 'tfree': lds_spin(a, 'km_spinT', CNT + 12, 4)
    elif W_START == 'arr': lds_spin(a, 'km_spinT', CNT, 4)
    elif W_START == 'iss': lds_spin(a, 'km_spinT', CNT + 36, 4)
    stamp(a, 4)
    a.label('km_hw_pre')
    w_issue()
    a('s_cmp_lg_u32 s24, %d' % (NST + 1)); a('s_cbranch_scc1 km_hw_pre1')
    a('s_waitcnt vmcnt(7)'); lds_inc(a, CNT + 16)
    a.label('km_hw_pre1')
    if W_START == 'fin2':
        a('s_cmp_lg_u32 s24, %d' % NPRE); a('s_cbranch_scc1 km_hw_pre2')
        lds_spin(a, 'km_spinT', CNT + 12, 4)
        a.label('km_hw_pre2')
    a('s_cmp_lt_u32 s24, %d' % RW); a('s_cbranch_scc1 km_hw_pre')
    stamp(a, 5)
    a('s_lshl_b32 s33, s37, 1'); a('s_add_u32 s33, s33, s49'); a('s_lshl_b32 s33, s33, 12'); a('s_add_u32 s33, s33, 0x%x' % STATS)
    a('v_lshlrev_b32 v16, 3, v6'); a('v_lshl_add_u32 v16, v4, 12, v16')
    a('s_lshl_b32 s34, s20, 5'); a('s_and_b32 s35, s21, %d' % (31 & ~((1 << lg) - 1))); a('s_add_u32 s34, s34, s35')
    a('s_lshl_b32 s35, s34, 2'); a('s_add_u32 s35, s35, 0x%x' % FLAGS)
    a('s_lshl_b32 s34, s34, 11'); a('s_lshl_b32 s36, s37, 10'); a('s_add_u32 s34, s34, s36'); a('s_add_u32 s34, s34, 0x%x' % CSP)
    a.bar()
    LW = 17 - RW
    c_iters('km_hw', 2, w_issue, LW, 7, RW - 3, LW + 1); a.nbar += LW + 1
    NP = 1 << lg
    a.vm = 0; a.tags = {}
    for st in range(LW + 2, 16): a.vm += 7; a.tags['W%d' % st] = a.vm
    ST = 32
    for b in range(LW + 1, 16):
        if b == LW + 1:
            for c in range(16): a('buffer_load_dwordx2 v[%d:%d], v16, s[16:19], s33 offen offset:%d sc1' % (ST + 2 * c, ST + 2 * c + 1, 256 * c), tag='st')
        if b == TAIL_B:
            poll(a, 'km_pollS', 35, NP)
            for p in range(NP):
                a('buffer_load_dwordx4 v[%d:%d], v3, s[16:19], s34 offen sc1' % (64 + 4 * p, 67 + 4 * p), tag='cp'); a('s_add_u32 s34, s34, 2048')
            for st in (16, 8, 4, 2):
                for i in range(0, st, 2): a.pk('v_pk_add_f32', ST + i, ST + i, ST + st + i)
            a('v_mul_f32 v10, %s, v%d' % (fbits(-1.0 / 512), ST))
            a('v_mul_f32 v11, %s, v%d' % (fbits(1.0 / 512), ST + 1)); a('v_fma_f32 v11, -v10, v10, v11'); a('v_max_f32 v11, 0, v11')
            a('v_add_f32 v11, %s, v11' % fbits(1e-5))
            a('v_rsq_f32 v14, v11'); a('v_sqrt_f32 v15, v11')
            for src, dst in ((10, 12), (15, 13)):
                a('v_cvt_pk_bf16_f32 v%d, v%d, v%d' % (ST, src, src)); a('v_and_b32 v%d, s46, v%d' % (ST, ST)); a('v_sub_f32 v%d, v%d, v%d' % (ST + 1, src, ST))
                a('v_cvt_pk_bf16_f32 v%d, v%d, v%d' % (dst, ST, ST + 1))
            a('s_lshl_b32 s32, s37, 10'); a('s_add_u32 s32, s32, %d' % STL); a('v_add_u32 v8, s32, v3'); a('ds_write_b128 v8, v[12:15]')
        if b == 15:
            a('s_waitcnt vmcnt(0)')
            st = NP // 2
            while st:
                for i in range(0, 4 * st, 2): a.pk('v_pk_add_f32', 64 + i, 64 + i, 64 + 4 * st + i)
                st //= 2
            for i in range(4):
                a('v_cvt_pk_bf16_f32 v%d, v%d, v%d' % (72 + 2 * i, 64 + i, 64 + i)); a('v_and_b32 v80, s46, v%d' % (72 + 2 * i)); a('v_sub_f32 v80, v%d, v80' % (64 + i))
                a('v_cvt_pk_bf16_f32 v%d, v80, v80' % (73 + 2 * i))
            a('v_lshrrev_b32 v8, 4, v1'); a('v_lshlrev_b32 v8, 9, v8'); a('v_and_b32 v9, 3, v1'); a('v_lshl_add_u32 v8, v9, 7, v8')
            a('v_bfe_u32 v9, v1, 2, 1'); a('v_lshl_add_u32 v8, v9, 6, v8'); a('v_bfe_u32 v9, v1, 3, 1'); a('v_lshl_add_u32 v8, v9, 3, v8')
            a('s_lshl_b32 s32, s37, 11'); a('s_add_u32 s32, s32, %d' % CSX); a('v_add_u32 v8, s32, v8')
            a('s_cmp_eq_u32 s37, 1'); a('s_cselect_b32 exec_hi, 0xffff, -1')
            for i in range(4): a('ds_write_b64 v8, v[%d:%d] offset:%d' % (72 + 2 * i, 73 + 2 * i, 16 * i))
            a('s_mov_b64 exec, -1')
        if b + 1 < 16 and b < TAIL_B: a.wait_vm('W%d' % (b + 1))
        if b == 15: a('s_waitcnt lgkmcnt(0)')
        a.bar()
    a('s_branch km_c_done')
    a.role('km_hz')
    a('s_lshr_b32 s63, s49, 2'); a('s_and_b32 s63, s63, 7'); a('s_lshl_b32 s63, s63, 8'); a('s_add_u32 s63, s63, 0x%x' % (FLAGB + 128))
    a('s_lshl_b32 s33, s37, 1'); a('s_add_u32 s33, s33, s49'); a('s_lshl_b32 s33, s33, 15'); a('s_add_u32 s33, s33, 0x%x' % ZT)
    a('s_lshl_b32 s34, s37, 12'); a('s_add_u32 s34, s34, %d' % ZR0); a('s_add_u32 s35, s34, %d' % (RZ * 8192)); a('s_mov_b32 s36, s34')
    a('s_lshl_b32 s39, s50, 11')
    nsh = 32 >> lg; ntch = max(1, 512 // nsh // 64) if Z_TOUCH else 0
    a('s_lshr_b32 s30, s21, %d' % lg); a('s_mul_i32 s30, s30, %d' % (65536 // nsh)); a('s_add_u32 s30, s30, s33'); a('v_lshlrev_b32 v29, 7, v1')
    def z_issue():
        a('s_mov_b32 m0, s36'); a('s_add_u32 s32, s33, s39'); a('s_add_u32 s31, s32, 32768')
        a('buffer_load_dwordx4 v3, s[16:19], s32 offen sc1 lds'); a('buffer_load_dwordx4 v3, s[16:19], s32 offen offset:1024 sc1 lds')
        a('s_add_u32 m0, m0, 2048'); a('s_add_u32 s39, s39, 2048'); a('s_and_b32 s39, s39, 32767')
        a('buffer_load_dwordx4 v3, s[16:19], s31 offen sc1 lds'); a('buffer_load_dwordx4 v3, s[16:19], s31 offen offset:1024 sc1 lds')
        a('s_add_u32 s36, s36, 8192'); a('s_cmp_eq_u32 s36, s35'); a('s_cselect_b32 s36, s34, s36')
    lds_spin(a, 'km_spinZ', CNT, 4)
    stamp(a, 6)
    a('s_cmp_eq_u32 s37, 1'); a('s_cbranch_scc1 km_hz_w')
    poll(a, 'km_pollB', 63, 1)
    lds_inc(a, CNT + 24)
    a('s_branch km_hz_go')
    a.label('km_hz_w')
    lds_spin(a, 'km_spinG', CNT + 24, 1)
    a.label('km_hz_go')
    stamp(a, 7)
    z_issue(); z_issue()
    for k in range(ntch):
        a('buffer_load_dword v31, v29, s[16:19], s30 offen sc1'); a('s_add_u32 s30, s30, 8192')
    a('s_waitcnt vmcnt(%d)' % (4 + ntch)); a('s_barrier')
    n1 = (RZ - 2 + 1) // 2
    for i in range(n1): z_issue()
    a('s_waitcnt vmcnt(%d)' % (4 * n1 + ntch)); a('s_barrier')
    for i in range(RZ - 2 - n1): z_issue()
    a('s_waitcnt vmcnt(%d)' % (4 * (RZ - 3))); a('s_barrier')
    c_iters('km_hz', 0, z_issue, 0, 4, RZ - 3, 16 - RZ)
    nx = 0
    if PF_WD == 2:
        a('s_lshl_b32 s32, s21, 1'); a('s_add_u32 s32, s32, s37'); a('s_mul_i32 s32, s32, 28672')
        a('s_mov_b32 exec_hi, 0xffffff')
        for k in range(4):
            a('buffer_load_dword v31, v29, s[12:15], s32 offen'); a('s_add_u32 s32, s32, 7168'); nx += 1
        a('s_mov_b64 exec, -1')
    for k in range(RZ - 4, -2, -1):
        if k >= 0: a('s_waitcnt vmcnt(%d)' % (4 * k + nx))
        a('s_barrier')
    a.label('km_c_done')
    dmap()
    a('v_lshrrev_b32 v5, 3, v1'); a('v_and_b32 v7, 7, v1'); a('v_lshrrev_b32 v8, 2, v1'); a('v_and_b32 v8, 4, v8'); a('v_xor_b32 v7, v7, v8')
    a('v_lshlrev_b32 v5, 10, v5'); a('v_lshl_add_u32 v5, v7, 4, v5')
    a('s_waitcnt lgkmcnt(0)')
    a('s_setprio %d' % D_PRIO)
    a.bar()
    if D_START == 'iss': lds_spin(a, 'km_spinD', CNT + 40, 8)
    stamp(a, 8)
    a('s_mul_i32 s30, s26, %d' % (448 * 1024)); a('s_lshl_b32 s31, s52, 7'); a('s_add_u32 s30, s30, s31')
    a('s_lshl_b32 s31, s26, 15'); a('v_add_u32 v7, s31, v3'); a('s_mov_b32 s33, 0')
    def next_region():
        a('s_lshl_b32 s32, s54, 16'); a('s_add_u32 s32, s32, s30'); a('s_add_u32 s54, s54, 1'); a('s_cmp_eq_u32 s54, 7'); a('s_cselect_b32 s54, 0, s54')
    a('s_mov_b32 m0, s31')
    a.label('km_d_loop')
    next_region()
    for k in range(8):
        a('buffer_load_dwordx4 v5, s[12:15], s32 offen lds'); a('s_add_u32 m0, m0, 1024')
        if k < 7: a('s_add_u32 s32, s32, 8192')
    a('s_add_u32 s33, s33, 1'); a('s_cmp_lt_u32 s33, 4'); a('s_cbranch_scc1 km_d_loop')
    for g in range(3):
        next_region()
        for k in range(8):
            r = 16 + 32 * g + 4 * k
            a('buffer_load_dwordx4 v[%d:%d], v5, s[12:15], s32 offen' % (r, r + 3))
            if k < 7: a('s_add_u32 s32, s32, 8192')
    a('s_waitcnt vmcnt(24)')
    stamp(a, 9)
    a.bar()
    a('s_waitcnt vmcnt(0)')
    for g in range(3):
        a.bar()
        for k in range(8):
            r = 16 + 32 * g + 4 * k
            a('ds_write_b128 v7, v[%d:%d] offset:%d' % (r, r + 3, g * 8192 + 1024 * k))
        a('s_waitcnt lgkmcnt(0)')
    a.bar()
    nbar_h = a.nbar
    a('s_branch %s_end' % name)
    a.role('km_compute'); a.nbar = 0
    a('s_lshr_b32 s27, s3, 2')
    a('s_load_dwordx2 s[4:5], s[0:1], 0'); a('s_load_dwordx4 s[8:11], s[0:1], 48'); a('s_load_dwordx2 s[60:61], s[0:1], 64')
    A2, B1, AC1, AP, ZF, GG = 16, 48, [64, 80], 96, 112, 128
    token_of(a, 7, 8, 23)
    a('s_mov_b64 s[30:31], vcc')
    a('s_lshr_b32 s28, s26, 1'); a('s_and_b32 s29, s26, 1'); a('s_lshl_b32 s29, s29, 4'); a('v_lshl_add_u32 v8, v4, 3, s29')
    a('s_cmp_eq_u32 s23, 0'); a('s_cselect_b32 s32, 0, s28'); a('s_sub_i32 s32, s32, s27'); a('v_cvt_f32_i32 v9, s32'); a('v_mul_f32 v9, %s, v9' % fbits(0.25))
    a('v_mul_u32_u24 v12, v7, v8'); a('v_and_b32 v12, 2047, v12'); a('v_cvt_f32_u32 v12, v12'); a('v_cvt_f32_u32 v13, v7')
    a('v_mul_f32 v13, %s, v13' % fbits(1 / 2048)); a('v_fmamk_f32 v64, v12, %s, v9' % fbits(1 / 2048))
    for i in range(1, 8): a('v_add_f32 v%d, v%d, v13' % (64 + i, 63 + i))
    for i in range(8): a('v_cos_f32 v%d, v%d' % (64 + i, 64 + i))
    for d in range(4): a('v_cvt_pk_bf16_f32 v%d, v%d, v%d' % (72 + d, 64 + 2 * d, 65 + 2 * d))
    a('s_not_b64 s[32:33], s[30:31]'); a('s_cmp_eq_u32 s28, 1'); a('s_cselect_b64 s[32:33], s[30:31], s[32:33]'); a('s_cmp_eq_u32 s23, 0'); a('s_cselect_b64 s[32:33], s[32:33], -1')
    for d in range(4): a('v_cndmask_b32 v%d, 0, v%d, s[32:33]' % (72 + d, 72 + d))
    a('s_lshl_b32 s32, s3, 10'); a('s_add_u32 s32, s32, %d' % B1L); a('v_add_u32 v8, s32, v3'); a('ds_write_b128 v8, v[72:75]')
    a('s_cmp_eq_u32 s27, 1'); a('s_cselect_b32 s34, %s, 0' % fbits(-0.25))
    gen_a2(a, A2, [64, 72, 80], 's34'); z_bases(a)
    a('s_lshl_b32 s32, s27, 12'); a('s_add_u32 s32, s32, %d' % B1L); a('v_add_u32 v8, s32, v3')
    a('v_cmp_eq_u32 s[42:43], 0, v7'); a('s_cmp_eq_u32 s27, 1'); a('s_cselect_b64 s[44:45], s[42:43], 0')
    a('v_lshlrev_b32 v5, 4, v4'); a('v_add_u32 v5, %d, v5' % YST); a('s_or_b32 s33, s22, s27')
    for r in range(160, 164): a('v_mov_b32 v%d, 0' % r)
    a('s_waitcnt lgkmcnt(0)')
    srd(a, 16, 6, WSZ)
    stamp(a, 1)
    XL, XU, XX = 160, 164, 2
    a('s_and_b32 s37, s26, 1'); a('s_lshr_b32 s38, s26, 1')
    ZFS = [112, 128]
    def zread(i):
        for j in range(4):
            for hf in range(2):
                r = ZFS[i & 1] + 4 * j + 2 * hf
                a('ds_read_b64_tr_b16 v[%d:%d], v%d offset:%d' % (r, r + 1, 10 + (j >> 1), 16384 * i + (16 * (j & 1) + 4 * hf) * 128), tag='zr%d_%d' % (i, j))
    def x_loads(u):
        a('s_cmp_eq_u32 s27, 0'); a('s_cbranch_scc1 km_nox%s' % u)
        srd(a, 12, 4, 2048 * 1024)
        a('s_cmp_eq_u32 s38, 1'); mirror_if(a, 7, 9, 13); a('v_lshlrev_b32 v7, 10, v7')
        a('s_lshl_b32 s39, s22, 6'); a('s_lshl_b32 s30, s37, 5'); a('s_add_u32 s39, s39, s30'); a('v_lshl_add_u32 v9, v4, 4, s39')
        a('v_add_u32 v0, v7, v9'); a('buffer_load_dwordx4 v[%d:%d], v0, s[12:15], 0 offen' % (XL, XL + 3))
        a('v_sub_u32 v0, 1008, v9'); a('v_add_u32 v0, v7, v0'); a('buffer_load_dwordx4 v[%d:%d], v0, s[12:15], 0 offen' % (XU, XU + 3))
        a('v_sub_u32 v0, 1024, v9'); a('v_and_b32 v0, 511, v0'); a('v_add_u32 v0, v7, v0')
        a('buffer_load_ushort v%d, v0, s[12:15], 0 offen offset:512' % XX)
        a('v_lshlrev_b32 v7, 1, v9')
        a.label('km_nox%s' % u)
    def w_touch(u):
        a('s_cmp_lg_u32 s27, 0'); a('s_cbranch_scc1 km_ntw%s' % u)
        span = 3584 >> (lg - 1); nl = span // 128 + (1 if span % 128 else 0)
        magic = -(-65536 // nl)
        a('s_cmp_ge_u32 s21, 16'); a('s_cselect_b32 s12, s10, s8'); a('s_cselect_b32 s13, s11, s9'); a('s_mov_b32 s14, %d' % (512 * 3584)); a('s_mov_b32 s15, 0x20000')
        a('s_and_b32 s40, s21, 15'); a('s_lshl_b32 s40, s40, 2'); a('s_add_u32 s40, s40, s26'); a('s_mul_i32 s40, s40, %d' % (8 * 3584))
        a('s_and_b32 s41, s20, %d' % gm); a('s_mul_i32 s41, s41, %d' % span); a('s_and_b32 s41, s41, 0xffffff80'); a('s_add_u32 s40, s40, s41')
        for k in range(-(-8 * nl // 64)):
            for idx in range(64 * k + 64): assert (idx * magic) >> 16 == idx // nl
            a('v_add_u32 v9, %d, v1' % (64 * k)); a('v_min_u32 v9, %d, v9' % (8 * nl - 1))
            a('v_mul_u32_u24 v7, %d, v9' % magic); a('v_lshrrev_b32 v7, 16, v7'); a('v_mul_u32_u24 v7, %d, v7' % (3584 - nl * 128)); a('v_lshl_add_u32 v7, v9, 7, v7')
            a('buffer_load_dword v164, v7, s[12:15], s40 offen')
        if WD_MALL:
            a('s_cmp_lg_u32 s26, 0'); a('s_cbranch_scc1 km_ntw%s' % u)
            a('s_mov_b32 s12, s60'); a('s_mov_b32 s13, s61'); a('s_mul_i32 s40, s2, 7168'); a('v_min_u32 v9, 27, v1'); a('v_lshlrev_b32 v9, 8, v9')
            a('buffer_load_dword v165, v9, s[12:15], s40 offen')
        a.label('km_ntw%s' % u)
    AY = 112; GG = 144
    def gread(i):
        a('s_add_u32 s32, s25, %d' % i); a('s_and_b32 s32, s32, 15'); a('s_lshl_b32 s32, s32, 7'); a('v_add_u32 v13, s32, v12')
        for k in range(4): a('ds_read_b128 v[%d:%d], v13 offset:%d' % (GG + 4 * k, GG + 4 * k + 3, 64 * (k >> 1) + 16 * (k & 1)), tag='g%d' % i)
    a.bar()
    stamp(a, 2)
    for j in range(4): a('ds_read_b128 v[%d:%d], v8 offset:%d' % (B1 + 4 * j, B1 + 4 * j + 3, 1024 * j))
    a.reg = 'B'
    zread(0)
    for j in range(4):
        a.wait_lg('zr0_%d' % j); a.mfma(AC1[0], ZFS[0] + 4 * j, B1 + 4 * j, j == 0)
    a.bar(); zread(1); gread(0)
    for i in range(4):
        xc = AC1[i & 1]
        V = ['v_mul_f32 v%d, v%d, v%d' % (xc + r, xc + r, GG + r) for r in range(16)] + ['G'] + \
            ['v_cvt_pk_bf16_f32 v%d, v%d, v%d' % (xc + d, xc + 2 * d, xc + 2 * d + 1) for d in range(8)]
        def emit(n):
            for _ in range(n):
                if not V: return
                t = V.pop(0)
                if t == 'G':
                    if i < 3: gread(i + 1)
                else: a(t)
        if i < 3:
            for j in range(4):
                a.wait_lg('zr%d_%d' % (i + 1, j)); a.mfma(AC1[(i + 1) & 1], ZFS[(i + 1) & 1] + 4 * j, B1 + 4 * j, j == 0)
                if j == 3 and i == 0: a.bar(); zread(2)
                if j == 0 and i == 1: zread(3)
                if j == 0: a.wait_lg('g%d' % i)
                emit(6)
        else:
            a.wait_lg('g3')
        emit(99)
        a('s_cmp_lg_u32 s33, 0')
        for h in range(2): a.mfma(AP, A2 + 8 * i + 4 * h, xc + 4 * h, i == 0 and h == 0)
        a('s_cbranch_scc1 km_nd%d' % i)
        for d in range(8): a('v_dot2c_f32_bf16 v%d, v%d, v15' % (160 + (d & 3), xc + d))
        if i == 3:
            a('s_nop 2'); a('v_add_f32 v160, v160, v161'); a('v_add_f32 v162, v162, v163'); a('v_add_f32 v14, v160, v162')
        a.label('km_nd%d' % i)
        if i == TOUCH_AT and PF_MODE == 'km': w_touch('')
        if i == 0: x_loads('')
    a.reg = ''
    stamp(a, 3); stamp(a, 14)
    a('s_load_dwordx2 s[4:5], s[0:1], 64')
    a('s_lshl_b32 s32, s3, 12'); a('s_add_u32 s32, s32, %d' % ZI); a('v_add_u32 v11, s32, v3')
    a('s_lshl_b32 s32, s26, 8'); a('s_add_u32 s32, s32, %d' % EXT); a('v_lshl_add_u32 v12, v1, 2, s32')
    a('s_cmp_eq_u32 s27, 0'); a('s_cselect_b64 s[30:31], -1, 0'); a('s_andn2_b64 s[34:35], s[30:31], s[42:43]')
    a('s_cmp_eq_u32 s23, 0'); a('s_cbranch_scc1 km_q0tail')
    a.label('km_q0back')
    a('s_nop 3')
    a('s_andn2_b64 exec, -1, s[44:45]')
    for k in range(4): a('ds_write_b128 v11, v[%d:%d] offset:%d' % (AP + 4 * k, AP + 4 * k + 3, 1024 * k))
    a('s_mov_b64 exec, s[30:31]'); a('ds_write_b32 v12, v14'); a('s_mov_b64 exec, s[34:35]'); a('ds_write_b32 v12, v14 offset:1024')
    a('s_mov_b64 exec, -1')
    a('s_waitcnt lgkmcnt(0)')
    lds_inc(a, CNT + 4)
    a('s_mov_b32 s46, 0xffff0000')
    cmap()
    a('s_cmp_eq_u32 s27, 0'); a('s_cbranch_scc1 km_csb')
    XLF, XUF = 120, 128
    a('s_waitcnt vmcnt(0)')
    unpack(a, XLF, XL, 4, 46); unpack_rev(a, XUF, XU, XX, 46)
    GA, G2, GAU, G2U = 24, 32, 40, 48
    a('v_add_u32 v21, %d, v7' % GAL)
    a('s_lshl_b32 s32, s37, 11'); a('s_add_u32 s32, s32, %d' % ZI); a('v_add_u32 v11, s32, v3')
    a('s_cmp_eq_u32 s38, 0'); a('s_cselect_b32 s34, -1.0, 1.0'); a('s_cselect_b32 s35, 0, 1.0')
    a('v_mov_b32 v16, s34'); a('v_mov_b32 v17, s35'); a('v_sub_f32 v18, 0, v16'); a('v_sub_f32 v22, 1.0, v17')
    a('v_cndmask_b32 v16, v16, v17, s[42:43]'); a('v_cndmask_b32 v18, v18, v17, s[42:43]'); a('v_cndmask_b32 v22, 1.0, v22, s[42:43]')
    a('s_lshl_b32 s39, s38, 5'); a('s_add_u32 s39, s39, s23')
    a('s_lshl_b32 s36, s39, 15'); a('s_lshl_b32 s33, s22, 1'); a('s_add_u32 s33, s33, s37'); a('s_lshl_b32 s33, s33, 10'); a('s_add_u32 s36, s36, s33')
    a('s_lshl_b32 s32, s38, 10'); a('s_add_u32 s32, s32, %d' % EXT); a('v_lshl_add_u32 v20, v1, 2, s32')
    a('s_or_b32 s33, s22, s37'); a('s_cmp_eq_u32 s33, 0'); a('s_cselect_b32 s30, -1, 0'); a('s_mov_b32 s31, 0')
    if E_PRIO: a('s_setprio 3')
    lds_spin(a, 'km_spinR', CNT + 4, 12)
    stamp(a, 4)
    RP, RQ, YL, YU = 56, 88, 64, 72
    for R, o in ((RP, 0), (RQ, 16384)):
        for src in range(4):
            for hf in range(2): a('ds_read_b128 v[%d:%d], v11 offset:%d' % (R + 8 * src + 4 * hf, R + 3 + 8 * src + 4 * hf, o + src * 4096 + hf * 1024))
    for n, R in enumerate((RP, RQ)):
        a('s_waitcnt lgkmcnt(%d)' % (8 if n == 0 else 10))
        if n == 0:
            for reg, off in ((GA, 0), (GAU, 1024), (G2, 2048), (G2U, 3072)):
                for k in range(2): a('ds_read_b128 v[%d:%d], v21 offset:%d' % (reg + 4 * k, reg + 4 * k + 3, off + 16 * k))
            a('ds_read2st64_b32 v[136:137], v20 offset0:0 offset1:1'); a('ds_read2st64_b32 v[138:139], v20 offset0:2 offset1:3')
        for i in range(0, 8, 2): a.pk('v_pk_add_f32', R + i, R + i, R + 8 + i); a.pk('v_pk_add_f32', R + 16 + i, R + 16 + i, R + 24 + i)
        for i in range(0, 8, 2): a.pk('v_pk_add_f32', R + i, R + i, R + 16 + i)
    for i in range(0, 8, 2): a('v_pk_mul_f32 v[%d:%d], v[%d:%d], v[22:23] op_sel_hi:[1,0]' % (RP + i, RP + i + 1, RP + i, RP + i + 1))
    for i in range(0, 8, 2):
        a('v_pk_fma_f32 v[%d:%d], v[%d:%d], v[16:17], v[%d:%d] op_sel_hi:[1,0,1]' % (YL + i, YL + i + 1, RQ + i, RQ + i + 1, RP + i, RP + i + 1))
        a('v_pk_fma_f32 v[%d:%d], v[%d:%d], v[18:19], v[%d:%d] op_sel_hi:[1,0,1]' % (YU + i, YU + i + 1, RQ + i, RQ + i + 1, RP + i, RP + i + 1))
    a('s_waitcnt lgkmcnt(0)')
    a.pk('v_pk_add_f32', 136, 136, 138); a('v_add_f32 v136, v136, v137'); half_sum(a, [136], 137)
    a('v_cndmask_b32 v%d, v%d, v136, s[30:31]' % (YU, YU))
    lds_inc(a, CNT + 12)
    for Y, G, X in ((YL, GA, XLF), (YU, GAU, XUF)):
        for i in range(0, 8, 2): a('v_pk_fma_f32 v[%d:%d], v[%d:%d], v[%d:%d], v[%d:%d]' % (Y + i, Y + i + 1, Y + i, Y + i + 1, G + i, G + i + 1, X + i, X + i + 1))
    for Y, G in ((YL, G2), (YU, G2U)):
        for i in range(0, 8, 2): a.pk('v_pk_mul_f32', G + i, Y + i, G + i)
    a('s_add_u32 s32, s36, 0x%x' % ZT); a('s_add_u32 s33, s32, 16384'); a('s_add_u32 s34, s36, 0x%x' % X1T); a('s_add_u32 s35, s34, 16384')
    for src, dst, so in ((G2, 80, 32), (G2U, 84, 33), (YL, 88, 34), (YU, 92, 35)):
        for d in range(4): a('v_cvt_pk_bf16_f32 v%d, v%d, v%d' % (dst + d, src + 2 * d, src + 2 * d + 1))
        a('buffer_store_dwordx4 v[%d:%d], v3, s[16:19], s%d offen sc1' % (dst, dst + 3, so))
    a.pk('v_pk_add_f32', 96, YL, YL + 2); a.pk('v_pk_mul_f32', 98, YL, YL)
    for i in range(2, 16, 2):
        if i > 2: a.pk('v_pk_add_f32', 96, 96, YL + i)
        a('v_pk_fma_f32 v[98:99], v[%d:%d], v[%d:%d], v[98:99]' % (YL + i, YL + i + 1, YL + i, YL + i + 1))
    a('v_add_f32 v100, v96, v97'); a('v_add_f32 v101, v98, v99')
    half_sum(a, [100, 101], 102)
    a('s_lshl_b32 s32, s39, 12'); a('s_lshl_b32 s33, s22, 9'); a('s_add_u32 s32, s32, s33'); a('s_lshl_b32 s33, s37, 8'); a('s_add_u32 s32, s32, s33'); a('s_add_u32 s32, s32, 0x%x' % STATS)
    a('v_lshlrev_b32 v8, 3, v1')
    a('s_mov_b32 exec_hi, 0')
    a('buffer_store_dwordx2 v[100:101], v8, s[16:19], s32 offen sc1')
    a('s_mov_b64 exec, -1')
    stamp(a, 12)
    a('s_lshl_b32 s32, s20, 8'); a('s_add_u32 s32, s32, 0x%x' % FLAGB)
    lds_inc(a, CNT + 36)
    arrive(a, 'km_arrB', CNT, 4, 32, 32)
    stamp(a, 9)
    a('s_setprio 0')
    a('s_branch km_C')
    a.role('km_q0tail')
    a('v_subrev_u32 v9, 1024, v5'); a('v_cndmask_b32 v5, v5, v9, s[42:43]')
    lds_spin(a, 'km_spinY', CNT + 32, 4)
    a('s_cmp_lg_u32 s27, 0'); a('s_cbranch_scc1 km_q0back')
    for i in range(4):
        a('s_add_u32 s32, s25, %d' % i); a('s_and_b32 s32, s32, 15'); a('s_lshl_b32 s32, s32, 6'); a('v_add_u32 v9, s32, v5')
        for h in range(2): a('ds_read_b128 v[%d:%d], v9 offset:%d' % (128 + 8 * i + 4 * h, 131 + 8 * i + 4 * h, 32 * h))
    a('v_mov_b32 v13, 0')
    for j in range(8):
        a('s_waitcnt lgkmcnt(%d)' % (7 - j)); a.mfma(AY, A2 + 4 * j, 128 + 4 * j, j == 0)
        for d in range(4): a('v_dot2c_f32_bf16 v13, v%d, v15' % (128 + 4 * j + d))
    a('s_nop 2')
    a('s_mov_b64 exec, s[42:43]')
    a('v_add_f32 v14, v14, v13')
    for r in range(0, 16, 2): a.pk('v_pk_add_f32', AP + r, AP + r, AY + r)
    a('s_lshl_b64 exec, s[42:43], 1')
    for k in range(4): a('ds_write_b128 v11, v[%d:%d] offset:%d' % (AY + 4 * k, AY + 4 * k + 3, 16384 - 16 + 1024 * k))
    a('ds_write_b32 v12, v13 offset:1020')
    a('s_mov_b64 exec, -1')
    a('s_branch km_q0back')
    a.role('km_csb')
    NST = 16 >> lg
    a('v_bfe_u32 v10, v1, 4, 1'); a('v_mul_u32_u24 v10, %d, v10' % WU)
    a('v_bfe_u32 v11, v1, 2, 2'); a('v_lshl_add_u32 v11, v4, 3, v11'); a('v_mul_u32_u24 v11, 224, v11'); a('v_add_u32 v10, v10, v11')
    a('v_and_b32 v11, 1, v1'); a('v_lshl_add_u32 v10, v11, 4, v10'); a('v_bfe_u32 v12, v1, 1, 1'); a('v_lshl_add_u32 v10, v12, 3, v10')
    a('s_lshl_b32 s32, s26, 5'); a('v_add_u32 v10, s32, v10')
    a('v_lshlrev_b32 v11, 10, v11'); a('v_lshl_add_u32 v11, v4, 4, v11'); a('v_add_u32 v11, %d, v11' % G2H)
    a('s_lshl_b32 s33, s20, 5'); a('s_add_u32 s33, s33, s21'); a('s_lshl_b32 s34, s33, 2'); a('s_add_u32 s34, s34, 0x%x' % FLAGS)
    a('s_lshl_b32 s33, s33, 11'); a('s_lshl_b32 s32, s26, 8'); a('s_add_u32 s33, s33, s32'); a('s_add_u32 s33, s33, 0x%x' % CSP)
    a('v_and_b32 v13, 1, v1'); a('v_lshlrev_b32 v13, 7, v13'); a('v_lshl_add_u32 v13, v4, 6, v13'); a('v_bfe_u32 v12, v1, 1, 2'); a('v_lshl_add_u32 v13, v12, 4, v13')
    lds_spin(a, 'km_spinR2', CNT + 4, 12); lds_spin(a, 'km_spinW', CNT + 16, 2)
    stamp(a, 4)
    for st in range(NST):
        a('s_add_u32 s32, s50, %d' % st); a('s_and_b32 s32, s32, 15'); a('s_lshl_b32 s32, s32, 6'); a('v_add_u32 v12, s32, v11')
        for ks in range(2):
            r = 48 + 24 * (st & 3) + 12 * ks
            a('ds_read_b128 v[%d:%d], v12 offset:%d' % (r, r + 3, 32 * ks))
            for t in range(2):
                for hf in range(2): a('ds_read_b64_tr_b16 v[%d:%d], v10 offset:%d' % (r + 4 + 4 * t + 2 * hf, r + 5 + 4 * t + 2 * hf, st * WSL + (16 * ks + 4 * hf) * 224 + 128 * t), tag='c%d_%d' % (st, ks))
    for st in range(NST):
        for ks in range(2):
            r = 48 + 24 * (st & 3) + 12 * ks
            a.wait_lg('c%d_%d' % (st, ks))
            for t in range(2): a.mfma(16 + 16 * t, r + 4 + 4 * t, r, st == 0 and ks == 0)
    a('v_bfe_u32 v12, v1, 1, 2')
    for k in range(1, 4):
        a('v_cmp_eq_u32 vcc, %d, v12' % k)
        for t in range(2):
            for i in range(4): a('v_cndmask_b32 v%d, v%d, v%d, vcc' % (16 + 16 * t + i, 16 + 16 * t + i, 16 + 16 * t + 4 * k + i))
    a('s_mov_b32 exec_lo, 0xff'); a('s_mov_b32 exec_hi, 0xff')
    for t in range(2): a('buffer_store_dwordx4 v[%d:%d], v13, s[16:19], s33 offen offset:%d sc1' % (16 + 16 * t, 19 + 16 * t, 1024 * t))
    a('s_mov_b64 exec, -1')
    stamp(a, 12)
    a.label('km_C'); a.hist = []
    a('s_add_u32 s49, s49, s26')
    a('v_bfe_u32 v10, v1, 4, 1'); a('v_mul_u32_u24 v10, %d, v10' % WU)
    a('v_bfe_u32 v11, v1, 2, 2'); a('v_lshl_add_u32 v11, v4, 3, v11'); a('v_mul_u32_u24 v11, 224, v11'); a('v_add_u32 v10, v10, v11')
    a('v_and_b32 v11, 1, v1'); a('v_lshl_add_u32 v10, v11, 4, v10'); a('v_bfe_u32 v11, v1, 1, 1'); a('v_lshl_add_u32 v10, v11, 3, v10')
    a('s_lshl_b32 s28, s27, 7'); a('v_add_u32 v12, s28, v10')
    a('s_lshl_b32 s28, s26, 11'); a('s_add_u32 s28, s28, %d' % ZR0); a('v_add_u32 v13, s28, v3')
    a('v_mov_b32 v14, v12'); a('v_mov_b32 v15, v13')
    ACC = 16; WF = [80, 100]; ST = 120
    for r in range(64): a('v_mov_b32 v%d, 0' % (ACC + r))
    a('s_mov_b32 s36, %d' % WSL); a('s_mov_b32 s37, 8192'); a('s_mov_b32 s38, 0')
    a('s_lshl_b32 s39, s26, 9'); a('s_add_u32 s39, s39, %d' % STL); a('v_lshl_add_u32 v5, v6, 4, s39')
    k1c = -2 * 0.7978845608028654 * LOG2E; k2c = k1c * 0.044715
    a('s_mov_b32 s44, %s' % fbits(k2c)); a('s_mov_b32 s46, 0xffff0000')
    a('s_mul_i32 s40, s49, %d' % (112 * 1024)); a('s_mul_i32 s41, s48, 7168'); a('s_add_u32 s40, s40, s41'); a('s_lshl_b32 s41, s27, 12'); a('s_add_u32 s40, s40, s41')
    a('s_add_u32 s40, s40, 0x%x' % ACT)
    a('s_lshr_b32 s41, s49, 2'); a('s_lshl_b32 s41, s41, 8'); a('s_add_u32 s41, s41, 0x%x' % FLAGC)
    a('s_lshl_b32 s42, s27, 11'); a('s_add_u32 s42, s42, %d' % CSX); a('v_lshl_add_u32 v7, v6, 4, s42')
    srd(a, 12, 4, 1792 * 1024); a('s_add_u32 s43, s3, %d' % SIDE_AT)
    a.bar()
    stamp(a, 5); cstamp(a, 3)
    a('s_cmp_eq_u32 s27, 1'); a('s_cbranch_scc1 km_B')
    nb0 = a.nbar
    for grp, NT in (('A', 4), ('B', 3)):
        if grp == 'B': a.role('km_B'); a.nbar = nb0
        def rdz(st, ks): a('ds_read_b128 v[%d:%d], v15 offset:%d' % (WF[st] + 16, WF[st] + 19, 1024 * ks))
        def rdw(st, ks, j):
            r = WF[st] + 4 * j
            for hf in range(2): a('ds_read_b64_tr_b16 v[%d:%d], v14 offset:%d' % (r + 2 * hf, r + 2 * hf + 1, (16 * ks + 4 * hf) * 224 + 32 * j))
        if grp == 'B' and B_PRIO: a('s_setprio %d' % B_PRIO)
        rdz(0, 0)
        for j in range(NT): rdw(0, 0, j)
        a.label('km_loop%s' % grp); a.reg = 'C'
        for st in range(2):
            for j in range(NT):
                a('s_waitcnt lgkmcnt(%d)' % (2 * NT - 2 if j == 0 else 2 * NT - 1))
                a.mfma(ACC + 16 * j, WF[st] + 4 * j, WF[st] + 16)
                if j == 0:
                    if st == 1: a.bar(16)
                    rdz(1 - st, 1 - st)
                rdw(1 - st, 1 - st, j)
                if st == 0 and j == NT - 1: a('v_add_u32 v14, s36, v12'); a('v_add_u32 v15, s37, v13')
                if st == 1 and j == 0:
                    a('s_add_u32 s36, s36, %d' % WSL); a('s_cmp_eq_u32 s36, %d' % ZR0); a('s_cselect_b32 s36, 0, s36')
                if st == 0 and j == 0 and (grp == 'A' or PF_WD == 1):
                    a('s_cmp_eq_u32 s38, s43'); a('s_cbranch_scc1 km_side%s' % grp)
                    a.label('km_back%s' % grp)
                if st == 0 and j == 1 and DEBUG and 'inloop' in EXP:
                    for it, sl in ((4, 13), (8, 14), (12, 1)):
                        a('s_cmp_lg_u32 s38, %d' % it); a('s_cbranch_scc1 km_st%s%d' % (grp, it)); stamp(a, sl); a.label('km_st%s%d' % (grp, it))
                if st == 1 and j == 1:
                    a('s_add_u32 s37, s37, 8192'); a('s_cmp_eq_u32 s37, %d' % (RZ * 8192)); a('s_cselect_b32 s37, 0, s37')
                    a('s_add_u32 s38, s38, 1'); a('s_cmp_lt_u32 s38, 16')
        a('s_cbranch_scc1 km_loop%s' % grp)
        a('s_branch km_post%s' % grp)
        a.role('km_side%s' % grp)
        if grp == 'A':
            arrive(a, 'km_arrS', CNT + 20, 4, 34)
        if PF_WD == 1:
            a('s_lshl_b32 s32, s21, 3'); a('s_add_u32 s32, s32, s3'); a('s_mul_i32 s32, s32, 7168'); a('v_lshlrev_b32 v8, 7, v1')
            a('s_mov_b32 exec_hi, 0xffffff'); a('buffer_load_dword v9, v8, s[12:15], s32 offen'); a('s_mov_b64 exec, -1')
        if grp == 'A' or PF_WD == 1: a('s_branch km_back%s' % grp)
        a.role('km_post%s' % grp)
        a.reg = ''
        stamp(a, 6); cstamp(a, 4)
        a('ds_read_b128 v[120:123], v5')
        for j in range(NT): a('ds_read_b128 v[%d:%d], v7 offset:%d' % (124 + 4 * j, 127 + 4 * j, 512 * j))
        a('v_cmp_gt_u32 vcc, 32, v1'); a('v_mov_b32 v10, %s' % fbits(k1c)); a('v_mov_b32 v11, s44')
        a('s_waitcnt lgkmcnt(%d)' % NT)
        a('v_cndmask_b32 v12, 0, v120, vcc'); a('v_cndmask_b32 v13, 0, v120, vcc'); a('v_cndmask_b32 v14, 0, v121, vcc'); a('v_cndmask_b32 v15, 0, v121, vcc')
        a('s_waitcnt vmcnt(0)')
        a('v_mov_b32 v8, v122'); a('v_mov_b32 v9, v123')
        a('s_waitcnt lgkmcnt(0)')
        if E_PRIO: a('s_setprio %d' % E_PRIO)
        a.bar()
        for j in range(NT): a.mfma(ACC + 16 * j, 124 + 4 * j, 12)
        for j in range(NT):
            g = ACC + 16 * j; u = g + 8; t = 80 + 8 * (j & 1)
            if EPI_PK:
                P = range(0, 8, 2)
                for i in P: a('v_pk_mul_f32 v[%d:%d], v[%d:%d], v[8:9] op_sel_hi:[1,0]' % (g + i, g + i + 1, g + i, g + i + 1))
                for i in P: a.pk('v_pk_mul_f32', t + i, g + i, g + i)
                for i in P: a('v_pk_fma_f32 v[%d:%d], v[%d:%d], v[10:11], v[10:11] op_sel:[0,1,0] op_sel_hi:[1,1,0]' % (t + i, t + i + 1, t + i, t + i + 1))
                for i in P: a.pk('v_pk_mul_f32', t + i, t + i, g + i)
                for i in range(8): a('v_exp_f32 v%d, v%d' % (t + i, t + i))
                for i in P: a.pk('v_pk_mul_f32', u + i, u + i, g + i)
                for i in P: a('v_pk_fma_f32 v[%d:%d], v[%d:%d], v[8:9], v[8:9] op_sel:[0,1,1] op_sel_hi:[1,1,1]' % (t + i, t + i + 1, t + i, t + i + 1))
                for i in range(8): a('v_rcp_f32 v%d, v%d' % (t + i, t + i))
                for i in P: a.pk('v_pk_mul_f32', u + i, u + i, t + i)
            else:
                for i in range(8): a('v_mul_f32 v%d, v8, v%d' % (g + i, g + i))
                for i in range(8): a('v_mul_f32 v%d, v%d, v%d' % (t + i, g + i, g + i))
                for i in range(8): a('v_fma_f32 v%d, v%d, s44, v10' % (t + i, t + i))
                for i in range(8): a('v_mul_f32 v%d, v%d, v%d' % (t + i, t + i, g + i))
                for i in range(8): a('v_exp_f32 v%d, v%d' % (t + i, t + i))
                for i in range(8): a('v_mul_f32 v%d, v%d, v%d' % (u + i, u + i, g + i))
                for i in range(8): a('v_fma_f32 v%d, v%d, v9, v9' % (t + i, t + i))
                for i in range(8): a('v_rcp_f32 v%d, v%d' % (t + i, t + i))
                for i in range(8): a('v_mul_f32 v%d, v%d, v%d' % (u + i, u + i, t + i))
            for d in range(4): a('v_cvt_pk_bf16_f32 v%d, v%d, v%d' % (g + d, u + 2 * d, u + 2 * d + 1))
            a('buffer_store_dwordx4 v[%d:%d], v3, s[16:19], s40 offen offset:%d sc1' % (g, g + 3, 1024 * j))
        stamp(a, 7)
        if D_START == 'iss': lds_inc(a, CNT + 40)
        arrive(a, 'km_arrC%s' % grp, CNT + 8, 8, 41, 16)
        stamp(a, 8)
        if grp == 'A': a('s_branch km_D')
    a.label('km_D'); a.hist = []
    if E_PRIO: a('s_setprio 0')
    dmap()
    a('s_load_dwordx2 s[8:9], s[0:1], 88')
    a('s_and_b32 s27, s3, 1'); a('s_lshr_b32 s28, s3, 1'); a('s_add_u32 s53, s53, s27')
    a('v_bfe_u32 v14, v1, 2, 2'); a('v_lshl_add_u32 v14, v4, 3, v14'); a('v_lshlrev_b32 v14, 7, v14')
    a('v_bfe_u32 v15, v1, 4, 1'); a('v_lshl_add_u32 v14, v15, 5, v14'); a('v_and_b32 v15, 1, v1'); a('v_lshl_add_u32 v14, v15, 4, v14')
    a('v_bfe_u32 v15, v1, 1, 1'); a('v_lshl_add_u32 v14, v15, 3, v14'); a('v_bfe_u32 v15, v1, 3, 1'); a('v_lshl_add_u32 v14, v15, 6, v14')
    a('s_lshl_b32 s29, s28, 5'); a('v_xor_b32 v14, s29, v14'); a('v_xor_b32 v15, 64, v14')
    a('s_lshl_b32 s29, s28, 15'); a('v_add_u32 v14, s29, v14'); a('v_add_u32 v15, s29, v15')
    a('s_mul_i32 s30, s53, %d' % (112 * 1024)); a('s_mul_i32 s31, s28, %d' % (28 * 1024)); a('s_add_u32 s30, s30, s31'); a('s_add_u32 s30, s30, 0x%x' % ACT)
    for g in range(7):
        a('s_lshl_b32 s%d, s54, 12' % (33 + g)); a('s_add_u32 s%d, s%d, s30' % (33 + g, 33 + g)); a('s_add_u32 s54, s54, 1'); a('s_cmp_eq_u32 s54, 7'); a('s_cselect_b32 s54, 0, s54')
    a('s_lshr_b32 s32, s53, 2'); a('s_lshl_b32 s32, s32, 8'); a('s_add_u32 s32, s32, 0x%x' % (FLAGC + 128))
    AD = [16, 32]; AF = 48; NR = 16; WD = [112, 120, 128, 136]; X1R = 144; GBR = 152; XA = 12
    a('s_lshl_b32 s44, s52, 3'); a('s_lshl_b32 s45, s28, 1'); a('s_add_u32 s44, s44, s45'); a('v_add_u32 v11, s44, v4')
    a('s_and_b32 s47, s53, 31'); token_of(a, 5, 8, 47); a('s_cmp_ge_u32 s53, 32'); mirror_if(a, 5, 8, 9)
    a('v_lshlrev_b32 v5, 10, v5'); a('v_lshl_add_u32 v5, v11, 4, v5')
    a('v_lshlrev_b32 v8, 4, v11'); a('v_add_u32 v8, %d, v8' % GBH)
    a('ds_read_b128 v[%d:%d], v8' % (GBR, GBR + 3))
    a('v_sub_u32 v9, 95, v11'); a('v_cmp_gt_u32 vcc, 32, v11'); a('v_cndmask_b32 v9, v9, v11, vcc')
    a('v_lshlrev_b32 v9, 9, v9'); a('v_lshl_add_u32 v%d, v6, 4, v9' % XA)
    a('v_sub_u32 v9, 64, v11'); a('v_and_b32 v9, 31, v9'); a('v_add_u32 v9, 32, v9'); a('v_lshlrev_b32 v9, 9, v9'); a('v_lshl_add_u32 v%d, v6, 4, v9' % (XA + 1))
    a('s_lshl_b32 s45, s53, 15'); a('s_add_u32 s45, s45, 0x%x' % X1T)
    a('s_mul_i32 s31, s52, 3584'); a('s_add_u32 s31, s31, s30'); a('v_min_u32 v7, 27, v1'); a('v_lshlrev_b32 v7, 7, v7')
    a('s_waitcnt lgkmcnt(0)')
    srd(a, 40, 8, 2048 * 1024)
    def act_load(n):
        r = AF + 4 * (n % NR)
        a('buffer_load_dwordx4 v[%d:%d], v3, s[16:19], s%d offen offset:%d sc1' % (r, r + 3, 33 + n // 4, 1024 * (n & 3)), tag='a%d' % n)
    def wd_read(n):
        for t in range(2):
            for hf in range(2):
                r = WD[n & 3] + 4 * t + 2 * hf
                a('ds_read_b64_tr_b16 v[%d:%d], v%d offset:%d' % (r, r + 1, 14 + t, (16 * (n & 15) + 4 * hf) * 128), tag='w%d' % n)
    a.bar()
    stamp(a, 2)
    a('s_cmp_lg_u32 s3, 0'); a('s_cbranch_scc1 km_d_w')
    poll(a, 'km_pollC', 32, 1)
    lds_inc(a, CNT + 28)
    a('s_branch km_d_go')
    a.label('km_d_w')
    lds_spin(a, 'km_spinH', CNT + 28, 1)
    a.label('km_d_go')
    stamp(a, 9)
    a.reg = 'D'
    act_load(0); act_load(1)
    if A_TOUCH: a('buffer_load_dword v10, v7, s[16:19], s31 offen sc1')
    for k in range(3): wd_read(k)
    nxt = 2
    while nxt < D_INIT: act_load(nxt); nxt += 1
    xdone = False
    for n in range(28):
        if n in (4, 8, 12, 20):
            a.bar()
            if 'cyc' not in EXP: stamp(a, {4: 3, 8: 4, 12: 12, 20: 13}[n])
        if n + 3 < 28: wd_read(n + 3)
        if 'Dnoload' not in EXP: a.wait_vm('a%d' % n)
        a.wait_lg('w%d' % n)
        for t in range(2):
            a.mfma(AD[t], WD[n & 3] + 4 * t, AF + 4 * (n % NR), n == 0)
            if nxt < 28 and nxt < n + D_AHEAD + t: act_load(nxt); nxt += 1
        if nxt == 28 and not xdone:
            xdone = True
            a('buffer_load_dwordx4 v[%d:%d], v%d, s[16:19], s45 offen sc1' % (X1R, X1R + 3, XA))
            a('buffer_load_ushort v%d, v%d, s[16:19], s45 offen sc1' % (X1R + 4, XA + 1))
    a.reg = ''
    stamp(a, 10)
    def slot(dst, src):
        a('s_and_b32 s34, s%d, 3' % src); a('s_mul_i32 s35, s34, 6144'); a('s_add_u32 s35, s35, 131072'); a('s_lshl_b32 s34, s34, 15'); a('s_add_u32 s34, s34, 24576')
        a('s_cmp_lt_u32 s%d, 4' % src); a('s_cselect_b32 s34, s35, s34'); a('v_add_u32 v%d, s34, v3' % dst)
    for k in range(1, 4):
        a('s_xor_b32 s33, s3, %d' % (2 * k)); slot(7 + k, 33)
    for k in range(1, 4):
        for hf in range(2): a('ds_write_b128 v%d, v[%d:%d] offset:%d' % (7 + k, 16 + 8 * k + 4 * hf, 19 + 8 * k + 4 * hf, 2048 * (k - 1) + 1024 * hf))
    X = 64; GF = 72
    a('s_waitcnt vmcnt(0)')
    unpack(a, GF, GBR, 4, 46)
    a('s_cmp_ge_u32 s52, 4'); a('s_cbranch_scc1 km_up')
    unpack(a, X, X1R, 4, 46)
    a('s_branch km_fin')
    a.label('km_up')
    unpack_rev(a, X, X1R, X1R + 4, 46)
    a.label('km_fin')
    slot(9, 3)
    a('s_waitcnt lgkmcnt(0)'); a('s_barrier')
    for k in range(6): a('ds_read_b128 v[%d:%d], v9 offset:%d' % (80 + 4 * k, 83 + 4 * k, 1024 * k))
    for k in range(3):
        a('s_waitcnt lgkmcnt(%d)' % (4 - 2 * k))
        for i in range(0, 8, 2): a.pk('v_pk_add_f32', 16 + i, 16 + i, 80 + 8 * k + i)
    for r in range(8): a('v_fmac_f32 v%d, v%d, v%d' % (X + r, GF + r, 16 + r))
    for d in range(4): a('v_cvt_pk_bf16_f32 v%d, v%d, v%d' % (104 + d, X + 2 * d, X + 1 + 2 * d))
    a('buffer_store_dwordx4 v[104:107], v5, s[40:43], 0 offen')
    stamp(a, 11)
    assert nbar_h == 3 + 17 + 1 + 5, nbar_h
    assert a.nbar == nbar_h, (nbar_h, a.nbar)
    finish(a, name, 1)
    return name, a.text() + kernel_desc(name, 168, 100), (256, 768, LDS_TOTAL)

HEADER = open('adaLN_cond__spectral_fnet__geglu_ffn__prompt.s.ref').read().split('; Override launch')[0]
def all_kernels(): return [kA(), kM()]
GROUPS = {}
def build(kernels):
    hdr = HEADER
    body = '.amdgcn_target "amdgcn-amd-amdhsa--gfx950"\n.text\n'
    for name, text, (g, b, lds) in kernels:
        hdr += '; @launch kernel=%s grid=(%d,1,1) block=(%d,1,1) lds=%d\n' % (name, g, b, lds)
        body += text
    return hdr + body

if __name__ == '__main__':
    if len(sys.argv) > 2 and sys.argv[2] == 'debug': DEBUG = True
    for idx in range(512): assert (idx * 4682) >> 16 == idx // 14
    out = sys.argv[1] if len(sys.argv) > 1 else 'adaLN_cond__spectral_fnet__geglu_ffn__prompt.s'
    open(out, 'w').write(build(all_kernels()))
    print('wrote', out)
```

```python
import sys, struct
from asmlib import Asm, kernel_desc

PART = 0x000000
FLAGB= 0x010000
FLAGC= 0x010800
FLAGS= 0x011800
REGX = 0x011C00
FB2  = 0x012000
FC2  = 0x012400
CSG  = 0x080000
STATS= 0x020000
ZB   = 0x100000
X1T  = 0x300000
ZT   = 0x500000
ACT  = 0x700000
WSZ  = 0x1000000
STAMP = 0xE00000
DEBUG = False
EXP = set()
K4_MAP = '8x4'; K4_ROT = True; K5_ROT = True
PF_CODE = True; PF_W = 128; PF_WD = 2
ZST = ''
SPIN = 1 << 15
PSLEEP = 2
LSLEEP = 1
H_PRIO = 3
W_THR = 35
Z_TOUCH = 0
A_TOUCH = 0
PF_MODE = 'km'
TOUCH_AT = 0
SIDE_AT = 1
W_START = 'early'
FORCE_SLOW = 0
D_PRIO = 0
B_PRIO = 0
D_AHEAD = 10
D_INIT = 4
Z_INIT = 4
TAIL_B = 9
W_STASH = 0
W_MORE = 1
GATHER = 'w'
ZPF = 1
LD = 'sc1'
KA_W = 0
KM_W = 0
WD_FROM = 20
FB_ROT = 1
SELF_T = 0
PRE_Z = 0
PRE_A = 0
W_NT = ''
EPI_PK = 0
KA_BAR = 7
KA_GLATE = 1
PAD = 6000
PADEV = 0
PADW = 4
E_PRIO = 2
WD_MALL = 1
KA_MALL = 0
D_START = ''
LOG2E = 1.4426950408889634

class XAsm(Asm):
    def __init__(self): super().__init__(); self.nbar = 0; self.reg = ''
    def __call__(self, text, tag=None):
        t = text.strip()
        if self.reg:
            if (self.reg + 'nomfma') in EXP and t.startswith('v_mfma'): return
            if (self.reg + 'nods') in EXP and t.startswith('ds_read'): return
            if (self.reg + 'noload') in EXP and t.startswith('buffer_load'): return
            if (self.reg + 'plain') in EXP and t.startswith('buffer_load'): text = text.replace(' sc1', '')
            if (self.reg + 'novalu') in EXP and t.startswith(('v_mul', 'v_cvt', 'v_dot')): return
        super().__call__(text, tag)
    def pk(self, op, d, x, y, extra=''): self('%s v[%d:%d], v[%d:%d], v[%d:%d]%s' % (op, d, d + 1, x, x + 1, y, y + 1, extra))
    def mfma(self, acc, A, B, first=False):
        self('v_mfma_f32_32x32x16_bf16 v[%d:%d], v[%d:%d], v[%d:%d], %s' % (acc, acc + 15, A, A + 3, B, B + 3, '0' if first else 'v[%d:%d]' % (acc, acc + 15)))
    def bar(self, n=1): self('s_barrier'); self.nbar += n
    def role(self, l): self.label(l); self.hist = []

def fbits(f): return '0x%08x' % struct.unpack('<I', struct.pack('<f', f))[0]
def stamp(a, i):
    if 'lite' in EXP and i not in (0, 15): return
    if DEBUG and not ('bst' in EXP and getattr(a, 'inD', False) and i not in (10, 11, 15)): a('s_memrealtime s[%d:%d]' % (64 + 2 * i, 65 + 2 * i))
def cstamp(a, i):
    if DEBUG and 'cyc' in EXP: a('s_memtime s[%d:%d]' % (64 + 2 * i, 65 + 2 * i))
def finish(a, name, kidx, vbase=4):
    a.label(name + '_end')
    if 'padev' in EXP:
        a.hist = []
        a('s_cmp_lg_u32 s2, 37'); a('s_cbranch_scc1 %s_exit' % name); a('s_cmp_lg_u32 s3, %d' % (0 if kidx == 0 else PADW)); a('s_cbranch_scc1 %s_exit' % name)
        a('s_mov_b64 exec, 1'); a('v_mov_b32 v8, 0'); a('s_mov_b32 s62, 0x1f000'); a('s_waitcnt lgkmcnt(0)')
        if kidx == 1:
            a('s_waitcnt vmcnt(0)'); a('s_memrealtime s[94:95]'); a('s_waitcnt lgkmcnt(0)')
            a('s_mov_b32 s63, s%d' % (64 + 2 * PADEV)); a('s_mov_b32 s61, 0')
            a.label('km_padloop2')
            a('s_memrealtime s[58:59]'); a('s_waitcnt lgkmcnt(0)'); a('s_sub_u32 s60, s58, s63'); a('s_cmp_ge_u32 s60, 4000'); a('s_cbranch_scc1 %s_exit' % name)
            a('s_add_u32 s61, s61, 1'); a('s_cmp_lt_u32 s61, 100000'); a('s_cbranch_scc1 km_padloop2')
        a('s_branch %s_exit' % name)
    if 'pad' in EXP:
        a.hist = []
        a('s_cmp_lg_u32 s2, 0'); a('s_cbranch_scc1 %s_exit' % name); a('s_cmp_lg_u32 s3, 0'); a('s_cbranch_scc1 %s_exit' % name)
        a('s_mov_b64 exec, 1'); a('v_mov_b32 v8, 0'); a('s_mov_b32 s62, 0x1f000')
        if kidx == 0:
            a('s_waitcnt lgkmcnt(0)'); a('v_mov_b32 v9, s64'); a('buffer_store_dword v9, v8, s[16:19], s62 offen')
        else:
            a('buffer_load_dword v9, v8, s[16:19], s62 offen'); a('s_waitcnt vmcnt(0)'); a('v_readfirstlane_b32 s63, v9'); a('s_mov_b32 s61, 0')
            a.label('km_padloop')
            a('s_memrealtime s[64:65]'); a('s_waitcnt lgkmcnt(0)'); a('s_sub_u32 s66, s64, s63'); a('s_cmp_ge_u32 s66, %d' % PAD); a('s_cbranch_scc1 %s_exit' % name)
            a('s_add_u32 s61, s61, 1'); a('s_cmp_lt_u32 s61, 100000'); a('s_cbranch_scc1 km_padloop')
    if DEBUG:
        a.hist = []
        a('s_waitcnt vmcnt(0)')
        stamp(a, 15)
        a('s_waitcnt lgkmcnt(0)'); a('s_mov_b64 exec, 1')
        for i in range(16): a('v_mov_b32 v%d, s%d' % (vbase + i, 64 + 2 * i))
        a('s_lshl_b32 s60, s2, 4'); a('s_add_u32 s60, s60, s3'); a('s_lshl_b32 s60, s60, 6'); a('s_add_u32 s60, s60, 0x%x' % (STAMP + kidx * 0x80000))
        a('v_mov_b32 v%d, 0' % (vbase + 16))
        for i in range(4): a('buffer_store_dwordx4 v[%d:%d], v%d, s[16:19], s60 offen offset:%d' % (vbase + 4 * i, vbase + 4 * i + 3, vbase + 16, 16 * i))
        if 'dbgout' in EXP:
            a('s_cmp_lg_u32 s2, 37'); a('s_cbranch_scc1 %s_exit' % name)
            a('s_load_dwordx2 s[56:57], s[0:1], 96'); a('s_waitcnt lgkmcnt(0)')
            if kidx == 0: a('s_add_u32 s56, s56, 512'); a('s_addc_u32 s57, s57, 0')
            a('s_mov_b32 s58, 256'); a('s_mov_b32 s59, 0x20000')
            sel = {0: {0: [(0, 0), (3, 1), (4, 2), (15, 3)]}, 1: {4: [(0, 4), (14, 5), (12, 6), (5, 7), (6, 8), (7, 9), (8, 10), (9, 11), (10, 12), (15, 13)], 10: [(2, 14), (7, 15)]}}[kidx]
            for w, lst in sel.items():
                a('s_cmp_lg_u32 s3, %d' % w); a('s_cbranch_scc1 %s_dn%d' % (name, w))
                for st, pos in lst: a('buffer_store_dword v%d, v%d, s[56:59], 0 offen offset:%d' % (vbase + st, vbase + 16, 4 * pos))
                a.label('%s_dn%d' % (name, w))
    a.label(name + '_exit')
    a('s_endpgm')
def srd(a, d, lo, size):
    a('s_mov_b32 s%d, s%d' % (d, lo)); a('s_mov_b32 s%d, s%d' % (d + 1, lo + 1))
    a('s_mov_b32 s%d, 0x%x' % (d + 2, size)); a('s_mov_b32 s%d, 0x20000' % (d + 3))
def head(a, name, nwg):
    a.raw('.p2align 8'); a.raw('.globl %s' % name); a.raw('.type %s,@function' % name); a.label(name)
    a('s_cmp_ge_u32 s2, %d' % nwg); a('s_cbranch_scc1 %s_exit' % name)
    if DEBUG:
        for i in range(16): a('s_mov_b32 s%d, 0' % (64 + 2 * i))
    stamp(a, 0)
    if 'pad' in EXP: a('s_memrealtime s[64:65]')
def ids(a):
    a('v_and_b32 v1, 63, v0'); a('v_lshrrev_b32 v2, 6, v0'); a('v_readfirstlane_b32 s3, v2'); a('v_lshlrev_b32 v3, 4, v1')
    a('v_lshrrev_b32 v4, 5, v1'); a('v_and_b32 v6, 31, v1')
    a('s_and_b32 s20, s2, 7'); a('s_lshr_b32 s21, s2, 3'); a('s_and_b32 s26, s3, 3')
def swap23_v(a, dst, src, t0):
    a('v_and_b32 v%d, 0x13, v%d' % (dst, src))
    a('v_and_b32 v%d, 4, v%d' % (t0, src)); a('v_lshl_or_b32 v%d, v%d, 1, v%d' % (dst, t0, dst))
    a('v_and_b32 v%d, 8, v%d' % (t0, src)); a('v_lshrrev_b32 v%d, 1, v%d' % (t0, t0)); a('v_or_b32 v%d, v%d, v%d' % (dst, dst, t0))
def half_sum(a, regs, tmp, op='v_permlane32_swap_b32'):
    for i, r in enumerate(regs): a('v_mov_b32 v%d, v%d' % (tmp + i, r))
    for i, r in enumerate(regs): a('%s v%d, v%d' % (op, tmp + i, r))
    for i, r in enumerate(regs): a('v_add_f32 v%d, v%d, v%d' % (r, r, tmp + i))
def unpack(a, dst, src, n, mask):
    for d in range(n):
        a('v_lshlrev_b32 v%d, 16, v%d' % (dst + 2 * d, src + d)); a('v_and_b32 v%d, s%d, v%d' % (dst + 2 * d + 1, mask, src + d))
def unpack_rev(a, dst, src, extra, mask):
    a('v_lshlrev_b32 v%d, 16, v%d' % (dst, extra))
    for i in range(1, 8):
        el = 8 - i
        if el & 1: a('v_and_b32 v%d, s%d, v%d' % (dst + i, mask, src + el // 2))
        else: a('v_lshlrev_b32 v%d, 16, v%d' % (dst + i, src + el // 2))
def token_of(a, dst, tmp, sq):
    a('v_lshlrev_b32 v%d, 6, v6' % dst); a('v_add_u32 v%d, s%d, v%d' % (dst, sq, dst))
    a('v_subrev_u32 v%d, 992, v%d' % (tmp, dst)); a('v_cmp_lt_u32 vcc, 15, v6'); a('s_cmp_eq_u32 s%d, 0' % sq); a('s_cselect_b64 vcc, vcc, 0')
    a('v_cndmask_b32 v%d, v%d, v%d, vcc' % (dst, dst, tmp))
def mirror_if(a, dst, t0, t1):
    a('s_cselect_b64 s[58:59], -1, 0')
    a('v_sub_u32 v%d, 2048, v%d' % (t0, dst)); a('v_cmp_eq_u32 vcc, 0, v%d' % dst); a('v_mov_b32 v%d, 1024' % t1); a('v_cndmask_b32 v%d, v%d, v%d, vcc' % (t0, t0, t1))
    a('v_cndmask_b32 v%d, v%d, v%d, s[58:59]' % (dst, dst, t0))


def w_rows_touch(a, u, first, nst, wsel, srd0, vdst):
    for k in range(nst):
        a('s_lshl_b32 s46, s20, 1'); a('s_add_u32 s46, s46, s%d' % wsel); a('s_add_u32 s46, s46, %d' % (first + k * u)); a('s_and_b32 s46, s46, 15')
        a('s_lshl_b32 s46, s46, 5'); a('s_add_u32 s46, s46, s21')
        a('s_sub_u32 s47, 768, s46'); a('s_cmp_eq_u32 s46, 256'); a('s_cselect_b32 s47, 256, s47'); a('s_cmp_lt_u32 s46, 256'); a('s_cselect_b32 s46, s46, s47')
        a('s_mul_i32 s46, s46, 3584')
        for m in range(2): a('buffer_load_dword v%d, v%d, s[%d:%d], s46 offen' % (vdst, vdst + 1, srd0 + 4 * m, srd0 + 4 * m + 3))

XP = 1040
def kA():
    a = XAsm(); name = 'ka_lnfft_kernel'
    SA = 64 * XP; GP = SA + 512
    head(a, name, 256)
    a('s_load_dwordx2 s[6:7], s[0:1], 104'); a('s_load_dwordx2 s[4:5], s[0:1], 0'); a('s_load_dwordx4 s[8:11], s[0:1], 72'); a('s_load_dwordx4 s[40:43], s[0:1], 48')
    ids(a)
    KC = GP + 4096
    a('v_mov_b32 v8, %d' % KC); a('v_mov_b32 v10, 0'); a('v_mov_b32 v11, 0'); a('ds_write_b64 v8, v[10:11]')
    a('s_cmp_ge_u32 s3, 8'); a('s_cbranch_scc1 ka_gemv')
    a('s_lshr_b32 s23, s21, 3'); a('s_lshl_b32 s22, s20, 2'); a('s_add_u32 s23, s23, s22')
    a('s_and_b32 s24, s21, 7')
    a('s_lshl_b32 s25, s3, 18'); a('s_lshl_b32 s27, s23, 10'); a('s_add_u32 s25, s25, s27')
    a('s_mul_i32 s28, s3, %d' % (8 * XP)); a('s_mov_b32 s27, s24')
    a('v_and_b32 v12, 7, v1'); a('v_mul_u32_u24 v13, %d, v12' % XP); a('v_lshrrev_b32 v14, 3, v1'); a('v_lshl_add_u32 v13, v14, 7, v13'); a('v_add_u32 v13, s28, v13')
    a('s_waitcnt lgkmcnt(0)')
    srd(a, 12, 4, 2048 * 1024); srd(a, 16, 6, WSZ)
    stamp(a, 1)
    for i in range(8):
        a('s_mul_i32 s31, s27, %d' % XP); a('s_add_u32 m0, s31, s28'); a('s_lshl_b32 s32, s27, 15'); a('s_add_u32 s32, s32, s25')
        a('buffer_load_dwordx4 v3, s[12:15], s32 offen lds')
        if i == KA_BAR: a('s_barrier')
        if i < 7: a('s_add_u32 s27, s27, 1'); a('s_and_b32 s27, s27, 7')
    stamp(a, 2)
    if KA_MALL:
        a('s_sub_u32 s46, s3, 4'); a('s_cmp_ge_u32 s46, 3'); a('s_cbranch_scc1 ka_nm')
        a('s_lshl_b32 s46, s46, 3'); a('s_add_u32 s46, s46, 48'); a('s_load_dwordx2 s[52:53], s[0:1], s46')
        a('s_mov_b32 s54, %d' % (512 * 3584)); a('s_mov_b32 s55, 0x20000'); a('s_mul_i32 s46, s2, 7168'); a('v_min_u32 v8, 27, v1'); a('v_lshlrev_b32 v8, 8, v8')
        a('s_waitcnt lgkmcnt(0)')
        a('buffer_load_dword v160, v8, s[52:55], s46 offen')
        a.label('ka_nm')
    a('s_lshl_b32 s31, s3, 3'); a('v_add_u32 v17, s31, v12'); a('v_lshlrev_b32 v18, 1, v17'); a('v_lshlrev_b32 v17, 2, v17')
    a('v_add_u32 v17, %d, v17' % SA); a('v_add_u32 v18, %d, v18' % SA)
    for r in range(24, 32): a('v_mov_b32 v%d, 0' % r)
    a('v_mov_b32 v21, 0'); a('v_mov_b32 v22, 0x3f803f80'); a('s_mov_b32 s36, 0xffff0000')
    BF = 32
    a('s_cmp_ge_u32 s3, 4'); a('s_cbranch_scc1 ka_nogen')
    a('s_and_b32 s29, s3, 1'); a('s_lshr_b32 s30, s3, 1')
    a('s_lshl_b32 s31, s29, 5'); a('v_add_u32 v7, s31, v6')
    a('v_lshrrev_b32 v8, 1, v7'); a('v_cmp_eq_u32 vcc, 1, v7'); a('v_cndmask_b32 v8, v8, 32, vcc')
    a('v_and_b32 v9, 1, v7'); a('v_cndmask_b32 v9, v9, 0, vcc'); a('v_cvt_f32_u32 v9, v9'); a('v_mul_f32 v9, %s, v9' % fbits(-0.25))
    a('v_cvt_f32_u32 v8, v8'); a('v_mul_f32 v8, %s, v8' % fbits(1 / 64))
    a('v_lshlrev_b32 v10, 3, v4'); a('v_cvt_f32_u32 v10, v10')
    a('v_fma_f32 v%d, v8, v10, v9' % BF); a('v_mul_f32 v11, %s, v8' % fbits(16.0))
    for i in range(1, 8): a('v_add_f32 v%d, v%d, v8' % (BF + i, BF + i - 1))
    for k in range(8, 32): a('v_add_f32 v%d, v%d, v11' % (BF + k, BF + k - 8))
    for k in range(32): a('v_cos_f32 v%d, v%d' % (BF + k, BF + k))
    a('v_bfe_u32 v15, v1, 2, 2'); a('v_lshl_add_u32 v15, v4, 3, v15'); a('v_mul_u32_u24 v15, %d, v15' % XP)
    a('v_and_b32 v16, 1, v1'); a('v_lshl_add_u32 v15, v16, 5, v15'); a('v_bfe_u32 v16, v1, 4, 1'); a('v_lshl_add_u32 v15, v16, 4, v15')
    a('v_bfe_u32 v16, v1, 1, 1'); a('v_lshl_add_u32 v15, v16, 3, v15')
    a('s_lshl_b32 s31, s24, 7'); a('s_lshl_b32 s32, s30, 6'); a('s_add_u32 s31, s31, s32'); a('v_add_u32 v15, s31, v15')
    a('v_lshlrev_b32 v19, 5, v4'); a('v_add_u32 v19, %d, v19' % SA); a('v_lshlrev_b32 v20, 4, v4'); a('v_add_u32 v20, %d, v20' % SA)
    a('v_lshlrev_b32 v21, 6, v7'); a('v_lshl_add_u32 v21, v4, 5, v21')
    a('s_lshl_b32 s33, s24, 1'); a('s_add_u32 s33, s33, s30'); a('s_lshl_b32 s33, s33, 17'); a('s_lshl_b32 s34, s23, 12'); a('s_add_u32 s33, s33, s34'); a('s_add_u32 s33, s33, 0x%x' % ZB)
    a.label('ka_nogen')
    if KA_MALL:
        a('s_sub_u32 s46, s3, 4'); a('s_cmp_ge_u32 s46, 3'); a('s_cbranch_scc1 ka_w0')
        a('s_waitcnt vmcnt(1)'); a('s_branch ka_w1')
        a.label('ka_w0')
    a('s_waitcnt vmcnt(0)')
    a.label('ka_w1')
    stamp(a, 3)
    if KA_W:
        a('s_cmp_ge_u32 s3, %d' % KA_W); a('s_cbranch_scc1 ka_now')
        srd(a, 48, 40, 512 * 3584); srd(a, 52, 42, 512 * 3584)
        a('v_min_u32 v161, 27, v1'); a('v_lshlrev_b32 v161, 7, v161')
        w_rows_touch(a, 8, 0, 1, 3, 48, 160)
        a.label('ka_now')
    XR = 64
    for j in range(8): a('ds_read_b128 v[%d:%d], v13 offset:%d' % (XR + 4 * j, XR + 4 * j + 3, 16 * j))
    for j in range(8):
        a('s_waitcnt lgkmcnt(%d)' % (7 - j))
        for d in range(4):
            a('v_dot2c_f32_bf16 v%d, v%d, v22' % (24 + d, XR + 4 * j + d)); a('v_dot2c_f32_bf16 v%d, v%d, v%d' % (28 + d, XR + 4 * j + d, XR + 4 * j + d))
    a('s_nop 2')
    a('v_add_f32 v24, v24, v25'); a('v_add_f32 v26, v26, v27'); a('v_add_f32 v28, v28, v29'); a('v_add_f32 v30, v30, v31')
    a('v_add_f32 v24, v24, v26'); a('v_add_f32 v25, v28, v30')
    a('v_add_f32_dpp v24, v24, v24 row_ror:8'); a('v_add_f32_dpp v25, v25, v25 row_ror:8')
    half_sum(a, [24, 25], 26, 'v_permlane16_swap_b32'); half_sum(a, [24, 25], 26)
    a('v_mul_f32 v24, %s, v24' % fbits(-1.0 / 512)); a('v_mul_f32 v25, %s, v25' % fbits(1.0 / 512))
    a('v_fma_f32 v25, -v24, v24, v25'); a('v_max_f32 v25, 0, v25'); a('v_add_f32 v25, %s, v25' % fbits(1e-5)); a('v_rsq_f32 v25, v25')
    a('v_cvt_pk_bf16_f32 v26, v24, v24'); a('v_and_b32 v27, s36, v26'); a('v_sub_f32 v27, v24, v27'); a('v_cvt_pk_bf16_f32 v27, v27, v27')
    a('ds_write_b32 v17, v25'); a('ds_write_b16 v18, v26 offset:256'); a('ds_write_b16 v18, v27 offset:384')
    a('s_waitcnt lgkmcnt(0)')
    lds_inc(a, KC)
    a('s_cmp_ge_u32 s3, 4'); a('s_cbranch_scc1 ka_pf')
    lds_spin(a, 'ka_spin', KC, 8)
    stamp(a, 4)
    RR = 64; AF = 96; MF = 112; ACC = 64
    for j in range(4):
        for k in range(2): a('ds_read_b128 v[%d:%d], v19 offset:%d' % (RR + 8 * j + 4 * k, RR + 8 * j + 4 * k + 3, 64 * j + 16 * k), tag='r%d' % j)
    for j in range(4):
        for hf in range(2): a('ds_read_b64_tr_b16 v[%d:%d], v15 offset:%d' % (AF + 4 * j + 2 * hf, AF + 4 * j + 2 * hf + 1, (16 * j + 4 * hf) * XP), tag='a%d' % j)
    for j in range(4):
        a.wait_lg('r%d' % j)
        for i in range(0, 8, 2): a.pk('v_pk_mul_f32', BF + 8 * j + i, BF + 8 * j + i, RR + 8 * j + i)
        for d in range(4): a('v_cvt_pk_bf16_f32 v%d, v%d, v%d' % (BF + 8 * j + d, BF + 8 * j + 2 * d, BF + 8 * j + 2 * d + 1))
        for k in range(2): a('ds_read_b128 v[%d:%d], v20 offset:%d' % (MF + 8 * j + 4 * k, MF + 8 * j + 4 * k + 3, 256 + 128 * k + 32 * j), tag='m%d' % j)
    for j in range(4):
        a.wait_lg('a%d' % j); a.mfma(ACC, AF + 4 * j, BF + 8 * j, j == 0)
    for j in range(4):
        a.wait_lg('m%d' % j); a.mfma(ACC, MF + 8 * j, BF + 8 * j); a.mfma(ACC, MF + 8 * j + 4, BF + 8 * j)
    for d in range(8): a('v_cvt_pk_bf16_f32 v%d, v%d, v%d' % (80 + d, ACC + 2 * d, ACC + 2 * d + 1))
    a('buffer_store_dwordx4 v[80:83], v21, s[16:19], s33 offen %s' % ZST); a('buffer_store_dwordx4 v[84:87], v21, s[16:19], s33 offen offset:16 %s' % ZST)
    stamp(a, 5)
    a('s_branch %s_end' % name)
    a.role('ka_pf')
    if PF_MODE == 'mall':
        a('s_cmp_eq_u32 s26, 3'); a('s_cbranch_scc1 ka_pf2')
        a('s_lshl_b32 s46, s26, 3'); a('s_add_u32 s46, s46, 48'); a('s_load_dwordx2 s[52:53], s[0:1], s46')
        a('s_mov_b32 s54, %d' % (512 * 3584)); a('s_mov_b32 s55, 0x20000'); a('s_mul_i32 s46, s2, 7168'); a('v_lshlrev_b32 v8, 7, v1')
        a('s_waitcnt lgkmcnt(0)')
        a('s_mov_b32 exec_hi, 0xffffff')
        a('buffer_load_dword v10, v8, s[52:55], s46 offen')
        a('s_mov_b64 exec, -1')
        a.label('ka_pf2')
    if PF_CODE:
        a('s_cmp_ge_u32 s21, 2'); a('s_cbranch_scc1 %s_end' % name)
        a('s_getpc_b64 s[40:41]')
        a.label('ka_pc')
        a('s_add_u32 s40, s40, kb_main_kernel-ka_pc'); a('s_addc_u32 s41, s41, 0')
        a('s_mov_b32 s42, kb_main_kernel_exit-kb_main_kernel'); a('s_mov_b32 s43, 0x20000')
        a('s_lshl_b32 s44, s21, 2'); a('s_add_u32 s44, s44, s26'); a('s_lshl_b32 s44, s44, 12')
        a('v_lshlrev_b32 v8, 6, v1')
        a('buffer_load_dword v9, v8, s[40:43], s44 offen')
    a('s_branch %s_end' % name)
    a.role('ka_gemv')
    a('v_and_b32 v5, 255, v0'); a('v_lshrrev_b32 v7, 3, v5'); a('v_and_b32 v8, 7, v5')
    a('s_lshr_b32 s22, s2, 2'); a('s_and_b32 s23, s2, 3')
    a('v_lshlrev_b32 v9, 3, v7'); a('s_lshl_b32 s24, s23, 8')
    a('v_mul_u32_u24 v10, %d, v7' % (4 * 6144)); a('v_lshl_add_u32 v10, v8, 4, v10')
    a('s_mul_i32 s25, s23, %d' % (128 * 6144)); a('s_lshl_b32 s27, s22, 7'); a('s_add_u32 s25, s25, s27')
    a('v_lshrrev_b32 v30, 4, v5'); a('v_lshlrev_b32 v30, 8, v30'); a('v_lshl_add_u32 v30, v8, 5, v30'); a('v_add_u32 v30, %d, v30' % GP)
    a('s_waitcnt lgkmcnt(0)')
    srd(a, 12, 8, 1024); srd(a, 28, 10, 512 * 6144); srd(a, 16, 6, WSZ)
    stamp(a, 1)
    a('s_cmp_lt_u32 s2, 192'); a('s_cbranch_scc1 ka_job')
    a('s_barrier')
    a('s_cmp_lt_u32 s2, 253'); a('s_cbranch_scc1 %s_end' % name)
    for r in range(12, 16): a('v_mov_b32 v%d, 0' % r)
    a('s_sub_u32 s24, s2, 253'); a('s_lshl_b32 s24, s24, 2'); a('s_add_u32 s24, s24, s26'); a('s_lshl_b32 s24, s24, 10'); a('s_add_u32 s24, s24, 0x%x' % FLAGB)
    a('buffer_store_dwordx4 v[12:15], v3, s[16:19], s24 offen')
    a('s_branch %s_end' % name)
    a.role('ka_job')
    a('buffer_load_dwordx2 v[12:13], v9, s[12:15], s24 offen', tag='c')
    if KA_GLATE: a('s_barrier')
    for i in range(4):
        a('buffer_load_dwordx4 v[%d:%d], v10, s[28:31], s25 offen' % (32 + 4 * i, 35 + 4 * i), tag='w%d' % i)
        if i < 3: a('s_add_u32 s25, s25, 6144')
    if not KA_GLATE: a('s_barrier')
    a('s_mov_b32 s36, 0xffff0000'); a('s_mov_b32 s40, 0x05040100'); a('s_mov_b32 s41, 0x07060302')
    for c in range(8): a('v_mov_b32 v%d, 0' % (64 + c))
    a.wait_vm('c')
    stamp(a, 2)
    unpack(a, 16, 12, 2, 36)
    for i in range(4): a('v_mul_f32 v%d, %s, v%d' % (20 + i, fbits(-LOG2E), 16 + i))
    for i in range(4): a('v_exp_f32 v%d, v%d' % (20 + i, 20 + i))
    for i in range(4): a('v_add_f32 v%d, 1.0, v%d' % (20 + i, 20 + i))
    for i in range(4): a('v_rcp_f32 v%d, v%d' % (20 + i, 20 + i))
    for i in range(4): a('v_mul_f32 v%d, v%d, v%d' % (20 + i, 20 + i, 16 + i))
    for d in range(2): a('v_cvt_pk_bf16_f32 v%d, v%d, v%d' % (12 + d, 20 + 2 * d, 21 + 2 * d))
    for ip in range(2):
        a.wait_vm('w%d' % (2 * ip + 1))
        r0 = 32 + 8 * ip; r1 = r0 + 4
        for d in range(4):
            a('v_perm_b32 v%d, v%d, v%d, s40' % (48 + 2 * d, r1 + d, r0 + d)); a('v_perm_b32 v%d, v%d, v%d, s41' % (49 + 2 * d, r1 + d, r0 + d))
        for c in range(8): a('v_dot2c_f32_bf16 v%d, v%d, v%d' % (64 + c, 48 + c, 12 + ip))
        a('s_nop 2')
    for c in range(8): a('v_add_f32_dpp v%d, v%d, v%d row_ror:8' % (64 + c, 64 + c, 64 + c))
    a('ds_write_b128 v30, v[64:67]'); a('ds_write_b128 v30, v[68:71] offset:16')
    a('s_waitcnt lgkmcnt(0)')
    a('v_mov_b32 v8, %d' % (KC + 4)); a('v_mov_b32 v9, 1'); a('s_mov_b64 exec, 1')
    a('ds_add_rtn_u32 v10, v8, v9'); a('s_waitcnt lgkmcnt(0)'); a('v_readfirstlane_b32 s56, v10'); a('s_mov_b64 exec, -1')
    stamp(a, 3)
    a('s_cmp_lg_u32 s56, 3'); a('s_cbranch_scc1 %s_end' % name)
    a('v_lshlrev_b32 v10, 2, v1'); a('v_add_u32 v10, %d, v10' % GP)
    for p in range(8): a('ds_read2st64_b32 v[%d:%d], v10 offset0:%d offset1:%d' % (32 + 2 * p, 33 + 2 * p, 2 * p, 2 * p + 1))
    a('s_lshr_b32 s24, s22, 3')
    a('s_lshl_b32 s25, s22, 6'); a('v_add_u32 v23, s25, v1'); a('v_and_b32 v26, 511, v23')
    a('v_sub_u32 v27, 512, v26'); a('v_and_b32 v27, 255, v27'); a('v_or_b32 v27, 256, v27')
    a('v_cmp_lt_u32 vcc, 255, v26'); a('s_sub_u32 s25, s24, 2'); a('s_cmp_lt_u32 s25, 3'); a('s_cselect_b64 vcc, vcc, 0')
    a('v_cndmask_b32 v27, v26, v27, vcc'); a('v_lshlrev_b32 v27, 2, v27')
    a('s_lshl_b32 s24, s24, 11'); a('s_mul_i32 s25, s23, 12288'); a('s_add_u32 s24, s24, s25')
    a('s_waitcnt lgkmcnt(0)')
    for st in (8, 4, 2, 1):
        for i in range(st): a('v_add_f32 v%d, v%d, v%d' % (32 + i, 32 + i, 32 + st + i))
    a('buffer_store_dword v32, v27, s[16:19], s24 offen %s' % ZST)
    finish(a, name, 0)
    return name, a.text() + kernel_desc(name, 168, 100), (256, 768, GP + 4096 + 64)

def cheb(a, dst, p1, p2, K):
    for i in range(0, 8, 2):
        a('v_pk_fma_f32 v[%d:%d], v[%d:%d], v[%d:%d], v[%d:%d] op_sel_hi:[1,0,1] neg_lo:[0,0,1] neg_hi:[0,0,1]' % (
            dst + i, dst + i + 1, p1 + i, p1 + i + 1, K, K + 1, p2 + i, p2 + i + 1))

PS = 156672; LDS_TOTAL = PS + 7168
G2H = PS; SBH = PS + 1024; GBH = PS + 2048; SAL = PS + 3072; YST = SAL + 1024; CNT = PS + 6656
TB = 74240; NPRE = 9
ZI = TB; B1L = TB + 65536; G1L = B1L + 8192; GAL = G1L + 2048; G2L = GAL + 2048; EXT = G2L + 2048; XEL = EXT + 2048
assert XEL + 512 <= PS and NPRE * 8192 <= TB
XCH = 131072
C_ARRB, C_RED, C_ARRC, C_W1, C_W2, C_GOB, C_GO, C_Y, C_ISS, C_ARRS, C_PROG, C_FULL, C_FREE, C_XW, C_XR = [CNT + o for o in (0, 4, 8, 16, 20, 24, 40, 32, 36, 28, 48, 64, 80, 96, 104)]
C_HOLD = CNT + 108; HOLD = 0; PASS2 = 0; PRIO_EA = 3; Q0_DRY = 0; C_FREEB = CNT + 112
W2_MODE = 'arr'; B_MERGE = 1
S_ATOM = 1; DB_INIT = 8; DB_AHEAD = 14; R_PRIO = 3; NPB = 12; D3 = 1; DIRECT_C = 0; DIRECT_B = 0
ZRING = 12; NWB = 6; PRIO_A = 1; PRIO_B = 1; PRIO_D = 0; PRIO_DB = 0; B_DELAY = 0

def poll(a, lbl, soff, nlanes, need=0):
    a('v_lshlrev_b32 v8, 2, v1'); a('s_mov_b32 s57, 0'); a('s_mov_b32 exec_lo, 0x%x' % ((1 << nlanes) - 1)); a('s_mov_b32 exec_hi, 0')
    a.label(lbl)
    a('buffer_load_dword v9, v8, s[16:19], s%d offen sc1' % soff); a('s_waitcnt vmcnt(0)')
    a('v_cmp_lt_u32 vcc, %d, v9' % max(0, need - 1)); a('s_cmp_eq_u32 vcc_lo, 0x%x' % ((1 << nlanes) - 1)); a('s_cbranch_scc1 %s_ok' % lbl)
    a('s_sleep %d' % PSLEEP); a('s_add_u32 s57, s57, 1'); a('s_cmp_lt_u32 s57, %d' % SPIN); a('s_cbranch_scc1 %s' % lbl)
    a.label(lbl + '_ok')
    a('s_mov_b64 exec, -1')
def lds_spin(a, lbl, addr, val):
    a('v_mov_b32 v8, %d' % addr); a('s_mov_b32 s57, 0')
    a.label(lbl)
    a('ds_read_b32 v9, v8'); a('s_waitcnt lgkmcnt(0)'); a('v_readfirstlane_b32 s56, v9')
    a('s_cmp_ge_u32 s56, %d' % val); a('s_cbranch_scc1 %s_ok' % lbl)
    a('s_sleep %d' % LSLEEP); a('s_add_u32 s57, s57, 1'); a('s_cmp_lt_u32 s57, %d' % (SPIN * 16)); a('s_cbranch_scc1 %s' % lbl)
    a.label(lbl + '_ok')
def lds_spin_v(a, lbl, vaddr, sval, off=0, sl=None):
    a('s_mov_b32 s57, 0')
    a.label(lbl)
    a('ds_read_b32 v9, v%d offset:%d' % (vaddr, off)); a('s_waitcnt lgkmcnt(0)'); a('v_readfirstlane_b32 s56, v9')
    a('s_cmp_ge_u32 s56, %s' % sval); a('s_cbranch_scc1 %s_ok' % lbl)
    a('s_sleep %d' % (LSLEEP if sl is None else sl)); a('s_add_u32 s57, s57, 1'); a('s_cmp_lt_u32 s57, %d' % (SPIN * 16)); a('s_cbranch_scc1 %s' % lbl)
    a.label(lbl + '_ok')
def lds_inc_v(a, vaddr, vone, off=0):
    a('s_mov_b64 exec, 1'); a('ds_add_u32 v%d, v%d offset:%d' % (vaddr, vone, off)); a('s_mov_b64 exec, -1')
def lds_inc(a, addr):
    a('v_mov_b32 v8, %d' % addr); a('v_mov_b32 v9, 1'); a('s_mov_b64 exec, 1'); a('ds_add_u32 v8, v9'); a('s_mov_b64 exec, -1')
def arrive(a, lbl, addr, n, soff, total=0, direct=False):
    a('s_waitcnt vmcnt(0)')
    a('v_mov_b32 v8, %s' % addr); a('v_mov_b32 v9, 1'); a('s_mov_b64 exec, 1')
    a('ds_add_rtn_u32 v10, v8, v9'); a('s_waitcnt lgkmcnt(0)'); a('v_readfirstlane_b32 s56, v10')
    a('s_cmp_lg_u32 s56, %d' % (n - 1)); a('s_cbranch_scc1 %s' % lbl)
    a('v_mov_b32 v8, 0')
    if direct:
        a('buffer_atomic_add v9, v8, s[16:19], s%d offen sc1' % soff)
    elif total and S_ATOM:
        a('s_mov_b32 s56, 1'); a('s_atomic_add s56, s[6:7], s%d glc' % soff); a('s_waitcnt lgkmcnt(0)')
        a('s_cmp_lg_u32 s56, %d' % (total - 1)); a('s_cbranch_scc1 %s' % lbl)
        if S_ATOM == 2:
            a('s_add_u32 s57, s%d, 128' % soff); a('s_mov_b32 s56, 1'); a('s_atomic_add s56, s[6:7], s57'); a('s_waitcnt lgkmcnt(0)')
        else:
            a('buffer_store_dword v9, v8, s[16:19], s%d offen offset:128 sc1' % soff)
    elif total:
        a('v_mov_b32 v10, 1'); a('buffer_atomic_add v10, v8, s[16:19], s%d offen sc0 sc1' % soff); a('s_waitcnt vmcnt(0)'); a('v_readfirstlane_b32 s56, v10')
        a('s_cmp_lg_u32 s56, %d' % (total - 1)); a('s_cbranch_scc1 %s' % lbl)
        a('buffer_store_dword v9, v8, s[16:19], s%d offen offset:128 sc1' % soff)
    else:
        a('buffer_store_dword v9, v8, s[16:19], s%d offen sc1' % soff)
    a.label(lbl)
    a('s_mov_b64 exec, -1')

def gen_a2(a, A2, CH, sphase):
    swap23_v(a, 9, 6, 10); a('s_lshl_b32 s32, s22, 5'); a('v_add_u32 v9, s32, v9')
    a('s_lshl_b32 s32, s25, 5'); a('v_lshl_add_u32 v8, v4, 3, s32')
    a('v_mul_u32_u24 v12, v9, v8'); a('v_and_b32 v12, 511, v12'); a('v_cvt_f32_u32 v12, v12'); a('v_cvt_f32_u32 v13, v9')
    a('v_mul_f32 v13, %s, v13' % fbits(1 / 512)); a('v_mov_b32 v%d, %s' % (CH[0], sphase)); a('v_fmac_f32 v%d, %s, v12' % (CH[0], fbits(1 / 512)))
    a('v_mul_f32 v10, %s, v13' % fbits(16.0))
    for i in range(1, 8): a('v_add_f32 v%d, v%d, v13' % (CH[0] + i, CH[0] + i - 1))
    for i in range(8): a('v_add_f32 v%d, v%d, v10' % (CH[1] + i, CH[0] + i))
    a('v_cos_f32 v10, v10')
    for g in range(2):
        for i in range(8): a('v_cos_f32 v%d, v%d' % (CH[g] + i, CH[g] + i))
    a('v_add_f32 v10, v10, v10')
    for j in range(8):
        c = CH[j % 3]
        if j >= 2: cheb(a, c, CH[(j - 1) % 3], CH[(j - 2) % 3], 10)
        for d in range(4): a('v_cvt_pk_bf16_f32 v%d, v%d, v%d' % (A2 + 4 * j + d, c + 2 * d, c + 2 * d + 1))
def z_bases(a):
    a('v_bfe_u32 v10, v1, 2, 2'); a('v_lshl_add_u32 v10, v4, 3, v10'); a('v_lshlrev_b32 v10, 7, v10')
    a('v_bfe_u32 v11, v1, 4, 1'); a('v_lshl_add_u32 v10, v11, 5, v10'); a('v_and_b32 v11, 1, v1'); a('v_lshl_add_u32 v10, v11, 4, v10')
    a('v_bfe_u32 v11, v1, 1, 1'); a('v_lshl_add_u32 v10, v11, 3, v10'); a('v_bfe_u32 v11, v1, 3, 1'); a('v_lshl_add_u32 v10, v11, 6, v10')
    a('v_xor_b32 v11, 64, v10')
    a('s_lshl_b32 s32, s26, 12'); a('s_add_u32 s32, s32, %d' % ZI); a('v_add_u32 v10, s32, v10'); a('v_add_u32 v11, s32, v11')
    a('v_lshlrev_b32 v12, 5, v4'); a('v_add_u32 v12, %d, v12' % G1L)
    a('v_mov_b32 v14, 0'); a('v_mov_b32 v15, 0xbf803f80')

def kM():
    W2_AT = {'go': (C_GOB, 1), 'iss': (C_ISS, 4), 'arr': (C_ARRB, 4)}[W2_MODE]
    a = XAsm(); name = 'kb_main_kernel'
    head(a, name, 256)
    a('s_load_dwordx2 s[6:7], s[0:1], 104')
    ids(a)
    a('s_and_b32 s22, s21, 7'); a('s_lshr_b32 s23, s21, 3'); a('s_lshl_b32 s24, s20, 2'); a('s_add_u32 s23, s23, s24')
    a('s_lshl_b32 s25, s26, 2'); a('s_lshl_b32 s24, s22, 1'); a('s_add_u32 s25, s25, s24')
    def cmap():
        a('s_and_b32 s49, s21, 3'); a('s_lshr_b32 s48, s21, 2'); a('s_lshl_b32 s50, s49, 1'); a('s_add_u32 s50, s50, s48'); a('s_lshl_b32 s50, s50, 1'); a('s_and_b32 s50, s50, 15')
        a('s_and_b32 s51, s20, 4'); a('s_add_u32 s49, s49, s51'); a('s_min_u32 s51, s49, 6')
        a('s_cmp_ge_u32 s21, 28'); a('s_cselect_b32 s48, s51, s48')
        a('s_and_b32 s51, s20, 3'); a('s_mul_i32 s51, s51, 7'); a('s_add_u32 s48, s48, s51')
    def dmap():
        a('s_and_b32 s51, s21, 3'); a('s_lshr_b32 s52, s21, 2'); a('s_lshl_b32 s53, s20, 2'); a('s_add_u32 s53, s53, s51')
        a('s_lshl_b32 s54, s51, 1'); a('s_add_u32 s54, s54, s52'); a('s_and_b32 s54, s54, 7'); a('s_cmp_eq_u32 s54, 7'); a('s_cselect_b32 s54, 3, s54')
    def region(dst, k, tmp):
        a('s_add_u32 s%d, s54, %d' % (dst, k)); a('s_sub_u32 s%d, s%d, 7' % (tmp, dst)); a('s_cmp_ge_u32 s%d, 7' % dst); a('s_cselect_b32 s%d, s%d, s%d' % (dst, tmp, dst))
    a('s_cmp_lt_u32 s3, 8'); a('s_cbranch_scc1 km_compute')
    a('s_load_dwordx4 s[8:11], s[0:1], 48')
    if H_PRIO: a('s_setprio %d' % H_PRIO)
    a('v_lshrrev_b32 v5, 3, v1'); a('v_lshlrev_b32 v5, 12, v5'); a('v_and_b32 v7, 7, v1'); a('v_lshrrev_b32 v8, 2, v1'); a('v_and_b32 v8, 4, v8'); a('v_xor_b32 v7, v7, v8')
    a('v_lshl_add_u32 v5, v7, 4, v5')
    a('s_lshl_b32 s27, s23, 7'); a('s_add_u32 s27, s27, 0x%x' % ZB)
    a('s_lshl_b32 s28, s26, 12'); a('s_add_u32 s28, s28, %d' % ZI)
    a('s_lshl_b32 s33, s26, 9'); a('v_lshlrev_b32 v16, 4, v6'); a('v_add_u32 v16, s33, v16')
    a('v_lshlrev_b32 v17, 11, v4'); a('v_sub_u32 v17, 2048, v17'); a('v_add_u32 v17, v17, v16')
    a('v_add_u32 v18, %d, v16' % G1L); a('v_lshrrev_b32 v20, 1, v16'); a('v_add_u32 v20, %d, v20' % SAL)
    a('v_cvt_f32_u32 v19, v4'); a('v_mul_f32 v21, %s, v19' % fbits(2047.0)); a('v_add_f32 v21, 1.0, v21'); a('v_sub_f32 v19, 1.0, v19')
    a('s_mov_b32 s46, 0xffff0000'); a('s_mov_b32 s34, 12288'); a('s_mov_b32 s35, 24576'); a('s_mov_b32 s36, 36864')
    a('s_waitcnt lgkmcnt(0)')
    srd(a, 16, 6, WSZ)
    stamp(a, 1)
    def zdma(i):
        a('s_add_u32 s32, s25, %d' % i); a('s_and_b32 s32, s32, 15'); a('s_lshl_b32 s32, s32, 17'); a('s_add_u32 s32, s32, s27')
        a('s_add_u32 m0, s28, %d' % (16384 * i))
        for k in range(4):
            a('buffer_load_dwordx4 v5, s[16:19], s32 offen lds', tag='z%d' % i)
            if k < 3: a('s_add_u32 m0, m0, 1024'); a('s_add_u32 s32, s32, 32768')
    FP = 32
    if not B_MERGE: zdma(0)
    for p, so in enumerate(('0', 's34', 's35', 's36')): a('buffer_load_dwordx4 v[%d:%d], v17, s[16:19], %s offen' % (FP + 4 * p, FP + 4 * p + 3, so), tag='f1')
    if B_MERGE: zdma(0)
    zdma(1)
    a('v_mov_b32 v8, %d' % CNT)
    for r in range(12, 16): a('v_mov_b32 v%d, 0' % r)
    [a('ds_write_b128 v8, v[12:15] offset:%d' % (16 * k)) for k in range(8)]
    if not B_MERGE:
        zdma(2); zdma(3)
        a('s_waitcnt lgkmcnt(0)'); a.wait_vm('z0'); a.bar()
    else: zdma(2)
    a.wait_vm('f1')
    for i in (0, 2): a.pk('v_pk_add_f32', FP + i, FP + i, FP + 4 + i); a.pk('v_pk_add_f32', FP + 8 + i, FP + 8 + i, FP + 12 + i)
    for i in (0, 2): a.pk('v_pk_add_f32', FP + i, FP + i, FP + 8 + i)
    for d in range(2): a('v_cvt_pk_bf16_f32 v%d, v%d, v%d' % (FP + 4 + d, FP + 2 * d, FP + 2 * d + 1))
    unpack(a, FP, FP + 4, 2, 46)
    for i in range(4): a('v_fma_f32 v%d, v%d, v21, v19' % (FP + i, FP + i))
    for d in range(2): a('v_cvt_pk_bf16_f32 v%d, v%d, v%d' % (FP + 4 + d, FP + 2 * d, FP + 2 * d + 1))
    unpack(a, FP, FP + 4, 2, 46)
    a('s_mov_b32 exec_hi, 0'); a('ds_write_b128 v18, v[%d:%d]' % (FP, FP + 3))
    a('s_not_b64 exec, exec'); a('ds_write_b64 v20, v[%d:%d]' % (FP + 4, FP + 5)); a('s_mov_b64 exec, -1')
    a('s_waitcnt lgkmcnt(0)')
    a.wait_vm('z1'); a.bar()
    if B_MERGE: zdma(3)
    stamp(a, 2)
    def w_prep():
        a('s_cmp_eq_u32 s37, 1'); a('s_cselect_b32 s40, s10, s8'); a('s_cselect_b32 s41, s11, s9'); a('s_mov_b32 s42, %d' % (512 * 3584)); a('s_mov_b32 s43, 0x20000')
        a('v_lshrrev_b32 v140, 3, v1'); a('v_bfe_u32 v141, v1, 1, 2'); a('v_and_b32 v142, 2, v140'); a('v_or_b32 v142, s37, v142'); a('v_xor_b32 v141, v141, v142')
        a('v_lshlrev_b32 v141, 5, v141'); a('v_and_b32 v142, 1, v1'); a('v_lshl_add_u32 v141, v142, 4, v141')
        a('v_mul_u32_u24 v142, 3584, v140'); a('v_add_u32 v144, v142, v141')
        a('v_sub_u32 v142, %d, v142' % (263 * 3584)); a('v_add_u32 v145, v142, v141')
        a('v_subrev_u32 v146, %d, v145' % (256 * 3584)); a('v_cmp_eq_u32 vcc, 0, v140'); a('v_cndmask_b32 v146, v145, v146, vcc')
        a('s_lshl_b32 s30, s48, 7')
    def w_loop(lbl, upto, hsel, hstep):
        a.label(lbl)
        a('s_lshr_b32 s33, s24, 1'); a('s_lshl_b32 s31, s33, 13'); a('s_add_u32 s33, s33, s50'); a('s_and_b32 s33, s33, 15'); a('s_lshl_b32 s33, s33, 5')
        a('s_and_b32 s34, s24, 1'); a('s_lshl_b32 s35, s34, 11'); a('s_add_u32 s31, s31, s35'); a('s_lshl_b32 s35, s37, 12'); a('s_add_u32 m0, s31, s35')
        a('s_lshl_b32 s34, s34, 4'); a('s_add_u32 s33, s33, s34')
        a('s_cmp_ge_u32 s33, 256'); a('s_cbranch_scc1 %s_up' % lbl)
        a('s_mul_i32 s33, s33, 3584'); a('s_add_u32 s33, s33, s30'); a('s_add_u32 s34, s33, %d' % (8 * 3584))
        a('buffer_load_dwordx4 v144, s[40:43], s33 offen lds'); a('s_add_u32 m0, m0, 1024')
        a('buffer_load_dwordx4 v144, s[40:43], s34 offen lds')
        a('s_branch %s_nx' % lbl)
        a.label(lbl + '_up')
        a('s_cmp_eq_u32 s33, 256'); a('s_cselect_b64 vcc, -1, 0'); a('v_cndmask_b32 v147, v145, v146, vcc')
        a('s_sub_u32 s33, 505, s33'); a('s_mul_i32 s33, s33, 3584'); a('s_add_u32 s33, s33, s30'); a('s_sub_u32 s34, s33, %d' % (8 * 3584))
        a('buffer_load_dwordx4 v147, s[40:43], s33 offen lds'); a('s_add_u32 m0, m0, 1024')
        a('buffer_load_dwordx4 v145, s[40:43], s34 offen lds')
        a.label(lbl + '_nx')
        a('s_add_u32 s24, s24, %d' % hstep); a('s_cmp_lt_u32 s24, %d' % upto); a('s_cbranch_scc1 %s' % lbl)
    def q0pre():
        z_bases(a)
        for d in range(4): a('v_mov_b32 v%d, v15' % (16 + d))
        swap23_v(a, 7, 6, 9)
        for t in range(8):
            a('s_add_u32 s32, s25, %d' % ((t & 3) + 8 * (t >> 2))); a('s_and_b32 s32, s32, 15'); a('s_lshl_b32 s32, s32, 5')
            a('v_add_u32 v9, s32, v7'); a('v_lshlrev_b32 v%d, 1, v9' % (152 + t)); a('v_lshlrev_b32 v9, 2, v9'); a('v_add_u32 v9, %d, v9' % G1L)
            a('v_add_u32 v%d, %d, v%d' % (152 + t, YST, 152 + t)); a('ds_read_b32 v%d, v9' % (160 + t))
    def q0job():
        ZQ = 24; AQ = [88, 104, 120, 88]
        for t in range(8):
            for j in range(2):
                for hf in range(2):
                    r = ZQ + 8 * t + 4 * j + 2 * hf
                    a('ds_read_b64_tr_b16 v[%d:%d], v10 offset:%d' % (r, r + 1, 16384 * (t & 3) + 8192 * (t >> 2) + (16 * j + 4 * hf) * 128), tag='q%d' % t)
        def post(t):
            a('v_mul_f32 v20, v%d, v%d' % (AQ[t % 3], 160 + t)); a('v_cvt_pk_bf16_f32 v%d, v20, v20' % (160 + t)); a('ds_write_b16 v%d, v%d' % (152 + t, 160 + t))
        for t in range(8):
            a.wait_lg('q%d' % t)
            a.mfma(AQ[t % 3], 16, ZQ + 8 * t, True); a.mfma(AQ[t % 3], 16, ZQ + 8 * t + 4)
            if t >= 2: post(t - 2)
        post(6); post(7)
        a('s_waitcnt lgkmcnt(0)')
        lds_inc(a, C_Y)
    a('s_load_dwordx2 s[4:5], s[0:1], 64')
    a('s_and_b32 s37, s26, 1'); a('s_lshr_b32 s38, s26, 1')
    cmap()
    a('s_cmp_eq_u32 s38, 1'); a('s_cbranch_scc1 km_hz')
    sv = (a.vm, dict(a.tags), a.nbar)
    w_prep()
    a('s_cmp_lg_u32 s23, 0'); a('s_cbranch_scc1 km_h_nq')
    q0pre()
    a.wait_vm('z3'); a('s_barrier')
    q0job()
    a('s_branch km_hw')
    a.role('km_h_nq')
    a.wait_vm('z3'); a.bar()
    a('s_branch km_hw')
    a.role('km_hz'); a.vm, a.tags, a.nbar = sv[0], dict(sv[1]), sv[2]
    a('s_lshl_b32 s34, s37, 1'); a('s_add_u32 s34, s34, 2'); a('s_lshl_b32 s34, s34, 11')
    for p in range(4):
        for rnd in range(2):
            for k in range(2):
                r = FP + 32 * rnd + 8 * p + 4 * k
                a('buffer_load_dwordx4 v[%d:%d], v3, s[16:19], s34 offen offset:%d' % (r, r + 3, 2048 * rnd + 1024 * k), tag='f2')
        if p < 3: a('s_add_u32 s34, s34, 12288')
    a.wait_vm('z3'); a.bar()
    a('s_load_dwordx2 s[40:41], s[0:1], 0')
    a('v_mov_b32 v163, v6')
    for k in range(2):
        a('v_lshrrev_b32 v6, 2, v1')
        if k: a('v_add_u32 v6, 16, v6')
        token_of(a, 164 + k, 8, 23); a('s_cmp_eq_u32 s37, 1'); mirror_if(a, 164 + k, 8, 9)
        a('v_lshlrev_b32 v%d, 10, v%d' % (164 + k, 164 + k)); a('v_and_b32 v8, 3, v1'); a('v_lshl_add_u32 v%d, v8, 4, v%d' % (164 + k, 164 + k))
    a('v_mov_b32 v6, v163')
    token_of(a, 166, 8, 23); a('s_cmp_eq_u32 s37, 1'); mirror_if(a, 166, 8, 9); a('v_lshlrev_b32 v166, 10, v166')
    a('s_lshl_b32 s30, s22, 6'); a('s_sub_u32 s31, 960, s30'); a('s_sub_u32 s33, 1024, s30'); a('s_and_b32 s33, s33, 511'); a('s_add_u32 s33, s33, 512')
    a('s_lshl_b32 s32, s37, 12'); a('s_add_u32 s32, s32, %d' % B1L)
    a('s_waitcnt lgkmcnt(0)'); a('s_mov_b32 s42, 0x200000'); a('s_mov_b32 s43, 0x20000')
    for up in range(2):
        for k in range(2):
            a('s_add_u32 m0, s32, %d' % (2048 * up + 1024 * k)); a('buffer_load_dwordx4 v%d, s[40:43], s%d offen lds' % (164 + k, 30 + up))
    a('s_lshl_b32 s32, s37, 8'); a('s_add_u32 m0, s32, %d' % XEL); a('buffer_load_dword v166, s[40:43], s33 offen lds', tag='xl')
    a.wait_vm('f2')
    a('s_cmp_eq_u32 s37, 1'); a('s_cselect_b32 s35, 1.0, 0')
    for rnd in range(2):
        F = FP + 32 * rnd
        for i in range(0, 8, 2): a.pk('v_pk_add_f32', F + i, F + i, F + 8 + i); a.pk('v_pk_add_f32', F + 16 + i, F + 16 + i, F + 24 + i)
        for i in range(0, 8, 2): a.pk('v_pk_add_f32', F + i, F + i, F + 16 + i)
        for d in range(4): a('v_cvt_pk_bf16_f32 v%d, v%d, v%d' % (F + 8 + d, F + 2 * d, F + 2 * d + 1))
    unpack(a, FP, FP + 8, 4, 46)
    for i in range(8): a('v_add_f32 v%d, s35, v%d' % (FP + i, FP + i))
    for d in range(4): a('v_cvt_pk_bf16_f32 v%d, v%d, v%d' % (FP + 8 + d, FP + 2 * d, FP + 2 * d + 1))
    unpack(a, FP, FP + 8, 4, 46)
    a('s_lshl_b32 s33, s37, 11'); a('s_add_u32 s33, s33, %d' % GAL); a('v_add_u32 v8, s33, v3')
    a('ds_write_b128 v8, v[%d:%d]' % (FP, FP + 3)); a('ds_write_b128 v8, v[%d:%d] offset:1024' % (FP + 4, FP + 7))
    a('s_lshl_b32 s33, s37, 10'); a('s_add_u32 s33, s33, %d' % SBH); a('v_lshl_add_u32 v20, v1, 3, s33')
    a('ds_write_b64 v20, v[%d:%d]' % (FP + 40, FP + 41)); a('ds_write_b64 v20, v[%d:%d] offset:512' % (FP + 42, FP + 43))
    a('s_cmp_eq_u32 s37, 0'); a('s_cbranch_scc1 km_nochk')
    a('v_subrev_u32 v20, 2048, v20')
    a('ds_write_b64 v20, v[%d:%d]' % (FP + 8, FP + 9)); a('ds_write_b64 v20, v[%d:%d] offset:512' % (FP + 10, FP + 11))
    a.label('km_nochk')
    a('s_waitcnt vmcnt(0) lgkmcnt(0)')
    lds_inc(a, C_RED)
    stamp(a, 3)
    w_prep()
    a('s_branch km_hw2')
    a.role('km_hw')
    stamp(a, 4)
    a('s_mov_b32 s24, 0')
    w_loop('km_hw_p1', 2 * NPRE, 0, 1)
    a('s_waitcnt vmcnt(0)'); lds_inc(a, C_W1)
    stamp(a, 6)
    a.label('km_hw2')
    a('s_waitcnt lgkmcnt(0)')
    srd(a, 12, 4, 1792 * 1024)
    a('s_cmp_ge_u32 s21, 28'); a('s_cselect_b32 s32, %d, 0' % (C_ISS - W2_AT[0])); a('s_cselect_b32 s33, 4, %d' % W2_AT[1]); a('s_add_u32 s32, s32, %d' % W2_AT[0]); a('v_mov_b32 v8, s32')
    lds_spin_v(a, 'km_spinT', 8, 's33')
    a('s_add_u32 s24, s38, %d' % (2 * NPRE))
    w_loop('km_hw_p2', 32, 0, 2)
    a('s_waitcnt vmcnt(0)'); lds_inc(a, C_W2)
    stamp(a, 5)
    a('s_setprio %d' % D_PRIO)
    dmap()
    a('v_lshrrev_b32 v5, 3, v1'); a('v_and_b32 v7, 7, v1'); a('v_lshrrev_b32 v8, 2, v1'); a('v_and_b32 v8, 4, v8'); a('v_xor_b32 v7, v7, v8')
    a('v_lshlrev_b32 v5, 10, v5'); a('v_lshl_add_u32 v5, v7, 4, v5')
    a('s_mul_i32 s27, s26, %d' % (448 * 1024)); a('s_lshl_b32 s28, s52, 7'); a('s_add_u32 s27, s27, s28')
    a('s_lshl_b32 s28, s26, 13'); a('v_add_u32 v7, s28, v3'); a('v_add_u32 v10, 65536, v7')
    a('s_lshl_b32 s32, s26, 2'); a('s_add_u32 s32, s32, %d' % C_FULL); a('v_mov_b32 v11, s32'); a('v_mov_b32 v12, 1')
    def stash(g, k):
        region(32, k, 25); a('s_lshl_b32 s32, s32, 16'); a('s_add_u32 s32, s32, s27')
        for i in range(8):
            r = 16 + 32 * g + 4 * i
            a('buffer_load_dwordx4 v[%d:%d], v5, s[12:15], s32 offen' % (r, r + 3))
            if i < 7: a('s_add_u32 s32, s32, 8192')
    for p in range(4):
        lds_spin(a, 'km_spinP%d' % p, C_PROG + 4 * p, 8)
        region(32, p, 25); a('s_lshl_b32 s32, s32, 16'); a('s_add_u32 s32, s32, s27'); a('s_add_u32 m0, s28, %d' % (32768 * p))
        for i in range(8):
            a('buffer_load_dwordx4 v5, s[12:15], s32 offen lds')
            if i < 7: a('s_add_u32 m0, m0, 1024'); a('s_add_u32 s32, s32, 8192')
        if p < 3: stash(p, 4 + p); a('s_waitcnt vmcnt(8)')
        else: a('s_waitcnt vmcnt(0)')
        lds_inc_v(a, 11, 12)
    stamp(a, 8)
    if R_PRIO: a('s_setprio %d' % R_PRIO)
    def refill(g):
        for i in range(8):
            r = 16 + 32 * g + 4 * i
            a('ds_write_b128 v%d, v[%d:%d] offset:%d' % (7 if g < 2 else 10, r, r + 3, (g & 1) * 32768 + 1024 * i))
        a('s_waitcnt lgkmcnt(0)')
        lds_inc_v(a, 11, 12)
    for g in range(3):
        lds_spin_v(a, 'km_spinFA%d' % g, 11, str(g + 1), C_FREE - C_FULL)
        if not PASS2: lds_spin_v(a, 'km_spinFB%d' % g, 11, str(g + 1), C_FREEB - C_FULL)
        refill(g)
    if PASS2:
        for g in range(3): stash(g, g)
        for g in range(3):
            lds_spin_v(a, 'km_spinFB%d' % g, 11, str(g + 1), C_FREEB - C_FULL); lds_spin_v(a, 'km_spinFC%d' % g, 11, str(g + 5), C_FREE - C_FULL)
            a('s_waitcnt vmcnt(%d)' % (8 * (2 - g)))
            refill(g)
    nbar_h = a.nbar
    a('s_branch %s_end' % name)
    a.role('km_compute'); a.nbar = 0
    a('s_lshr_b32 s27, s3, 2')
    a('s_load_dwordx2 s[8:9], s[0:1], 88')
    A2, B1, AC1, AP, ZF, GG = 16, 48, [64, 80], 96, 112, 128
    token_of(a, 7, 8, 23)
    a('s_mov_b64 s[30:31], vcc')
    a('s_lshr_b32 s28, s26, 1'); a('s_and_b32 s29, s26, 1'); a('s_lshl_b32 s29, s29, 4'); a('v_lshl_add_u32 v8, v4, 3, s29')
    a('s_cmp_eq_u32 s23, 0'); a('s_cselect_b32 s32, 0, s28'); a('s_sub_i32 s32, s32, s27'); a('v_cvt_f32_i32 v9, s32'); a('v_mul_f32 v9, %s, v9' % fbits(0.25))
    a('v_mul_u32_u24 v12, v7, v8'); a('v_and_b32 v12, 2047, v12'); a('v_cvt_f32_u32 v12, v12'); a('v_cvt_f32_u32 v13, v7')
    a('v_mul_f32 v13, %s, v13' % fbits(1 / 2048)); a('v_fmamk_f32 v64, v12, %s, v9' % fbits(1 / 2048))
    for i in range(1, 8): a('v_add_f32 v%d, v%d, v13' % (64 + i, 63 + i))
    for i in range(8): a('v_cos_f32 v%d, v%d' % (64 + i, 64 + i))
    for d in range(4): a('v_cvt_pk_bf16_f32 v%d, v%d, v%d' % (72 + d, 64 + 2 * d, 65 + 2 * d))
    a('s_not_b64 s[32:33], s[30:31]'); a('s_cmp_eq_u32 s28, 1'); a('s_cselect_b64 s[32:33], s[30:31], s[32:33]'); a('s_cmp_eq_u32 s23, 0'); a('s_cselect_b64 s[32:33], s[32:33], -1')
    for d in range(4): a('v_cndmask_b32 v%d, 0, v%d, s[32:33]' % (72 + d, 72 + d))
    a('s_lshl_b32 s32, s3, 10'); a('s_add_u32 s32, s32, %d' % B1L); a('v_add_u32 v8, s32, v3'); a('ds_write_b128 v8, v[72:75]')
    a('s_cmp_eq_u32 s27, 1'); a('s_cselect_b32 s34, %s, 0' % fbits(-0.25))
    gen_a2(a, A2, [64, 72, 80], 's34'); z_bases(a)
    a('v_cmp_eq_u32 s[42:43], 0, v7'); a('s_cmp_eq_u32 s27, 1'); a('s_cselect_b64 s[44:45], s[42:43], 0')
    a('v_lshlrev_b32 v5, 4, v4'); a('v_add_u32 v5, %d, v5' % YST); a('s_or_b32 s33, s22, s27')
    for r in range(160, 164): a('v_mov_b32 v%d, 0' % r)
    a('v_subrev_u32 v9, 1024, v5'); a('v_cndmask_b32 v5, v5, v9, s[42:43]')
    a('s_mov_b64 s[62:63], 0'); a('s_mov_b32 s59, 0')
    if Q0_DRY: a('s_cmp_eq_u32 s23, 0'); a('s_cbranch_scc1 km_q0dry')
    a.label('km_q0dryback'); a.hist = []
    a('s_lshl_b32 s32, s27, 12'); a('s_add_u32 s32, s32, %d' % B1L); a('v_add_u32 v8, s32, v3')
    a('s_waitcnt lgkmcnt(0)')
    srd(a, 16, 6, WSZ)
    stamp(a, 1)
    XL, XU, XX = 156, 160, 2
    a('s_and_b32 s37, s26, 1'); a('s_lshr_b32 s38, s26, 1')
    ZFS = [112, 128]
    def zread(i):
        for j in range(4):
            for hf in range(2):
                r = ZFS[i & 1] + 4 * j + 2 * hf
                a('ds_read_b64_tr_b16 v[%d:%d], v%d offset:%d' % (r, r + 1, 10 + (j >> 1), 16384 * i + (16 * (j & 1) + 4 * hf) * 128), tag='zr%d_%d' % (i, j))
    AY = 112; GG = 144
    def gread(i):
        a('s_add_u32 s32, s25, %d' % i); a('s_and_b32 s32, s32, 15'); a('s_lshl_b32 s32, s32, 7'); a('v_add_u32 v13, s32, v12')
        for k in range(4): a('ds_read_b128 v[%d:%d], v13 offset:%d' % (GG + 4 * k, GG + 4 * k + 3, 64 * (k >> 1) + 16 * (k & 1)), tag='g%d' % i)
    a.bar()
    stamp(a, 2)
    for j in range(4): a('ds_read_b128 v[%d:%d], v8 offset:%d' % (B1 + 4 * j, B1 + 4 * j + 3, 1024 * j))
    a.reg = 'B'
    zread(0)
    if B_MERGE: zread(1); gread(0)
    for j in range(4):
        a.wait_lg('zr0_%d' % j); a.mfma(AC1[0], ZFS[0] + 4 * j, B1 + 4 * j, j == 0)
    if not B_MERGE: a.bar(); zread(1); gread(0)
    for i in range(4):
        xc = AC1[i & 1]
        V = ['v_mul_f32 v%d, v%d, v%d' % (xc + r, xc + r, GG + r) for r in range(16)] + ['G'] + \
            ['v_cvt_pk_bf16_f32 v%d, v%d, v%d' % (xc + d, xc + 2 * d, xc + 2 * d + 1) for d in range(8)]
        def emit(n):
            for _ in range(n):
                if not V: return
                t = V.pop(0)
                if t == 'G':
                    if i < 3: gread(i + 1)
                else: a(t)
        if i < 3:
            for j in range(4):
                a.wait_lg('zr%d_%d' % (i + 1, j)); a.mfma(AC1[(i + 1) & 1], ZFS[(i + 1) & 1] + 4 * j, B1 + 4 * j, j == 0)
                if j == 3 and i == 0: a.bar(); zread(2)
                if j == 0 and i == 1: zread(3)
                if j == 0: a.wait_lg('g%d' % i)
                emit(6)
        else:
            a.wait_lg('g3')
        emit(99)
        a('s_cmp_lg_u32 s33, 0')
        for h in range(2): a.mfma(AP, A2 + 8 * i + 4 * h, xc + 4 * h, i == 0 and h == 0)
        a('s_cbranch_scc1 km_nd%d' % i)
        for d in range(8): a('v_dot2c_f32_bf16 v%d, v%d, v15' % (160 + (d & 3), xc + d))
        if i == 3:
            a('s_nop 2'); a('v_add_f32 v160, v160, v161'); a('v_add_f32 v162, v162, v163'); a('v_add_f32 v14, v160, v162')
        a.label('km_nd%d' % i)
    a.reg = ''
    stamp(a, 3)
    a('s_lshl_b32 s32, s3, 12'); a('s_add_u32 s32, s32, %d' % ZI); a('v_add_u32 v11, s32, v3')
    a('s_lshl_b32 s32, s26, 8'); a('s_add_u32 s32, s32, %d' % EXT); a('v_lshl_add_u32 v12, v1, 2, s32')
    a('s_cmp_eq_u32 s27, 0'); a('s_cselect_b64 s[30:31], -1, 0'); a('s_andn2_b64 s[34:35], s[30:31], s[42:43]')
    a('s_cmp_eq_u32 s23, 0'); a('s_cbranch_scc1 km_q0tail')
    a.label('km_q0back')
    a('s_nop 3')
    a('s_andn2_b64 exec, -1, s[44:45]')
    for k in range(4): a('ds_write_b128 v11, v[%d:%d] offset:%d' % (AP + 4 * k, AP + 4 * k + 3, 1024 * k))
    a('s_mov_b64 exec, s[30:31]'); a('ds_write_b32 v12, v14'); a('s_mov_b64 exec, s[34:35]'); a('ds_write_b32 v12, v14 offset:1024')
    a('s_mov_b64 exec, -1')
    a('s_waitcnt lgkmcnt(0)')
    lds_inc(a, CNT + 4)
    a('s_mov_b32 s46, 0xffff0000')
    cmap()
    a('s_cmp_eq_u32 s27, 0'); a('s_cbranch_scc1 km_C')
    XLF, XUF = 120, 128
    a('s_lshl_b32 s30, s37, 1'); a('v_add_u32 v9, s30, v4')
    a('s_lshl_b32 s39, s22, 7'); a('v_lshl_add_u32 v7, v9, 5, s39')
    a('s_lshl_b32 s30, s38, 12'); a('s_add_u32 s30, s30, %d' % B1L); a('v_lshl_add_u32 v13, v6, 6, s30')
    a('v_lshl_add_u32 v14, v9, 4, v13'); a('v_lshlrev_b32 v15, 4, v9'); a('v_sub_u32 v15, v13, v15')
    a('s_lshl_b32 s30, s38, 8'); a('s_add_u32 s30, s30, %d' % (XEL - 2112)); a('v_lshl_add_u32 v13, v6, 2, s30')
    a('v_cmp_eq_u32 vcc, 0, v9'); a('v_cndmask_b32 v13, v15, v13, vcc')
    GA, G2, GAU, G2U = 24, 32, 40, 48
    a('v_add_u32 v21, %d, v7' % GAL)
    a('s_lshl_b32 s32, s37, 11'); a('s_add_u32 s32, s32, %d' % ZI); a('v_add_u32 v11, s32, v3')
    a('s_cmp_eq_u32 s38, 0'); a('s_cselect_b32 s34, -1.0, 1.0'); a('s_cselect_b32 s35, 0, 1.0')
    a('v_mov_b32 v16, s34'); a('v_mov_b32 v17, s35'); a('v_sub_f32 v18, 0, v16'); a('v_sub_f32 v22, 1.0, v17')
    a('v_cndmask_b32 v16, v16, v17, s[42:43]'); a('v_cndmask_b32 v18, v18, v17, s[42:43]'); a('v_cndmask_b32 v22, 1.0, v22, s[42:43]')
    a('s_lshl_b32 s39, s38, 5'); a('s_add_u32 s39, s39, s23')
    a('s_lshl_b32 s36, s39, 15'); a('s_lshl_b32 s33, s22, 1'); a('s_add_u32 s33, s33, s37'); a('s_lshl_b32 s33, s33, 10'); a('s_add_u32 s36, s36, s33')
    a('s_lshl_b32 s32, s38, 10'); a('s_add_u32 s32, s32, %d' % EXT); a('v_lshl_add_u32 v20, v1, 2, s32')
    a('s_or_b32 s33, s22, s37'); a('s_cmp_eq_u32 s33, 0'); a('s_cselect_b32 s30, -1, 0'); a('s_mov_b32 s31, 0')
    a('s_setprio 0')
    lds_spin(a, 'km_spinR', CNT + 4, 10)
    if E_PRIO: a('s_setprio 3')
    stamp(a, 4)
    RP, RQ, YL, YU = 56, 88, 64, 72
    a('ds_read_b128 v[%d:%d], v14' % (XL, XL + 3)); a('ds_read_b128 v[%d:%d], v15 offset:2096' % (XU, XU + 3)); a('ds_read_u16 v%d, v13 offset:2112' % XX)
    for R, o in ((RP, 0), (RQ, 16384)):
        for src in range(4):
            for hf in range(2): a('ds_read_b128 v[%d:%d], v11 offset:%d' % (R + 8 * src + 4 * hf, R + 3 + 8 * src + 4 * hf, o + src * 4096 + hf * 1024))
    a('s_waitcnt lgkmcnt(15)')
    unpack(a, XLF, XL, 4, 46); unpack_rev(a, XUF, XU, XX, 46)
    for n, R in enumerate((RP, RQ)):
        a('s_waitcnt lgkmcnt(%d)' % (8 if n == 0 else 10))
        if n == 0:
            for reg, off in ((GA, 0), (GAU, 1024), (G2, 2048), (G2U, 3072)):
                for k in range(2): a('ds_read_b128 v[%d:%d], v21 offset:%d' % (reg + 4 * k, reg + 4 * k + 3, off + 16 * k))
            a('ds_read2st64_b32 v[136:137], v20 offset0:0 offset1:1'); a('ds_read2st64_b32 v[138:139], v20 offset0:2 offset1:3')
        for i in range(0, 8, 2): a.pk('v_pk_add_f32', R + i, R + i, R + 8 + i); a.pk('v_pk_add_f32', R + 16 + i, R + 16 + i, R + 24 + i)
        for i in range(0, 8, 2): a.pk('v_pk_add_f32', R + i, R + i, R + 16 + i)
    for i in range(0, 8, 2): a('v_pk_mul_f32 v[%d:%d], v[%d:%d], v[22:23] op_sel_hi:[1,0]' % (RP + i, RP + i + 1, RP + i, RP + i + 1))
    for i in range(0, 8, 2):
        a('v_pk_fma_f32 v[%d:%d], v[%d:%d], v[16:17], v[%d:%d] op_sel_hi:[1,0,1]' % (YL + i, YL + i + 1, RQ + i, RQ + i + 1, RP + i, RP + i + 1))
        a('v_pk_fma_f32 v[%d:%d], v[%d:%d], v[18:19], v[%d:%d] op_sel_hi:[1,0,1]' % (YU + i, YU + i + 1, RQ + i, RQ + i + 1, RP + i, RP + i + 1))
    a('s_waitcnt lgkmcnt(0)')
    a.pk('v_pk_add_f32', 136, 136, 138); a('v_add_f32 v136, v136, v137'); half_sum(a, [136], 137)
    a('v_cndmask_b32 v%d, v%d, v136, s[30:31]' % (YU, YU))
    for Y, G, X in ((YL, GA, XLF), (YU, GAU, XUF)):
        for i in range(0, 8, 2): a('v_pk_fma_f32 v[%d:%d], v[%d:%d], v[%d:%d], v[%d:%d]' % (Y + i, Y + i + 1, Y + i, Y + i + 1, G + i, G + i + 1, X + i, X + i + 1))
    for Y, G in ((YL, G2), (YU, G2U)):
        for i in range(0, 8, 2): a.pk('v_pk_mul_f32', G + i, Y + i, G + i)
    a('s_add_u32 s32, s36, 0x%x' % ZT); a('s_add_u32 s33, s32, 16384'); a('s_add_u32 s34, s36, 0x%x' % X1T); a('s_add_u32 s35, s34, 16384')
    for src, dst, so in ((G2, 80, 32), (G2U, 84, 33), (YL, 88, 34), (YU, 92, 35)):
        for d in range(4): a('v_cvt_pk_bf16_f32 v%d, v%d, v%d' % (dst + d, src + 2 * d, src + 2 * d + 1))
        a('buffer_store_dwordx4 v[%d:%d], v3, s[16:19], s%d offen sc1' % (dst, dst + 3, so))
    a.pk('v_pk_add_f32', 96, YL, YL + 2); a.pk('v_pk_mul_f32', 98, YL, YL)
    for i in range(2, 16, 2):
        if i > 2: a.pk('v_pk_add_f32', 96, 96, YL + i)
        a('v_pk_fma_f32 v[98:99], v[%d:%d], v[%d:%d], v[98:99]' % (YL + i, YL + i + 1, YL + i, YL + i + 1))
    a('v_add_f32 v100, v96, v97'); a('v_add_f32 v101, v98, v99')
    half_sum(a, [100, 101], 102)
    a('s_lshl_b32 s32, s39, 12'); a('s_lshl_b32 s33, s22, 9'); a('s_add_u32 s32, s32, s33'); a('s_lshl_b32 s33, s37, 8'); a('s_add_u32 s32, s32, s33'); a('s_add_u32 s32, s32, 0x%x' % STATS)
    a('v_lshlrev_b32 v8, 3, v1')
    a('s_mov_b32 exec_hi, 0')
    a('buffer_store_dwordx2 v[100:101], v8, s[16:19], s32 offen sc1')
    a('s_mov_b64 exec, -1')
    stamp(a, 12)
    a('s_lshl_b32 s32, s20, 8'); a('s_add_u32 s32, s32, 0x%x' % FLAGB)
    lds_inc(a, C_ISS)
    arrive(a, 'km_arrB', CNT, 4, 32, 32, DIRECT_B)
    stamp(a, 9)
    a('s_setprio 0')
    a('s_branch km_C')
    a.role('km_q0tail')
    a('s_mov_b64 s[62:63], s[42:43]'); a('s_mov_b32 s59, 2'); a('s_setprio 3')
    a.label('km_q0dry')
    a('v_mov_b32 v8, %d' % C_Y); lds_spin_v(a, 'km_spinY', 8, 's59', 0, 0)
    a('s_cmp_lg_u32 s27, 0'); a('s_cbranch_scc1 km_q0ret')
    for i in range(4):
        a('s_add_u32 s32, s25, %d' % i); a('s_and_b32 s32, s32, 15'); a('s_lshl_b32 s32, s32, 6'); a('v_add_u32 v9, s32, v5')
        for h in range(2): a('ds_read_b128 v[%d:%d], v9 offset:%d' % (128 + 8 * i + 4 * h, 131 + 8 * i + 4 * h, 32 * h))
    for r in range(164, 168): a('v_mov_b32 v%d, 0' % r)
    for j in range(8):
        a('s_waitcnt lgkmcnt(%d)' % (7 - j)); a.mfma(AY, A2 + 4 * j, 128 + 4 * j, j == 0)
        for d in range(4): a('v_dot2c_f32_bf16 v%d, v%d, v15' % (164 + d, 128 + 4 * j + d))
    a('s_nop 2')
    a('v_add_f32 v164, v164, v165'); a('v_add_f32 v166, v166, v167'); a('v_add_f32 v13, v164, v166')
    a('s_mov_b64 exec, s[62:63]')
    a('v_add_f32 v14, v14, v13')
    for r in range(0, 16, 2): a.pk('v_pk_add_f32', AP + r, AP + r, AY + r)
    a('s_lshl_b64 exec, s[62:63], 1')
    for k in range(4): a('ds_write_b128 v11, v[%d:%d] offset:%d' % (AY + 4 * k, AY + 4 * k + 3, 16384 - 16 + 1024 * k))
    a('ds_write_b32 v12, v13 offset:1020')
    a('s_mov_b64 exec, -1')
    a.label('km_q0ret')
    a('s_cmp_eq_u32 s59, 0'); a('s_cbranch_scc1 km_q0dryback')
    a('s_branch km_q0back')
    a.role('km_C')
    a('s_setprio 0')
    ACC = 16; WB = 80; ZF = WB + 4 * NWB; ST = ZF + 4 * ZRING
    assert ST + 16 <= 168
    a('v_bfe_u32 v10, v1, 4, 1'); a('v_bfe_u32 v11, v1, 2, 2'); a('v_lshl_add_u32 v12, v4, 3, v11'); a('v_lshlrev_b32 v12, 7, v12'); a('v_lshl_add_u32 v12, v10, 12, v12')
    a('v_and_b32 v11, 2, v11'); a('v_or_b32 v11, v11, v10'); a('v_lshl_add_u32 v12, v11, 5, v12')
    a('v_and_b32 v11, 1, v1'); a('v_lshl_add_u32 v12, v11, 4, v12'); a('v_bfe_u32 v11, v1, 1, 1'); a('v_lshl_add_u32 v12, v11, 3, v12')
    for j in range(1, 4): a('v_xor_b32 v%d, %d, v12' % (12 + j, 32 * j))
    a('v_mov_b32 v0, %d' % C_PROG); a('v_mov_b32 v2, 1')
    a('s_lshl_b32 s34, s48, 7'); a('s_add_u32 s34, s34, 0x%x' % FLAGS); a('s_lshl_b32 s35, s48, 11'); a('s_add_u32 s35, s35, 0x%x' % CSG)
    a('v_lshlrev_b32 v7, 4, v6')
    def wrd(n, j, dst, tag=None):
        for hf in range(2):
            a('ds_read_b64_tr_b16 v[%d:%d], v%d offset:%d' % (dst + 2 * hf, dst + 2 * hf + 1, 12 + j, ((n >> 1) & 7) * 8192 + (16 * (n & 1) + 4 * hf) * 128), tag=tag)
    a('s_cmp_ge_u32 s21, 28'); a('s_cbranch_scc1 km_csb')
    a('s_lshl_b32 s28, s49, 2'); a('s_add_u32 s28, s28, s26'); a('s_lshl_b32 s29, s27, 5'); a('s_add_u32 s28, s28, s29')
    a('s_lshl_b32 s36, s28, 15'); a('s_add_u32 s36, s36, 0x%x' % ZT); a('s_lshl_b32 s37, s50, 11')
    a('s_lshl_b32 s39, s28, 12'); a('s_add_u32 s39, s39, 0x%x' % STATS); a('v_lshlrev_b32 v5, 3, v6'); a('v_lshl_add_u32 v5, v4, 11, v5')
    k1c = -2 * 0.7978845608028654 * LOG2E; k2c = k1c * 0.044715
    a('s_mov_b32 s44, %s' % fbits(k2c))
    a('s_mul_i32 s40, s28, %d' % (112 * 1024)); a('s_lshl_b32 s41, s48, 12'); a('s_add_u32 s40, s40, s41'); a('s_add_u32 s40, s40, 0x%x' % ACT)
    a('s_lshr_b32 s41, s28, 2'); a('s_lshl_b32 s41, s41, 8'); a('s_add_u32 s41, s41, 0x%x' % FLAGC)
    a('s_lshl_b32 s42, s27, 2'); a('s_add_u32 s42, s42, %d' % C_ARRC)
    a('s_lshl_b32 s32, s49, 8'); a('s_add_u32 s32, s32, 0x%x' % (FLAGB + (0 if DIRECT_B else 128)))
    a('s_cmp_lg_u32 s3, 0'); a('s_cbranch_scc1 km_c_w')
    lds_spin(a, 'km_spinZ', C_ARRB, 4)
    poll(a, 'km_pollB', 32, 1, 32 if DIRECT_B else 0)
    lds_inc(a, C_GOB)
    a('s_branch km_c_go')
    a.label('km_c_w')
    lds_spin(a, 'km_spinG', C_GOB, 1)
    a.label('km_c_go')
    stamp(a, 13)
    a('s_cmp_eq_u32 s27, 0'); a('s_cbranch_scc1 km_c_pa'); a('s_setprio %d' % PRIO_B)
    if B_DELAY: lds_spin(a, 'km_spinBD', C_PROG, B_DELAY)
    a('s_branch km_c_pb')
    a.label('km_c_pa'); a('s_setprio %d' % PRIO_A)
    a.label('km_c_pb')
    def zld(n):
        if n & 1 == 0: a('s_add_u32 s38, s36, s37'); a('s_add_u32 s37, s37, 2048'); a('s_and_b32 s37, s37, 32767')
        r = ZF + 4 * (n % ZRING)
        a('buffer_load_dwordx4 v[%d:%d], v3, s[16:19], s38 offen offset:%d %s' % (r, r + 3, 1024 * (n & 1), LD), tag='z%d' % n)
    zn = 0
    while zn < Z_INIT: zld(zn); zn += 1
    lds_spin(a, 'km_spinW1', C_W1, 2)
    stamp(a, 5)
    a.reg = 'C'
    AHEAD = NWB - 1
    seq = [(n, j) for n in range(32) for j in range(4)]
    def issue_w(i):
        n, j = seq[i]
        if n == 2 * NPRE and j == 0: lds_spin(a, 'km_spinW2', C_W2, 4)
        if n == 16: a('v_add_u32 v%d, 65536, v%d' % (12 + j, 12 + j))
        wrd(n, j, WB + 4 * (i % NWB), 'w%d' % i)
    for i in range(AHEAD): issue_w(i)
    CS = [ZF + 4 * ((32 + k) % ZRING) for k in range(4)]
    for i, (n, j) in enumerate(seq):
        if j == 0: a.wait_vm('z%d' % n)
        a.wait_lg('w%d' % i)
        a.mfma(ACC + 16 * j, WB + 4 * (i % NWB), ZF + 4 * (n % ZRING), n == 0)
        if i + AHEAD < 128: issue_w(i + AHEAD)
        if j in (1, 3) and zn < 32 and zn < n + ZRING - (0 if j == 3 else 1) - 0 and (zn - ZRING < n or (zn - ZRING == n and False)):
            zld(zn); zn += 1
        if j == 2 and 8 <= n < 16: a('buffer_load_dwordx2 v[%d:%d], v5, s[16:19], s39 offen offset:%d %s' % (ST + 2 * (n - 8), ST + 2 * (n - 8) + 1, 256 * (n - 8), LD), tag='st')
        if j == 2 and n == 17: a('v_mov_b32 v10, 0'); a('buffer_load_dword v11, v10, s[16:19], s34 offen sc1', tag='fs')
        if j == 2 and n == 24:
            a.wait_vm('fs'); a('v_readfirstlane_b32 s56, v11'); a('s_cmp_lg_u32 s56, 0'); a('s_cbranch_scc1 km_fs_ok')
            vm = a.vm; poll(a, 'km_pollS', 34, 1); a.vm = vm
            a.label('km_fs_ok')
        if j == 2 and 25 <= n < 29:
            k = n - 25; assert 32 + k - ZRING < n
            a('buffer_load_dwordx4 v[%d:%d], v7, s[16:19], s35 offen offset:%d sc1' % (CS[k], CS[k] + 3, 512 * k), tag='cs')
        if j == 3 and n % 8 == 7: lds_inc_v(a, 0, 2, 4 * (n >> 3))
    assert zn == 32
    a.reg = ''
    stamp(a, 6)
    a('s_cmp_eq_u32 s27, 0'); a('s_cbranch_scc1 km_e_pa'); a('s_setprio 3'); a('s_branch km_e_pb')
    a.label('km_e_pa'); a('s_setprio %d' % PRIO_EA)
    a.label('km_e_pb')
    for st in (8, 4, 2):
        for i in range(st): a('v_add_f32 v%d, v%d, v%d' % (ST + i, ST + i, ST + st + i))
    half_sum(a, [ST, ST + 1], ST + 2)
    a('v_mul_f32 v10, %s, v%d' % (fbits(-1.0 / 512), ST))
    a('v_mul_f32 v11, %s, v%d' % (fbits(1.0 / 512), ST + 1)); a('v_fma_f32 v11, -v10, v10, v11'); a('v_max_f32 v11, 0, v11')
    a('v_add_f32 v11, %s, v11' % fbits(1e-5))
    a('v_rsq_f32 v8, v11'); a('v_sqrt_f32 v9, v11')
    for src, dst in ((10, 12), (9, 14)):
        a('v_cvt_pk_bf16_f32 v%d, v%d, v%d' % (ST, src, src)); a('v_and_b32 v%d, s46, v%d' % (ST, ST)); a('v_sub_f32 v%d, v%d, v%d' % (ST + 1, src, ST))
        a('v_cvt_pk_bf16_f32 v%d, v%d, v%d' % (dst, ST, ST + 1))
    a('v_cmp_gt_u32 vcc, 32, v1'); a('v_cndmask_b32 v12, 0, v12, vcc'); a('v_cndmask_b32 v14, 0, v14, vcc')
    a('v_mov_b32 v13, v12'); a('v_mov_b32 v15, v14'); a('v_mov_b32 v10, %s' % fbits(k1c)); a('v_mov_b32 v11, s44')
    a('s_waitcnt vmcnt(0)')
    for j in range(4): a.mfma(ACC + 16 * j, CS[j], 12)
    for j in range(4):
        g = ACC + 16 * j; u = g + 8; t = 80 + 8 * (j & 1)
        if EPI_PK:
            P = range(0, 8, 2)
            for i in P: a('v_pk_mul_f32 v[%d:%d], v[%d:%d], v[8:9] op_sel_hi:[1,0]' % (g + i, g + i + 1, g + i, g + i + 1))
            for i in P: a.pk('v_pk_mul_f32', t + i, g + i, g + i)
            for i in P: a('v_pk_fma_f32 v[%d:%d], v[%d:%d], v[10:11], v[10:11] op_sel:[0,1,0] op_sel_hi:[1,1,0]' % (t + i, t + i + 1, t + i, t + i + 1))
            for i in P: a.pk('v_pk_mul_f32', t + i, t + i, g + i)
            for i in range(8): a('v_exp_f32 v%d, v%d' % (t + i, t + i))
            for i in P: a.pk('v_pk_mul_f32', u + i, u + i, g + i)
            for i in P: a('v_pk_fma_f32 v[%d:%d], v[%d:%d], v[8:9], v[8:9] op_sel:[0,1,1] op_sel_hi:[1,1,1]' % (t + i, t + i + 1, t + i, t + i + 1))
            for i in range(8): a('v_rcp_f32 v%d, v%d' % (t + i, t + i))
            for i in P: a.pk('v_pk_mul_f32', u + i, u + i, t + i)
        else:
            for i in range(8): a('v_mul_f32 v%d, v8, v%d' % (g + i, g + i))
            for i in range(8): a('v_mul_f32 v%d, v%d, v%d' % (t + i, g + i, g + i))
            for i in range(8): a('v_fma_f32 v%d, v%d, s44, v10' % (t + i, t + i))
            for i in range(8): a('v_mul_f32 v%d, v%d, v%d' % (t + i, t + i, g + i))
            for i in range(8): a('v_exp_f32 v%d, v%d' % (t + i, t + i))
            for i in range(8): a('v_mul_f32 v%d, v%d, v%d' % (u + i, u + i, g + i))
            for i in range(8): a('v_fma_f32 v%d, v%d, v9, v9' % (t + i, t + i))
            for i in range(8): a('v_rcp_f32 v%d, v%d' % (t + i, t + i))
            for i in range(8): a('v_mul_f32 v%d, v%d, v%d' % (u + i, u + i, t + i))
        for d in range(4): a('v_cvt_pk_bf16_f32 v%d, v%d, v%d' % (g + d, u + 2 * d, u + 2 * d + 1))
        a('buffer_store_dwordx4 v[%d:%d], v3, s[16:19], s40 offen offset:%d sc1' % (g, g + 3, 1024 * j))
    stamp(a, 7)
    arrive(a, 'km_arrC', 's42', 4, 41, 28, DIRECT_C)
    stamp(a, 8)
    a('s_branch km_D')
    a.role('km_csb')
    lds_spin(a, 'km_spinR2', C_RED, 10); lds_spin(a, 'km_spinW3', C_W2, 4)
    a('s_cmp_lg_u32 s27, 0'); a('s_cbranch_scc1 km_csb_done')
    a('s_cmp_ge_u32 s49, 7'); a('s_cbranch_scc1 km_csb_done')
    a('s_lshl_b32 s32, s26, 5'); a('v_xor_b32 v12, s32, v12'); a('v_add_u32 v13, 65536, v12')
    a('v_and_b32 v10, 1, v1'); a('v_lshlrev_b32 v10, 10, v10'); a('v_lshl_add_u32 v10, v4, 4, v10'); a('v_add_u32 v10, %d, v10' % G2H)
    a('s_lshl_b32 s33, s50, 6')
    for blk in range(4):
        for k in range(8):
            n = 8 * blk + k
            if n & 1 == 0: a('v_add_u32 v11, s33, v10'); a('s_add_u32 s33, s33, 64'); a('s_and_b32 s33, s33, 1023')
            a('ds_read_b128 v[%d:%d], v11 offset:%d' % (32 + 8 * k, 35 + 8 * k, 32 * (n & 1)))
            wrd(n, n >> 4, 36 + 8 * k, 'c%d' % n)
        for k in range(8):
            n = 8 * blk + k
            a.wait_lg('c%d' % n); a.mfma(16, 32 + 8 * k, 36 + 8 * k, n == 0)
    for i in range(2):
        a('v_cvt_pk_bf16_f32 v%d, v%d, v%d' % (100 + 2 * i, 16 + i, 16 + i)); a('v_and_b32 v104, s46, v%d' % (100 + 2 * i)); a('v_sub_f32 v104, v%d, v104' % (16 + i))
        a('v_cvt_pk_bf16_f32 v%d, v104, v104' % (101 + 2 * i))
    a('s_lshl_b32 s32, s26, 9'); a('s_add_u32 s35, s35, s32')
    a('s_mov_b32 exec_hi, 0'); a('buffer_store_dwordx4 v[100:103], v7, s[16:19], s35 offen sc1'); a('s_mov_b64 exec, -1')
    arrive(a, 'km_arrS', C_ARRS, 4, 34)
    a.label('km_csb_done')
    stamp(a, 14)
    for p in range(4): lds_inc_v(a, 0, 2, 4 * p)
    a.label('km_D'); a.hist = []; a.inD = True
    if HOLD:
        a('v_mov_b32 v8, %d' % C_HOLD); a('v_mov_b32 v9, s27'); lds_inc_v(a, 8, 9)
    a('s_cmp_eq_u32 s27, 0'); a('s_cbranch_scc1 km_d_pa'); a('s_setprio %d' % PRIO_DB); a('s_branch km_d_pb')
    a.label('km_d_pa'); a('s_setprio %d' % PRIO_D)
    a.label('km_d_pb')
    dmap()
    a('s_lshl_b32 s29, s27, 5'); a('s_add_u32 s53, s53, s29')
    a('v_bfe_u32 v12, v1, 2, 2'); a('v_lshl_add_u32 v12, v4, 3, v12'); a('v_lshlrev_b32 v12, 7, v12')
    a('v_bfe_u32 v13, v1, 4, 1'); a('v_lshl_add_u32 v12, v13, 5, v12'); a('v_and_b32 v13, 1, v1'); a('v_lshl_add_u32 v12, v13, 4, v12')
    a('v_bfe_u32 v13, v1, 1, 1'); a('v_lshl_add_u32 v12, v13, 3, v12'); a('v_bfe_u32 v13, v1, 3, 1'); a('v_lshl_add_u32 v12, v13, 6, v12')
    a('s_lshl_b32 s29, s26, 5'); a('v_xor_b32 v12, s29, v12'); a('s_lshl_b32 s29, s26, 13'); a('v_add_u32 v12, s29, v12'); a('v_xor_b32 v13, 64, v12')
    a('v_add_u32 v14, 65536, v12'); a('v_add_u32 v15, 65536, v13')
    a('s_mul_i32 s30, s53, %d' % (112 * 1024)); a('s_mul_i32 s31, s26, %d' % (28 * 1024)); a('s_add_u32 s30, s30, s31'); a('s_add_u32 s30, s30, 0x%x' % ACT)
    for g in range(7):
        if PASS2:
            a('s_cmp_eq_u32 s27, 0'); a('s_cselect_b32 s31, %d, %d' % (g, [4, 5, 6, 3, 0, 1, 2][g])); a('s_add_u32 s31, s31, s54'); a('s_sub_u32 s32, s31, 7')
            a('s_cmp_ge_u32 s31, 7'); a('s_cselect_b32 s31, s32, s31'); a('s_lshl_b32 s31, s31, 12'); a('s_add_u32 s%d, s31, s30' % (33 + g))
        else:
            region(31, g, 32); a('s_lshl_b32 s31, s31, 12'); a('s_add_u32 s%d, s31, s30' % (33 + g))
    a('s_lshr_b32 s32, s53, 2'); a('s_lshl_b32 s32, s32, 8'); a('s_add_u32 s32, s32, 0x%x' % (FLAGC + (0 if DIRECT_C else 128)))
    AD = [16, 32]; AF = 48; NR = 16; WD = [112, 120, 128, 136]; X1R = 144; GBR = 152; XA = 156; FC = 158
    a('s_lshl_b32 s44, s52, 3'); a('s_lshl_b32 s45, s26, 1'); a('s_add_u32 s44, s44, s45'); a('v_add_u32 v11, s44, v4')
    a('s_and_b32 s47, s53, 31'); token_of(a, 5, 8, 47); a('s_cmp_ge_u32 s53, 32'); mirror_if(a, 5, 8, 9)
    a('v_lshlrev_b32 v5, 10, v5'); a('v_lshl_add_u32 v5, v11, 4, v5')
    a('s_lshl_b32 s45, s53, 15'); a('s_add_u32 s45, s45, 0x%x' % X1T)
    a('s_lshl_b32 s29, s26, 2'); a('s_add_u32 s29, s29, %d' % C_FULL); a('v_mov_b32 v0, s29')
    a('s_lshl_b32 s29, s27, 2'); a('s_add_u32 s29, s29, %d' % C_GO); a('v_mov_b32 v7, s29')
    a('s_lshl_b32 s29, s27, 5'); a('v_add_u32 v10, s29, v0')
    srd(a, 40, 8, 2048 * 1024)
    a('s_cmp_eq_u32 s27, 0'); a('s_cselect_b32 s60, 0, 2048'); a('s_add_u32 s60, s60, 6144'); a('s_cmp_eq_u32 s27, 0'); a('s_cselect_b32 s61, %d, 0' % (XCH - 98304)); a('s_add_u32 s61, s61, 98304')
    for k in range(4):
        a('s_xor_b32 s29, s26, %d' % k); a('s_mul_i32 s29, s29, s60'); a('s_add_u32 s%d, s29, s61' % (48 + k))
    FC = 166
    def late():
        L = ['v_lshlrev_b32 v8, 4, v11', 'v_add_u32 v8, %d, v8' % GBH, 'ds_read_b128 v[%d:%d], v8' % (GBR, GBR + 3),
             'v_sub_u32 v8, 95, v11', 'v_cmp_gt_u32 vcc, 32, v11', 'v_cndmask_b32 v8, v8, v11, vcc', 'v_lshlrev_b32 v8, 9, v8', 'v_lshl_add_u32 v%d, v6, 4, v8' % XA,
             'v_sub_u32 v8, 64, v11', 'v_and_b32 v8, 31, v8', 'v_add_u32 v8, 32, v8', 'v_lshlrev_b32 v8, 9, v8', 'v_lshl_add_u32 v%d, v6, 4, v8' % (XA + 1)]
        L += ['v_add_u32 v%d, s%d, v3' % (160 + k, 48 + k) for k in range(4)]
        L += ['v_and_b32 v164, 3, v1', 'v_lshlrev_b32 v164, 2, v164', 'v_bfe_u32 v8, v1, 2, 1', 'v_lshl_add_u32 v164, v8, 5, v164', 'v_add_u32 v164, %d, v164' % C_FREE]
        return L
    areg = {}; wreg = {}
    def act_load(n, free):
        r = areg[n] = free.pop(0)
        a('buffer_load_dwordx4 v[%d:%d], v3, s[16:19], s%d offen offset:%d %s' % (r, r + 3, 33 + n // 4, 1024 * (n & 3), LD), tag='a%d' % n)
    def wd_read(n, free):
        pos = (n >> 2) & 3; wreg[n] = []
        for t in range(2):
            r0 = free.pop(0); wreg[n].append(r0)
            for hf in range(2):
                a('ds_read_b64_tr_b16 v[%d:%d], v%d offset:%d' % (r0 + 2 * hf, r0 + 2 * hf + 1, 12 + t + 2 * (pos >> 1), (pos & 1) * 32768 + (16 * (n & 3) + 4 * hf) * 128), tag='w%d' % n)
    stamp(a, 2)
    free0 = list(range(48, 144, 4))
    a('s_mov_b32 s31, %d' % (NPB // 4)); lds_spin_v(a, 'km_spinD1', 0, 's31')
    for k in range(NPB): wd_read(k, free0)
    a('s_waitcnt lgkmcnt(0)')
    a('v_mov_b32 v9, %d' % (NPB // 4)); lds_inc_v(a, 10, 9, C_FREE - C_FULL)
    wpre = dict(wreg)
    if HOLD:
        a('v_mov_b32 v8, %d' % C_HOLD); a('s_lshl_b32 s29, s27, 2'); a('s_sub_u32 s29, 4, s29')
        lds_spin_v(a, 'km_hold', 8, 's29')
    a('s_cmp_lg_u32 s26, 0'); a('s_cbranch_scc1 km_d_w')
    poll(a, 'km_pollC', 32, 1)
    lds_inc_v(a, 7, 2)
    a('s_branch km_d_go')
    a.label('km_d_w')
    lds_spin_v(a, 'km_spinH', 7, '1')
    a.label('km_d_go')
    stamp(a, 9)
    a('s_cmp_eq_u32 s27, 1'); a('s_cbranch_scc1 km_dB')
    svd = (a.vm, dict(a.tags), a.lg, dict(a.ltags))
    for G, dinit, dahead in (('A', D_INIT, D_AHEAD), ('B', DB_INIT, DB_AHEAD)):
        if G == 'B': a.role('km_dB'); a.vm, a.tags, a.lg, a.ltags = svd[0], dict(svd[1]), svd[2], dict(svd[3])
        a.reg = 'D'
        free = list(range(144, 164, 4)) + list(free0); LQ = late(); wreg.clear(); wreg.update(wpre); areg.clear()
        nxt = 0
        while (nxt < dinit or nxt < 5) and free: act_load(nxt, free); nxt += 1
        xdone = False; later = []
        for n in range(28):
            if n == 25: a('ds_read_b32 v165, v164')
            if n % 4 == 0 and NPB <= n + 4 < 28: a('ds_read_b32 v%d, v0' % FC, tag='fc%d' % n)
            if n % 4 == 1 and NPB <= n + 3 < 28:
                a.wait_lg('fc%d' % (n - 1)); a('v_readfirstlane_b32 s56, v%d' % FC); a('s_add_u32 s31, s31, 1')
                a('s_cmp_ge_u32 s56, s31'); a('s_cbranch_scc1 km_fu%s%d_ok' % (G, n))
                lg = a.lg; lds_spin_v(a, 'km_fu%s%d' % (G, n), 0, 's31'); a.lg = lg
            if NPB <= n + 3 < 28: wd_read(n + 3, free)
            a.wait_vm('a%d' % n)
            if n == 0: stamp(a, 1)
            if n in (4, 12, 20): stamp(a, {4: 3, 12: 4, 20: 12}[n])
            if n >= NPB: a.wait_lg('w%d' % n)
            for t in range(2):
                a.mfma(AD[t], wreg[n][t], areg[n], n == 0)
                if t == 0: free += later; later = []
                keep = 2 if NPB <= n + 4 < 28 else 0
                if nxt < 28 and nxt < n + dahead + t and len(free) > keep: act_load(nxt, free); nxt += 1
                if t == 0 and G == 'B' and D3 and nxt < 28 and nxt < n + dahead and len(free) > keep + 1: act_load(nxt, free); nxt += 1
            later = [r for r in wreg[n] + [areg[n]] if r < 144]
            if n >= 6:
                assert all(areg[k] < 144 for k in areg if k >= n - 1)
                for t in LQ[:6]: a(t)
                LQ = LQ[6:]
            if n in (3, 7, 11, 15) and n >= NPB: lds_inc_v(a, 10, 2, C_FREE - C_FULL)
            if nxt == 28 and not xdone and not LQ:
                xdone = True
                a('buffer_load_dwordx4 v[%d:%d], v%d, s[16:19], s45 offen %s' % (X1R, X1R + 3, XA, LD))
                a('buffer_load_ushort v%d, v%d, s[16:19], s45 offen %s' % (X1R + 4, XA + 1, LD))
        assert xdone and not LQ
        if G == 'A': a('s_branch km_djoin')
    a.label('km_djoin')
    a.reg = ''
    stamp(a, 10)
    a('s_waitcnt lgkmcnt(0)')
    a('v_cmp_lt_u32 vcc, 3, v165'); a('s_cmp_eq_u64 vcc, -1'); a('s_cbranch_scc1 km_x_ok')
    a('s_cmp_eq_u32 s27, 0'); a('s_cbranch_scc1 km_x_ok')
    a('s_mov_b32 s57, 0')
    a.label('km_x_sp')
    a('ds_read_b32 v9, v164'); a('s_waitcnt lgkmcnt(0)'); a('v_cmp_lt_u32 vcc, 3, v9'); a('s_cmp_eq_u64 vcc, -1'); a('s_cbranch_scc1 km_x_ok')
    a('s_sleep 1'); a('s_add_u32 s57, s57, 1'); a('s_cmp_lt_u32 s57, %d' % (SPIN * 16)); a('s_cbranch_scc1 km_x_sp')
    a.label('km_x_ok')
    a('s_nop 7')
    for k in range(1, 4):
        for hf in range(2): a('ds_write_b128 v%d, v[%d:%d] offset:%d' % (160 + k, 16 + 8 * k + 4 * hf, 19 + 8 * k + 4 * hf, 2048 * (k - 1) + 1024 * hf))
    X = 64; GF = 72
    a('s_waitcnt vmcnt(0)')
    unpack(a, GF, GBR, 4, 46)
    a('s_cmp_ge_u32 s52, 4'); a('s_cbranch_scc1 km_up')
    unpack(a, X, X1R, 4, 46)
    a('s_branch km_fin')
    a.label('km_up')
    unpack_rev(a, X, X1R, X1R + 4, 46)
    a.label('km_fin')
    a('s_waitcnt lgkmcnt(0)')
    lds_inc_v(a, 7, 2, C_XW - C_GO)
    lds_spin_v(a, 'km_spinX1', 7, '4', C_XW - C_GO, 0)
    for k in range(6): a('ds_read_b128 v[%d:%d], v160 offset:%d' % (80 + 4 * k, 83 + 4 * k, 1024 * k))
    for k in range(3):
        a('s_waitcnt lgkmcnt(%d)' % (4 - 2 * k))
        for i in range(0, 8, 2): a.pk('v_pk_add_f32', 16 + i, 16 + i, 80 + 8 * k + i)
    for r in range(8): a('v_fmac_f32 v%d, v%d, v%d' % (X + r, GF + r, 16 + r))
    for d in range(4): a('v_cvt_pk_bf16_f32 v%d, v%d, v%d' % (104 + d, X + 2 * d, X + 1 + 2 * d))
    a('buffer_store_dwordx4 v[104:107], v5, s[40:43], 0 offen')
    stamp(a, 11)
    assert nbar_h == 3 - B_MERGE and a.nbar == 3 - B_MERGE, (nbar_h, a.nbar)
    finish(a, name, 1)
    return name, a.text() + kernel_desc(name, 168, 100), (256, 768, LDS_TOTAL)

HEADER = open('adaLN_cond__spectral_fnet__geglu_ffn__prompt.s.ref').read().split('; Override launch')[0]
def all_kernels(): return [kA(), kM()]
GROUPS = {}
def build(kernels):
    hdr = HEADER
    body = '.amdgcn_target "amdgcn-amd-amdhsa--gfx950"\n.text\n'
    for name, text, (g, b, lds) in kernels:
        hdr += '; @launch kernel=%s grid=(%d,1,1) block=(%d,1,1) lds=%d\n' % (name, g, b, lds)
        body += text
    return hdr + body

if __name__ == '__main__':
    if len(sys.argv) > 2 and sys.argv[2] == 'debug': DEBUG = True
    for idx in range(512): assert (idx * 4682) >> 16 == idx // 14
    out = sys.argv[1] if len(sys.argv) > 1 else 'adaLN_cond__spectral_fnet__geglu_ffn__prompt.s'
    open(out, 'w').write(build(all_kernels()))
    print('wrote', out)
```

```python
import sys, struct
from asmlib import Asm, kernel_desc

PART = 0x000000
FLAGB= 0x010000
FLAGC= 0x010800
FLAGS= 0x011800
FLAGA= 0x013000
REGX = 0x011C00
FB2  = 0x012000
FC2  = 0x012400
CSG  = 0x080000
STATS= 0x020000
ZB   = 0x100000
X1T  = 0x300000
ZT   = 0x500000
ACT  = 0x700000
WSZ  = 0x1000000
STAMP = 0xE00000
DEBUG = False
EXP = set()
K4_MAP = '8x4'; K4_ROT = True; K5_ROT = True
PF_CODE = True; PF_W = 128; PF_WD = 2
ZST = ''
SPIN = 1 << 15
PSLEEP = 2
LSLEEP = 1
H_PRIO = 3
W_THR = 35
Z_TOUCH = 0
A_TOUCH = 0
PF_MODE = 'km'
TOUCH_AT = 0
SIDE_AT = 1
W_START = 'early'
FORCE_SLOW = 0
D_PRIO = 0
B_PRIO = 0
D_AHEAD = 10
D_INIT = 4
Z_INIT = 4
TAIL_B = 9
W_STASH = 0
W_MORE = 1
GATHER = 'w'
ZPF = 1
LD = 'sc1'
KA_W = 0
KM_W = 0
WD_FROM = 20
FB_ROT = 1
SELF_T = 0
PRE_Z = 0
PRE_A = 0
W_NT = ''
EPI_PK = 0
KA_BAR = 7
KA_GLATE = 1
PAD = 6000
PADEV = 0
PADW = 4
E_PRIO = 2
WD_MALL = 1
KA_MALL = 0
D_START = ''
LOG2E = 1.4426950408889634

class XAsm(Asm):
    def __init__(self): super().__init__(); self.nbar = 0; self.reg = ''
    def __call__(self, text, tag=None):
        t = text.strip()
        if self.reg:
            if (self.reg + 'nomfma') in EXP and t.startswith('v_mfma'): return
            if (self.reg + 'nods') in EXP and t.startswith('ds_read'): return
            if (self.reg + 'noload') in EXP and t.startswith('buffer_load'): return
            if (self.reg + 'plain') in EXP and t.startswith('buffer_load'): text = text.replace(' sc1', '')
            if (self.reg + 'novalu') in EXP and t.startswith(('v_mul', 'v_cvt', 'v_dot')): return
        super().__call__(text, tag)
    def pk(self, op, d, x, y, extra=''): self('%s v[%d:%d], v[%d:%d], v[%d:%d]%s' % (op, d, d + 1, x, x + 1, y, y + 1, extra))
    def mfma(self, acc, A, B, first=False):
        self('v_mfma_f32_32x32x16_bf16 v[%d:%d], v[%d:%d], v[%d:%d], %s' % (acc, acc + 15, A, A + 3, B, B + 3, '0' if first else 'v[%d:%d]' % (acc, acc + 15)))
    def bar(self, n=1): self('s_barrier'); self.nbar += n
    def role(self, l): self.label(l); self.hist = []

def fbits(f): return '0x%08x' % struct.unpack('<I', struct.pack('<f', f))[0]
def stamp(a, i):
    if 'lite' in EXP and i not in (0, 15): return
    if DEBUG and not ('bst' in EXP and getattr(a, 'inD', False) and i not in (10, 11, 15)): a('s_memrealtime s[%d:%d]' % (64 + 2 * i, 65 + 2 * i))
def cstamp(a, i):
    if DEBUG and 'cyc' in EXP: a('s_memtime s[%d:%d]' % (64 + 2 * i, 65 + 2 * i))
def finish(a, name, kidx, vbase=4):
    a.label(name + '_end')
    if 'padev' in EXP:
        a.hist = []
        a('s_cmp_lg_u32 s2, 37'); a('s_cbranch_scc1 %s_exit' % name); a('s_cmp_lg_u32 s3, %d' % (0 if kidx == 0 else PADW)); a('s_cbranch_scc1 %s_exit' % name)
        a('s_mov_b64 exec, 1'); a('v_mov_b32 v8, 0'); a('s_mov_b32 s62, 0x1f000'); a('s_waitcnt lgkmcnt(0)')
        if kidx == 1:
            a('s_waitcnt vmcnt(0)'); a('s_memrealtime s[94:95]'); a('s_waitcnt lgkmcnt(0)')
            a('s_mov_b32 s63, s%d' % (64 + 2 * PADEV)); a('s_mov_b32 s61, 0')
            a.label('km_padloop2')
            a('s_memrealtime s[58:59]'); a('s_waitcnt lgkmcnt(0)'); a('s_sub_u32 s60, s58, s63'); a('s_cmp_ge_u32 s60, 4000'); a('s_cbranch_scc1 %s_exit' % name)
            a('s_add_u32 s61, s61, 1'); a('s_cmp_lt_u32 s61, 100000'); a('s_cbranch_scc1 km_padloop2')
        a('s_branch %s_exit' % name)
    if 'pad' in EXP:
        a.hist = []
        a('s_cmp_lg_u32 s2, 0'); a('s_cbranch_scc1 %s_exit' % name); a('s_cmp_lg_u32 s3, 0'); a('s_cbranch_scc1 %s_exit' % name)
        a('s_mov_b64 exec, 1'); a('v_mov_b32 v8, 0'); a('s_mov_b32 s62, 0x1f000')
        if kidx == 0:
            a('s_waitcnt lgkmcnt(0)'); a('v_mov_b32 v9, s64'); a('buffer_store_dword v9, v8, s[16:19], s62 offen')
        else:
            a('buffer_load_dword v9, v8, s[16:19], s62 offen'); a('s_waitcnt vmcnt(0)'); a('v_readfirstlane_b32 s63, v9'); a('s_mov_b32 s61, 0')
            a.label('km_padloop')
            a('s_memrealtime s[64:65]'); a('s_waitcnt lgkmcnt(0)'); a('s_sub_u32 s66, s64, s63'); a('s_cmp_ge_u32 s66, %d' % PAD); a('s_cbranch_scc1 %s_exit' % name)
            a('s_add_u32 s61, s61, 1'); a('s_cmp_lt_u32 s61, 100000'); a('s_cbranch_scc1 km_padloop')
    if DEBUG:
        a.hist = []
        a('s_waitcnt vmcnt(0)')
        stamp(a, 15)
        a('s_waitcnt lgkmcnt(0)'); a('s_mov_b64 exec, 1')
        for i in range(16): a('v_mov_b32 v%d, s%d' % (vbase + i, 64 + 2 * i))
        a('s_lshl_b32 s60, s2, 4'); a('s_add_u32 s60, s60, s3'); a('s_lshl_b32 s60, s60, 6'); a('s_add_u32 s60, s60, 0x%x' % (STAMP + kidx * 0x80000))
        a('v_mov_b32 v%d, 0' % (vbase + 16))
        for i in range(4): a('buffer_store_dwordx4 v[%d:%d], v%d, s[16:19], s60 offen offset:%d' % (vbase + 4 * i, vbase + 4 * i + 3, vbase + 16, 16 * i))
        if 'dbgout' in EXP:
            a('s_cmp_lg_u32 s2, 37'); a('s_cbranch_scc1 %s_exit' % name)
            a('s_load_dwordx2 s[56:57], s[0:1], 96'); a('s_waitcnt lgkmcnt(0)')
            if kidx == 0: a('s_add_u32 s56, s56, 512'); a('s_addc_u32 s57, s57, 0')
            a('s_mov_b32 s58, 256'); a('s_mov_b32 s59, 0x20000')
            sel = {0: {0: [(0, 0), (3, 1), (4, 2), (15, 3)]}, 1: {4: [(0, 4), (14, 5), (12, 6), (5, 7), (6, 8), (7, 9), (8, 10), (9, 11), (10, 12), (15, 13)], 10: [(2, 14), (7, 15)]}}[kidx]
            for w, lst in sel.items():
                a('s_cmp_lg_u32 s3, %d' % w); a('s_cbranch_scc1 %s_dn%d' % (name, w))
                for st, pos in lst: a('buffer_store_dword v%d, v%d, s[56:59], 0 offen offset:%d' % (vbase + st, vbase + 16, 4 * pos))
                a.label('%s_dn%d' % (name, w))
    a.label(name + '_exit')
    a('s_endpgm')
def srd(a, d, lo, size):
    a('s_mov_b32 s%d, s%d' % (d, lo)); a('s_mov_b32 s%d, s%d' % (d + 1, lo + 1))
    a('s_mov_b32 s%d, 0x%x' % (d + 2, size)); a('s_mov_b32 s%d, 0x20000' % (d + 3))
def head(a, name, nwg):
    a.raw('.p2align 8'); a.raw('.globl %s' % name); a.raw('.type %s,@function' % name); a.label(name)
    a('s_cmp_ge_u32 s2, %d' % nwg); a('s_cbranch_scc1 %s_exit' % name)
    if DEBUG:
        for i in range(16): a('s_mov_b32 s%d, 0' % (64 + 2 * i))
    stamp(a, 0)
    if 'pad' in EXP: a('s_memrealtime s[64:65]')
def ids(a):
    a('v_and_b32 v1, 63, v0'); a('v_lshrrev_b32 v2, 6, v0'); a('v_readfirstlane_b32 s3, v2'); a('v_lshlrev_b32 v3, 4, v1')
    a('v_lshrrev_b32 v4, 5, v1'); a('v_and_b32 v6, 31, v1')
    a('s_and_b32 s20, s2, 7'); a('s_lshr_b32 s21, s2, 3'); a('s_and_b32 s26, s3, 3')
def swap23_v(a, dst, src, t0):
    a('v_and_b32 v%d, 0x13, v%d' % (dst, src))
    a('v_and_b32 v%d, 4, v%d' % (t0, src)); a('v_lshl_or_b32 v%d, v%d, 1, v%d' % (dst, t0, dst))
    a('v_and_b32 v%d, 8, v%d' % (t0, src)); a('v_lshrrev_b32 v%d, 1, v%d' % (t0, t0)); a('v_or_b32 v%d, v%d, v%d' % (dst, dst, t0))
def half_sum(a, regs, tmp, op='v_permlane32_swap_b32'):
    for i, r in enumerate(regs): a('v_mov_b32 v%d, v%d' % (tmp + i, r))
    for i, r in enumerate(regs): a('%s v%d, v%d' % (op, tmp + i, r))
    for i, r in enumerate(regs): a('v_add_f32 v%d, v%d, v%d' % (r, r, tmp + i))
def unpack(a, dst, src, n, mask):
    for d in range(n):
        a('v_lshlrev_b32 v%d, 16, v%d' % (dst + 2 * d, src + d)); a('v_and_b32 v%d, s%d, v%d' % (dst + 2 * d + 1, mask, src + d))
def unpack_rev(a, dst, src, extra, mask):
    a('v_lshlrev_b32 v%d, 16, v%d' % (dst, extra))
    for i in range(1, 8):
        el = 8 - i
        if el & 1: a('v_and_b32 v%d, s%d, v%d' % (dst + i, mask, src + el // 2))
        else: a('v_lshlrev_b32 v%d, 16, v%d' % (dst + i, src + el // 2))
def token_of(a, dst, tmp, sq):
    a('v_lshlrev_b32 v%d, 6, v6' % dst); a('v_add_u32 v%d, s%d, v%d' % (dst, sq, dst))
    a('v_subrev_u32 v%d, 992, v%d' % (tmp, dst)); a('v_cmp_lt_u32 vcc, 15, v6'); a('s_cmp_eq_u32 s%d, 0' % sq); a('s_cselect_b64 vcc, vcc, 0')
    a('v_cndmask_b32 v%d, v%d, v%d, vcc' % (dst, dst, tmp))
def mirror_if(a, dst, t0, t1):
    a('s_cselect_b64 s[58:59], -1, 0')
    a('v_sub_u32 v%d, 2048, v%d' % (t0, dst)); a('v_cmp_eq_u32 vcc, 0, v%d' % dst); a('v_mov_b32 v%d, 1024' % t1); a('v_cndmask_b32 v%d, v%d, v%d, vcc' % (t0, t0, t1))
    a('v_cndmask_b32 v%d, v%d, v%d, s[58:59]' % (dst, dst, t0))


def w_rows_touch(a, u, first, nst, wsel, srd0, vdst):
    for k in range(nst):
        a('s_lshl_b32 s46, s20, 1'); a('s_add_u32 s46, s46, s%d' % wsel); a('s_add_u32 s46, s46, %d' % (first + k * u)); a('s_and_b32 s46, s46, 15')
        a('s_lshl_b32 s46, s46, 5'); a('s_add_u32 s46, s46, s21')
        a('s_sub_u32 s47, 768, s46'); a('s_cmp_eq_u32 s46, 256'); a('s_cselect_b32 s47, 256, s47'); a('s_cmp_lt_u32 s46, 256'); a('s_cselect_b32 s46, s46, s47')
        a('s_mul_i32 s46, s46, 3584')
        for m in range(2): a('buffer_load_dword v%d, v%d, s[%d:%d], s46 offen' % (vdst, vdst + 1, srd0 + 4 * m, srd0 + 4 * m + 3))

XP = 1040
def phaseA(a, name):
    SA = 64 * XP; GP = SA + 512
    KC = C_KC
    a('v_mov_b32 v8, %d' % CNT)
    for r in range(12, 16): a('v_mov_b32 v%d, 0' % r)
    a('v_lshl_add_u32 v8, v6, 4, v8'); a('s_mov_b32 exec_lo, 0x3ff'); a('s_mov_b32 exec_hi, 0'); a('ds_write_b128 v8, v[12:15]'); a('s_mov_b64 exec, -1')
    def arriveA(u):
        a('s_waitcnt vmcnt(0)')
        a('v_mov_b32 v8, %d' % C_ARRA); a('v_mov_b32 v9, 1'); a('s_mov_b64 exec, 1')
        a('ds_add_rtn_u32 v10, v8, v9'); a('ds_read_b32 v11, v8 offset:%d' % (C_INIT - C_ARRA)); a('s_waitcnt lgkmcnt(0)')
        a('v_readfirstlane_b32 s56, v10'); a('v_readfirstlane_b32 s57, v11'); a('s_mov_b64 exec, -1')
        a('s_cmp_lg_u32 s56, 4'); a('s_cbranch_scc1 km_start')
        a('s_branch ka_signal')
    a('s_cmp_ge_u32 s3, 8'); a('s_cbranch_scc1 ka_gemv')
    a('s_lshr_b32 s23, s21, 3'); a('s_lshl_b32 s22, s20, 2'); a('s_add_u32 s23, s23, s22')
    a('s_and_b32 s24, s21, 7')
    a('s_lshl_b32 s25, s3, 18'); a('s_lshl_b32 s27, s23, 10'); a('s_add_u32 s25, s25, s27')
    a('s_mul_i32 s28, s3, %d' % (8 * XP)); a('s_mov_b32 s27, s24')
    a('v_and_b32 v12, 7, v1'); a('v_mul_u32_u24 v13, %d, v12' % XP); a('v_lshrrev_b32 v14, 3, v1'); a('v_lshl_add_u32 v13, v14, 7, v13'); a('v_add_u32 v13, s28, v13')
    a('s_waitcnt lgkmcnt(0)')
    srd(a, 12, 4, 2048 * 1024); srd(a, 16, 6, WSZ); a('s_mov_b32 s46, 256'); a('s_mov_b32 s47, 0x20000')
    for i in range(8):
        a('s_mul_i32 s31, s27, %d' % XP); a('s_add_u32 m0, s31, s28'); a('s_lshl_b32 s32, s27, 15'); a('s_add_u32 s32, s32, s25')
        a('buffer_load_dwordx4 v3, s[12:15], s32 offen lds')
        if i == KA_BAR: a('s_barrier')
        if i < 7: a('s_add_u32 s27, s27, 1'); a('s_and_b32 s27, s27, 7')
    a('s_lshl_b32 s31, s3, 3'); a('v_add_u32 v17, s31, v12'); a('v_lshlrev_b32 v18, 1, v17'); a('v_lshlrev_b32 v17, 2, v17')
    a('v_add_u32 v17, %d, v17' % SA); a('v_add_u32 v18, %d, v18' % SA)
    for r in range(24, 32): a('v_mov_b32 v%d, 0' % r)
    a('v_mov_b32 v21, 0'); a('v_mov_b32 v22, 0x3f803f80'); a('s_mov_b32 s36, 0xffff0000')
    BF = 32
    a('s_cmp_ge_u32 s3, 4'); a('s_cbranch_scc1 ka_nogen')
    a('s_and_b32 s29, s3, 1'); a('s_lshr_b32 s30, s3, 1')
    a('s_lshl_b32 s31, s29, 5'); a('v_add_u32 v7, s31, v6')
    a('v_lshrrev_b32 v8, 1, v7'); a('v_cmp_eq_u32 vcc, 1, v7'); a('v_cndmask_b32 v8, v8, 32, vcc')
    a('v_and_b32 v9, 1, v7'); a('v_cndmask_b32 v9, v9, 0, vcc'); a('v_cvt_f32_u32 v9, v9'); a('v_mul_f32 v9, %s, v9' % fbits(-0.25))
    a('v_cvt_f32_u32 v8, v8'); a('v_mul_f32 v8, %s, v8' % fbits(1 / 64))
    a('v_lshlrev_b32 v10, 3, v4'); a('v_cvt_f32_u32 v10, v10')
    a('v_fma_f32 v%d, v8, v10, v9' % BF); a('v_mul_f32 v11, %s, v8' % fbits(16.0))
    for i in range(1, 8): a('v_add_f32 v%d, v%d, v8' % (BF + i, BF + i - 1))
    for k in range(8, 32): a('v_add_f32 v%d, v%d, v11' % (BF + k, BF + k - 8))
    for k in range(32): a('v_cos_f32 v%d, v%d' % (BF + k, BF + k))
    a('v_bfe_u32 v15, v1, 2, 2'); a('v_lshl_add_u32 v15, v4, 3, v15'); a('v_mul_u32_u24 v15, %d, v15' % XP)
    a('v_and_b32 v16, 1, v1'); a('v_lshl_add_u32 v15, v16, 5, v15'); a('v_bfe_u32 v16, v1, 4, 1'); a('v_lshl_add_u32 v15, v16, 4, v15')
    a('v_bfe_u32 v16, v1, 1, 1'); a('v_lshl_add_u32 v15, v16, 3, v15')
    a('s_lshl_b32 s31, s24, 7'); a('s_lshl_b32 s32, s30, 6'); a('s_add_u32 s31, s31, s32'); a('v_add_u32 v15, s31, v15')
    a('v_lshlrev_b32 v19, 5, v4'); a('v_add_u32 v19, %d, v19' % SA); a('v_lshlrev_b32 v20, 4, v4'); a('v_add_u32 v20, %d, v20' % SA)
    a('s_lshl_b32 s31, s3, 11'); a('s_add_u32 s31, s31, %d' % TB); a('v_lshlrev_b32 v21, 6, v6'); a('v_lshl_add_u32 v21, v4, 5, v21'); a('v_add_u32 v21, s31, v21'); a('v_add_u32 v23, s31, v3')
    a('s_lshl_b32 s33, s24, 1'); a('s_add_u32 s33, s33, s30'); a('s_lshl_b32 s33, s33, 17'); a('s_lshl_b32 s34, s23, 12'); a('s_add_u32 s33, s33, s34'); a('s_add_u32 s33, s33, 0x%x' % ZB)
    a('s_lshl_b32 s34, s29, 11'); a('s_add_u32 s33, s33, s34')
    a.label('ka_nogen')
    a('s_waitcnt vmcnt(0)')
    a.label('ka_w1')
    XR = 64
    for j in range(8): a('ds_read_b128 v[%d:%d], v13 offset:%d' % (XR + 4 * j, XR + 4 * j + 3, 16 * j))
    for j in range(8):
        a('s_waitcnt lgkmcnt(%d)' % (7 - j))
        for d in range(4):
            a('v_dot2c_f32_bf16 v%d, v%d, v22' % (24 + d, XR + 4 * j + d)); a('v_dot2c_f32_bf16 v%d, v%d, v%d' % (28 + d, XR + 4 * j + d, XR + 4 * j + d))
    a('s_nop 2')
    a('v_add_f32 v24, v24, v25'); a('v_add_f32 v26, v26, v27'); a('v_add_f32 v28, v28, v29'); a('v_add_f32 v30, v30, v31')
    a('v_add_f32 v24, v24, v26'); a('v_add_f32 v25, v28, v30')
    a('v_add_f32_dpp v24, v24, v24 row_ror:8'); a('v_add_f32_dpp v25, v25, v25 row_ror:8')
    half_sum(a, [24, 25], 26, 'v_permlane16_swap_b32'); half_sum(a, [24, 25], 26)
    a('v_mul_f32 v24, %s, v24' % fbits(-1.0 / 512)); a('v_mul_f32 v25, %s, v25' % fbits(1.0 / 512))
    a('v_fma_f32 v25, -v24, v24, v25'); a('v_max_f32 v25, 0, v25'); a('v_add_f32 v25, %s, v25' % fbits(1e-5)); a('v_rsq_f32 v25, v25')
    a('v_cvt_pk_bf16_f32 v26, v24, v24'); a('v_and_b32 v27, s36, v26'); a('v_sub_f32 v27, v24, v27'); a('v_cvt_pk_bf16_f32 v27, v27, v27')
    a('ds_write_b32 v17, v25'); a('ds_write_b16 v18, v26 offset:256'); a('ds_write_b16 v18, v27 offset:384')
    a('s_waitcnt lgkmcnt(0)')
    lds_inc(a, KC)
    a('s_cmp_ge_u32 s3, 4'); a('s_cbranch_scc1 ka_pf')
    lds_spin(a, 'ka_spin', KC, 8)
    RR = 64; AF = 96; MF = 112; ACC = 64
    for j in range(4):
        for k in range(2): a('ds_read_b128 v[%d:%d], v19 offset:%d' % (RR + 8 * j + 4 * k, RR + 8 * j + 4 * k + 3, 64 * j + 16 * k), tag='r%d' % j)
    for j in range(4):
        for hf in range(2): a('ds_read_b64_tr_b16 v[%d:%d], v15 offset:%d' % (AF + 4 * j + 2 * hf, AF + 4 * j + 2 * hf + 1, (16 * j + 4 * hf) * XP), tag='a%d' % j)
    for j in range(4):
        a.wait_lg('r%d' % j)
        for i in range(0, 8, 2): a.pk('v_pk_mul_f32', BF + 8 * j + i, BF + 8 * j + i, RR + 8 * j + i)
        for d in range(4): a('v_cvt_pk_bf16_f32 v%d, v%d, v%d' % (BF + 8 * j + d, BF + 8 * j + 2 * d, BF + 8 * j + 2 * d + 1))
        for k in range(2): a('ds_read_b128 v[%d:%d], v20 offset:%d' % (MF + 8 * j + 4 * k, MF + 8 * j + 4 * k + 3, 256 + 128 * k + 32 * j), tag='m%d' % j)
    for j in range(4):
        a.wait_lg('a%d' % j); a.mfma(ACC, AF + 4 * j, BF + 8 * j, j == 0)
    for j in range(4):
        a.wait_lg('m%d' % j); a.mfma(ACC, MF + 8 * j, BF + 8 * j); a.mfma(ACC, MF + 8 * j + 4, BF + 8 * j)
    for d in range(8): a('v_cvt_pk_bf16_f32 v%d, v%d, v%d' % (80 + d, ACC + 2 * d, ACC + 2 * d + 1))
    a('ds_write_b128 v21, v[80:83]'); a('ds_write_b128 v21, v[84:87] offset:16'); a('s_waitcnt lgkmcnt(0)')
    a('ds_read_b128 v[88:91], v23'); a('ds_read_b128 v[92:95], v23 offset:1024')
    a('s_waitcnt lgkmcnt(1)'); a('buffer_store_dwordx4 v[88:91], v3, s[16:19], s33 offen sc1')
    a('s_waitcnt lgkmcnt(0)'); a('buffer_store_dwordx4 v[92:95], v3, s[16:19], s33 offen offset:1024 sc1')
    stamp(a, 14)
    arriveA('m')
    a.role('ka_signal')
    a('s_cmp_lg_u32 s57, 0'); a('s_cbranch_scc1 ka_inited')
    a('s_mov_b32 s57, 0')
    a.label('ka_iw')
    a('s_load_dword s56, s[44:45], 0 glc'); a('s_waitcnt lgkmcnt(0)'); a('s_cmp_lg_u32 s56, 0'); a('s_cbranch_scc1 ka_inited')
    a('s_sleep 2'); a('s_add_u32 s57, s57, 1'); a('s_cmp_lt_u32 s57, %d' % SPIN); a('s_cbranch_scc1 ka_iw')
    a.label('ka_inited')
    a('s_lshl_b32 s57, s20, 7'); a('s_add_u32 s57, s57, 0x%x' % FLAGA)
    a('s_mov_b32 s56, 1'); a('s_atomic_add s56, s[6:7], s57 glc'); a('s_waitcnt lgkmcnt(0)')
    a('s_cmp_lg_u32 s56, 31'); a('s_cbranch_scc1 km_start')
    a('s_mov_b32 s56, 1'); a('s_atomic_add s56, s[44:45], 64 glc'); a('s_waitcnt lgkmcnt(0)')
    a('s_cmp_lg_u32 s56, 7'); a('s_cbranch_scc1 km_start')
    a('s_mov_b64 exec, 1'); a('v_mov_b32 v8, 0'); a('v_mov_b32 v9, 1'); a('buffer_store_dword v9, v8, s[44:47], 0 offen offset:128 sc1'); a('s_mov_b64 exec, -1')
    a('s_branch km_start')
    a.role('ka_pf')
    a('s_cmp_lg_u32 s3, 4'); a('s_cbranch_scc1 km_start')
    a('v_mov_b32 v8, 0'); a('buffer_load_dword v9, v8, s[44:47], 0 offen sc1'); a('v_mov_b32 v8, %d' % C_INIT); a('s_waitcnt vmcnt(0)'); a('ds_write_b32 v8, v9')
    a('s_branch km_start')
    a.role('ka_gemv')
    a('v_and_b32 v5, 255, v0'); a('v_lshrrev_b32 v7, 3, v5'); a('v_and_b32 v8, 7, v5')
    a('s_lshr_b32 s22, s2, 2'); a('s_and_b32 s23, s2, 3')
    a('v_lshlrev_b32 v9, 3, v7'); a('s_lshl_b32 s24, s23, 8')
    a('v_mul_u32_u24 v10, %d, v7' % (4 * 6144)); a('v_lshl_add_u32 v10, v8, 4, v10')
    a('s_mul_i32 s25, s23, %d' % (128 * 6144)); a('s_lshl_b32 s27, s22, 7'); a('s_add_u32 s25, s25, s27')
    a('v_lshrrev_b32 v30, 4, v5'); a('v_lshlrev_b32 v30, 8, v30'); a('v_lshl_add_u32 v30, v8, 5, v30'); a('v_add_u32 v30, %d, v30' % GP)
    a('s_waitcnt lgkmcnt(0)')
    srd(a, 12, 8, 1024); srd(a, 28, 10, 512 * 6144); srd(a, 16, 6, WSZ); a('s_mov_b32 s46, 256'); a('s_mov_b32 s47, 0x20000')
    a('s_cmp_lt_u32 s2, 192'); a('s_cbranch_scc1 ka_job')
    a('s_lshl_b32 s25, s2, 4'); a('s_add_u32 s25, s25, s3')
    a('s_cmp_lg_u32 s25, %d' % (255 * 16 + 8)); a('s_cbranch_scc1 ka_nj')
    a('s_mov_b32 s24, 0x%x' % FLAGA)
    a('buffer_store_dwordx4 v[12:15], v3, s[16:19], s24 offen sc1')
    a.label('ka_nj')
    a('s_barrier')
    a('s_cmp_lg_u32 s25, %d' % (255 * 16 + 8)); a('s_cbranch_scc1 ka_nj2')
    a('s_waitcnt vmcnt(0)')
    a('s_mov_b64 exec, 1'); a('v_mov_b32 v8, 0'); a('v_mov_b32 v9, 1'); a('buffer_store_dword v9, v8, s[44:47], 0 offen sc1'); a('s_mov_b64 exec, -1')
    a('s_mov_b32 s24, 0x%x' % FLAGB)
    for i in range(10): a('buffer_store_dwordx4 v[12:15], v3, s[16:19], s24 offen sc1'); a('s_add_u32 s24, s24, 1024')
    a.label('ka_nj2')
    if PF_CODE:
        a('s_cmp_lt_u32 s21, 30'); a('s_cbranch_scc1 ka_npf'); a('s_cmp_lt_u32 s26, 2'); a('s_cbranch_scc1 ka_npf')
        a('s_getpc_b64 s[40:41]')
        a.label('ka_pc')
        a('s_add_u32 s40, s40, km_start-ka_pc'); a('s_addc_u32 s41, s41, 0')
        a('s_mov_b32 s42, %s_exit-km_start' % name); a('s_mov_b32 s43, 0x20000')
        a('s_and_b32 s24, s21, 1'); a('s_lshl_b32 s24, s24, 1'); a('s_add_u32 s24, s24, s26'); a('s_sub_u32 s24, s24, 2'); a('s_lshl_b32 s24, s24, 13')
        a('v_lshlrev_b32 v8, 7, v1')
        a('buffer_load_dword v167, v8, s[40:43], s24 offen')
        a.label('ka_npf')
    a('s_cmp_lg_u32 s3, 8'); a('s_cbranch_scc1 km_start')
    arriveA('n')
    a.role('ka_job')
    a('buffer_load_dwordx2 v[12:13], v9, s[12:15], s24 offen', tag='c')
    if KA_GLATE: a('s_barrier')
    for i in range(4):
        a('buffer_load_dwordx4 v[%d:%d], v10, s[28:31], s25 offen' % (32 + 4 * i, 35 + 4 * i), tag='w%d' % i)
        if i < 3: a('s_add_u32 s25, s25, 6144')
    if not KA_GLATE: a('s_barrier')
    a('s_mov_b32 s36, 0xffff0000'); a('s_mov_b32 s40, 0x05040100'); a('s_mov_b32 s41, 0x07060302')
    for c in range(8): a('v_mov_b32 v%d, 0' % (64 + c))
    a.wait_vm('c')
    unpack(a, 16, 12, 2, 36)
    for i in range(4): a('v_mul_f32 v%d, %s, v%d' % (20 + i, fbits(-LOG2E), 16 + i))
    for i in range(4): a('v_exp_f32 v%d, v%d' % (20 + i, 20 + i))
    for i in range(4): a('v_add_f32 v%d, 1.0, v%d' % (20 + i, 20 + i))
    for i in range(4): a('v_rcp_f32 v%d, v%d' % (20 + i, 20 + i))
    for i in range(4): a('v_mul_f32 v%d, v%d, v%d' % (20 + i, 20 + i, 16 + i))
    for d in range(2): a('v_cvt_pk_bf16_f32 v%d, v%d, v%d' % (12 + d, 20 + 2 * d, 21 + 2 * d))
    for ip in range(2):
        a.wait_vm('w%d' % (2 * ip + 1))
        r0 = 32 + 8 * ip; r1 = r0 + 4
        for d in range(4):
            a('v_perm_b32 v%d, v%d, v%d, s40' % (48 + 2 * d, r1 + d, r0 + d)); a('v_perm_b32 v%d, v%d, v%d, s41' % (49 + 2 * d, r1 + d, r0 + d))
        for c in range(8): a('v_dot2c_f32_bf16 v%d, v%d, v%d' % (64 + c, 48 + c, 12 + ip))
        a('s_nop 2')
    for c in range(8): a('v_add_f32_dpp v%d, v%d, v%d row_ror:8' % (64 + c, 64 + c, 64 + c))
    a('ds_write_b128 v30, v[64:67]'); a('ds_write_b128 v30, v[68:71] offset:16')
    a('s_waitcnt lgkmcnt(0)')
    a('v_mov_b32 v8, %d' % (KC + 4)); a('v_mov_b32 v9, 1'); a('s_mov_b64 exec, 1')
    a('ds_add_rtn_u32 v10, v8, v9'); a('s_waitcnt lgkmcnt(0)'); a('v_readfirstlane_b32 s56, v10'); a('s_mov_b64 exec, -1')
    a('s_cmp_lg_u32 s56, 3'); a('s_cbranch_scc1 km_start')
    a('v_lshlrev_b32 v10, 2, v1'); a('v_add_u32 v10, %d, v10' % GP)
    for p in range(8): a('ds_read2st64_b32 v[%d:%d], v10 offset0:%d offset1:%d' % (32 + 2 * p, 33 + 2 * p, 2 * p, 2 * p + 1))
    a('s_lshr_b32 s24, s22, 3')
    a('s_lshl_b32 s25, s22, 6'); a('v_add_u32 v23, s25, v1'); a('v_and_b32 v26, 511, v23')
    a('v_sub_u32 v27, 512, v26'); a('v_and_b32 v27, 255, v27'); a('v_or_b32 v27, 256, v27')
    a('v_cmp_lt_u32 vcc, 255, v26'); a('s_sub_u32 s25, s24, 2'); a('s_cmp_lt_u32 s25, 3'); a('s_cselect_b64 vcc, vcc, 0')
    a('v_cndmask_b32 v27, v26, v27, vcc'); a('v_lshlrev_b32 v27, 2, v27')
    a('s_lshl_b32 s24, s24, 11'); a('s_mul_i32 s25, s23, 12288'); a('s_add_u32 s24, s24, s25')
    a('s_waitcnt lgkmcnt(0)')
    for st in (8, 4, 2, 1):
        for i in range(st): a('v_add_f32 v%d, v%d, v%d' % (32 + i, 32 + i, 32 + st + i))
    a('buffer_store_dword v32, v27, s[16:19], s24 offen sc1')
    arriveA('g')

def cheb(a, dst, p1, p2, K):
    for i in range(0, 8, 2):
        a('v_pk_fma_f32 v[%d:%d], v[%d:%d], v[%d:%d], v[%d:%d] op_sel_hi:[1,0,1] neg_lo:[0,0,1] neg_hi:[0,0,1]' % (
            dst + i, dst + i + 1, p1 + i, p1 + i + 1, K, K + 1, p2 + i, p2 + i + 1))

PS = 156672; LDS_TOTAL = PS + 7168
G2H = PS; SBH = PS + 1024; GBH = PS + 2048; SAL = PS + 3072; YST = SAL + 1024; CNT = PS + 6656
TB = 74240; NPRE = 9
ZI = TB; B1L = TB + 65536; G1L = B1L + 8192; GAL = G1L + 2048; G2L = GAL + 2048; EXT = G2L + 2048; XEL = EXT + 2048
assert XEL + 512 <= PS and NPRE * 8192 <= TB
XCH = 131072
C_ARRB, C_RED, C_ARRC, C_W1, C_W2, C_GOB, C_GO, C_Y, C_ISS, C_ARRS, C_PROG, C_FULL, C_FREE, C_XW, C_XR = [CNT + o for o in (0, 4, 8, 16, 20, 24, 40, 32, 36, 28, 48, 64, 80, 96, 104)]
C_KC = CNT + 128; C_ARRA = CNT + 136; C_INIT = CNT + 140; C_GOA = CNT + 144; W1_EARLY = 1
C_HOLD = CNT + 108; HOLD = 0; PASS2 = 0; PRIO_EA = 3; Q0_DRY = 0; C_FREEB = CNT + 112
W2_MODE = 'arr'; B_MERGE = 1
S_ATOM = 1; DB_INIT = 8; DB_AHEAD = 14; R_PRIO = 3; NPB = 12; D3 = 1; DIRECT_C = 0; DIRECT_B = 0
ZRING = 12; NWB = 6; PRIO_A = 1; PRIO_B = 1; PRIO_D = 0; PRIO_DB = 0; B_DELAY = 0

def poll(a, lbl, soff, nlanes, need=0):
    a('v_lshlrev_b32 v8, 2, v1'); a('s_mov_b32 s57, 0'); a('s_mov_b32 exec_lo, 0x%x' % ((1 << nlanes) - 1)); a('s_mov_b32 exec_hi, 0')
    a.label(lbl)
    a('buffer_load_dword v9, v8, s[16:19], s%d offen sc1' % soff); a('s_waitcnt vmcnt(0)')
    a('v_cmp_lt_u32 vcc, %d, v9' % max(0, need - 1)); a('s_cmp_eq_u32 vcc_lo, 0x%x' % ((1 << nlanes) - 1)); a('s_cbranch_scc1 %s_ok' % lbl)
    a('s_sleep %d' % PSLEEP); a('s_add_u32 s57, s57, 1'); a('s_cmp_lt_u32 s57, %d' % SPIN); a('s_cbranch_scc1 %s' % lbl)
    a.label(lbl + '_ok')
    a('s_mov_b64 exec, -1')
def lds_spin(a, lbl, addr, val):
    a('v_mov_b32 v8, %d' % addr); a('s_mov_b32 s57, 0')
    a.label(lbl)
    a('ds_read_b32 v9, v8'); a('s_waitcnt lgkmcnt(0)'); a('v_readfirstlane_b32 s56, v9')
    a('s_cmp_ge_u32 s56, %d' % val); a('s_cbranch_scc1 %s_ok' % lbl)
    a('s_sleep %d' % LSLEEP); a('s_add_u32 s57, s57, 1'); a('s_cmp_lt_u32 s57, %d' % (SPIN * 16)); a('s_cbranch_scc1 %s' % lbl)
    a.label(lbl + '_ok')
def lds_spin_v(a, lbl, vaddr, sval, off=0, sl=None):
    a('s_mov_b32 s57, 0')
    a.label(lbl)
    a('ds_read_b32 v9, v%d offset:%d' % (vaddr, off)); a('s_waitcnt lgkmcnt(0)'); a('v_readfirstlane_b32 s56, v9')
    a('s_cmp_ge_u32 s56, %s' % sval); a('s_cbranch_scc1 %s_ok' % lbl)
    a('s_sleep %d' % (LSLEEP if sl is None else sl)); a('s_add_u32 s57, s57, 1'); a('s_cmp_lt_u32 s57, %d' % (SPIN * 16)); a('s_cbranch_scc1 %s' % lbl)
    a.label(lbl + '_ok')
def lds_inc_v(a, vaddr, vone, off=0):
    a('s_mov_b64 exec, 1'); a('ds_add_u32 v%d, v%d offset:%d' % (vaddr, vone, off)); a('s_mov_b64 exec, -1')
def lds_inc(a, addr):
    a('v_mov_b32 v8, %d' % addr); a('v_mov_b32 v9, 1'); a('s_mov_b64 exec, 1'); a('ds_add_u32 v8, v9'); a('s_mov_b64 exec, -1')
def arrive(a, lbl, addr, n, soff, total=0, direct=False):
    a('s_waitcnt vmcnt(0)')
    a('v_mov_b32 v8, %s' % addr); a('v_mov_b32 v9, 1'); a('s_mov_b64 exec, 1')
    a('ds_add_rtn_u32 v10, v8, v9'); a('s_waitcnt lgkmcnt(0)'); a('v_readfirstlane_b32 s56, v10')
    a('s_cmp_lg_u32 s56, %d' % (n - 1)); a('s_cbranch_scc1 %s' % lbl)
    a('v_mov_b32 v8, 0')
    if direct:
        a('buffer_atomic_add v9, v8, s[16:19], s%d offen sc1' % soff)
    elif total and S_ATOM:
        a('s_mov_b32 s56, 1'); a('s_atomic_add s56, s[6:7], s%d glc' % soff); a('s_waitcnt lgkmcnt(0)')
        a('s_cmp_lg_u32 s56, %d' % (total - 1)); a('s_cbranch_scc1 %s' % lbl)
        if S_ATOM == 2:
            a('s_add_u32 s57, s%d, 128' % soff); a('s_mov_b32 s56, 1'); a('s_atomic_add s56, s[6:7], s57'); a('s_waitcnt lgkmcnt(0)')
        else:
            a('buffer_store_dword v9, v8, s[16:19], s%d offen offset:128 sc1' % soff)
    elif total:
        a('v_mov_b32 v10, 1'); a('buffer_atomic_add v10, v8, s[16:19], s%d offen sc0 sc1' % soff); a('s_waitcnt vmcnt(0)'); a('v_readfirstlane_b32 s56, v10')
        a('s_cmp_lg_u32 s56, %d' % (total - 1)); a('s_cbranch_scc1 %s' % lbl)
        a('buffer_store_dword v9, v8, s[16:19], s%d offen offset:128 sc1' % soff)
    else:
        a('buffer_store_dword v9, v8, s[16:19], s%d offen sc1' % soff)
    a.label(lbl)
    a('s_mov_b64 exec, -1')

def gen_a2(a, A2, CH, sphase):
    swap23_v(a, 9, 6, 10); a('s_lshl_b32 s32, s22, 5'); a('v_add_u32 v9, s32, v9')
    a('s_lshl_b32 s32, s25, 5'); a('v_lshl_add_u32 v8, v4, 3, s32')
    a('v_mul_u32_u24 v12, v9, v8'); a('v_and_b32 v12, 511, v12'); a('v_cvt_f32_u32 v12, v12'); a('v_cvt_f32_u32 v13, v9')
    a('v_mul_f32 v13, %s, v13' % fbits(1 / 512)); a('v_mov_b32 v%d, %s' % (CH[0], sphase)); a('v_fmac_f32 v%d, %s, v12' % (CH[0], fbits(1 / 512)))
    a('v_mul_f32 v10, %s, v13' % fbits(16.0))
    for i in range(1, 8): a('v_add_f32 v%d, v%d, v13' % (CH[0] + i, CH[0] + i - 1))
    for i in range(8): a('v_add_f32 v%d, v%d, v10' % (CH[1] + i, CH[0] + i))
    a('v_cos_f32 v10, v10')
    for g in range(2):
        for i in range(8): a('v_cos_f32 v%d, v%d' % (CH[g] + i, CH[g] + i))
    a('v_add_f32 v10, v10, v10')
    for j in range(8):
        c = CH[j % 3]
        if j >= 2: cheb(a, c, CH[(j - 1) % 3], CH[(j - 2) % 3], 10)
        for d in range(4): a('v_cvt_pk_bf16_f32 v%d, v%d, v%d' % (A2 + 4 * j + d, c + 2 * d, c + 2 * d + 1))
def z_bases(a):
    a('v_bfe_u32 v10, v1, 2, 2'); a('v_lshl_add_u32 v10, v4, 3, v10'); a('v_lshlrev_b32 v10, 7, v10')
    a('v_bfe_u32 v11, v1, 4, 1'); a('v_lshl_add_u32 v10, v11, 5, v10'); a('v_and_b32 v11, 1, v1'); a('v_lshl_add_u32 v10, v11, 4, v10')
    a('v_bfe_u32 v11, v1, 1, 1'); a('v_lshl_add_u32 v10, v11, 3, v10'); a('v_bfe_u32 v11, v1, 3, 1'); a('v_lshl_add_u32 v10, v11, 6, v10')
    a('v_xor_b32 v11, 64, v10')
    a('s_lshl_b32 s32, s26, 12'); a('s_add_u32 s32, s32, %d' % ZI); a('v_add_u32 v10, s32, v10'); a('v_add_u32 v11, s32, v11')
    a('v_lshlrev_b32 v12, 5, v4'); a('v_add_u32 v12, %d, v12' % G1L)
    a('v_mov_b32 v14, 0'); a('v_mov_b32 v15, 0xbf803f80')

KNAME = 'adaLN_cond__spectral_fnet__geglu_ffn__prompt_kernel'
def kM():
    W2_AT = {'go': (C_GOB, 1), 'iss': (C_ISS, 4), 'arr': (C_ARRB, 4)}[W2_MODE]
    a = XAsm(); name = KNAME
    head(a, name, 256)
    a('s_load_dwordx2 s[6:7], s[0:1], 104'); a('s_load_dwordx2 s[4:5], s[0:1], 0'); a('s_load_dwordx4 s[8:11], s[0:1], 72'); a('s_load_dwordx2 s[44:45], s[0:1], 96')
    ids(a)
    phaseA(a, name)
    a.role('km_start'); a.vm = 0; a.tags = {}; a.lg = 0; a.ltags = {}
    a('s_and_b32 s22, s21, 7'); a('s_lshr_b32 s23, s21, 3'); a('s_lshl_b32 s24, s20, 2'); a('s_add_u32 s23, s23, s24')
    a('s_lshl_b32 s25, s26, 2'); a('s_lshl_b32 s24, s22, 1'); a('s_add_u32 s25, s25, s24')
    def cmap():
        a('s_and_b32 s49, s21, 3'); a('s_lshr_b32 s48, s21, 2'); a('s_lshl_b32 s50, s49, 1'); a('s_add_u32 s50, s50, s48'); a('s_lshl_b32 s50, s50, 1'); a('s_and_b32 s50, s50, 15')
        a('s_and_b32 s51, s20, 4'); a('s_add_u32 s49, s49, s51'); a('s_min_u32 s51, s49, 6')
        a('s_cmp_ge_u32 s21, 28'); a('s_cselect_b32 s48, s51, s48')
        a('s_and_b32 s51, s20, 3'); a('s_mul_i32 s51, s51, 7'); a('s_add_u32 s48, s48, s51')
    def dmap():
        a('s_and_b32 s51, s21, 3'); a('s_lshr_b32 s52, s21, 2'); a('s_lshl_b32 s53, s20, 2'); a('s_add_u32 s53, s53, s51')
        a('s_lshl_b32 s54, s51, 1'); a('s_add_u32 s54, s54, s52'); a('s_and_b32 s54, s54, 7'); a('s_cmp_eq_u32 s54, 7'); a('s_cselect_b32 s54, 3, s54')
    def region(dst, k, tmp):
        a('s_add_u32 s%d, s54, %d' % (dst, k)); a('s_sub_u32 s%d, s%d, 7' % (tmp, dst)); a('s_cmp_ge_u32 s%d, 7' % dst); a('s_cselect_b32 s%d, s%d, s%d' % (dst, tmp, dst))
    a('s_cmp_lt_u32 s3, 8'); a('s_cbranch_scc1 km_compute')
    a('s_load_dwordx4 s[8:11], s[0:1], 48')
    if H_PRIO: a('s_setprio %d' % H_PRIO)
    a('v_lshrrev_b32 v5, 3, v1'); a('v_lshlrev_b32 v5, 12, v5'); a('v_and_b32 v7, 7, v1'); a('v_lshrrev_b32 v8, 2, v1'); a('v_and_b32 v8, 4, v8'); a('v_xor_b32 v7, v7, v8')
    a('v_lshl_add_u32 v5, v7, 4, v5')
    a('s_lshl_b32 s27, s23, 7'); a('s_add_u32 s27, s27, 0x%x' % ZB)
    a('s_lshl_b32 s28, s26, 12'); a('s_add_u32 s28, s28, %d' % ZI)
    a('s_lshl_b32 s33, s26, 9'); a('v_lshlrev_b32 v16, 4, v6'); a('v_add_u32 v16, s33, v16')
    a('v_lshlrev_b32 v17, 11, v4'); a('v_sub_u32 v17, 2048, v17'); a('v_add_u32 v17, v17, v16')
    a('v_add_u32 v18, %d, v16' % G1L); a('v_lshrrev_b32 v20, 1, v16'); a('v_add_u32 v20, %d, v20' % SAL)
    a('v_cvt_f32_u32 v19, v4'); a('v_mul_f32 v21, %s, v19' % fbits(2047.0)); a('v_add_f32 v21, 1.0, v21'); a('v_sub_f32 v19, 1.0, v19')
    def w_prep():
        a('s_cmp_eq_u32 s37, 1'); a('s_cselect_b32 s40, s10, s8'); a('s_cselect_b32 s41, s11, s9'); a('s_mov_b32 s42, %d' % (512 * 3584)); a('s_mov_b32 s43, 0x20000')
        a('v_lshrrev_b32 v140, 3, v1'); a('v_bfe_u32 v141, v1, 1, 2'); a('v_and_b32 v142, 2, v140'); a('v_or_b32 v142, s37, v142'); a('v_xor_b32 v141, v141, v142')
        a('v_lshlrev_b32 v141, 5, v141'); a('v_and_b32 v142, 1, v1'); a('v_lshl_add_u32 v141, v142, 4, v141')
        a('v_mul_u32_u24 v142, 3584, v140'); a('v_add_u32 v144, v142, v141')
        a('v_sub_u32 v142, %d, v142' % (263 * 3584)); a('v_add_u32 v145, v142, v141')
        a('v_subrev_u32 v146, %d, v145' % (256 * 3584)); a('v_cmp_eq_u32 vcc, 0, v140'); a('v_cndmask_b32 v146, v145, v146, vcc')
        a('s_lshl_b32 s30, s48, 7')
    def w_loop(lbl, upto, hsel, hstep):
        a.label(lbl)
        a('s_lshr_b32 s33, s24, 1'); a('s_lshl_b32 s31, s33, 13'); a('s_add_u32 s33, s33, s50'); a('s_and_b32 s33, s33, 15'); a('s_lshl_b32 s33, s33, 5')
        a('s_and_b32 s34, s24, 1'); a('s_lshl_b32 s35, s34, 11'); a('s_add_u32 s31, s31, s35'); a('s_lshl_b32 s35, s37, 12'); a('s_add_u32 m0, s31, s35')
        a('s_lshl_b32 s34, s34, 4'); a('s_add_u32 s33, s33, s34')
        a('s_cmp_ge_u32 s33, 256'); a('s_cbranch_scc1 %s_up' % lbl)
        a('s_mul_i32 s33, s33, 3584'); a('s_add_u32 s33, s33, s30'); a('s_add_u32 s34, s33, %d' % (8 * 3584))
        a('buffer_load_dwordx4 v144, s[40:43], s33 offen lds'); a('s_add_u32 m0, m0, 1024')
        a('buffer_load_dwordx4 v144, s[40:43], s34 offen lds')
        a('s_branch %s_nx' % lbl)
        a.label(lbl + '_up')
        a('s_cmp_eq_u32 s33, 256'); a('s_cselect_b64 vcc, -1, 0'); a('v_cndmask_b32 v147, v145, v146, vcc')
        a('s_sub_u32 s33, 505, s33'); a('s_mul_i32 s33, s33, 3584'); a('s_add_u32 s33, s33, s30'); a('s_sub_u32 s34, s33, %d' % (8 * 3584))
        a('buffer_load_dwordx4 v147, s[40:43], s33 offen lds'); a('s_add_u32 m0, m0, 1024')
        a('buffer_load_dwordx4 v145, s[40:43], s34 offen lds')
        a.label(lbl + '_nx')
        a('s_add_u32 s24, s24, %d' % hstep); a('s_cmp_lt_u32 s24, %d' % upto); a('s_cbranch_scc1 %s' % lbl)
    a('s_and_b32 s37, s26, 1'); a('s_lshr_b32 s38, s26, 1')
    cmap()
    a('s_waitcnt lgkmcnt(0)')
    w_prep()
    a('s_cmp_eq_u32 s26, 3'); a('s_cbranch_scc1 km_ga_poll')
    if W1_EARLY:
        a('s_cmp_eq_u32 s38, 1'); a('s_cbranch_scc1 km_ga_wait')
        lds_spin(a, 'km_spinA', C_ARRA, 5)
        stamp(a, 4)
        a('s_mov_b32 s24, 0')
        w_loop('km_hw_p1', 2 * NPRE, 0, 1)
        a.vm = 0
        stamp(a, 6)
    a.label('km_ga_wait')
    lds_spin(a, 'km_spinGA', C_GOA, 1)
    a('s_branch km_ga_go')
    a.role('km_ga_poll')
    lds_spin(a, 'km_spinA2', C_ARRA, 5)
    a('v_mov_b32 v8, 0'); a('s_mov_b32 s57, 0')
    a.label('km_ga_lp')
    a('buffer_load_dword v9, v8, s[44:47], 0 offen offset:128 sc1'); a('s_waitcnt vmcnt(0)'); a('v_readfirstlane_b32 s56, v9')
    a('s_cmp_lg_u32 s56, 0'); a('s_cbranch_scc1 km_ga_ok')
    a('s_sleep %d' % PSLEEP); a('s_add_u32 s57, s57, 1'); a('s_cmp_lt_u32 s57, %d' % SPIN); a('s_cbranch_scc1 km_ga_lp')
    a.label('km_ga_ok')
    lds_inc(a, C_GOA)
    a.label('km_ga_go'); a.vm = 0
    a('s_mov_b32 s46, 0xffff0000'); a('s_mov_b32 s34, 12288'); a('s_mov_b32 s35, 24576'); a('s_mov_b32 s36, 36864')
    stamp(a, 1)
    def zdma(i):
        a('s_add_u32 s32, s25, %d' % i); a('s_and_b32 s32, s32, 15'); a('s_lshl_b32 s32, s32, 17'); a('s_add_u32 s32, s32, s27')
        a('s_add_u32 m0, s28, %d' % (16384 * i))
        for k in range(4):
            a('buffer_load_dwordx4 v5, s[16:19], s32 offen sc1 lds', tag='z%d' % i)
            if k < 3: a('s_add_u32 m0, m0, 1024'); a('s_add_u32 s32, s32, 32768')
    FP = 32
    if not B_MERGE: zdma(0)
    for p, so in enumerate(('0', 's34', 's35', 's36')): a('buffer_load_dwordx4 v[%d:%d], v17, s[16:19], %s offen sc1' % (FP + 4 * p, FP + 4 * p + 3, so), tag='f1')
    if B_MERGE: zdma(0)
    zdma(1)
    if not B_MERGE:
        zdma(2); zdma(3)
        a('s_waitcnt lgkmcnt(0)'); a.wait_vm('z0'); a.bar()
    else: zdma(2)
    a.wait_vm('f1')
    for i in (0, 2): a.pk('v_pk_add_f32', FP + i, FP + i, FP + 4 + i); a.pk('v_pk_add_f32', FP + 8 + i, FP + 8 + i, FP + 12 + i)
    for i in (0, 2): a.pk('v_pk_add_f32', FP + i, FP + i, FP + 8 + i)
    for d in range(2): a('v_cvt_pk_bf16_f32 v%d, v%d, v%d' % (FP + 4 + d, FP + 2 * d, FP + 2 * d + 1))
    unpack(a, FP, FP + 4, 2, 46)
    for i in range(4): a('v_fma_f32 v%d, v%d, v21, v19' % (FP + i, FP + i))
    for d in range(2): a('v_cvt_pk_bf16_f32 v%d, v%d, v%d' % (FP + 4 + d, FP + 2 * d, FP + 2 * d + 1))
    unpack(a, FP, FP + 4, 2, 46)
    a('s_mov_b32 exec_hi, 0'); a('ds_write_b128 v18, v[%d:%d]' % (FP, FP + 3))
    a('s_not_b64 exec, exec'); a('ds_write_b64 v20, v[%d:%d]' % (FP + 4, FP + 5)); a('s_mov_b64 exec, -1')
    a('s_waitcnt lgkmcnt(0)')
    a.wait_vm('z1'); a.bar()
    if B_MERGE: zdma(3)
    stamp(a, 2)
    def q0pre():
        z_bases(a)
        for d in range(4): a('v_mov_b32 v%d, v15' % (16 + d))
        swap23_v(a, 7, 6, 9)
        for t in range(8):
            a('s_add_u32 s32, s25, %d' % ((t & 3) + 8 * (t >> 2))); a('s_and_b32 s32, s32, 15'); a('s_lshl_b32 s32, s32, 5')
            a('v_add_u32 v9, s32, v7'); a('v_lshlrev_b32 v%d, 1, v9' % (152 + t)); a('v_lshlrev_b32 v9, 2, v9'); a('v_add_u32 v9, %d, v9' % G1L)
            a('v_add_u32 v%d, %d, v%d' % (152 + t, YST, 152 + t)); a('ds_read_b32 v%d, v9' % (160 + t))
    def q0job():
        ZQ = 24; AQ = [88, 104, 120, 88]
        for t in range(8):
            for j in range(2):
                for hf in range(2):
                    r = ZQ + 8 * t + 4 * j + 2 * hf
                    a('ds_read_b64_tr_b16 v[%d:%d], v10 offset:%d' % (r, r + 1, 16384 * (t & 3) + 8192 * (t >> 2) + (16 * j + 4 * hf) * 128), tag='q%d' % t)
        def post(t):
            a('v_mul_f32 v20, v%d, v%d' % (AQ[t % 3], 160 + t)); a('v_cvt_pk_bf16_f32 v%d, v20, v20' % (160 + t)); a('ds_write_b16 v%d, v%d' % (152 + t, 160 + t))
        for t in range(8):
            a.wait_lg('q%d' % t)
            a.mfma(AQ[t % 3], 16, ZQ + 8 * t, True); a.mfma(AQ[t % 3], 16, ZQ + 8 * t + 4)
            if t >= 2: post(t - 2)
        post(6); post(7)
        a('s_waitcnt lgkmcnt(0)')
        lds_inc(a, C_Y)
    a('s_load_dwordx2 s[4:5], s[0:1], 64')
    a('s_cmp_eq_u32 s38, 1'); a('s_cbranch_scc1 km_hz')
    sv = (a.vm, dict(a.tags), a.nbar)
    a('s_cmp_lg_u32 s23, 0'); a('s_cbranch_scc1 km_h_nq')
    q0pre()
    a.wait_vm('z3'); a('s_barrier')
    q0job()
    a('s_branch km_hw')
    a.role('km_h_nq')
    a.wait_vm('z3'); a.bar()
    a('s_branch km_hw')
    a.role('km_hz'); a.vm, a.tags, a.nbar = sv[0], dict(sv[1]), sv[2]
    a('s_lshl_b32 s34, s37, 1'); a('s_add_u32 s34, s34, 2'); a('s_lshl_b32 s34, s34, 11')
    for p in range(4):
        for rnd in range(2):
            for k in range(2):
                r = FP + 32 * rnd + 8 * p + 4 * k
                a('buffer_load_dwordx4 v[%d:%d], v3, s[16:19], s34 offen offset:%d sc1' % (r, r + 3, 2048 * rnd + 1024 * k), tag='f2')
        if p < 3: a('s_add_u32 s34, s34, 12288')
    a.wait_vm('z3'); a.bar()
    a('s_load_dwordx2 s[40:41], s[0:1], 0')
    a('v_mov_b32 v163, v6')
    for k in range(2):
        a('v_lshrrev_b32 v6, 2, v1')
        if k: a('v_add_u32 v6, 16, v6')
        token_of(a, 164 + k, 8, 23); a('s_cmp_eq_u32 s37, 1'); mirror_if(a, 164 + k, 8, 9)
        a('v_lshlrev_b32 v%d, 10, v%d' % (164 + k, 164 + k)); a('v_and_b32 v8, 3, v1'); a('v_lshl_add_u32 v%d, v8, 4, v%d' % (164 + k, 164 + k))
    a('v_mov_b32 v6, v163')
    token_of(a, 166, 8, 23); a('s_cmp_eq_u32 s37, 1'); mirror_if(a, 166, 8, 9); a('v_lshlrev_b32 v166, 10, v166')
    a('s_lshl_b32 s30, s22, 6'); a('s_sub_u32 s31, 960, s30'); a('s_sub_u32 s33, 1024, s30'); a('s_and_b32 s33, s33, 511'); a('s_add_u32 s33, s33, 512')
    a('s_lshl_b32 s32, s37, 12'); a('s_add_u32 s32, s32, %d' % B1L)
    a('s_waitcnt lgkmcnt(0)'); a('s_mov_b32 s42, 0x200000'); a('s_mov_b32 s43, 0x20000')
    for up in range(2):
        for k in range(2):
            a('s_add_u32 m0, s32, %d' % (2048 * up + 1024 * k)); a('buffer_load_dwordx4 v%d, s[40:43], s%d offen lds' % (164 + k, 30 + up))
    a('s_lshl_b32 s32, s37, 8'); a('s_add_u32 m0, s32, %d' % XEL); a('buffer_load_dword v166, s[40:43], s33 offen lds', tag='xl')
    a.wait_vm('f2')
    a('s_cmp_eq_u32 s37, 1'); a('s_cselect_b32 s35, 1.0, 0')
    for rnd in range(2):
        F = FP + 32 * rnd
        for i in range(0, 8, 2): a.pk('v_pk_add_f32', F + i, F + i, F + 8 + i); a.pk('v_pk_add_f32', F + 16 + i, F + 16 + i, F + 24 + i)
        for i in range(0, 8, 2): a.pk('v_pk_add_f32', F + i, F + i, F + 16 + i)
        for d in range(4): a('v_cvt_pk_bf16_f32 v%d, v%d, v%d' % (F + 8 + d, F + 2 * d, F + 2 * d + 1))
    unpack(a, FP, FP + 8, 4, 46)
    for i in range(8): a('v_add_f32 v%d, s35, v%d' % (FP + i, FP + i))
    for d in range(4): a('v_cvt_pk_bf16_f32 v%d, v%d, v%d' % (FP + 8 + d, FP + 2 * d, FP + 2 * d + 1))
    unpack(a, FP, FP + 8, 4, 46)
    a('s_lshl_b32 s33, s37, 11'); a('s_add_u32 s33, s33, %d' % GAL); a('v_add_u32 v8, s33, v3')
    a('ds_write_b128 v8, v[%d:%d]' % (FP, FP + 3)); a('ds_write_b128 v8, v[%d:%d] offset:1024' % (FP + 4, FP + 7))
    a('s_lshl_b32 s33, s37, 10'); a('s_add_u32 s33, s33, %d' % SBH); a('v_lshl_add_u32 v20, v1, 3, s33')
    a('ds_write_b64 v20, v[%d:%d]' % (FP + 40, FP + 41)); a('ds_write_b64 v20, v[%d:%d] offset:512' % (FP + 42, FP + 43))
    a('s_cmp_eq_u32 s37, 0'); a('s_cbranch_scc1 km_nochk')
    a('v_subrev_u32 v20, 2048, v20')
    a('ds_write_b64 v20, v[%d:%d]' % (FP + 8, FP + 9)); a('ds_write_b64 v20, v[%d:%d] offset:512' % (FP + 10, FP + 11))
    a.label('km_nochk')
    a('s_waitcnt vmcnt(0) lgkmcnt(0)')
    lds_inc(a, C_RED)
    stamp(a, 3)
    w_prep()
    a('s_branch km_hw2')
    a.role('km_hw')
    if not W1_EARLY:
        stamp(a, 4)
        a('s_mov_b32 s24, 0')
        w_loop('km_hw_p1', 2 * NPRE, 0, 1)
    a('s_waitcnt vmcnt(0)'); lds_inc(a, C_W1)
    a.label('km_hw2')
    a('s_waitcnt lgkmcnt(0)')
    srd(a, 12, 4, 1792 * 1024)
    a('s_cmp_ge_u32 s21, 28'); a('s_cselect_b32 s32, %d, 0' % (C_ISS - W2_AT[0])); a('s_cselect_b32 s33, 4, %d' % W2_AT[1]); a('s_add_u32 s32, s32, %d' % W2_AT[0]); a('v_mov_b32 v8, s32')
    lds_spin_v(a, 'km_spinT', 8, 's33')
    a('s_add_u32 s24, s38, %d' % (2 * NPRE))
    w_loop('km_hw_p2', 32, 0, 2)
    a('s_waitcnt vmcnt(0)'); lds_inc(a, C_W2)
    stamp(a, 5)
    a('s_setprio %d' % D_PRIO)
    dmap()
    a('v_lshrrev_b32 v5, 3, v1'); a('v_and_b32 v7, 7, v1'); a('v_lshrrev_b32 v8, 2, v1'); a('v_and_b32 v8, 4, v8'); a('v_xor_b32 v7, v7, v8')
    a('v_lshlrev_b32 v5, 10, v5'); a('v_lshl_add_u32 v5, v7, 4, v5')
    a('s_mul_i32 s27, s26, %d' % (448 * 1024)); a('s_lshl_b32 s28, s52, 7'); a('s_add_u32 s27, s27, s28')
    a('s_lshl_b32 s28, s26, 13'); a('v_add_u32 v7, s28, v3'); a('v_add_u32 v10, 65536, v7')
    a('s_lshl_b32 s32, s26, 2'); a('s_add_u32 s32, s32, %d' % C_FULL); a('v_mov_b32 v11, s32'); a('v_mov_b32 v12, 1')
    def stash(g, k):
        region(32, k, 25); a('s_lshl_b32 s32, s32, 16'); a('s_add_u32 s32, s32, s27')
        for i in range(8):
            r = 16 + 32 * g + 4 * i
            a('buffer_load_dwordx4 v[%d:%d], v5, s[12:15], s32 offen' % (r, r + 3))
            if i < 7: a('s_add_u32 s32, s32, 8192')
    for p in range(4):
        lds_spin(a, 'km_spinP%d' % p, C_PROG + 4 * p, 8)
        region(32, p, 25); a('s_lshl_b32 s32, s32, 16'); a('s_add_u32 s32, s32, s27'); a('s_add_u32 m0, s28, %d' % (32768 * p))
        for i in range(8):
            a('buffer_load_dwordx4 v5, s[12:15], s32 offen lds')
            if i < 7: a('s_add_u32 m0, m0, 1024'); a('s_add_u32 s32, s32, 8192')
        if p < 3: stash(p, 4 + p); a('s_waitcnt vmcnt(8)')
        else: a('s_waitcnt vmcnt(0)')
        lds_inc_v(a, 11, 12)
    stamp(a, 8)
    if R_PRIO: a('s_setprio %d' % R_PRIO)
    def refill(g):
        for i in range(8):
            r = 16 + 32 * g + 4 * i
            a('ds_write_b128 v%d, v[%d:%d] offset:%d' % (7 if g < 2 else 10, r, r + 3, (g & 1) * 32768 + 1024 * i))
        a('s_waitcnt lgkmcnt(0)')
        lds_inc_v(a, 11, 12)
    for g in range(3):
        lds_spin_v(a, 'km_spinFA%d' % g, 11, str(g + 1), C_FREE - C_FULL)
        if not PASS2: lds_spin_v(a, 'km_spinFB%d' % g, 11, str(g + 1), C_FREEB - C_FULL)
        refill(g)
    if PASS2:
        for g in range(3): stash(g, g)
        for g in range(3):
            lds_spin_v(a, 'km_spinFB%d' % g, 11, str(g + 1), C_FREEB - C_FULL); lds_spin_v(a, 'km_spinFC%d' % g, 11, str(g + 5), C_FREE - C_FULL)
            a('s_waitcnt vmcnt(%d)' % (8 * (2 - g)))
            refill(g)
    nbar_h = a.nbar
    a('s_branch %s_end' % name)
    a.role('km_compute'); a.nbar = 0
    a('s_lshr_b32 s27, s3, 2')
    a('s_load_dwordx2 s[8:9], s[0:1], 88')
    A2, B1, AC1, AP, ZF, GG = 16, 48, [64, 80], 96, 112, 128
    token_of(a, 7, 8, 23)
    a('s_mov_b64 s[30:31], vcc')
    a('s_lshr_b32 s28, s26, 1'); a('s_and_b32 s29, s26, 1'); a('s_lshl_b32 s29, s29, 4'); a('v_lshl_add_u32 v8, v4, 3, s29')
    a('s_cmp_eq_u32 s23, 0'); a('s_cselect_b32 s32, 0, s28'); a('s_sub_i32 s32, s32, s27'); a('v_cvt_f32_i32 v9, s32'); a('v_mul_f32 v9, %s, v9' % fbits(0.25))
    a('v_mul_u32_u24 v12, v7, v8'); a('v_and_b32 v12, 2047, v12'); a('v_cvt_f32_u32 v12, v12'); a('v_cvt_f32_u32 v13, v7')
    a('v_mul_f32 v13, %s, v13' % fbits(1 / 2048)); a('v_fmamk_f32 v64, v12, %s, v9' % fbits(1 / 2048))
    for i in range(1, 8): a('v_add_f32 v%d, v%d, v13' % (64 + i, 63 + i))
    for i in range(8): a('v_cos_f32 v%d, v%d' % (64 + i, 64 + i))
    for d in range(4): a('v_cvt_pk_bf16_f32 v%d, v%d, v%d' % (72 + d, 64 + 2 * d, 65 + 2 * d))
    a('s_not_b64 s[32:33], s[30:31]'); a('s_cmp_eq_u32 s28, 1'); a('s_cselect_b64 s[32:33], s[30:31], s[32:33]'); a('s_cmp_eq_u32 s23, 0'); a('s_cselect_b64 s[32:33], s[32:33], -1')
    for d in range(4): a('v_cndmask_b32 v%d, 0, v%d, s[32:33]' % (72 + d, 72 + d))
    a('s_lshl_b32 s32, s3, 10'); a('s_add_u32 s32, s32, %d' % B1L); a('v_add_u32 v8, s32, v3'); a('ds_write_b128 v8, v[72:75]')
    a('s_cmp_eq_u32 s27, 1'); a('s_cselect_b32 s34, %s, 0' % fbits(-0.25))
    gen_a2(a, A2, [64, 72, 80], 's34'); z_bases(a)
    a('v_cmp_eq_u32 s[42:43], 0, v7'); a('s_cmp_eq_u32 s27, 1'); a('s_cselect_b64 s[44:45], s[42:43], 0')
    a('v_lshlrev_b32 v5, 4, v4'); a('v_add_u32 v5, %d, v5' % YST); a('s_or_b32 s33, s22, s27')
    for r in range(160, 164): a('v_mov_b32 v%d, 0' % r)
    a('v_subrev_u32 v9, 1024, v5'); a('v_cndmask_b32 v5, v5, v9, s[42:43]')
    a('s_mov_b64 s[62:63], 0'); a('s_mov_b32 s59, 0')
    if Q0_DRY: a('s_cmp_eq_u32 s23, 0'); a('s_cbranch_scc1 km_q0dry')
    a.label('km_q0dryback'); a.hist = []
    a('s_lshl_b32 s32, s27, 12'); a('s_add_u32 s32, s32, %d' % B1L); a('v_add_u32 v8, s32, v3')
    a('s_waitcnt lgkmcnt(0)')
    stamp(a, 1)
    XL, XU, XX = 156, 160, 2
    a('s_and_b32 s37, s26, 1'); a('s_lshr_b32 s38, s26, 1')
    ZFS = [112, 128]
    def zread(i):
        for j in range(4):
            for hf in range(2):
                r = ZFS[i & 1] + 4 * j + 2 * hf
                a('ds_read_b64_tr_b16 v[%d:%d], v%d offset:%d' % (r, r + 1, 10 + (j >> 1), 16384 * i + (16 * (j & 1) + 4 * hf) * 128), tag='zr%d_%d' % (i, j))
    AY = 112; GG = 144
    def gread(i):
        a('s_add_u32 s32, s25, %d' % i); a('s_and_b32 s32, s32, 15'); a('s_lshl_b32 s32, s32, 7'); a('v_add_u32 v13, s32, v12')
        for k in range(4): a('ds_read_b128 v[%d:%d], v13 offset:%d' % (GG + 4 * k, GG + 4 * k + 3, 64 * (k >> 1) + 16 * (k & 1)), tag='g%d' % i)
    a.bar()
    stamp(a, 2)
    for j in range(4): a('ds_read_b128 v[%d:%d], v8 offset:%d' % (B1 + 4 * j, B1 + 4 * j + 3, 1024 * j))
    a.reg = 'B'
    zread(0)
    if B_MERGE: zread(1); gread(0)
    for j in range(4):
        a.wait_lg('zr0_%d' % j); a.mfma(AC1[0], ZFS[0] + 4 * j, B1 + 4 * j, j == 0)
    if not B_MERGE: a.bar(); zread(1); gread(0)
    for i in range(4):
        xc = AC1[i & 1]
        V = ['v_mul_f32 v%d, v%d, v%d' % (xc + r, xc + r, GG + r) for r in range(16)] + ['G'] + \
            ['v_cvt_pk_bf16_f32 v%d, v%d, v%d' % (xc + d, xc + 2 * d, xc + 2 * d + 1) for d in range(8)]
        def emit(n):
            for _ in range(n):
                if not V: return
                t = V.pop(0)
                if t == 'G':
                    if i < 3: gread(i + 1)
                else: a(t)
        if i < 3:
            for j in range(4):
                a.wait_lg('zr%d_%d' % (i + 1, j)); a.mfma(AC1[(i + 1) & 1], ZFS[(i + 1) & 1] + 4 * j, B1 + 4 * j, j == 0)
                if j == 3 and i == 0: a.bar(); zread(2)
                if j == 0 and i == 1: zread(3)
                if j == 0: a.wait_lg('g%d' % i)
                emit(6)
        else:
            a.wait_lg('g3')
        emit(99)
        a('s_cmp_lg_u32 s33, 0')
        for h in range(2): a.mfma(AP, A2 + 8 * i + 4 * h, xc + 4 * h, i == 0 and h == 0)
        a('s_cbranch_scc1 km_nd%d' % i)
        for d in range(8): a('v_dot2c_f32_bf16 v%d, v%d, v15' % (160 + (d & 3), xc + d))
        if i == 3:
            a('s_nop 2'); a('v_add_f32 v160, v160, v161'); a('v_add_f32 v162, v162, v163'); a('v_add_f32 v14, v160, v162')
        a.label('km_nd%d' % i)
    a.reg = ''
    stamp(a, 3)
    a('s_lshl_b32 s32, s3, 12'); a('s_add_u32 s32, s32, %d' % ZI); a('v_add_u32 v11, s32, v3')
    a('s_lshl_b32 s32, s26, 8'); a('s_add_u32 s32, s32, %d' % EXT); a('v_lshl_add_u32 v12, v1, 2, s32')
    a('s_cmp_eq_u32 s27, 0'); a('s_cselect_b64 s[30:31], -1, 0'); a('s_andn2_b64 s[34:35], s[30:31], s[42:43]')
    a('s_cmp_eq_u32 s23, 0'); a('s_cbranch_scc1 km_q0tail')
    a.label('km_q0back')
    a('s_nop 3')
    a('s_andn2_b64 exec, -1, s[44:45]')
    for k in range(4): a('ds_write_b128 v11, v[%d:%d] offset:%d' % (AP + 4 * k, AP + 4 * k + 3, 1024 * k))
    a('s_mov_b64 exec, s[30:31]'); a('ds_write_b32 v12, v14'); a('s_mov_b64 exec, s[34:35]'); a('ds_write_b32 v12, v14 offset:1024')
    a('s_mov_b64 exec, -1')
    a('s_waitcnt lgkmcnt(0)')
    lds_inc(a, CNT + 4)
    a('s_mov_b32 s46, 0xffff0000')
    cmap()
    a('s_cmp_eq_u32 s27, 0'); a('s_cbranch_scc1 km_C')
    XLF, XUF = 120, 128
    a('s_lshl_b32 s30, s37, 1'); a('v_add_u32 v9, s30, v4')
    a('s_lshl_b32 s39, s22, 7'); a('v_lshl_add_u32 v7, v9, 5, s39')
    a('s_lshl_b32 s30, s38, 12'); a('s_add_u32 s30, s30, %d' % B1L); a('v_lshl_add_u32 v13, v6, 6, s30')
    a('v_lshl_add_u32 v14, v9, 4, v13'); a('v_lshlrev_b32 v15, 4, v9'); a('v_sub_u32 v15, v13, v15')
    a('s_lshl_b32 s30, s38, 8'); a('s_add_u32 s30, s30, %d' % (XEL - 2112)); a('v_lshl_add_u32 v13, v6, 2, s30')
    a('v_cmp_eq_u32 vcc, 0, v9'); a('v_cndmask_b32 v13, v15, v13, vcc')
    GA, G2, GAU, G2U = 24, 32, 40, 48
    a('v_add_u32 v21, %d, v7' % GAL)
    a('s_lshl_b32 s32, s37, 11'); a('s_add_u32 s32, s32, %d' % ZI); a('v_add_u32 v11, s32, v3')
    a('s_cmp_eq_u32 s38, 0'); a('s_cselect_b32 s34, -1.0, 1.0'); a('s_cselect_b32 s35, 0, 1.0')
    a('v_mov_b32 v16, s34'); a('v_mov_b32 v17, s35'); a('v_sub_f32 v18, 0, v16'); a('v_sub_f32 v22, 1.0, v17')
    a('v_cndmask_b32 v16, v16, v17, s[42:43]'); a('v_cndmask_b32 v18, v18, v17, s[42:43]'); a('v_cndmask_b32 v22, 1.0, v22, s[42:43]')
    a('s_lshl_b32 s39, s38, 5'); a('s_add_u32 s39, s39, s23')
    a('s_lshl_b32 s36, s39, 15'); a('s_lshl_b32 s33, s22, 1'); a('s_add_u32 s33, s33, s37'); a('s_lshl_b32 s33, s33, 10'); a('s_add_u32 s36, s36, s33')
    a('s_lshl_b32 s32, s38, 10'); a('s_add_u32 s32, s32, %d' % EXT); a('v_lshl_add_u32 v20, v1, 2, s32')
    a('s_or_b32 s33, s22, s37'); a('s_cmp_eq_u32 s33, 0'); a('s_cselect_b32 s30, -1, 0'); a('s_mov_b32 s31, 0')
    a('s_setprio 0')
    lds_spin(a, 'km_spinR', CNT + 4, 10)
    if E_PRIO: a('s_setprio 3')
    stamp(a, 4)
    RP, RQ, YL, YU = 56, 88, 64, 72
    a('ds_read_b128 v[%d:%d], v14' % (XL, XL + 3)); a('ds_read_b128 v[%d:%d], v15 offset:2096' % (XU, XU + 3)); a('ds_read_u16 v%d, v13 offset:2112' % XX)
    for R, o in ((RP, 0), (RQ, 16384)):
        for src in range(4):
            for hf in range(2): a('ds_read_b128 v[%d:%d], v11 offset:%d' % (R + 8 * src + 4 * hf, R + 3 + 8 * src + 4 * hf, o + src * 4096 + hf * 1024))
    a('s_waitcnt lgkmcnt(15)')
    unpack(a, XLF, XL, 4, 46); unpack_rev(a, XUF, XU, XX, 46)
    for n, R in enumerate((RP, RQ)):
        a('s_waitcnt lgkmcnt(%d)' % (8 if n == 0 else 10))
        if n == 0:
            for reg, off in ((GA, 0), (GAU, 1024), (G2, 2048), (G2U, 3072)):
                for k in range(2): a('ds_read_b128 v[%d:%d], v21 offset:%d' % (reg + 4 * k, reg + 4 * k + 3, off + 16 * k))
            a('ds_read2st64_b32 v[136:137], v20 offset0:0 offset1:1'); a('ds_read2st64_b32 v[138:139], v20 offset0:2 offset1:3')
        for i in range(0, 8, 2): a.pk('v_pk_add_f32', R + i, R + i, R + 8 + i); a.pk('v_pk_add_f32', R + 16 + i, R + 16 + i, R + 24 + i)
        for i in range(0, 8, 2): a.pk('v_pk_add_f32', R + i, R + i, R + 16 + i)
    for i in range(0, 8, 2): a('v_pk_mul_f32 v[%d:%d], v[%d:%d], v[22:23] op_sel_hi:[1,0]' % (RP + i, RP + i + 1, RP + i, RP + i + 1))
    for i in range(0, 8, 2):
        a('v_pk_fma_f32 v[%d:%d], v[%d:%d], v[16:17], v[%d:%d] op_sel_hi:[1,0,1]' % (YL + i, YL + i + 1, RQ + i, RQ + i + 1, RP + i, RP + i + 1))
        a('v_pk_fma_f32 v[%d:%d], v[%d:%d], v[18:19], v[%d:%d] op_sel_hi:[1,0,1]' % (YU + i, YU + i + 1, RQ + i, RQ + i + 1, RP + i, RP + i + 1))
    a('s_waitcnt lgkmcnt(0)')
    a.pk('v_pk_add_f32', 136, 136, 138); a('v_add_f32 v136, v136, v137'); half_sum(a, [136], 137)
    a('v_cndmask_b32 v%d, v%d, v136, s[30:31]' % (YU, YU))
    for Y, G, X in ((YL, GA, XLF), (YU, GAU, XUF)):
        for i in range(0, 8, 2): a('v_pk_fma_f32 v[%d:%d], v[%d:%d], v[%d:%d], v[%d:%d]' % (Y + i, Y + i + 1, Y + i, Y + i + 1, G + i, G + i + 1, X + i, X + i + 1))
    for Y, G in ((YL, G2), (YU, G2U)):
        for i in range(0, 8, 2): a.pk('v_pk_mul_f32', G + i, Y + i, G + i)
    a('s_add_u32 s32, s36, 0x%x' % ZT); a('s_add_u32 s33, s32, 16384'); a('s_add_u32 s34, s36, 0x%x' % X1T); a('s_add_u32 s35, s34, 16384')
    for src, dst, so in ((G2, 80, 32), (G2U, 84, 33), (YL, 88, 34), (YU, 92, 35)):
        for d in range(4): a('v_cvt_pk_bf16_f32 v%d, v%d, v%d' % (dst + d, src + 2 * d, src + 2 * d + 1))
        a('buffer_store_dwordx4 v[%d:%d], v3, s[16:19], s%d offen sc1' % (dst, dst + 3, so))
    a.pk('v_pk_add_f32', 96, YL, YL + 2); a.pk('v_pk_mul_f32', 98, YL, YL)
    for i in range(2, 16, 2):
        if i > 2: a.pk('v_pk_add_f32', 96, 96, YL + i)
        a('v_pk_fma_f32 v[98:99], v[%d:%d], v[%d:%d], v[98:99]' % (YL + i, YL + i + 1, YL + i, YL + i + 1))
    a('v_add_f32 v100, v96, v97'); a('v_add_f32 v101, v98, v99')
    half_sum(a, [100, 101], 102)
    a('s_lshl_b32 s32, s39, 12'); a('s_lshl_b32 s33, s22, 9'); a('s_add_u32 s32, s32, s33'); a('s_lshl_b32 s33, s37, 8'); a('s_add_u32 s32, s32, s33'); a('s_add_u32 s32, s32, 0x%x' % STATS)
    a('v_lshlrev_b32 v8, 3, v1')
    a('s_mov_b32 exec_hi, 0')
    a('buffer_store_dwordx2 v[100:101], v8, s[16:19], s32 offen sc1')
    a('s_mov_b64 exec, -1')
    stamp(a, 12)
    a('s_lshl_b32 s32, s20, 8'); a('s_add_u32 s32, s32, 0x%x' % FLAGB)
    lds_inc(a, C_ISS)
    arrive(a, 'km_arrB', CNT, 4, 32, 32, DIRECT_B)
    stamp(a, 9)
    a('s_setprio 0')
    a('s_branch km_C')
    a.role('km_q0tail')
    a('s_mov_b64 s[62:63], s[42:43]'); a('s_mov_b32 s59, 2'); a('s_setprio 3')
    a.label('km_q0dry')
    a('v_mov_b32 v8, %d' % C_Y); lds_spin_v(a, 'km_spinY', 8, 's59', 0, 0)
    a('s_cmp_lg_u32 s27, 0'); a('s_cbranch_scc1 km_q0ret')
    for i in range(4):
        a('s_add_u32 s32, s25, %d' % i); a('s_and_b32 s32, s32, 15'); a('s_lshl_b32 s32, s32, 6'); a('v_add_u32 v9, s32, v5')
        for h in range(2): a('ds_read_b128 v[%d:%d], v9 offset:%d' % (128 + 8 * i + 4 * h, 131 + 8 * i + 4 * h, 32 * h))
    for r in range(164, 168): a('v_mov_b32 v%d, 0' % r)
    for j in range(8):
        a('s_waitcnt lgkmcnt(%d)' % (7 - j)); a.mfma(AY, A2 + 4 * j, 128 + 4 * j, j == 0)
        for d in range(4): a('v_dot2c_f32_bf16 v%d, v%d, v15' % (164 + d, 128 + 4 * j + d))
    a('s_nop 2')
    a('v_add_f32 v164, v164, v165'); a('v_add_f32 v166, v166, v167'); a('v_add_f32 v13, v164, v166')
    a('s_mov_b64 exec, s[62:63]')
    a('v_add_f32 v14, v14, v13')
    for r in range(0, 16, 2): a.pk('v_pk_add_f32', AP + r, AP + r, AY + r)
    a('s_lshl_b64 exec, s[62:63], 1')
    for k in range(4): a('ds_write_b128 v11, v[%d:%d] offset:%d' % (AY + 4 * k, AY + 4 * k + 3, 16384 - 16 + 1024 * k))
    a('ds_write_b32 v12, v13 offset:1020')
    a('s_mov_b64 exec, -1')
    a.label('km_q0ret')
    a('s_cmp_eq_u32 s59, 0'); a('s_cbranch_scc1 km_q0dryback')
    a('s_branch km_q0back')
    a.role('km_C')
    a('s_setprio 0')
    ACC = 16; WB = 80; ZF = WB + 4 * NWB; ST = ZF + 4 * ZRING
    assert ST + 16 <= 168
    a('v_bfe_u32 v10, v1, 4, 1'); a('v_bfe_u32 v11, v1, 2, 2'); a('v_lshl_add_u32 v12, v4, 3, v11'); a('v_lshlrev_b32 v12, 7, v12'); a('v_lshl_add_u32 v12, v10, 12, v12')
    a('v_and_b32 v11, 2, v11'); a('v_or_b32 v11, v11, v10'); a('v_lshl_add_u32 v12, v11, 5, v12')
    a('v_and_b32 v11, 1, v1'); a('v_lshl_add_u32 v12, v11, 4, v12'); a('v_bfe_u32 v11, v1, 1, 1'); a('v_lshl_add_u32 v12, v11, 3, v12')
    for j in range(1, 4): a('v_xor_b32 v%d, %d, v12' % (12 + j, 32 * j))
    a('v_mov_b32 v0, %d' % C_PROG); a('v_mov_b32 v2, 1')
    a('s_lshl_b32 s34, s48, 7'); a('s_add_u32 s34, s34, 0x%x' % FLAGS); a('s_lshl_b32 s35, s48, 11'); a('s_add_u32 s35, s35, 0x%x' % CSG)
    a('v_lshlrev_b32 v7, 4, v6')
    def wrd(n, j, dst, tag=None):
        for hf in range(2):
            a('ds_read_b64_tr_b16 v[%d:%d], v%d offset:%d' % (dst + 2 * hf, dst + 2 * hf + 1, 12 + j, ((n >> 1) & 7) * 8192 + (16 * (n & 1) + 4 * hf) * 128), tag=tag)
    a('s_cmp_ge_u32 s21, 28'); a('s_cbranch_scc1 km_csb')
    a('s_lshl_b32 s28, s49, 2'); a('s_add_u32 s28, s28, s26'); a('s_lshl_b32 s29, s27, 5'); a('s_add_u32 s28, s28, s29')
    a('s_lshl_b32 s36, s28, 15'); a('s_add_u32 s36, s36, 0x%x' % ZT); a('s_lshl_b32 s37, s50, 11')
    a('s_lshl_b32 s39, s28, 12'); a('s_add_u32 s39, s39, 0x%x' % STATS); a('v_lshlrev_b32 v5, 3, v6'); a('v_lshl_add_u32 v5, v4, 11, v5')
    k1c = -2 * 0.7978845608028654 * LOG2E; k2c = k1c * 0.044715
    a('s_mov_b32 s44, %s' % fbits(k2c))
    a('s_mul_i32 s40, s28, %d' % (112 * 1024)); a('s_lshl_b32 s41, s48, 12'); a('s_add_u32 s40, s40, s41'); a('s_add_u32 s40, s40, 0x%x' % ACT)
    a('s_lshr_b32 s41, s28, 2'); a('s_lshl_b32 s41, s41, 8'); a('s_add_u32 s41, s41, 0x%x' % FLAGC)
    a('s_lshl_b32 s42, s27, 2'); a('s_add_u32 s42, s42, %d' % C_ARRC)
    a('s_lshl_b32 s32, s49, 8'); a('s_add_u32 s32, s32, 0x%x' % (FLAGB + (0 if DIRECT_B else 128)))
    a('s_cmp_lg_u32 s3, 0'); a('s_cbranch_scc1 km_c_w')
    lds_spin(a, 'km_spinZ', C_ARRB, 4)
    poll(a, 'km_pollB', 32, 1, 32 if DIRECT_B else 0)
    lds_inc(a, C_GOB)
    a('s_branch km_c_go')
    a.label('km_c_w')
    lds_spin(a, 'km_spinG', C_GOB, 1)
    a.label('km_c_go')
    stamp(a, 13)
    a('s_cmp_eq_u32 s27, 0'); a('s_cbranch_scc1 km_c_pa'); a('s_setprio %d' % PRIO_B)
    if B_DELAY: lds_spin(a, 'km_spinBD', C_PROG, B_DELAY)
    a('s_branch km_c_pb')
    a.label('km_c_pa'); a('s_setprio %d' % PRIO_A)
    a.label('km_c_pb')
    def zld(n):
        if n & 1 == 0: a('s_add_u32 s38, s36, s37'); a('s_add_u32 s37, s37, 2048'); a('s_and_b32 s37, s37, 32767')
        r = ZF + 4 * (n % ZRING)
        a('buffer_load_dwordx4 v[%d:%d], v3, s[16:19], s38 offen offset:%d %s' % (r, r + 3, 1024 * (n & 1), LD), tag='z%d' % n)
    zn = 0
    while zn < Z_INIT: zld(zn); zn += 1
    lds_spin(a, 'km_spinW1', C_W1, 2)
    stamp(a, 5)
    a.reg = 'C'
    AHEAD = NWB - 1
    seq = [(n, j) for n in range(32) for j in range(4)]
    def issue_w(i):
        n, j = seq[i]
        if n == 2 * NPRE and j == 0: lds_spin(a, 'km_spinW2', C_W2, 4)
        if n == 16: a('v_add_u32 v%d, 65536, v%d' % (12 + j, 12 + j))
        wrd(n, j, WB + 4 * (i % NWB), 'w%d' % i)
    for i in range(AHEAD): issue_w(i)
    CS = [ZF + 4 * ((32 + k) % ZRING) for k in range(4)]
    for i, (n, j) in enumerate(seq):
        if j == 0: a.wait_vm('z%d' % n)
        a.wait_lg('w%d' % i)
        a.mfma(ACC + 16 * j, WB + 4 * (i % NWB), ZF + 4 * (n % ZRING), n == 0)
        if i + AHEAD < 128: issue_w(i + AHEAD)
        if j in (1, 3) and zn < 32 and zn < n + ZRING - (0 if j == 3 else 1) - 0 and (zn - ZRING < n or (zn - ZRING == n and False)):
            zld(zn); zn += 1
        if j == 2 and 8 <= n < 16: a('buffer_load_dwordx2 v[%d:%d], v5, s[16:19], s39 offen offset:%d %s' % (ST + 2 * (n - 8), ST + 2 * (n - 8) + 1, 256 * (n - 8), LD), tag='st')
        if j == 2 and n == 17: a('v_mov_b32 v10, 0'); a('buffer_load_dword v11, v10, s[16:19], s34 offen sc1', tag='fs')
        if j == 2 and n == 24:
            a.wait_vm('fs'); a('v_readfirstlane_b32 s56, v11'); a('s_cmp_lg_u32 s56, 0'); a('s_cbranch_scc1 km_fs_ok')
            vm = a.vm; poll(a, 'km_pollS', 34, 1); a.vm = vm
            a.label('km_fs_ok')
        if j == 2 and 25 <= n < 29:
            k = n - 25; assert 32 + k - ZRING < n
            a('buffer_load_dwordx4 v[%d:%d], v7, s[16:19], s35 offen offset:%d sc1' % (CS[k], CS[k] + 3, 512 * k), tag='cs')
        if j == 3 and n % 8 == 7: lds_inc_v(a, 0, 2, 4 * (n >> 3))
    assert zn == 32
    a.reg = ''
    stamp(a, 6)
    a('s_cmp_eq_u32 s27, 0'); a('s_cbranch_scc1 km_e_pa'); a('s_setprio 3'); a('s_branch km_e_pb')
    a.label('km_e_pa'); a('s_setprio %d' % PRIO_EA)
    a.label('km_e_pb')
    for st in (8, 4, 2):
        for i in range(st): a('v_add_f32 v%d, v%d, v%d' % (ST + i, ST + i, ST + st + i))
    half_sum(a, [ST, ST + 1], ST + 2)
    a('v_mul_f32 v10, %s, v%d' % (fbits(-1.0 / 512), ST))
    a('v_mul_f32 v11, %s, v%d' % (fbits(1.0 / 512), ST + 1)); a('v_fma_f32 v11, -v10, v10, v11'); a('v_max_f32 v11, 0, v11')
    a('v_add_f32 v11, %s, v11' % fbits(1e-5))
    a('v_rsq_f32 v8, v11'); a('v_sqrt_f32 v9, v11')
    for src, dst in ((10, 12), (9, 14)):
        a('v_cvt_pk_bf16_f32 v%d, v%d, v%d' % (ST, src, src)); a('v_and_b32 v%d, s46, v%d' % (ST, ST)); a('v_sub_f32 v%d, v%d, v%d' % (ST + 1, src, ST))
        a('v_cvt_pk_bf16_f32 v%d, v%d, v%d' % (dst, ST, ST + 1))
    a('v_cmp_gt_u32 vcc, 32, v1'); a('v_cndmask_b32 v12, 0, v12, vcc'); a('v_cndmask_b32 v14, 0, v14, vcc')
    a('v_mov_b32 v13, v12'); a('v_mov_b32 v15, v14'); a('v_mov_b32 v10, %s' % fbits(k1c)); a('v_mov_b32 v11, s44')
    a('s_waitcnt vmcnt(0)')
    for j in range(4): a.mfma(ACC + 16 * j, CS[j], 12)
    for j in range(4):
        g = ACC + 16 * j; u = g + 8; t = 80 + 8 * (j & 1)
        if EPI_PK:
            P = range(0, 8, 2)
            for i in P: a('v_pk_mul_f32 v[%d:%d], v[%d:%d], v[8:9] op_sel_hi:[1,0]' % (g + i, g + i + 1, g + i, g + i + 1))
            for i in P: a.pk('v_pk_mul_f32', t + i, g + i, g + i)
            for i in P: a('v_pk_fma_f32 v[%d:%d], v[%d:%d], v[10:11], v[10:11] op_sel:[0,1,0] op_sel_hi:[1,1,0]' % (t + i, t + i + 1, t + i, t + i + 1))
            for i in P: a.pk('v_pk_mul_f32', t + i, t + i, g + i)
            for i in range(8): a('v_exp_f32 v%d, v%d' % (t + i, t + i))
            for i in P: a.pk('v_pk_mul_f32', u + i, u + i, g + i)
            for i in P: a('v_pk_fma_f32 v[%d:%d], v[%d:%d], v[8:9], v[8:9] op_sel:[0,1,1] op_sel_hi:[1,1,1]' % (t + i, t + i + 1, t + i, t + i + 1))
            for i in range(8): a('v_rcp_f32 v%d, v%d' % (t + i, t + i))
            for i in P: a.pk('v_pk_mul_f32', u + i, u + i, t + i)
        else:
            for i in range(8): a('v_mul_f32 v%d, v8, v%d' % (g + i, g + i))
            for i in range(8): a('v_mul_f32 v%d, v%d, v%d' % (t + i, g + i, g + i))
            for i in range(8): a('v_fma_f32 v%d, v%d, s44, v10' % (t + i, t + i))
            for i in range(8): a('v_mul_f32 v%d, v%d, v%d' % (t + i, t + i, g + i))
            for i in range(8): a('v_exp_f32 v%d, v%d' % (t + i, t + i))
            for i in range(8): a('v_mul_f32 v%d, v%d, v%d' % (u + i, u + i, g + i))
            for i in range(8): a('v_fma_f32 v%d, v%d, v9, v9' % (t + i, t + i))
            for i in range(8): a('v_rcp_f32 v%d, v%d' % (t + i, t + i))
            for i in range(8): a('v_mul_f32 v%d, v%d, v%d' % (u + i, u + i, t + i))
        for d in range(4): a('v_cvt_pk_bf16_f32 v%d, v%d, v%d' % (g + d, u + 2 * d, u + 2 * d + 1))
        a('buffer_store_dwordx4 v[%d:%d], v3, s[16:19], s40 offen offset:%d sc1' % (g, g + 3, 1024 * j))
    stamp(a, 7)
    arrive(a, 'km_arrC', 's42', 4, 41, 28, DIRECT_C)
    stamp(a, 8)
    a('s_branch km_D')
    a.role('km_csb')
    lds_spin(a, 'km_spinR2', C_RED, 10); lds_spin(a, 'km_spinW3', C_W2, 4)
    a('s_cmp_lg_u32 s27, 0'); a('s_cbranch_scc1 km_csb_done')
    a('s_cmp_ge_u32 s49, 7'); a('s_cbranch_scc1 km_csb_done')
    a('s_lshl_b32 s32, s26, 5'); a('v_xor_b32 v12, s32, v12'); a('v_add_u32 v13, 65536, v12')
    a('v_and_b32 v10, 1, v1'); a('v_lshlrev_b32 v10, 10, v10'); a('v_lshl_add_u32 v10, v4, 4, v10'); a('v_add_u32 v10, %d, v10' % G2H)
    a('s_lshl_b32 s33, s50, 6')
    for blk in range(4):
        for k in range(8):
            n = 8 * blk + k
            if n & 1 == 0: a('v_add_u32 v11, s33, v10'); a('s_add_u32 s33, s33, 64'); a('s_and_b32 s33, s33, 1023')
            a('ds_read_b128 v[%d:%d], v11 offset:%d' % (32 + 8 * k, 35 + 8 * k, 32 * (n & 1)))
            wrd(n, n >> 4, 36 + 8 * k, 'c%d' % n)
        for k in range(8):
            n = 8 * blk + k
            a.wait_lg('c%d' % n); a.mfma(16, 32 + 8 * k, 36 + 8 * k, n == 0)
    for i in range(2):
        a('v_cvt_pk_bf16_f32 v%d, v%d, v%d' % (100 + 2 * i, 16 + i, 16 + i)); a('v_and_b32 v104, s46, v%d' % (100 + 2 * i)); a('v_sub_f32 v104, v%d, v104' % (16 + i))
        a('v_cvt_pk_bf16_f32 v%d, v104, v104' % (101 + 2 * i))
    a('s_lshl_b32 s32, s26, 9'); a('s_add_u32 s35, s35, s32')
    a('s_mov_b32 exec_hi, 0'); a('buffer_store_dwordx4 v[100:103], v7, s[16:19], s35 offen sc1'); a('s_mov_b64 exec, -1')
    arrive(a, 'km_arrS', C_ARRS, 4, 34)
    a.label('km_csb_done')
    stamp(a, 14)
    for p in range(4): lds_inc_v(a, 0, 2, 4 * p)
    a.label('km_D'); a.hist = []; a.inD = True
    if HOLD:
        a('v_mov_b32 v8, %d' % C_HOLD); a('v_mov_b32 v9, s27'); lds_inc_v(a, 8, 9)
    a('s_cmp_eq_u32 s27, 0'); a('s_cbranch_scc1 km_d_pa'); a('s_setprio %d' % PRIO_DB); a('s_branch km_d_pb')
    a.label('km_d_pa'); a('s_setprio %d' % PRIO_D)
    a.label('km_d_pb')
    dmap()
    a('s_lshl_b32 s29, s27, 5'); a('s_add_u32 s53, s53, s29')
    a('v_bfe_u32 v12, v1, 2, 2'); a('v_lshl_add_u32 v12, v4, 3, v12'); a('v_lshlrev_b32 v12, 7, v12')
    a('v_bfe_u32 v13, v1, 4, 1'); a('v_lshl_add_u32 v12, v13, 5, v12'); a('v_and_b32 v13, 1, v1'); a('v_lshl_add_u32 v12, v13, 4, v12')
    a('v_bfe_u32 v13, v1, 1, 1'); a('v_lshl_add_u32 v12, v13, 3, v12'); a('v_bfe_u32 v13, v1, 3, 1'); a('v_lshl_add_u32 v12, v13, 6, v12')
    a('s_lshl_b32 s29, s26, 5'); a('v_xor_b32 v12, s29, v12'); a('s_lshl_b32 s29, s26, 13'); a('v_add_u32 v12, s29, v12'); a('v_xor_b32 v13, 64, v12')
    a('v_add_u32 v14, 65536, v12'); a('v_add_u32 v15, 65536, v13')
    a('s_mul_i32 s30, s53, %d' % (112 * 1024)); a('s_mul_i32 s31, s26, %d' % (28 * 1024)); a('s_add_u32 s30, s30, s31'); a('s_add_u32 s30, s30, 0x%x' % ACT)
    for g in range(7):
        if PASS2:
            a('s_cmp_eq_u32 s27, 0'); a('s_cselect_b32 s31, %d, %d' % (g, [4, 5, 6, 3, 0, 1, 2][g])); a('s_add_u32 s31, s31, s54'); a('s_sub_u32 s32, s31, 7')
            a('s_cmp_ge_u32 s31, 7'); a('s_cselect_b32 s31, s32, s31'); a('s_lshl_b32 s31, s31, 12'); a('s_add_u32 s%d, s31, s30' % (33 + g))
        else:
            region(31, g, 32); a('s_lshl_b32 s31, s31, 12'); a('s_add_u32 s%d, s31, s30' % (33 + g))
    a('s_lshr_b32 s32, s53, 2'); a('s_lshl_b32 s32, s32, 8'); a('s_add_u32 s32, s32, 0x%x' % (FLAGC + (0 if DIRECT_C else 128)))
    AD = [16, 32]; AF = 48; NR = 16; WD = [112, 120, 128, 136]; X1R = 144; GBR = 152; XA = 156; FC = 158
    a('s_lshl_b32 s44, s52, 3'); a('s_lshl_b32 s45, s26, 1'); a('s_add_u32 s44, s44, s45'); a('v_add_u32 v11, s44, v4')
    a('s_and_b32 s47, s53, 31'); token_of(a, 5, 8, 47); a('s_cmp_ge_u32 s53, 32'); mirror_if(a, 5, 8, 9)
    a('v_lshlrev_b32 v5, 10, v5'); a('v_lshl_add_u32 v5, v11, 4, v5')
    a('s_lshl_b32 s45, s53, 15'); a('s_add_u32 s45, s45, 0x%x' % X1T)
    a('s_lshl_b32 s29, s26, 2'); a('s_add_u32 s29, s29, %d' % C_FULL); a('v_mov_b32 v0, s29')
    a('s_lshl_b32 s29, s27, 2'); a('s_add_u32 s29, s29, %d' % C_GO); a('v_mov_b32 v7, s29')
    a('s_lshl_b32 s29, s27, 5'); a('v_add_u32 v10, s29, v0')
    srd(a, 40, 8, 2048 * 1024)
    a('s_cmp_eq_u32 s27, 0'); a('s_cselect_b32 s60, 0, 2048'); a('s_add_u32 s60, s60, 6144'); a('s_cmp_eq_u32 s27, 0'); a('s_cselect_b32 s61, %d, 0' % (XCH - 98304)); a('s_add_u32 s61, s61, 98304')
    for k in range(4):
        a('s_xor_b32 s29, s26, %d' % k); a('s_mul_i32 s29, s29, s60'); a('s_add_u32 s%d, s29, s61' % (48 + k))
    FC = 166
    def late():
        L = ['v_lshlrev_b32 v8, 4, v11', 'v_add_u32 v8, %d, v8' % GBH, 'ds_read_b128 v[%d:%d], v8' % (GBR, GBR + 3),
             'v_sub_u32 v8, 95, v11', 'v_cmp_gt_u32 vcc, 32, v11', 'v_cndmask_b32 v8, v8, v11, vcc', 'v_lshlrev_b32 v8, 9, v8', 'v_lshl_add_u32 v%d, v6, 4, v8' % XA,
             'v_sub_u32 v8, 64, v11', 'v_and_b32 v8, 31, v8', 'v_add_u32 v8, 32, v8', 'v_lshlrev_b32 v8, 9, v8', 'v_lshl_add_u32 v%d, v6, 4, v8' % (XA + 1)]
        L += ['v_add_u32 v%d, s%d, v3' % (160 + k, 48 + k) for k in range(4)]
        L += ['v_and_b32 v164, 3, v1', 'v_lshlrev_b32 v164, 2, v164', 'v_bfe_u32 v8, v1, 2, 1', 'v_lshl_add_u32 v164, v8, 5, v164', 'v_add_u32 v164, %d, v164' % C_FREE]
        return L
    areg = {}; wreg = {}
    def act_load(n, free):
        r = areg[n] = free.pop(0)
        a('buffer_load_dwordx4 v[%d:%d], v3, s[16:19], s%d offen offset:%d %s' % (r, r + 3, 33 + n // 4, 1024 * (n & 3), LD), tag='a%d' % n)
    def wd_read(n, free):
        pos = (n >> 2) & 3; wreg[n] = []
        for t in range(2):
            r0 = free.pop(0); wreg[n].append(r0)
            for hf in range(2):
                a('ds_read_b64_tr_b16 v[%d:%d], v%d offset:%d' % (r0 + 2 * hf, r0 + 2 * hf + 1, 12 + t + 2 * (pos >> 1), (pos & 1) * 32768 + (16 * (n & 3) + 4 * hf) * 128), tag='w%d' % n)
    stamp(a, 2)
    free0 = list(range(48, 144, 4))
    a('s_mov_b32 s31, %d' % (NPB // 4)); lds_spin_v(a, 'km_spinD1', 0, 's31')
    for k in range(NPB): wd_read(k, free0)
    a('s_waitcnt lgkmcnt(0)')
    a('v_mov_b32 v9, %d' % (NPB // 4)); lds_inc_v(a, 10, 9, C_FREE - C_FULL)
    wpre = dict(wreg)
    if HOLD:
        a('v_mov_b32 v8, %d' % C_HOLD); a('s_lshl_b32 s29, s27, 2'); a('s_sub_u32 s29, 4, s29')
        lds_spin_v(a, 'km_hold', 8, 's29')
    a('s_cmp_lg_u32 s26, 0'); a('s_cbranch_scc1 km_d_w')
    poll(a, 'km_pollC', 32, 1)
    lds_inc_v(a, 7, 2)
    a('s_branch km_d_go')
    a.label('km_d_w')
    lds_spin_v(a, 'km_spinH', 7, '1')
    a.label('km_d_go')
    stamp(a, 9)
    a('s_cmp_eq_u32 s27, 1'); a('s_cbranch_scc1 km_dB')
    svd = (a.vm, dict(a.tags), a.lg, dict(a.ltags))
    for G, dinit, dahead in (('A', D_INIT, D_AHEAD), ('B', DB_INIT, DB_AHEAD)):
        if G == 'B': a.role('km_dB'); a.vm, a.tags, a.lg, a.ltags = svd[0], dict(svd[1]), svd[2], dict(svd[3])
        a.reg = 'D'
        free = list(range(144, 164, 4)) + list(free0); LQ = late(); wreg.clear(); wreg.update(wpre); areg.clear()
        nxt = 0
        while (nxt < dinit or nxt < 5) and free: act_load(nxt, free); nxt += 1
        xdone = False; later = []
        for n in range(28):
            if n == 25: a('ds_read_b32 v165, v164')
            if n % 4 == 0 and NPB <= n + 4 < 28: a('ds_read_b32 v%d, v0' % FC, tag='fc%d' % n)
            if n % 4 == 1 and NPB <= n + 3 < 28:
                a.wait_lg('fc%d' % (n - 1)); a('v_readfirstlane_b32 s56, v%d' % FC); a('s_add_u32 s31, s31, 1')
                a('s_cmp_ge_u32 s56, s31'); a('s_cbranch_scc1 km_fu%s%d_ok' % (G, n))
                lg = a.lg; lds_spin_v(a, 'km_fu%s%d' % (G, n), 0, 's31'); a.lg = lg
            if NPB <= n + 3 < 28: wd_read(n + 3, free)
            a.wait_vm('a%d' % n)
            if n == 0: stamp(a, 1)
            if n in (4, 12, 20): stamp(a, {4: 3, 12: 4, 20: 12}[n])
            if n >= NPB: a.wait_lg('w%d' % n)
            for t in range(2):
                a.mfma(AD[t], wreg[n][t], areg[n], n == 0)
                if t == 0: free += later; later = []
                keep = 2 if NPB <= n + 4 < 28 else 0
                if nxt < 28 and nxt < n + dahead + t and len(free) > keep: act_load(nxt, free); nxt += 1
                if t == 0 and G == 'B' and D3 and nxt < 28 and nxt < n + dahead and len(free) > keep + 1: act_load(nxt, free); nxt += 1
            later = [r for r in wreg[n] + [areg[n]] if r < 144]
            if n >= 6:
                assert all(areg[k] < 144 for k in areg if k >= n - 1)
                for t in LQ[:6]: a(t)
                LQ = LQ[6:]
            if n in (3, 7, 11, 15) and n >= NPB: lds_inc_v(a, 10, 2, C_FREE - C_FULL)
            if nxt == 28 and not xdone and not LQ:
                xdone = True
                a('buffer_load_dwordx4 v[%d:%d], v%d, s[16:19], s45 offen %s' % (X1R, X1R + 3, XA, LD))
                a('buffer_load_ushort v%d, v%d, s[16:19], s45 offen %s' % (X1R + 4, XA + 1, LD))
        assert xdone and not LQ
        if G == 'A': a('s_branch km_djoin')
    a.label('km_djoin')
    a.reg = ''
    stamp(a, 10)
    a('s_waitcnt lgkmcnt(0)')
    a('v_cmp_lt_u32 vcc, 3, v165'); a('s_cmp_eq_u64 vcc, -1'); a('s_cbranch_scc1 km_x_ok')
    a('s_cmp_eq_u32 s27, 0'); a('s_cbranch_scc1 km_x_ok')
    a('s_mov_b32 s57, 0')
    a.label('km_x_sp')
    a('ds_read_b32 v9, v164'); a('s_waitcnt lgkmcnt(0)'); a('v_cmp_lt_u32 vcc, 3, v9'); a('s_cmp_eq_u64 vcc, -1'); a('s_cbranch_scc1 km_x_ok')
    a('s_sleep 1'); a('s_add_u32 s57, s57, 1'); a('s_cmp_lt_u32 s57, %d' % (SPIN * 16)); a('s_cbranch_scc1 km_x_sp')
    a.label('km_x_ok')
    a('s_nop 7')
    for k in range(1, 4):
        for hf in range(2): a('ds_write_b128 v%d, v[%d:%d] offset:%d' % (160 + k, 16 + 8 * k + 4 * hf, 19 + 8 * k + 4 * hf, 2048 * (k - 1) + 1024 * hf))
    X = 64; GF = 72
    a('s_waitcnt vmcnt(0)')
    unpack(a, GF, GBR, 4, 46)
    a('s_cmp_ge_u32 s52, 4'); a('s_cbranch_scc1 km_up')
    unpack(a, X, X1R, 4, 46)
    a('s_branch km_fin')
    a.label('km_up')
    unpack_rev(a, X, X1R, X1R + 4, 46)
    a.label('km_fin')
    a('s_waitcnt lgkmcnt(0)')
    lds_inc_v(a, 7, 2, C_XW - C_GO)
    lds_spin_v(a, 'km_spinX1', 7, '4', C_XW - C_GO, 0)
    for k in range(6): a('ds_read_b128 v[%d:%d], v160 offset:%d' % (80 + 4 * k, 83 + 4 * k, 1024 * k))
    for k in range(3):
        a('s_waitcnt lgkmcnt(%d)' % (4 - 2 * k))
        for i in range(0, 8, 2): a.pk('v_pk_add_f32', 16 + i, 16 + i, 80 + 8 * k + i)
    for r in range(8): a('v_fmac_f32 v%d, v%d, v%d' % (X + r, GF + r, 16 + r))
    for d in range(4): a('v_cvt_pk_bf16_f32 v%d, v%d, v%d' % (104 + d, X + 2 * d, X + 1 + 2 * d))
    a('buffer_store_dwordx4 v[104:107], v5, s[40:43], 0 offen')
    stamp(a, 11)
    assert nbar_h == 3 - B_MERGE and a.nbar == 3 - B_MERGE, (nbar_h, a.nbar)
    finish(a, name, 1)
    return name, a.text() + kernel_desc(name, 168, 100), (256, 768, LDS_TOTAL)

HEADER = open('adaLN_cond__spectral_fnet__geglu_ffn__prompt.s.ref').read().split('; Override launch')[0]
def all_kernels(): return [kM()]
GROUPS = {}
def build(kernels):
    hdr = HEADER
    body = '.amdgcn_target "amdgcn-amd-amdhsa--gfx950"\n.text\n'
    for name, text, (g, b, lds) in kernels:
        hdr += '; @launch grid=(%d,1,1) block=(%d,1,1) lds=%d\n' % (g, b, lds)
        body += text
    return hdr + body

if __name__ == '__main__':
    if len(sys.argv) > 2 and sys.argv[2] == 'debug': DEBUG = True
    for idx in range(512): assert (idx * 4682) >> 16 == idx // 14
    out = sys.argv[1] if len(sys.argv) > 1 else 'adaLN_cond__spectral_fnet__geglu_ffn__prompt.s'
    open(out, 'w').write(build(all_kernels()))
    print('wrote', out)
```

```python
import sys, struct
from asmlib import Asm, kernel_desc

PART = 0x000000
FLAGB= 0x010000
FLAGC= 0x010800
FLAGS= 0x011800
FLAGA= 0x013000
REGX = 0x011C00
FB2  = 0x012000
FC2  = 0x012400
CSG  = 0x080000
STATS= 0x020000
ZB   = 0x100000
X1T  = 0x300000
ZT   = 0x500000
ACT  = 0x700000
WSZ  = 0x1000000
STAMP = 0xE00000
DEBUG = False
EXP = set()
K4_MAP = '8x4'; K4_ROT = True; K5_ROT = True
PF_CODE = True; PF_W = 128; PF_WD = 2
ZST = ''
SPIN = 1 << 15
PSLEEP = 2
LSLEEP = 1
H_PRIO = 3
W_THR = 35
Z_TOUCH = 0
A_TOUCH = 0
PF_MODE = 'km'
TOUCH_AT = 0
SIDE_AT = 1
W_START = 'early'
FORCE_SLOW = 0
D_PRIO = 0
B_PRIO = 0
D_AHEAD = 10
D_INIT = 4
Z_INIT = 4
TAIL_B = 9
W_STASH = 0
W_MORE = 1
GATHER = 'w'
ZPF = 1
LD = 'sc1'
KA_W = 0
KM_W = 0
WD_FROM = 20
FB_ROT = 1
SELF_T = 0
PRE_Z = 0
PRE_A = 0
W_NT = ''
EPI_PK = 0
KA_BAR = 7
KA_GLATE = 1
PAD = 6000
PADEV = 0
PADW = 4
E_PRIO = 2
WD_MALL = 1
KA_MALL = 0
D_START = ''
LOG2E = 1.4426950408889634

class XAsm(Asm):
    def __init__(self): super().__init__(); self.nbar = 0; self.reg = ''
    def __call__(self, text, tag=None):
        t = text.strip()
        if self.reg:
            if (self.reg + 'nomfma') in EXP and t.startswith('v_mfma'): return
            if (self.reg + 'nods') in EXP and t.startswith('ds_read'): return
            if (self.reg + 'noload') in EXP and t.startswith('buffer_load'): return
            if (self.reg + 'plain') in EXP and t.startswith('buffer_load'): text = text.replace(' sc1', '')
            if (self.reg + 'novalu') in EXP and t.startswith(('v_mul', 'v_cvt', 'v_dot')): return
        super().__call__(text, tag)
    def pk(self, op, d, x, y, extra=''): self('%s v[%d:%d], v[%d:%d], v[%d:%d]%s' % (op, d, d + 1, x, x + 1, y, y + 1, extra))
    def mfma(self, acc, A, B, first=False):
        self('v_mfma_f32_32x32x16_bf16 v[%d:%d], v[%d:%d], v[%d:%d], %s' % (acc, acc + 15, A, A + 3, B, B + 3, '0' if first else 'v[%d:%d]' % (acc, acc + 15)))
    def bar(self, n=1): self('s_barrier'); self.nbar += n
    def role(self, l): self.label(l); self.hist = []

def fbits(f): return '0x%08x' % struct.unpack('<I', struct.pack('<f', f))[0]
def stamp(a, i):
    if 'lite' in EXP and i not in (0, 15): return
    if DEBUG and not ('bst' in EXP and getattr(a, 'inD', False) and i not in (10, 11, 15)): a('s_memrealtime s[%d:%d]' % (64 + 2 * i, 65 + 2 * i))
def cstamp(a, i):
    if DEBUG and 'cyc' in EXP: a('s_memtime s[%d:%d]' % (64 + 2 * i, 65 + 2 * i))
def finish(a, name, kidx, vbase=4):
    a.label(name + '_end')
    if 'padev' in EXP:
        a.hist = []
        a('s_cmp_lg_u32 s2, 37'); a('s_cbranch_scc1 %s_exit' % name); a('s_cmp_lg_u32 s3, %d' % (0 if kidx == 0 else PADW)); a('s_cbranch_scc1 %s_exit' % name)
        a('s_mov_b64 exec, 1'); a('v_mov_b32 v8, 0'); a('s_mov_b32 s62, 0x1f000'); a('s_waitcnt lgkmcnt(0)')
        if kidx == 1:
            a('s_waitcnt vmcnt(0)'); a('s_memrealtime s[94:95]'); a('s_waitcnt lgkmcnt(0)')
            a('s_mov_b32 s63, s%d' % (64 + 2 * PADEV)); a('s_mov_b32 s61, 0')
            a.label('km_padloop2')
            a('s_memrealtime s[58:59]'); a('s_waitcnt lgkmcnt(0)'); a('s_sub_u32 s60, s58, s63'); a('s_cmp_ge_u32 s60, 4000'); a('s_cbranch_scc1 %s_exit' % name)
            a('s_add_u32 s61, s61, 1'); a('s_cmp_lt_u32 s61, 100000'); a('s_cbranch_scc1 km_padloop2')
        a('s_branch %s_exit' % name)
    if 'pad' in EXP:
        a.hist = []
        a('s_cmp_lg_u32 s2, 0'); a('s_cbranch_scc1 %s_exit' % name); a('s_cmp_lg_u32 s3, 0'); a('s_cbranch_scc1 %s_exit' % name)
        a('s_mov_b64 exec, 1'); a('v_mov_b32 v8, 0'); a('s_mov_b32 s62, 0x1f000')
        if kidx == 0:
            a('s_waitcnt lgkmcnt(0)'); a('v_mov_b32 v9, s64'); a('buffer_store_dword v9, v8, s[16:19], s62 offen')
        else:
            a('buffer_load_dword v9, v8, s[16:19], s62 offen'); a('s_waitcnt vmcnt(0)'); a('v_readfirstlane_b32 s63, v9'); a('s_mov_b32 s61, 0')
            a.label('km_padloop')
            a('s_memrealtime s[64:65]'); a('s_waitcnt lgkmcnt(0)'); a('s_sub_u32 s66, s64, s63'); a('s_cmp_ge_u32 s66, %d' % PAD); a('s_cbranch_scc1 %s_exit' % name)
            a('s_add_u32 s61, s61, 1'); a('s_cmp_lt_u32 s61, 100000'); a('s_cbranch_scc1 km_padloop')
    if DEBUG:
        a.hist = []
        a('s_waitcnt vmcnt(0)')
        stamp(a, 15)
        a('s_waitcnt lgkmcnt(0)'); a('s_mov_b64 exec, 1')
        for i in range(16): a('v_mov_b32 v%d, s%d' % (vbase + i, 64 + 2 * i))
        a('s_lshl_b32 s60, s2, 4'); a('s_add_u32 s60, s60, s3'); a('s_lshl_b32 s60, s60, 6'); a('s_add_u32 s60, s60, 0x%x' % (STAMP + kidx * 0x80000))
        a('v_mov_b32 v%d, 0' % (vbase + 16))
        for i in range(4): a('buffer_store_dwordx4 v[%d:%d], v%d, s[16:19], s60 offen offset:%d' % (vbase + 4 * i, vbase + 4 * i + 3, vbase + 16, 16 * i))
        if 'dbgout' in EXP:
            a('s_cmp_lg_u32 s2, 37'); a('s_cbranch_scc1 %s_exit' % name)
            a('s_load_dwordx2 s[56:57], s[0:1], 96'); a('s_waitcnt lgkmcnt(0)')
            if kidx == 0: a('s_add_u32 s56, s56, 512'); a('s_addc_u32 s57, s57, 0')
            a('s_mov_b32 s58, 256'); a('s_mov_b32 s59, 0x20000')
            sel = {0: {0: [(0, 0), (3, 1), (4, 2), (15, 3)]}, 1: {4: [(0, 4), (14, 5), (12, 6), (5, 7), (6, 8), (7, 9), (8, 10), (9, 11), (10, 12), (15, 13)], 10: [(2, 14), (7, 15)]}}[kidx]
            for w, lst in sel.items():
                a('s_cmp_lg_u32 s3, %d' % w); a('s_cbranch_scc1 %s_dn%d' % (name, w))
                for st, pos in lst: a('buffer_store_dword v%d, v%d, s[56:59], 0 offen offset:%d' % (vbase + st, vbase + 16, 4 * pos))
                a.label('%s_dn%d' % (name, w))
    a.label(name + '_exit')
    a('s_endpgm')
def srd(a, d, lo, size):
    a('s_mov_b32 s%d, s%d' % (d, lo)); a('s_mov_b32 s%d, s%d' % (d + 1, lo + 1))
    a('s_mov_b32 s%d, 0x%x' % (d + 2, size)); a('s_mov_b32 s%d, 0x20000' % (d + 3))
def head(a, name, nwg):
    a.raw('.p2align 8'); a.raw('.globl %s' % name); a.raw('.type %s,@function' % name); a.label(name)
    a('s_cmp_ge_u32 s2, %d' % nwg); a('s_cbranch_scc1 %s_exit' % name)
    if DEBUG:
        for i in range(16): a('s_mov_b32 s%d, 0' % (64 + 2 * i))
    stamp(a, 0)
    if 'pad' in EXP: a('s_memrealtime s[64:65]')
def ids(a):
    a('v_and_b32 v1, 63, v0'); a('v_lshrrev_b32 v2, 6, v0'); a('v_readfirstlane_b32 s3, v2'); a('v_lshlrev_b32 v3, 4, v1')
    a('v_lshrrev_b32 v4, 5, v1'); a('v_and_b32 v6, 31, v1')
    a('s_and_b32 s20, s2, 7'); a('s_lshr_b32 s21, s2, 3'); a('s_and_b32 s26, s3, 3')
def swap23_v(a, dst, src, t0):
    a('v_and_b32 v%d, 0x13, v%d' % (dst, src))
    a('v_and_b32 v%d, 4, v%d' % (t0, src)); a('v_lshl_or_b32 v%d, v%d, 1, v%d' % (dst, t0, dst))
    a('v_and_b32 v%d, 8, v%d' % (t0, src)); a('v_lshrrev_b32 v%d, 1, v%d' % (t0, t0)); a('v_or_b32 v%d, v%d, v%d' % (dst, dst, t0))
def half_sum(a, regs, tmp, op='v_permlane32_swap_b32'):
    for i, r in enumerate(regs): a('v_mov_b32 v%d, v%d' % (tmp + i, r))
    for i, r in enumerate(regs): a('%s v%d, v%d' % (op, tmp + i, r))
    for i, r in enumerate(regs): a('v_add_f32 v%d, v%d, v%d' % (r, r, tmp + i))
def unpack(a, dst, src, n, mask):
    for d in range(n):
        a('v_lshlrev_b32 v%d, 16, v%d' % (dst + 2 * d, src + d)); a('v_and_b32 v%d, s%d, v%d' % (dst + 2 * d + 1, mask, src + d))
def unpack_rev(a, dst, src, extra, mask):
    a('v_lshlrev_b32 v%d, 16, v%d' % (dst, extra))
    for i in range(1, 8):
        el = 8 - i
        if el & 1: a('v_and_b32 v%d, s%d, v%d' % (dst + i, mask, src + el // 2))
        else: a('v_lshlrev_b32 v%d, 16, v%d' % (dst + i, src + el // 2))
def token_of(a, dst, tmp, sq):
    a('v_lshlrev_b32 v%d, 6, v6' % dst); a('v_add_u32 v%d, s%d, v%d' % (dst, sq, dst))
    a('v_subrev_u32 v%d, 992, v%d' % (tmp, dst)); a('v_cmp_lt_u32 vcc, 15, v6'); a('s_cmp_eq_u32 s%d, 0' % sq); a('s_cselect_b64 vcc, vcc, 0')
    a('v_cndmask_b32 v%d, v%d, v%d, vcc' % (dst, dst, tmp))
def mirror_if(a, dst, t0, t1):
    a('s_cselect_b64 s[58:59], -1, 0')
    a('v_sub_u32 v%d, 2048, v%d' % (t0, dst)); a('v_cmp_eq_u32 vcc, 0, v%d' % dst); a('v_mov_b32 v%d, 1024' % t1); a('v_cndmask_b32 v%d, v%d, v%d, vcc' % (t0, t0, t1))
    a('v_cndmask_b32 v%d, v%d, v%d, s[58:59]' % (dst, dst, t0))


def w_rows_touch(a, u, first, nst, wsel, srd0, vdst):
    for k in range(nst):
        a('s_lshl_b32 s46, s20, 1'); a('s_add_u32 s46, s46, s%d' % wsel); a('s_add_u32 s46, s46, %d' % (first + k * u)); a('s_and_b32 s46, s46, 15')
        a('s_lshl_b32 s46, s46, 5'); a('s_add_u32 s46, s46, s21')
        a('s_sub_u32 s47, 768, s46'); a('s_cmp_eq_u32 s46, 256'); a('s_cselect_b32 s47, 256, s47'); a('s_cmp_lt_u32 s46, 256'); a('s_cselect_b32 s46, s46, s47')
        a('s_mul_i32 s46, s46, 3584')
        for m in range(2): a('buffer_load_dword v%d, v%d, s[%d:%d], s46 offen' % (vdst, vdst + 1, srd0 + 4 * m, srd0 + 4 * m + 3))

XP = 1040
def phaseA(a, name):
    SA = 64 * XP; GP = SA + 512
    KC = C_KC
    a('v_mov_b32 v8, %d' % CNT)
    for r in range(12, 16): a('v_mov_b32 v%d, 0' % r)
    a('v_lshl_add_u32 v8, v6, 4, v8'); a('s_mov_b32 exec_lo, 0x3ff'); a('s_mov_b32 exec_hi, 0'); a('ds_write_b128 v8, v[12:15]'); a('s_mov_b64 exec, -1')
    def arriveA(u):
        a('s_waitcnt vmcnt(0)')
        a('v_mov_b32 v8, %d' % C_ARRA); a('v_mov_b32 v9, 1'); a('s_mov_b64 exec, 1')
        a('ds_add_rtn_u32 v10, v8, v9'); a('ds_read_b32 v11, v8 offset:%d' % (C_INIT - C_ARRA)); a('s_waitcnt lgkmcnt(0)')
        a('v_readfirstlane_b32 s56, v10'); a('v_readfirstlane_b32 s57, v11'); a('s_mov_b64 exec, -1')
        a('s_cmp_lg_u32 s56, 4'); a('s_cbranch_scc1 km_start')
        a('s_branch ka_signal')
    a('s_cmp_ge_u32 s3, 8'); a('s_cbranch_scc1 ka_gemv')
    a('s_lshr_b32 s23, s21, 3'); a('s_lshl_b32 s22, s20, 2'); a('s_add_u32 s23, s23, s22')
    a('s_and_b32 s24, s21, 7')
    a('s_lshl_b32 s25, s3, 18'); a('s_lshl_b32 s27, s23, 10'); a('s_add_u32 s25, s25, s27')
    a('s_mul_i32 s28, s3, %d' % (8 * XP)); a('s_mov_b32 s27, s24')
    a('v_and_b32 v12, 7, v1'); a('v_mul_u32_u24 v13, %d, v12' % XP); a('v_lshrrev_b32 v14, 3, v1'); a('v_lshl_add_u32 v13, v14, 7, v13'); a('v_add_u32 v13, s28, v13')
    a('s_waitcnt lgkmcnt(0)')
    srd(a, 12, 4, 2048 * 1024); srd(a, 16, 6, WSZ); a('s_mov_b32 s46, 256'); a('s_mov_b32 s47, 0x20000')
    for i in range(8):
        a('s_mul_i32 s31, s27, %d' % XP); a('s_add_u32 m0, s31, s28'); a('s_lshl_b32 s32, s27, 15'); a('s_add_u32 s32, s32, s25')
        a('buffer_load_dwordx4 v3, s[12:15], s32 offen lds')
        if i == KA_BAR: a('s_barrier')
        if i < 7: a('s_add_u32 s27, s27, 1'); a('s_and_b32 s27, s27, 7')
    a('s_lshl_b32 s31, s3, 3'); a('v_add_u32 v17, s31, v12'); a('v_lshlrev_b32 v18, 1, v17'); a('v_lshlrev_b32 v17, 2, v17')
    a('v_add_u32 v17, %d, v17' % SA); a('v_add_u32 v18, %d, v18' % SA)
    for r in range(24, 32): a('v_mov_b32 v%d, 0' % r)
    a('v_mov_b32 v21, 0'); a('v_mov_b32 v22, 0x3f803f80'); a('s_mov_b32 s36, 0xffff0000')
    BF = 32
    a('s_cmp_ge_u32 s3, 4'); a('s_cbranch_scc1 ka_nogen')
    a('s_and_b32 s29, s3, 1'); a('s_lshr_b32 s30, s3, 1')
    a('s_lshl_b32 s31, s29, 5'); a('v_add_u32 v7, s31, v6')
    a('v_lshrrev_b32 v8, 1, v7'); a('v_cmp_eq_u32 vcc, 1, v7'); a('v_cndmask_b32 v8, v8, 32, vcc')
    a('v_and_b32 v9, 1, v7'); a('v_cndmask_b32 v9, v9, 0, vcc'); a('v_cvt_f32_u32 v9, v9'); a('v_mul_f32 v9, %s, v9' % fbits(-0.25))
    a('v_cvt_f32_u32 v8, v8'); a('v_mul_f32 v8, %s, v8' % fbits(1 / 64))
    a('v_lshlrev_b32 v10, 3, v4'); a('v_cvt_f32_u32 v10, v10')
    a('v_fma_f32 v%d, v8, v10, v9' % BF); a('v_mul_f32 v11, %s, v8' % fbits(16.0))
    for i in range(1, 8): a('v_add_f32 v%d, v%d, v8' % (BF + i, BF + i - 1))
    for k in range(8, 32): a('v_add_f32 v%d, v%d, v11' % (BF + k, BF + k - 8))
    for k in range(32): a('v_cos_f32 v%d, v%d' % (BF + k, BF + k))
    a('v_bfe_u32 v15, v1, 2, 2'); a('v_lshl_add_u32 v15, v4, 3, v15'); a('v_mul_u32_u24 v15, %d, v15' % XP)
    a('v_and_b32 v16, 1, v1'); a('v_lshl_add_u32 v15, v16, 5, v15'); a('v_bfe_u32 v16, v1, 4, 1'); a('v_lshl_add_u32 v15, v16, 4, v15')
    a('v_bfe_u32 v16, v1, 1, 1'); a('v_lshl_add_u32 v15, v16, 3, v15')
    a('s_lshl_b32 s31, s24, 7'); a('s_lshl_b32 s32, s30, 6'); a('s_add_u32 s31, s31, s32'); a('v_add_u32 v15, s31, v15')
    a('v_lshlrev_b32 v19, 5, v4'); a('v_add_u32 v19, %d, v19' % SA); a('v_lshlrev_b32 v20, 4, v4'); a('v_add_u32 v20, %d, v20' % SA)
    a('s_lshl_b32 s31, s3, 11'); a('s_add_u32 s31, s31, %d' % TB); a('v_lshlrev_b32 v21, 6, v6'); a('v_lshl_add_u32 v21, v4, 5, v21'); a('v_add_u32 v21, s31, v21'); a('v_add_u32 v23, s31, v3')
    a('s_lshl_b32 s33, s24, 1'); a('s_add_u32 s33, s33, s30'); a('s_lshl_b32 s33, s33, 17'); a('s_lshl_b32 s34, s23, 12'); a('s_add_u32 s33, s33, s34'); a('s_add_u32 s33, s33, 0x%x' % ZB)
    a('s_lshl_b32 s34, s29, 11'); a('s_add_u32 s33, s33, s34')
    a.label('ka_nogen')
    a('s_waitcnt vmcnt(0)')
    a.label('ka_w1')
    XR = 64
    for j in range(8): a('ds_read_b128 v[%d:%d], v13 offset:%d' % (XR + 4 * j, XR + 4 * j + 3, 16 * j))
    for j in range(8):
        a('s_waitcnt lgkmcnt(%d)' % (7 - j))
        for d in range(4):
            a('v_dot2c_f32_bf16 v%d, v%d, v22' % (24 + d, XR + 4 * j + d)); a('v_dot2c_f32_bf16 v%d, v%d, v%d' % (28 + d, XR + 4 * j + d, XR + 4 * j + d))
    a('s_nop 2')
    a('v_add_f32 v24, v24, v25'); a('v_add_f32 v26, v26, v27'); a('v_add_f32 v28, v28, v29'); a('v_add_f32 v30, v30, v31')
    a('v_add_f32 v24, v24, v26'); a('v_add_f32 v25, v28, v30')
    a('v_add_f32_dpp v24, v24, v24 row_ror:8'); a('v_add_f32_dpp v25, v25, v25 row_ror:8')
    half_sum(a, [24, 25], 26, 'v_permlane16_swap_b32'); half_sum(a, [24, 25], 26)
    a('v_mul_f32 v24, %s, v24' % fbits(-1.0 / 512)); a('v_mul_f32 v25, %s, v25' % fbits(1.0 / 512))
    a('v_fma_f32 v25, -v24, v24, v25'); a('v_max_f32 v25, 0, v25'); a('v_add_f32 v25, %s, v25' % fbits(1e-5)); a('v_rsq_f32 v25, v25')
    a('v_cvt_pk_bf16_f32 v26, v24, v24'); a('v_and_b32 v27, s36, v26'); a('v_sub_f32 v27, v24, v27'); a('v_cvt_pk_bf16_f32 v27, v27, v27')
    a('ds_write_b32 v17, v25'); a('ds_write_b16 v18, v26 offset:256'); a('ds_write_b16 v18, v27 offset:384')
    a('s_waitcnt lgkmcnt(0)')
    lds_inc(a, KC)
    a('s_cmp_ge_u32 s3, 4'); a('s_cbranch_scc1 ka_pf')
    lds_spin(a, 'ka_spin', KC, 8)
    RR = 64; AF = 96; MF = 112; ACC = 64
    for j in range(4):
        for k in range(2): a('ds_read_b128 v[%d:%d], v19 offset:%d' % (RR + 8 * j + 4 * k, RR + 8 * j + 4 * k + 3, 64 * j + 16 * k), tag='r%d' % j)
    for j in range(4):
        for hf in range(2): a('ds_read_b64_tr_b16 v[%d:%d], v15 offset:%d' % (AF + 4 * j + 2 * hf, AF + 4 * j + 2 * hf + 1, (16 * j + 4 * hf) * XP), tag='a%d' % j)
    for j in range(4):
        a.wait_lg('r%d' % j)
        for i in range(0, 8, 2): a.pk('v_pk_mul_f32', BF + 8 * j + i, BF + 8 * j + i, RR + 8 * j + i)
        for d in range(4): a('v_cvt_pk_bf16_f32 v%d, v%d, v%d' % (BF + 8 * j + d, BF + 8 * j + 2 * d, BF + 8 * j + 2 * d + 1))
        for k in range(2): a('ds_read_b128 v[%d:%d], v20 offset:%d' % (MF + 8 * j + 4 * k, MF + 8 * j + 4 * k + 3, 256 + 128 * k + 32 * j), tag='m%d' % j)
    for j in range(4):
        a.wait_lg('a%d' % j); a.mfma(ACC, AF + 4 * j, BF + 8 * j, j == 0)
    for j in range(4):
        a.wait_lg('m%d' % j); a.mfma(ACC, MF + 8 * j, BF + 8 * j); a.mfma(ACC, MF + 8 * j + 4, BF + 8 * j)
    for d in range(8): a('v_cvt_pk_bf16_f32 v%d, v%d, v%d' % (80 + d, ACC + 2 * d, ACC + 2 * d + 1))
    a('ds_write_b128 v21, v[80:83]'); a('ds_write_b128 v21, v[84:87] offset:16'); a('s_waitcnt lgkmcnt(0)')
    a('ds_read_b128 v[88:91], v23'); a('ds_read_b128 v[92:95], v23 offset:1024')
    a('s_waitcnt lgkmcnt(1)'); a('buffer_store_dwordx4 v[88:91], v3, s[16:19], s33 offen sc1')
    a('s_waitcnt lgkmcnt(0)'); a('buffer_store_dwordx4 v[92:95], v3, s[16:19], s33 offen offset:1024 sc1')
    stamp(a, 14)
    arriveA('m')
    a.role('ka_signal')
    a('s_cmp_lg_u32 s57, 0'); a('s_cbranch_scc1 ka_inited')
    lds_spin(a, 'ka_iw', C_INIT, 1)
    a.label('ka_inited')
    a('s_and_b32 s57, s2, %d' % (NGA - 1)); a('s_lshl_b32 s57, s57, 7'); a('s_add_u32 s57, s57, 0x%x' % FLAGA)
    a('s_mov_b32 s56, 1'); a('s_atomic_add s56, s[6:7], s57 glc'); a('s_waitcnt lgkmcnt(0)')
    a('s_cmp_lg_u32 s56, %d' % (256 // NGA - 1)); a('s_cbranch_scc1 km_start')
    if A_TOP:
        a('s_mov_b32 s56, 1'); a('s_atomic_add s56, s[44:45], 64 glc'); a('s_waitcnt lgkmcnt(0)')
        a('s_cmp_lg_u32 s56, 7'); a('s_cbranch_scc1 km_start')
        a('s_mov_b32 s57, 0')
    a('s_mov_b64 exec, 1'); a('v_mov_b32 v8, 0'); a('v_mov_b32 v9, 1')
    if A_TOP: a('buffer_store_dword v9, v8, s[44:47], s57 offen offset:128 sc1')
    else: a('buffer_store_dword v9, v8, s[16:19], s57 offen offset:2048 sc1')
    a('s_mov_b64 exec, -1')
    a('s_branch km_start')
    a.role('ka_pf')
    a('s_cmp_lg_u32 s3, 4'); a('s_cbranch_scc1 km_start')
    a('v_mov_b32 v8, 0'); a('s_mov_b32 s57, 0')
    a.label('ka_gi_lp')
    a('buffer_load_dword v9, v8, s[44:47], 0 offen sc1'); a('s_waitcnt vmcnt(0)'); a('v_readfirstlane_b32 s56, v9'); a('s_cmp_lg_u32 s56, 0'); a('s_cbranch_scc1 ka_gi_ok')
    a('s_sleep 2'); a('s_add_u32 s57, s57, 1'); a('s_cmp_lt_u32 s57, %d' % SPIN); a('s_cbranch_scc1 ka_gi_lp')
    a.label('ka_gi_ok')
    stamp(a, 14)
    lds_inc(a, C_INIT)
    a('s_branch km_start')
    a.role('ka_gemv')
    a('v_and_b32 v5, 255, v0'); a('v_lshrrev_b32 v7, 3, v5'); a('v_and_b32 v8, 7, v5')
    a('s_lshr_b32 s22, s2, 2'); a('s_and_b32 s23, s2, 3')
    a('v_lshlrev_b32 v9, 3, v7'); a('s_lshl_b32 s24, s23, 8')
    a('v_mul_u32_u24 v10, %d, v7' % (4 * 6144)); a('v_lshl_add_u32 v10, v8, 4, v10')
    a('s_mul_i32 s25, s23, %d' % (128 * 6144)); a('s_lshl_b32 s27, s22, 7'); a('s_add_u32 s25, s25, s27')
    a('v_lshrrev_b32 v30, 4, v5'); a('v_lshlrev_b32 v30, 8, v30'); a('v_lshl_add_u32 v30, v8, 5, v30'); a('v_add_u32 v30, %d, v30' % GP)
    a('s_waitcnt lgkmcnt(0)')
    srd(a, 12, 8, 1024); srd(a, 28, 10, 512 * 6144); srd(a, 16, 6, WSZ); a('s_mov_b32 s46, 256'); a('s_mov_b32 s47, 0x20000')
    a('s_cmp_lt_u32 s2, 192'); a('s_cbranch_scc1 ka_job')
    a('s_lshl_b32 s25, s2, 4'); a('s_add_u32 s25, s25, s3')
    a('s_cmp_lg_u32 s25, %d' % (255 * 16 + 8)); a('s_cbranch_scc1 ka_nj')
    a('s_mov_b32 s24, 0x%x' % FLAGA)
    [a('buffer_store_dwordx4 v[12:15], v3, s[16:19], s24 offen offset:%d sc1' % (1024 * k)) for k in range(4)]
    a.label('ka_nj')
    a('s_barrier')
    a('s_cmp_lg_u32 s25, %d' % (255 * 16 + 8)); a('s_cbranch_scc1 ka_nj2')
    a('s_waitcnt vmcnt(0)')
    a('s_mov_b64 exec, 1'); a('v_mov_b32 v8, 0'); a('v_mov_b32 v9, 1'); a('buffer_store_dword v9, v8, s[44:47], 0 offen sc1'); a('s_mov_b64 exec, -1')
    a('s_mov_b32 s24, 0x%x' % FLAGB)
    for i in range(10): a('buffer_store_dwordx4 v[12:15], v3, s[16:19], s24 offen sc1'); a('s_add_u32 s24, s24, 1024')
    a.label('ka_nj2')
    if PF_CODE:
        a('s_cmp_lt_u32 s21, 30'); a('s_cbranch_scc1 ka_npf'); a('s_cmp_lt_u32 s26, 2'); a('s_cbranch_scc1 ka_npf')
        a('s_getpc_b64 s[40:41]')
        a.label('ka_pc')
        a('s_add_u32 s40, s40, km_start-ka_pc'); a('s_addc_u32 s41, s41, 0')
        a('s_mov_b32 s42, %s_exit-km_start' % name); a('s_mov_b32 s43, 0x20000')
        a('s_and_b32 s24, s21, 1'); a('s_lshl_b32 s24, s24, 1'); a('s_add_u32 s24, s24, s26'); a('s_sub_u32 s24, s24, 2'); a('s_lshl_b32 s24, s24, 13')
        a('v_lshlrev_b32 v8, 7, v1')
        a('buffer_load_dword v167, v8, s[40:43], s24 offen')
        a.label('ka_npf')
    a('s_cmp_lg_u32 s3, 8'); a('s_cbranch_scc1 km_start')
    arriveA('n')
    a.role('ka_job')
    a('buffer_load_dwordx2 v[12:13], v9, s[12:15], s24 offen', tag='c')
    if KA_GLATE: a('s_barrier')
    for i in range(4):
        a('buffer_load_dwordx4 v[%d:%d], v10, s[28:31], s25 offen' % (32 + 4 * i, 35 + 4 * i), tag='w%d' % i)
        if i < 3: a('s_add_u32 s25, s25, 6144')
    if not KA_GLATE: a('s_barrier')
    a('s_mov_b32 s36, 0xffff0000'); a('s_mov_b32 s40, 0x05040100'); a('s_mov_b32 s41, 0x07060302')
    for c in range(8): a('v_mov_b32 v%d, 0' % (64 + c))
    a.wait_vm('c')
    unpack(a, 16, 12, 2, 36)
    for i in range(4): a('v_mul_f32 v%d, %s, v%d' % (20 + i, fbits(-LOG2E), 16 + i))
    for i in range(4): a('v_exp_f32 v%d, v%d' % (20 + i, 20 + i))
    for i in range(4): a('v_add_f32 v%d, 1.0, v%d' % (20 + i, 20 + i))
    for i in range(4): a('v_rcp_f32 v%d, v%d' % (20 + i, 20 + i))
    for i in range(4): a('v_mul_f32 v%d, v%d, v%d' % (20 + i, 20 + i, 16 + i))
    for d in range(2): a('v_cvt_pk_bf16_f32 v%d, v%d, v%d' % (12 + d, 20 + 2 * d, 21 + 2 * d))
    for ip in range(2):
        a.wait_vm('w%d' % (2 * ip + 1))
        r0 = 32 + 8 * ip; r1 = r0 + 4
        for d in range(4):
            a('v_perm_b32 v%d, v%d, v%d, s40' % (48 + 2 * d, r1 + d, r0 + d)); a('v_perm_b32 v%d, v%d, v%d, s41' % (49 + 2 * d, r1 + d, r0 + d))
        for c in range(8): a('v_dot2c_f32_bf16 v%d, v%d, v%d' % (64 + c, 48 + c, 12 + ip))
        a('s_nop 2')
    for c in range(8): a('v_add_f32_dpp v%d, v%d, v%d row_ror:8' % (64 + c, 64 + c, 64 + c))
    a('ds_write_b128 v30, v[64:67]'); a('ds_write_b128 v30, v[68:71] offset:16')
    a('s_waitcnt lgkmcnt(0)')
    a('v_mov_b32 v8, %d' % (KC + 4)); a('v_mov_b32 v9, 1'); a('s_mov_b64 exec, 1')
    a('ds_add_rtn_u32 v10, v8, v9'); a('s_waitcnt lgkmcnt(0)'); a('v_readfirstlane_b32 s56, v10'); a('s_mov_b64 exec, -1')
    a('s_cmp_lg_u32 s56, 3'); a('s_cbranch_scc1 km_start')
    a('v_lshlrev_b32 v10, 2, v1'); a('v_add_u32 v10, %d, v10' % GP)
    for p in range(8): a('ds_read2st64_b32 v[%d:%d], v10 offset0:%d offset1:%d' % (32 + 2 * p, 33 + 2 * p, 2 * p, 2 * p + 1))
    a('s_lshr_b32 s24, s22, 3')
    a('s_lshl_b32 s25, s22, 6'); a('v_add_u32 v23, s25, v1'); a('v_and_b32 v26, 511, v23')
    a('v_sub_u32 v27, 512, v26'); a('v_and_b32 v27, 255, v27'); a('v_or_b32 v27, 256, v27')
    a('v_cmp_lt_u32 vcc, 255, v26'); a('s_sub_u32 s25, s24, 2'); a('s_cmp_lt_u32 s25, 3'); a('s_cselect_b64 vcc, vcc, 0')
    a('v_cndmask_b32 v27, v26, v27, vcc'); a('v_lshlrev_b32 v27, 2, v27')
    a('s_lshl_b32 s24, s24, 11'); a('s_mul_i32 s25, s23, 12288'); a('s_add_u32 s24, s24, s25')
    a('s_waitcnt lgkmcnt(0)')
    for st in (8, 4, 2, 1):
        for i in range(st): a('v_add_f32 v%d, v%d, v%d' % (32 + i, 32 + i, 32 + st + i))
    a('buffer_store_dword v32, v27, s[16:19], s24 offen sc1')
    arriveA('g')

def cheb(a, dst, p1, p2, K):
    for i in range(0, 8, 2):
        a('v_pk_fma_f32 v[%d:%d], v[%d:%d], v[%d:%d], v[%d:%d] op_sel_hi:[1,0,1] neg_lo:[0,0,1] neg_hi:[0,0,1]' % (
            dst + i, dst + i + 1, p1 + i, p1 + i + 1, K, K + 1, p2 + i, p2 + i + 1))

PS = 156672; LDS_TOTAL = PS + 7168
G2H = PS; SBH = PS + 1024; GBH = PS + 2048; SAL = PS + 3072; YST = SAL + 1024; CNT = PS + 6656
TB = 74240; NPRE = 9
ZI = TB; B1L = TB + 65536; G1L = B1L + 8192; GAL = G1L + 2048; G2L = GAL + 2048; EXT = G2L + 2048; XEL = EXT + 2048
assert XEL + 512 <= PS and NPRE * 8192 <= TB
XCH = 131072
C_ARRB, C_RED, C_ARRC, C_W1, C_W2, C_GOB, C_GO, C_Y, C_ISS, C_ARRS, C_PROG, C_FULL, C_FREE, C_XW, C_XR = [CNT + o for o in (0, 4, 8, 16, 20, 24, 40, 32, 36, 28, 48, 64, 80, 96, 104)]
C_KC = CNT + 128; C_ARRA = CNT + 136; C_INIT = CNT + 140; C_GOA = CNT + 144; W1_EARLY = 0; A_TOP = 0; NGA = 16; A_WAIT = 0
C_HOLD = CNT + 108; HOLD = 0; PASS2 = 0; PRIO_EA = 3; Q0_DRY = 0; C_FREEB = CNT + 112
W2_MODE = 'arr'; B_MERGE = 1
S_ATOM = 1; DB_INIT = 8; DB_AHEAD = 14; R_PRIO = 3; NPB = 12; D3 = 1; DIRECT_C = 0; DIRECT_B = 0
ZRING = 12; NWB = 6; PRIO_A = 1; PRIO_B = 1; PRIO_D = 0; PRIO_DB = 0; B_DELAY = 0

def poll(a, lbl, soff, nlanes, need=0):
    a('v_lshlrev_b32 v8, 2, v1'); a('s_mov_b32 s57, 0'); a('s_mov_b32 exec_lo, 0x%x' % ((1 << nlanes) - 1)); a('s_mov_b32 exec_hi, 0')
    a.label(lbl)
    a('buffer_load_dword v9, v8, s[16:19], s%d offen sc1' % soff); a('s_waitcnt vmcnt(0)')
    a('v_cmp_lt_u32 vcc, %d, v9' % max(0, need - 1)); a('s_cmp_eq_u32 vcc_lo, 0x%x' % ((1 << nlanes) - 1)); a('s_cbranch_scc1 %s_ok' % lbl)
    a('s_sleep %d' % PSLEEP); a('s_add_u32 s57, s57, 1'); a('s_cmp_lt_u32 s57, %d' % SPIN); a('s_cbranch_scc1 %s' % lbl)
    a.label(lbl + '_ok')
    a('s_mov_b64 exec, -1')
def lds_spin(a, lbl, addr, val):
    a('v_mov_b32 v8, %d' % addr); a('s_mov_b32 s57, 0')
    a.label(lbl)
    a('ds_read_b32 v9, v8'); a('s_waitcnt lgkmcnt(0)'); a('v_readfirstlane_b32 s56, v9')
    a('s_cmp_ge_u32 s56, %d' % val); a('s_cbranch_scc1 %s_ok' % lbl)
    a('s_sleep %d' % LSLEEP); a('s_add_u32 s57, s57, 1'); a('s_cmp_lt_u32 s57, %d' % (SPIN * 16)); a('s_cbranch_scc1 %s' % lbl)
    a.label(lbl + '_ok')
def lds_spin_v(a, lbl, vaddr, sval, off=0, sl=None):
    a('s_mov_b32 s57, 0')
    a.label(lbl)
    a('ds_read_b32 v9, v%d offset:%d' % (vaddr, off)); a('s_waitcnt lgkmcnt(0)'); a('v_readfirstlane_b32 s56, v9')
    a('s_cmp_ge_u32 s56, %s' % sval); a('s_cbranch_scc1 %s_ok' % lbl)
    a('s_sleep %d' % (LSLEEP if sl is None else sl)); a('s_add_u32 s57, s57, 1'); a('s_cmp_lt_u32 s57, %d' % (SPIN * 16)); a('s_cbranch_scc1 %s' % lbl)
    a.label(lbl + '_ok')
def lds_inc_v(a, vaddr, vone, off=0):
    a('s_mov_b64 exec, 1'); a('ds_add_u32 v%d, v%d offset:%d' % (vaddr, vone, off)); a('s_mov_b64 exec, -1')
def lds_inc(a, addr):
    a('v_mov_b32 v8, %d' % addr); a('v_mov_b32 v9, 1'); a('s_mov_b64 exec, 1'); a('ds_add_u32 v8, v9'); a('s_mov_b64 exec, -1')
def arrive(a, lbl, addr, n, soff, total=0, direct=False):
    a('s_waitcnt vmcnt(0)')
    a('v_mov_b32 v8, %s' % addr); a('v_mov_b32 v9, 1'); a('s_mov_b64 exec, 1')
    a('ds_add_rtn_u32 v10, v8, v9'); a('s_waitcnt lgkmcnt(0)'); a('v_readfirstlane_b32 s56, v10')
    a('s_cmp_lg_u32 s56, %d' % (n - 1)); a('s_cbranch_scc1 %s' % lbl)
    a('v_mov_b32 v8, 0')
    if direct:
        a('buffer_atomic_add v9, v8, s[16:19], s%d offen sc1' % soff)
    elif total and S_ATOM:
        a('s_mov_b32 s56, 1'); a('s_atomic_add s56, s[6:7], s%d glc' % soff); a('s_waitcnt lgkmcnt(0)')
        a('s_cmp_lg_u32 s56, %d' % (total - 1)); a('s_cbranch_scc1 %s' % lbl)
        if S_ATOM == 2:
            a('s_add_u32 s57, s%d, 128' % soff); a('s_mov_b32 s56, 1'); a('s_atomic_add s56, s[6:7], s57'); a('s_waitcnt lgkmcnt(0)')
        else:
            a('buffer_store_dword v9, v8, s[16:19], s%d offen offset:128 sc1' % soff)
    elif total:
        a('v_mov_b32 v10, 1'); a('buffer_atomic_add v10, v8, s[16:19], s%d offen sc0 sc1' % soff); a('s_waitcnt vmcnt(0)'); a('v_readfirstlane_b32 s56, v10')
        a('s_cmp_lg_u32 s56, %d' % (total - 1)); a('s_cbranch_scc1 %s' % lbl)
        a('buffer_store_dword v9, v8, s[16:19], s%d offen offset:128 sc1' % soff)
    else:
        a('buffer_store_dword v9, v8, s[16:19], s%d offen sc1' % soff)
    a.label(lbl)
    a('s_mov_b64 exec, -1')

def gen_a2(a, A2, CH, sphase):
    swap23_v(a, 9, 6, 10); a('s_lshl_b32 s32, s22, 5'); a('v_add_u32 v9, s32, v9')
    a('s_lshl_b32 s32, s25, 5'); a('v_lshl_add_u32 v8, v4, 3, s32')
    a('v_mul_u32_u24 v12, v9, v8'); a('v_and_b32 v12, 511, v12'); a('v_cvt_f32_u32 v12, v12'); a('v_cvt_f32_u32 v13, v9')
    a('v_mul_f32 v13, %s, v13' % fbits(1 / 512)); a('v_mov_b32 v%d, %s' % (CH[0], sphase)); a('v_fmac_f32 v%d, %s, v12' % (CH[0], fbits(1 / 512)))
    a('v_mul_f32 v10, %s, v13' % fbits(16.0))
    for i in range(1, 8): a('v_add_f32 v%d, v%d, v13' % (CH[0] + i, CH[0] + i - 1))
    for i in range(8): a('v_add_f32 v%d, v%d, v10' % (CH[1] + i, CH[0] + i))
    a('v_cos_f32 v10, v10')
    for g in range(2):
        for i in range(8): a('v_cos_f32 v%d, v%d' % (CH[g] + i, CH[g] + i))
    a('v_add_f32 v10, v10, v10')
    for j in range(8):
        c = CH[j % 3]
        if j >= 2: cheb(a, c, CH[(j - 1) % 3], CH[(j - 2) % 3], 10)
        for d in range(4): a('v_cvt_pk_bf16_f32 v%d, v%d, v%d' % (A2 + 4 * j + d, c + 2 * d, c + 2 * d + 1))
def z_bases(a):
    a('v_bfe_u32 v10, v1, 2, 2'); a('v_lshl_add_u32 v10, v4, 3, v10'); a('v_lshlrev_b32 v10, 7, v10')
    a('v_bfe_u32 v11, v1, 4, 1'); a('v_lshl_add_u32 v10, v11, 5, v10'); a('v_and_b32 v11, 1, v1'); a('v_lshl_add_u32 v10, v11, 4, v10')
    a('v_bfe_u32 v11, v1, 1, 1'); a('v_lshl_add_u32 v10, v11, 3, v10'); a('v_bfe_u32 v11, v1, 3, 1'); a('v_lshl_add_u32 v10, v11, 6, v10')
    a('v_xor_b32 v11, 64, v10')
    a('s_lshl_b32 s32, s26, 12'); a('s_add_u32 s32, s32, %d' % ZI); a('v_add_u32 v10, s32, v10'); a('v_add_u32 v11, s32, v11')
    a('v_lshlrev_b32 v12, 5, v4'); a('v_add_u32 v12, %d, v12' % G1L)
    a('v_mov_b32 v14, 0'); a('v_mov_b32 v15, 0xbf803f80')

KNAME = 'adaLN_cond__spectral_fnet__geglu_ffn__prompt_kernel'
def kM():
    W2_AT = {'go': (C_GOB, 1), 'iss': (C_ISS, 4), 'arr': (C_ARRB, 4)}[W2_MODE]
    a = XAsm(); name = KNAME
    head(a, name, 256)
    a('s_load_dwordx2 s[6:7], s[0:1], 104'); a('s_load_dwordx2 s[4:5], s[0:1], 0'); a('s_load_dwordx4 s[8:11], s[0:1], 72'); a('s_load_dwordx2 s[44:45], s[0:1], 96')
    ids(a)
    phaseA(a, name)
    a.role('km_start'); a.vm = 0; a.tags = {}; a.lg = 0; a.ltags = {}
    a('s_and_b32 s22, s21, 7'); a('s_lshr_b32 s23, s21, 3'); a('s_lshl_b32 s24, s20, 2'); a('s_add_u32 s23, s23, s24')
    a('s_lshl_b32 s25, s26, 2'); a('s_lshl_b32 s24, s22, 1'); a('s_add_u32 s25, s25, s24')
    def cmap():
        a('s_and_b32 s49, s21, 3'); a('s_lshr_b32 s48, s21, 2'); a('s_lshl_b32 s50, s49, 1'); a('s_add_u32 s50, s50, s48'); a('s_lshl_b32 s50, s50, 1'); a('s_and_b32 s50, s50, 15')
        a('s_and_b32 s51, s20, 4'); a('s_add_u32 s49, s49, s51'); a('s_min_u32 s51, s49, 6')
        a('s_cmp_ge_u32 s21, 28'); a('s_cselect_b32 s48, s51, s48')
        a('s_and_b32 s51, s20, 3'); a('s_mul_i32 s51, s51, 7'); a('s_add_u32 s48, s48, s51')
    def dmap():
        a('s_and_b32 s51, s21, 3'); a('s_lshr_b32 s52, s21, 2'); a('s_lshl_b32 s53, s20, 2'); a('s_add_u32 s53, s53, s51')
        a('s_lshl_b32 s54, s51, 1'); a('s_add_u32 s54, s54, s52'); a('s_and_b32 s54, s54, 7'); a('s_cmp_eq_u32 s54, 7'); a('s_cselect_b32 s54, 3, s54')
    def region(dst, k, tmp):
        a('s_add_u32 s%d, s54, %d' % (dst, k)); a('s_sub_u32 s%d, s%d, 7' % (tmp, dst)); a('s_cmp_ge_u32 s%d, 7' % dst); a('s_cselect_b32 s%d, s%d, s%d' % (dst, tmp, dst))
    a('s_cmp_lt_u32 s3, 8'); a('s_cbranch_scc1 km_compute')
    a('s_load_dwordx4 s[8:11], s[0:1], 48')
    if H_PRIO: a('s_setprio %d' % H_PRIO)
    a('v_lshrrev_b32 v5, 3, v1'); a('v_lshlrev_b32 v5, 12, v5'); a('v_and_b32 v7, 7, v1'); a('v_lshrrev_b32 v8, 2, v1'); a('v_and_b32 v8, 4, v8'); a('v_xor_b32 v7, v7, v8')
    a('v_lshl_add_u32 v5, v7, 4, v5')
    a('s_lshl_b32 s27, s23, 7'); a('s_add_u32 s27, s27, 0x%x' % ZB)
    a('s_lshl_b32 s28, s26, 12'); a('s_add_u32 s28, s28, %d' % ZI)
    a('s_lshl_b32 s33, s26, 9'); a('v_lshlrev_b32 v16, 4, v6'); a('v_add_u32 v16, s33, v16')
    a('v_lshlrev_b32 v17, 11, v4'); a('v_sub_u32 v17, 2048, v17'); a('v_add_u32 v17, v17, v16')
    a('v_add_u32 v18, %d, v16' % G1L); a('v_lshrrev_b32 v20, 1, v16'); a('v_add_u32 v20, %d, v20' % SAL)
    a('v_cvt_f32_u32 v19, v4'); a('v_mul_f32 v21, %s, v19' % fbits(2047.0)); a('v_add_f32 v21, 1.0, v21'); a('v_sub_f32 v19, 1.0, v19')
    def w_prep():
        a('s_cmp_eq_u32 s37, 1'); a('s_cselect_b32 s40, s10, s8'); a('s_cselect_b32 s41, s11, s9'); a('s_mov_b32 s42, %d' % (512 * 3584)); a('s_mov_b32 s43, 0x20000')
        a('v_lshrrev_b32 v140, 3, v1'); a('v_bfe_u32 v141, v1, 1, 2'); a('v_and_b32 v142, 2, v140'); a('v_or_b32 v142, s37, v142'); a('v_xor_b32 v141, v141, v142')
        a('v_lshlrev_b32 v141, 5, v141'); a('v_and_b32 v142, 1, v1'); a('v_lshl_add_u32 v141, v142, 4, v141')
        a('v_mul_u32_u24 v142, 3584, v140'); a('v_add_u32 v144, v142, v141')
        a('v_sub_u32 v142, %d, v142' % (263 * 3584)); a('v_add_u32 v145, v142, v141')
        a('v_subrev_u32 v146, %d, v145' % (256 * 3584)); a('v_cmp_eq_u32 vcc, 0, v140'); a('v_cndmask_b32 v146, v145, v146, vcc')
        a('s_lshl_b32 s30, s48, 7')
    def w_loop(lbl, upto, hsel, hstep):
        a.label(lbl)
        a('s_lshr_b32 s33, s24, 1'); a('s_lshl_b32 s31, s33, 13'); a('s_add_u32 s33, s33, s50'); a('s_and_b32 s33, s33, 15'); a('s_lshl_b32 s33, s33, 5')
        a('s_and_b32 s34, s24, 1'); a('s_lshl_b32 s35, s34, 11'); a('s_add_u32 s31, s31, s35'); a('s_lshl_b32 s35, s37, 12'); a('s_add_u32 m0, s31, s35')
        a('s_lshl_b32 s34, s34, 4'); a('s_add_u32 s33, s33, s34')
        a('s_cmp_ge_u32 s33, 256'); a('s_cbranch_scc1 %s_up' % lbl)
        a('s_mul_i32 s33, s33, 3584'); a('s_add_u32 s33, s33, s30'); a('s_add_u32 s34, s33, %d' % (8 * 3584))
        a('buffer_load_dwordx4 v144, s[40:43], s33 offen lds'); a('s_add_u32 m0, m0, 1024')
        a('buffer_load_dwordx4 v144, s[40:43], s34 offen lds')
        a('s_branch %s_nx' % lbl)
        a.label(lbl + '_up')
        a('s_cmp_eq_u32 s33, 256'); a('s_cselect_b64 vcc, -1, 0'); a('v_cndmask_b32 v147, v145, v146, vcc')
        a('s_sub_u32 s33, 505, s33'); a('s_mul_i32 s33, s33, 3584'); a('s_add_u32 s33, s33, s30'); a('s_sub_u32 s34, s33, %d' % (8 * 3584))
        a('buffer_load_dwordx4 v147, s[40:43], s33 offen lds'); a('s_add_u32 m0, m0, 1024')
        a('buffer_load_dwordx4 v145, s[40:43], s34 offen lds')
        a.label(lbl + '_nx')
        a('s_add_u32 s24, s24, %d' % hstep); a('s_cmp_lt_u32 s24, %d' % upto); a('s_cbranch_scc1 %s' % lbl)
    a('s_and_b32 s37, s26, 1'); a('s_lshr_b32 s38, s26, 1')
    cmap()
    a('s_waitcnt lgkmcnt(0)')
    w_prep()
    a('s_cmp_eq_u32 s26, 3'); a('s_cbranch_scc1 km_ga_poll')
    if W1_EARLY:
        a('s_cmp_eq_u32 s38, 1'); a('s_cbranch_scc1 km_ga_wait')
        lds_spin(a, 'km_spinA', C_ARRA, 5)
        stamp(a, 4)
        a('s_mov_b32 s24, 0')
        w_loop('km_hw_p1', 2 * NPRE, 0, 1)
        a.vm = 0
        stamp(a, 6)
    a.label('km_ga_wait')
    lds_spin(a, 'km_spinGA', C_GOA, 1)
    a('s_branch km_ga_go')
    a.role('km_ga_poll')
    if not A_TOP:
        lds_spin(a, 'km_gi', C_INIT, 1)
    lds_spin(a, 'km_spinA2', C_ARRA, 5)
    a('v_and_b32 v8, %d, v1' % (0 if A_TOP else NGA - 1)); a('v_lshlrev_b32 v8, 7, v8'); a('s_mov_b32 s57, 0'); a('s_mov_b32 s32, 0x%x' % (FLAGA + 2048))
    a('s_mov_b32 exec_lo, 0xffff'); a('s_mov_b32 exec_hi, 0')
    a.label('km_ga_lp')
    if A_TOP: a('buffer_load_dword v9, v8, s[44:47], 0 offen offset:128 sc1')
    else: a('buffer_load_dword v9, v8, s[16:19], s32 offen sc1')
    a('s_waitcnt vmcnt(0)')
    a('v_cmp_ne_u32 vcc, 0, v9'); a('s_cmp_eq_u32 vcc_lo, 0xffff'); a('s_cbranch_scc1 km_ga_ok')
    a('s_sleep %d' % PSLEEP); a('s_add_u32 s57, s57, 1'); a('s_cmp_lt_u32 s57, %d' % SPIN); a('s_cbranch_scc1 km_ga_lp')
    a.label('km_ga_ok')
    a('s_mov_b64 exec, -1')
    lds_inc(a, C_GOA)
    a.label('km_ga_go'); a.vm = 0
    a('s_mov_b32 s46, 0xffff0000'); a('s_mov_b32 s34, 12288'); a('s_mov_b32 s35, 24576'); a('s_mov_b32 s36, 36864')
    stamp(a, 1)
    def zdma(i):
        a('s_add_u32 s32, s25, %d' % i); a('s_and_b32 s32, s32, 15'); a('s_lshl_b32 s32, s32, 17'); a('s_add_u32 s32, s32, s27')
        a('s_add_u32 m0, s28, %d' % (16384 * i))
        for k in range(4):
            a('buffer_load_dwordx4 v5, s[16:19], s32 offen sc1 lds', tag='z%d' % i)
            if k < 3: a('s_add_u32 m0, m0, 1024'); a('s_add_u32 s32, s32, 32768')
    FP = 32
    if not B_MERGE: zdma(0)
    for p, so in enumerate(('0', 's34', 's35', 's36')): a('buffer_load_dwordx4 v[%d:%d], v17, s[16:19], %s offen sc1' % (FP + 4 * p, FP + 4 * p + 3, so), tag='f1')
    if B_MERGE: zdma(0)
    zdma(1)
    if not B_MERGE:
        zdma(2); zdma(3)
        a('s_waitcnt lgkmcnt(0)'); a.wait_vm('z0'); a.bar()
    else: zdma(2)
    a.wait_vm('f1')
    for i in (0, 2): a.pk('v_pk_add_f32', FP + i, FP + i, FP + 4 + i); a.pk('v_pk_add_f32', FP + 8 + i, FP + 8 + i, FP + 12 + i)
    for i in (0, 2): a.pk('v_pk_add_f32', FP + i, FP + i, FP + 8 + i)
    for d in range(2): a('v_cvt_pk_bf16_f32 v%d, v%d, v%d' % (FP + 4 + d, FP + 2 * d, FP + 2 * d + 1))
    unpack(a, FP, FP + 4, 2, 46)
    for i in range(4): a('v_fma_f32 v%d, v%d, v21, v19' % (FP + i, FP + i))
    for d in range(2): a('v_cvt_pk_bf16_f32 v%d, v%d, v%d' % (FP + 4 + d, FP + 2 * d, FP + 2 * d + 1))
    unpack(a, FP, FP + 4, 2, 46)
    a('s_mov_b32 exec_hi, 0'); a('ds_write_b128 v18, v[%d:%d]' % (FP, FP + 3))
    a('s_not_b64 exec, exec'); a('ds_write_b64 v20, v[%d:%d]' % (FP + 4, FP + 5)); a('s_mov_b64 exec, -1')
    a('s_waitcnt lgkmcnt(0)')
    a.wait_vm('z1'); a.bar()
    if B_MERGE: zdma(3)
    stamp(a, 2)
    def q0pre():
        z_bases(a)
        for d in range(4): a('v_mov_b32 v%d, v15' % (16 + d))
        swap23_v(a, 7, 6, 9)
        for t in range(8):
            a('s_add_u32 s32, s25, %d' % ((t & 3) + 8 * (t >> 2))); a('s_and_b32 s32, s32, 15'); a('s_lshl_b32 s32, s32, 5')
            a('v_add_u32 v9, s32, v7'); a('v_lshlrev_b32 v%d, 1, v9' % (152 + t)); a('v_lshlrev_b32 v9, 2, v9'); a('v_add_u32 v9, %d, v9' % G1L)
            a('v_add_u32 v%d, %d, v%d' % (152 + t, YST, 152 + t)); a('ds_read_b32 v%d, v9' % (160 + t))
    def q0job():
        ZQ = 24; AQ = [88, 104, 120, 88]
        for t in range(8):
            for j in range(2):
                for hf in range(2):
                    r = ZQ + 8 * t + 4 * j + 2 * hf
                    a('ds_read_b64_tr_b16 v[%d:%d], v10 offset:%d' % (r, r + 1, 16384 * (t & 3) + 8192 * (t >> 2) + (16 * j + 4 * hf) * 128), tag='q%d' % t)
        def post(t):
            a('v_mul_f32 v20, v%d, v%d' % (AQ[t % 3], 160 + t)); a('v_cvt_pk_bf16_f32 v%d, v20, v20' % (160 + t)); a('ds_write_b16 v%d, v%d' % (152 + t, 160 + t))
        for t in range(8):
            a.wait_lg('q%d' % t)
            a.mfma(AQ[t % 3], 16, ZQ + 8 * t, True); a.mfma(AQ[t % 3], 16, ZQ + 8 * t + 4)
            if t >= 2: post(t - 2)
        post(6); post(7)
        a('s_waitcnt lgkmcnt(0)')
        lds_inc(a, C_Y)
    a('s_load_dwordx2 s[4:5], s[0:1], 64')
    a('s_cmp_eq_u32 s38, 1'); a('s_cbranch_scc1 km_hz')
    sv = (a.vm, dict(a.tags), a.nbar)
    a('s_cmp_lg_u32 s23, 0'); a('s_cbranch_scc1 km_h_nq')
    q0pre()
    a.wait_vm('z3'); a('s_barrier')
    q0job()
    a('s_branch km_hw')
    a.role('km_h_nq')
    a.wait_vm('z3'); a.bar()
    a('s_branch km_hw')
    a.role('km_hz'); a.vm, a.tags, a.nbar = sv[0], dict(sv[1]), sv[2]
    a('s_lshl_b32 s34, s37, 1'); a('s_add_u32 s34, s34, 2'); a('s_lshl_b32 s34, s34, 11')
    for p in range(4):
        for rnd in range(2):
            for k in range(2):
                r = FP + 32 * rnd + 8 * p + 4 * k
                a('buffer_load_dwordx4 v[%d:%d], v3, s[16:19], s34 offen offset:%d sc1' % (r, r + 3, 2048 * rnd + 1024 * k), tag='f2')
        if p < 3: a('s_add_u32 s34, s34, 12288')
    a.wait_vm('z3'); a.bar()
    a('s_load_dwordx2 s[40:41], s[0:1], 0')
    a('v_mov_b32 v163, v6')
    for k in range(2):
        a('v_lshrrev_b32 v6, 2, v1')
        if k: a('v_add_u32 v6, 16, v6')
        token_of(a, 164 + k, 8, 23); a('s_cmp_eq_u32 s37, 1'); mirror_if(a, 164 + k, 8, 9)
        a('v_lshlrev_b32 v%d, 10, v%d' % (164 + k, 164 + k)); a('v_and_b32 v8, 3, v1'); a('v_lshl_add_u32 v%d, v8, 4, v%d' % (164 + k, 164 + k))
    a('v_mov_b32 v6, v163')
    token_of(a, 166, 8, 23); a('s_cmp_eq_u32 s37, 1'); mirror_if(a, 166, 8, 9); a('v_lshlrev_b32 v166, 10, v166')
    a('s_lshl_b32 s30, s22, 6'); a('s_sub_u32 s31, 960, s30'); a('s_sub_u32 s33, 1024, s30'); a('s_and_b32 s33, s33, 511'); a('s_add_u32 s33, s33, 512')
    a('s_lshl_b32 s32, s37, 12'); a('s_add_u32 s32, s32, %d' % B1L)
    a('s_waitcnt lgkmcnt(0)'); a('s_mov_b32 s42, 0x200000'); a('s_mov_b32 s43, 0x20000')
    for up in range(2):
        for k in range(2):
            a('s_add_u32 m0, s32, %d' % (2048 * up + 1024 * k)); a('buffer_load_dwordx4 v%d, s[40:43], s%d offen lds' % (164 + k, 30 + up))
    a('s_lshl_b32 s32, s37, 8'); a('s_add_u32 m0, s32, %d' % XEL); a('buffer_load_dword v166, s[40:43], s33 offen lds', tag='xl')
    a.wait_vm('f2')
    a('s_cmp_eq_u32 s37, 1'); a('s_cselect_b32 s35, 1.0, 0')
    for rnd in range(2):
        F = FP + 32 * rnd
        for i in range(0, 8, 2): a.pk('v_pk_add_f32', F + i, F + i, F + 8 + i); a.pk('v_pk_add_f32', F + 16 + i, F + 16 + i, F + 24 + i)
        for i in range(0, 8, 2): a.pk('v_pk_add_f32', F + i, F + i, F + 16 + i)
        for d in range(4): a('v_cvt_pk_bf16_f32 v%d, v%d, v%d' % (F + 8 + d, F + 2 * d, F + 2 * d + 1))
    unpack(a, FP, FP + 8, 4, 46)
    for i in range(8): a('v_add_f32 v%d, s35, v%d' % (FP + i, FP + i))
    for d in range(4): a('v_cvt_pk_bf16_f32 v%d, v%d, v%d' % (FP + 8 + d, FP + 2 * d, FP + 2 * d + 1))
    unpack(a, FP, FP + 8, 4, 46)
    a('s_lshl_b32 s33, s37, 11'); a('s_add_u32 s33, s33, %d' % GAL); a('v_add_u32 v8, s33, v3')
    a('ds_write_b128 v8, v[%d:%d]' % (FP, FP + 3)); a('ds_write_b128 v8, v[%d:%d] offset:1024' % (FP + 4, FP + 7))
    a('s_lshl_b32 s33, s37, 10'); a('s_add_u32 s33, s33, %d' % SBH); a('v_lshl_add_u32 v20, v1, 3, s33')
    a('ds_write_b64 v20, v[%d:%d]' % (FP + 40, FP + 41)); a('ds_write_b64 v20, v[%d:%d] offset:512' % (FP + 42, FP + 43))
    a('s_cmp_eq_u32 s37, 0'); a('s_cbranch_scc1 km_nochk')
    a('v_subrev_u32 v20, 2048, v20')
    a('ds_write_b64 v20, v[%d:%d]' % (FP + 8, FP + 9)); a('ds_write_b64 v20, v[%d:%d] offset:512' % (FP + 10, FP + 11))
    a.label('km_nochk')
    a('s_waitcnt vmcnt(0) lgkmcnt(0)')
    lds_inc(a, C_RED)
    stamp(a, 3)
    w_prep()
    a('s_branch km_hw2')
    a.role('km_hw')
    if not W1_EARLY:
        stamp(a, 4)
        a('s_mov_b32 s24, 0')
        w_loop('km_hw_p1', 2 * NPRE, 0, 1)
    a('s_waitcnt vmcnt(0)'); lds_inc(a, C_W1)
    a.label('km_hw2')
    a('s_waitcnt lgkmcnt(0)')
    srd(a, 12, 4, 1792 * 1024)
    a('s_cmp_ge_u32 s21, 28'); a('s_cselect_b32 s32, %d, 0' % (C_ISS - W2_AT[0])); a('s_cselect_b32 s33, 4, %d' % W2_AT[1]); a('s_add_u32 s32, s32, %d' % W2_AT[0]); a('v_mov_b32 v8, s32')
    lds_spin_v(a, 'km_spinT', 8, 's33')
    a('s_add_u32 s24, s38, %d' % (2 * NPRE))
    w_loop('km_hw_p2', 32, 0, 2)
    a('s_waitcnt vmcnt(0)'); lds_inc(a, C_W2)
    stamp(a, 5)
    a('s_setprio %d' % D_PRIO)
    dmap()
    a('v_lshrrev_b32 v5, 3, v1'); a('v_and_b32 v7, 7, v1'); a('v_lshrrev_b32 v8, 2, v1'); a('v_and_b32 v8, 4, v8'); a('v_xor_b32 v7, v7, v8')
    a('v_lshlrev_b32 v5, 10, v5'); a('v_lshl_add_u32 v5, v7, 4, v5')
    a('s_mul_i32 s27, s26, %d' % (448 * 1024)); a('s_lshl_b32 s28, s52, 7'); a('s_add_u32 s27, s27, s28')
    a('s_lshl_b32 s28, s26, 13'); a('v_add_u32 v7, s28, v3'); a('v_add_u32 v10, 65536, v7')
    a('s_lshl_b32 s32, s26, 2'); a('s_add_u32 s32, s32, %d' % C_FULL); a('v_mov_b32 v11, s32'); a('v_mov_b32 v12, 1')
    def stash(g, k):
        region(32, k, 25); a('s_lshl_b32 s32, s32, 16'); a('s_add_u32 s32, s32, s27')
        for i in range(8):
            r = 16 + 32 * g + 4 * i
            a('buffer_load_dwordx4 v[%d:%d], v5, s[12:15], s32 offen' % (r, r + 3))
            if i < 7: a('s_add_u32 s32, s32, 8192')
    for p in range(4):
        lds_spin(a, 'km_spinP%d' % p, C_PROG + 4 * p, 8)
        region(32, p, 25); a('s_lshl_b32 s32, s32, 16'); a('s_add_u32 s32, s32, s27'); a('s_add_u32 m0, s28, %d' % (32768 * p))
        for i in range(8):
            a('buffer_load_dwordx4 v5, s[12:15], s32 offen lds')
            if i < 7: a('s_add_u32 m0, m0, 1024'); a('s_add_u32 s32, s32, 8192')
        if p < 3: stash(p, 4 + p); a('s_waitcnt vmcnt(8)')
        else: a('s_waitcnt vmcnt(0)')
        lds_inc_v(a, 11, 12)
    stamp(a, 8)
    if R_PRIO: a('s_setprio %d' % R_PRIO)
    def refill(g):
        for i in range(8):
            r = 16 + 32 * g + 4 * i
            a('ds_write_b128 v%d, v[%d:%d] offset:%d' % (7 if g < 2 else 10, r, r + 3, (g & 1) * 32768 + 1024 * i))
        a('s_waitcnt lgkmcnt(0)')
        lds_inc_v(a, 11, 12)
    for g in range(3):
        lds_spin_v(a, 'km_spinFA%d' % g, 11, str(g + 1), C_FREE - C_FULL)
        if not PASS2: lds_spin_v(a, 'km_spinFB%d' % g, 11, str(g + 1), C_FREEB - C_FULL)
        refill(g)
    if PASS2:
        for g in range(3): stash(g, g)
        for g in range(3):
            lds_spin_v(a, 'km_spinFB%d' % g, 11, str(g + 1), C_FREEB - C_FULL); lds_spin_v(a, 'km_spinFC%d' % g, 11, str(g + 5), C_FREE - C_FULL)
            a('s_waitcnt vmcnt(%d)' % (8 * (2 - g)))
            refill(g)
    nbar_h = a.nbar
    a('s_branch %s_end' % name)
    a.role('km_compute'); a.nbar = 0
    a('s_lshr_b32 s27, s3, 2')
    a('s_load_dwordx2 s[8:9], s[0:1], 88')
    A2, B1, AC1, AP, ZF, GG = 16, 48, [64, 80], 96, 112, 128
    token_of(a, 7, 8, 23)
    a('s_mov_b64 s[30:31], vcc')
    a('s_lshr_b32 s28, s26, 1'); a('s_and_b32 s29, s26, 1'); a('s_lshl_b32 s29, s29, 4'); a('v_lshl_add_u32 v8, v4, 3, s29')
    a('s_cmp_eq_u32 s23, 0'); a('s_cselect_b32 s32, 0, s28'); a('s_sub_i32 s32, s32, s27'); a('v_cvt_f32_i32 v9, s32'); a('v_mul_f32 v9, %s, v9' % fbits(0.25))
    a('v_mul_u32_u24 v12, v7, v8'); a('v_and_b32 v12, 2047, v12'); a('v_cvt_f32_u32 v12, v12'); a('v_cvt_f32_u32 v13, v7')
    a('v_mul_f32 v13, %s, v13' % fbits(1 / 2048)); a('v_fmamk_f32 v64, v12, %s, v9' % fbits(1 / 2048))
    for i in range(1, 8): a('v_add_f32 v%d, v%d, v13' % (64 + i, 63 + i))
    for i in range(8): a('v_cos_f32 v%d, v%d' % (64 + i, 64 + i))
    for d in range(4): a('v_cvt_pk_bf16_f32 v%d, v%d, v%d' % (72 + d, 64 + 2 * d, 65 + 2 * d))
    a('s_not_b64 s[32:33], s[30:31]'); a('s_cmp_eq_u32 s28, 1'); a('s_cselect_b64 s[32:33], s[30:31], s[32:33]'); a('s_cmp_eq_u32 s23, 0'); a('s_cselect_b64 s[32:33], s[32:33], -1')
    for d in range(4): a('v_cndmask_b32 v%d, 0, v%d, s[32:33]' % (72 + d, 72 + d))
    a('s_lshl_b32 s32, s3, 10'); a('s_add_u32 s32, s32, %d' % B1L); a('v_add_u32 v8, s32, v3'); a('ds_write_b128 v8, v[72:75]')
    a('s_cmp_eq_u32 s27, 1'); a('s_cselect_b32 s34, %s, 0' % fbits(-0.25))
    gen_a2(a, A2, [64, 72, 80], 's34'); z_bases(a)
    a('v_cmp_eq_u32 s[42:43], 0, v7'); a('s_cmp_eq_u32 s27, 1'); a('s_cselect_b64 s[44:45], s[42:43], 0')
    a('v_lshlrev_b32 v5, 4, v4'); a('v_add_u32 v5, %d, v5' % YST); a('s_or_b32 s33, s22, s27')
    for r in range(160, 164): a('v_mov_b32 v%d, 0' % r)
    a('v_subrev_u32 v9, 1024, v5'); a('v_cndmask_b32 v5, v5, v9, s[42:43]')
    a('s_mov_b64 s[62:63], 0'); a('s_mov_b32 s59, 0')
    if Q0_DRY: a('s_cmp_eq_u32 s23, 0'); a('s_cbranch_scc1 km_q0dry')
    a.label('km_q0dryback'); a.hist = []
    a('s_lshl_b32 s32, s27, 12'); a('s_add_u32 s32, s32, %d' % B1L); a('v_add_u32 v8, s32, v3')
    a('s_waitcnt lgkmcnt(0)')
    stamp(a, 1)
    XL, XU, XX = 156, 160, 2
    a('s_and_b32 s37, s26, 1'); a('s_lshr_b32 s38, s26, 1')
    ZFS = [112, 128]
    def zread(i):
        for j in range(4):
            for hf in range(2):
                r = ZFS[i & 1] + 4 * j + 2 * hf
                a('ds_read_b64_tr_b16 v[%d:%d], v%d offset:%d' % (r, r + 1, 10 + (j >> 1), 16384 * i + (16 * (j & 1) + 4 * hf) * 128), tag='zr%d_%d' % (i, j))
    AY = 112; GG = 144
    def gread(i):
        a('s_add_u32 s32, s25, %d' % i); a('s_and_b32 s32, s32, 15'); a('s_lshl_b32 s32, s32, 7'); a('v_add_u32 v13, s32, v12')
        for k in range(4): a('ds_read_b128 v[%d:%d], v13 offset:%d' % (GG + 4 * k, GG + 4 * k + 3, 64 * (k >> 1) + 16 * (k & 1)), tag='g%d' % i)
    a.bar()
    stamp(a, 2)
    for j in range(4): a('ds_read_b128 v[%d:%d], v8 offset:%d' % (B1 + 4 * j, B1 + 4 * j + 3, 1024 * j))
    a.reg = 'B'
    zread(0)
    if B_MERGE: zread(1); gread(0)
    for j in range(4):
        a.wait_lg('zr0_%d' % j); a.mfma(AC1[0], ZFS[0] + 4 * j, B1 + 4 * j, j == 0)
    if not B_MERGE: a.bar(); zread(1); gread(0)
    for i in range(4):
        xc = AC1[i & 1]
        V = ['v_mul_f32 v%d, v%d, v%d' % (xc + r, xc + r, GG + r) for r in range(16)] + ['G'] + \
            ['v_cvt_pk_bf16_f32 v%d, v%d, v%d' % (xc + d, xc + 2 * d, xc + 2 * d + 1) for d in range(8)]
        def emit(n):
            for _ in range(n):
                if not V: return
                t = V.pop(0)
                if t == 'G':
                    if i < 3: gread(i + 1)
                else: a(t)
        if i < 3:
            for j in range(4):
                a.wait_lg('zr%d_%d' % (i + 1, j)); a.mfma(AC1[(i + 1) & 1], ZFS[(i + 1) & 1] + 4 * j, B1 + 4 * j, j == 0)
                if j == 3 and i == 0: a.bar(); zread(2)
                if j == 0 and i == 1: zread(3)
                if j == 0: a.wait_lg('g%d' % i)
                emit(6)
        else:
            a.wait_lg('g3')
        emit(99)
        a('s_cmp_lg_u32 s33, 0')
        for h in range(2): a.mfma(AP, A2 + 8 * i + 4 * h, xc + 4 * h, i == 0 and h == 0)
        a('s_cbranch_scc1 km_nd%d' % i)
        for d in range(8): a('v_dot2c_f32_bf16 v%d, v%d, v15' % (160 + (d & 3), xc + d))
        if i == 3:
            a('s_nop 2'); a('v_add_f32 v160, v160, v161'); a('v_add_f32 v162, v162, v163'); a('v_add_f32 v14, v160, v162')
        a.label('km_nd%d' % i)
    a.reg = ''
    stamp(a, 3)
    a('s_lshl_b32 s32, s3, 12'); a('s_add_u32 s32, s32, %d' % ZI); a('v_add_u32 v11, s32, v3')
    a('s_lshl_b32 s32, s26, 8'); a('s_add_u32 s32, s32, %d' % EXT); a('v_lshl_add_u32 v12, v1, 2, s32')
    a('s_cmp_eq_u32 s27, 0'); a('s_cselect_b64 s[30:31], -1, 0'); a('s_andn2_b64 s[34:35], s[30:31], s[42:43]')
    a('s_cmp_eq_u32 s23, 0'); a('s_cbranch_scc1 km_q0tail')
    a.label('km_q0back')
    a('s_nop 3')
    a('s_andn2_b64 exec, -1, s[44:45]')
    for k in range(4): a('ds_write_b128 v11, v[%d:%d] offset:%d' % (AP + 4 * k, AP + 4 * k + 3, 1024 * k))
    a('s_mov_b64 exec, s[30:31]'); a('ds_write_b32 v12, v14'); a('s_mov_b64 exec, s[34:35]'); a('ds_write_b32 v12, v14 offset:1024')
    a('s_mov_b64 exec, -1')
    a('s_waitcnt lgkmcnt(0)')
    lds_inc(a, CNT + 4)
    a('s_mov_b32 s46, 0xffff0000')
    cmap()
    a('s_cmp_eq_u32 s27, 0'); a('s_cbranch_scc1 km_C')
    XLF, XUF = 120, 128
    a('s_lshl_b32 s30, s37, 1'); a('v_add_u32 v9, s30, v4')
    a('s_lshl_b32 s39, s22, 7'); a('v_lshl_add_u32 v7, v9, 5, s39')
    a('s_lshl_b32 s30, s38, 12'); a('s_add_u32 s30, s30, %d' % B1L); a('v_lshl_add_u32 v13, v6, 6, s30')
    a('v_lshl_add_u32 v14, v9, 4, v13'); a('v_lshlrev_b32 v15, 4, v9'); a('v_sub_u32 v15, v13, v15')
    a('s_lshl_b32 s30, s38, 8'); a('s_add_u32 s30, s30, %d' % (XEL - 2112)); a('v_lshl_add_u32 v13, v6, 2, s30')
    a('v_cmp_eq_u32 vcc, 0, v9'); a('v_cndmask_b32 v13, v15, v13, vcc')
    GA, G2, GAU, G2U = 24, 32, 40, 48
    a('v_add_u32 v21, %d, v7' % GAL)
    a('s_lshl_b32 s32, s37, 11'); a('s_add_u32 s32, s32, %d' % ZI); a('v_add_u32 v11, s32, v3')
    a('s_cmp_eq_u32 s38, 0'); a('s_cselect_b32 s34, -1.0, 1.0'); a('s_cselect_b32 s35, 0, 1.0')
    a('v_mov_b32 v16, s34'); a('v_mov_b32 v17, s35'); a('v_sub_f32 v18, 0, v16'); a('v_sub_f32 v22, 1.0, v17')
    a('v_cndmask_b32 v16, v16, v17, s[42:43]'); a('v_cndmask_b32 v18, v18, v17, s[42:43]'); a('v_cndmask_b32 v22, 1.0, v22, s[42:43]')
    a('s_lshl_b32 s39, s38, 5'); a('s_add_u32 s39, s39, s23')
    a('s_lshl_b32 s36, s39, 15'); a('s_lshl_b32 s33, s22, 1'); a('s_add_u32 s33, s33, s37'); a('s_lshl_b32 s33, s33, 10'); a('s_add_u32 s36, s36, s33')
    a('s_lshl_b32 s32, s38, 10'); a('s_add_u32 s32, s32, %d' % EXT); a('v_lshl_add_u32 v20, v1, 2, s32')
    a('s_or_b32 s33, s22, s37'); a('s_cmp_eq_u32 s33, 0'); a('s_cselect_b32 s30, -1, 0'); a('s_mov_b32 s31, 0')
    a('s_setprio 0')
    lds_spin(a, 'km_spinR', CNT + 4, 10)
    if E_PRIO: a('s_setprio 3')
    stamp(a, 4)
    RP, RQ, YL, YU = 56, 88, 64, 72
    a('ds_read_b128 v[%d:%d], v14' % (XL, XL + 3)); a('ds_read_b128 v[%d:%d], v15 offset:2096' % (XU, XU + 3)); a('ds_read_u16 v%d, v13 offset:2112' % XX)
    for R, o in ((RP, 0), (RQ, 16384)):
        for src in range(4):
            for hf in range(2): a('ds_read_b128 v[%d:%d], v11 offset:%d' % (R + 8 * src + 4 * hf, R + 3 + 8 * src + 4 * hf, o + src * 4096 + hf * 1024))
    a('s_waitcnt lgkmcnt(15)')
    unpack(a, XLF, XL, 4, 46); unpack_rev(a, XUF, XU, XX, 46)
    for n, R in enumerate((RP, RQ)):
        a('s_waitcnt lgkmcnt(%d)' % (8 if n == 0 else 10))
        if n == 0:
            for reg, off in ((GA, 0), (GAU, 1024), (G2, 2048), (G2U, 3072)):
                for k in range(2): a('ds_read_b128 v[%d:%d], v21 offset:%d' % (reg + 4 * k, reg + 4 * k + 3, off + 16 * k))
            a('ds_read2st64_b32 v[136:137], v20 offset0:0 offset1:1'); a('ds_read2st64_b32 v[138:139], v20 offset0:2 offset1:3')
        for i in range(0, 8, 2): a.pk('v_pk_add_f32', R + i, R + i, R + 8 + i); a.pk('v_pk_add_f32', R + 16 + i, R + 16 + i, R + 24 + i)
        for i in range(0, 8, 2): a.pk('v_pk_add_f32', R + i, R + i, R + 16 + i)
    for i in range(0, 8, 2): a('v_pk_mul_f32 v[%d:%d], v[%d:%d], v[22:23] op_sel_hi:[1,0]' % (RP + i, RP + i + 1, RP + i, RP + i + 1))
    for i in range(0, 8, 2):
        a('v_pk_fma_f32 v[%d:%d], v[%d:%d], v[16:17], v[%d:%d] op_sel_hi:[1,0,1]' % (YL + i, YL + i + 1, RQ + i, RQ + i + 1, RP + i, RP + i + 1))
        a('v_pk_fma_f32 v[%d:%d], v[%d:%d], v[18:19], v[%d:%d] op_sel_hi:[1,0,1]' % (YU + i, YU + i + 1, RQ + i, RQ + i + 1, RP + i, RP + i + 1))
    a('s_waitcnt lgkmcnt(0)')
    a.pk('v_pk_add_f32', 136, 136, 138); a('v_add_f32 v136, v136, v137'); half_sum(a, [136], 137)
    a('v_cndmask_b32 v%d, v%d, v136, s[30:31]' % (YU, YU))
    for Y, G, X in ((YL, GA, XLF), (YU, GAU, XUF)):
        for i in range(0, 8, 2): a('v_pk_fma_f32 v[%d:%d], v[%d:%d], v[%d:%d], v[%d:%d]' % (Y + i, Y + i + 1, Y + i, Y + i + 1, G + i, G + i + 1, X + i, X + i + 1))
    for Y, G in ((YL, G2), (YU, G2U)):
        for i in range(0, 8, 2): a.pk('v_pk_mul_f32', G + i, Y + i, G + i)
    a('s_add_u32 s32, s36, 0x%x' % ZT); a('s_add_u32 s33, s32, 16384'); a('s_add_u32 s34, s36, 0x%x' % X1T); a('s_add_u32 s35, s34, 16384')
    for src, dst, so in ((G2, 80, 32), (G2U, 84, 33), (YL, 88, 34), (YU, 92, 35)):
        for d in range(4): a('v_cvt_pk_bf16_f32 v%d, v%d, v%d' % (dst + d, src + 2 * d, src + 2 * d + 1))
        a('buffer_store_dwordx4 v[%d:%d], v3, s[16:19], s%d offen sc1' % (dst, dst + 3, so))
    a.pk('v_pk_add_f32', 96, YL, YL + 2); a.pk('v_pk_mul_f32', 98, YL, YL)
    for i in range(2, 16, 2):
        if i > 2: a.pk('v_pk_add_f32', 96, 96, YL + i)
        a('v_pk_fma_f32 v[98:99], v[%d:%d], v[%d:%d], v[98:99]' % (YL + i, YL + i + 1, YL + i, YL + i + 1))
    a('v_add_f32 v100, v96, v97'); a('v_add_f32 v101, v98, v99')
    half_sum(a, [100, 101], 102)
    a('s_lshl_b32 s32, s39, 12'); a('s_lshl_b32 s33, s22, 9'); a('s_add_u32 s32, s32, s33'); a('s_lshl_b32 s33, s37, 8'); a('s_add_u32 s32, s32, s33'); a('s_add_u32 s32, s32, 0x%x' % STATS)
    a('v_lshlrev_b32 v8, 3, v1')
    a('s_mov_b32 exec_hi, 0')
    a('buffer_store_dwordx2 v[100:101], v8, s[16:19], s32 offen sc1')
    a('s_mov_b64 exec, -1')
    stamp(a, 12)
    a('s_lshl_b32 s32, s20, 8'); a('s_add_u32 s32, s32, 0x%x' % FLAGB)
    lds_inc(a, C_ISS)
    arrive(a, 'km_arrB', CNT, 4, 32, 32, DIRECT_B)
    stamp(a, 9)
    a('s_setprio 0')
    a('s_branch km_C')
    a.role('km_q0tail')
    a('s_mov_b64 s[62:63], s[42:43]'); a('s_mov_b32 s59, 2'); a('s_setprio 3')
    a.label('km_q0dry')
    a('v_mov_b32 v8, %d' % C_Y); lds_spin_v(a, 'km_spinY', 8, 's59', 0, 0)
    a('s_cmp_lg_u32 s27, 0'); a('s_cbranch_scc1 km_q0ret')
    for i in range(4):
        a('s_add_u32 s32, s25, %d' % i); a('s_and_b32 s32, s32, 15'); a('s_lshl_b32 s32, s32, 6'); a('v_add_u32 v9, s32, v5')
        for h in range(2): a('ds_read_b128 v[%d:%d], v9 offset:%d' % (128 + 8 * i + 4 * h, 131 + 8 * i + 4 * h, 32 * h))
    for r in range(164, 168): a('v_mov_b32 v%d, 0' % r)
    for j in range(8):
        a('s_waitcnt lgkmcnt(%d)' % (7 - j)); a.mfma(AY, A2 + 4 * j, 128 + 4 * j, j == 0)
        for d in range(4): a('v_dot2c_f32_bf16 v%d, v%d, v15' % (164 + d, 128 + 4 * j + d))
    a('s_nop 2')
    a('v_add_f32 v164, v164, v165'); a('v_add_f32 v166, v166, v167'); a('v_add_f32 v13, v164, v166')
    a('s_mov_b64 exec, s[62:63]')
    a('v_add_f32 v14, v14, v13')
    for r in range(0, 16, 2): a.pk('v_pk_add_f32', AP + r, AP + r, AY + r)
    a('s_lshl_b64 exec, s[62:63], 1')
    for k in range(4): a('ds_write_b128 v11, v[%d:%d] offset:%d' % (AY + 4 * k, AY + 4 * k + 3, 16384 - 16 + 1024 * k))
    a('ds_write_b32 v12, v13 offset:1020')
    a('s_mov_b64 exec, -1')
    a.label('km_q0ret')
    a('s_cmp_eq_u32 s59, 0'); a('s_cbranch_scc1 km_q0dryback')
    a('s_branch km_q0back')
    a.role('km_C')
    a('s_setprio 0')
    ACC = 16; WB = 80; ZF = WB + 4 * NWB; ST = ZF + 4 * ZRING
    assert ST + 16 <= 168
    a('v_bfe_u32 v10, v1, 4, 1'); a('v_bfe_u32 v11, v1, 2, 2'); a('v_lshl_add_u32 v12, v4, 3, v11'); a('v_lshlrev_b32 v12, 7, v12'); a('v_lshl_add_u32 v12, v10, 12, v12')
    a('v_and_b32 v11, 2, v11'); a('v_or_b32 v11, v11, v10'); a('v_lshl_add_u32 v12, v11, 5, v12')
    a('v_and_b32 v11, 1, v1'); a('v_lshl_add_u32 v12, v11, 4, v12'); a('v_bfe_u32 v11, v1, 1, 1'); a('v_lshl_add_u32 v12, v11, 3, v12')
    for j in range(1, 4): a('v_xor_b32 v%d, %d, v12' % (12 + j, 32 * j))
    a('v_mov_b32 v0, %d' % C_PROG); a('v_mov_b32 v2, 1')
    a('s_lshl_b32 s34, s48, 7'); a('s_add_u32 s34, s34, 0x%x' % FLAGS); a('s_lshl_b32 s35, s48, 11'); a('s_add_u32 s35, s35, 0x%x' % CSG)
    a('v_lshlrev_b32 v7, 4, v6')
    def wrd(n, j, dst, tag=None):
        for hf in range(2):
            a('ds_read_b64_tr_b16 v[%d:%d], v%d offset:%d' % (dst + 2 * hf, dst + 2 * hf + 1, 12 + j, ((n >> 1) & 7) * 8192 + (16 * (n & 1) + 4 * hf) * 128), tag=tag)
    a('s_cmp_ge_u32 s21, 28'); a('s_cbranch_scc1 km_csb')
    a('s_lshl_b32 s28, s49, 2'); a('s_add_u32 s28, s28, s26'); a('s_lshl_b32 s29, s27, 5'); a('s_add_u32 s28, s28, s29')
    a('s_lshl_b32 s36, s28, 15'); a('s_add_u32 s36, s36, 0x%x' % ZT); a('s_lshl_b32 s37, s50, 11')
    a('s_lshl_b32 s39, s28, 12'); a('s_add_u32 s39, s39, 0x%x' % STATS); a('v_lshlrev_b32 v5, 3, v6'); a('v_lshl_add_u32 v5, v4, 11, v5')
    k1c = -2 * 0.7978845608028654 * LOG2E; k2c = k1c * 0.044715
    a('s_mov_b32 s44, %s' % fbits(k2c))
    a('s_mul_i32 s40, s28, %d' % (112 * 1024)); a('s_lshl_b32 s41, s48, 12'); a('s_add_u32 s40, s40, s41'); a('s_add_u32 s40, s40, 0x%x' % ACT)
    a('s_lshr_b32 s41, s28, 2'); a('s_lshl_b32 s41, s41, 8'); a('s_add_u32 s41, s41, 0x%x' % FLAGC)
    a('s_lshl_b32 s42, s27, 2'); a('s_add_u32 s42, s42, %d' % C_ARRC)
    a('s_lshl_b32 s32, s49, 8'); a('s_add_u32 s32, s32, 0x%x' % (FLAGB + (0 if DIRECT_B else 128)))
    a('s_cmp_lg_u32 s3, 0'); a('s_cbranch_scc1 km_c_w')
    lds_spin(a, 'km_spinZ', C_ARRB, 4)
    poll(a, 'km_pollB', 32, 1, 32 if DIRECT_B else 0)
    lds_inc(a, C_GOB)
    a('s_branch km_c_go')
    a.label('km_c_w')
    lds_spin(a, 'km_spinG', C_GOB, 1)
    a.label('km_c_go')
    stamp(a, 13)
    a('s_cmp_eq_u32 s27, 0'); a('s_cbranch_scc1 km_c_pa'); a('s_setprio %d' % PRIO_B)
    if B_DELAY: lds_spin(a, 'km_spinBD', C_PROG, B_DELAY)
    a('s_branch km_c_pb')
    a.label('km_c_pa'); a('s_setprio %d' % PRIO_A)
    a.label('km_c_pb')
    def zld(n):
        if n & 1 == 0: a('s_add_u32 s38, s36, s37'); a('s_add_u32 s37, s37, 2048'); a('s_and_b32 s37, s37, 32767')
        r = ZF + 4 * (n % ZRING)
        a('buffer_load_dwordx4 v[%d:%d], v3, s[16:19], s38 offen offset:%d %s' % (r, r + 3, 1024 * (n & 1), LD), tag='z%d' % n)
    zn = 0
    while zn < Z_INIT: zld(zn); zn += 1
    lds_spin(a, 'km_spinW1', C_W1, 2)
    stamp(a, 5)
    a.reg = 'C'
    AHEAD = NWB - 1
    seq = [(n, j) for n in range(32) for j in range(4)]
    def issue_w(i):
        n, j = seq[i]
        if n == 2 * NPRE and j == 0: lds_spin(a, 'km_spinW2', C_W2, 4)
        if n == 16: a('v_add_u32 v%d, 65536, v%d' % (12 + j, 12 + j))
        wrd(n, j, WB + 4 * (i % NWB), 'w%d' % i)
    for i in range(AHEAD): issue_w(i)
    CS = [ZF + 4 * ((32 + k) % ZRING) for k in range(4)]
    for i, (n, j) in enumerate(seq):
        if j == 0: a.wait_vm('z%d' % n)
        a.wait_lg('w%d' % i)
        a.mfma(ACC + 16 * j, WB + 4 * (i % NWB), ZF + 4 * (n % ZRING), n == 0)
        if i + AHEAD < 128: issue_w(i + AHEAD)
        if j in (1, 3) and zn < 32 and zn < n + ZRING - (0 if j == 3 else 1) - 0 and (zn - ZRING < n or (zn - ZRING == n and False)):
            zld(zn); zn += 1
        if j == 2 and 8 <= n < 16: a('buffer_load_dwordx2 v[%d:%d], v5, s[16:19], s39 offen offset:%d %s' % (ST + 2 * (n - 8), ST + 2 * (n - 8) + 1, 256 * (n - 8), LD), tag='st')
        if j == 2 and n == 17: a('v_mov_b32 v10, 0'); a('buffer_load_dword v11, v10, s[16:19], s34 offen sc1', tag='fs')
        if j == 2 and n == 24:
            a.wait_vm('fs'); a('v_readfirstlane_b32 s56, v11'); a('s_cmp_lg_u32 s56, 0'); a('s_cbranch_scc1 km_fs_ok')
            vm = a.vm; poll(a, 'km_pollS', 34, 1); a.vm = vm
            a.label('km_fs_ok')
        if j == 2 and 25 <= n < 29:
            k = n - 25; assert 32 + k - ZRING < n
            a('buffer_load_dwordx4 v[%d:%d], v7, s[16:19], s35 offen offset:%d sc1' % (CS[k], CS[k] + 3, 512 * k), tag='cs')
        if j == 3 and n % 8 == 7: lds_inc_v(a, 0, 2, 4 * (n >> 3))
    assert zn == 32
    a.reg = ''
    stamp(a, 6)
    a('s_cmp_eq_u32 s27, 0'); a('s_cbranch_scc1 km_e_pa'); a('s_setprio 3'); a('s_branch km_e_pb')
    a.label('km_e_pa'); a('s_setprio %d' % PRIO_EA)
    a.label('km_e_pb')
    for st in (8, 4, 2):
        for i in range(st): a('v_add_f32 v%d, v%d, v%d' % (ST + i, ST + i, ST + st + i))
    half_sum(a, [ST, ST + 1], ST + 2)
    a('v_mul_f32 v10, %s, v%d' % (fbits(-1.0 / 512), ST))
    a('v_mul_f32 v11, %s, v%d' % (fbits(1.0 / 512), ST + 1)); a('v_fma_f32 v11, -v10, v10, v11'); a('v_max_f32 v11, 0, v11')
    a('v_add_f32 v11, %s, v11' % fbits(1e-5))
    a('v_rsq_f32 v8, v11'); a('v_sqrt_f32 v9, v11')
    for src, dst in ((10, 12), (9, 14)):
        a('v_cvt_pk_bf16_f32 v%d, v%d, v%d' % (ST, src, src)); a('v_and_b32 v%d, s46, v%d' % (ST, ST)); a('v_sub_f32 v%d, v%d, v%d' % (ST + 1, src, ST))
        a('v_cvt_pk_bf16_f32 v%d, v%d, v%d' % (dst, ST, ST + 1))
    a('v_cmp_gt_u32 vcc, 32, v1'); a('v_cndmask_b32 v12, 0, v12, vcc'); a('v_cndmask_b32 v14, 0, v14, vcc')
    a('v_mov_b32 v13, v12'); a('v_mov_b32 v15, v14'); a('v_mov_b32 v10, %s' % fbits(k1c)); a('v_mov_b32 v11, s44')
    a('s_waitcnt vmcnt(0)')
    for j in range(4): a.mfma(ACC + 16 * j, CS[j], 12)
    for j in range(4):
        g = ACC + 16 * j; u = g + 8; t = 80 + 8 * (j & 1)
        if EPI_PK:
            P = range(0, 8, 2)
            for i in P: a('v_pk_mul_f32 v[%d:%d], v[%d:%d], v[8:9] op_sel_hi:[1,0]' % (g + i, g + i + 1, g + i, g + i + 1))
            for i in P: a.pk('v_pk_mul_f32', t + i, g + i, g + i)
            for i in P: a('v_pk_fma_f32 v[%d:%d], v[%d:%d], v[10:11], v[10:11] op_sel:[0,1,0] op_sel_hi:[1,1,0]' % (t + i, t + i + 1, t + i, t + i + 1))
            for i in P: a.pk('v_pk_mul_f32', t + i, t + i, g + i)
            for i in range(8): a('v_exp_f32 v%d, v%d' % (t + i, t + i))
            for i in P: a.pk('v_pk_mul_f32', u + i, u + i, g + i)
            for i in P: a('v_pk_fma_f32 v[%d:%d], v[%d:%d], v[8:9], v[8:9] op_sel:[0,1,1] op_sel_hi:[1,1,1]' % (t + i, t + i + 1, t + i, t + i + 1))
            for i in range(8): a('v_rcp_f32 v%d, v%d' % (t + i, t + i))
            for i in P: a.pk('v_pk_mul_f32', u + i, u + i, t + i)
        else:
            for i in range(8): a('v_mul_f32 v%d, v8, v%d' % (g + i, g + i))
            for i in range(8): a('v_mul_f32 v%d, v%d, v%d' % (t + i, g + i, g + i))
            for i in range(8): a('v_fma_f32 v%d, v%d, s44, v10' % (t + i, t + i))
            for i in range(8): a('v_mul_f32 v%d, v%d, v%d' % (t + i, t + i, g + i))
            for i in range(8): a('v_exp_f32 v%d, v%d' % (t + i, t + i))
            for i in range(8): a('v_mul_f32 v%d, v%d, v%d' % (u + i, u + i, g + i))
            for i in range(8): a('v_fma_f32 v%d, v%d, v9, v9' % (t + i, t + i))
            for i in range(8): a('v_rcp_f32 v%d, v%d' % (t + i, t + i))
            for i in range(8): a('v_mul_f32 v%d, v%d, v%d' % (u + i, u + i, t + i))
        for d in range(4): a('v_cvt_pk_bf16_f32 v%d, v%d, v%d' % (g + d, u + 2 * d, u + 2 * d + 1))
        a('buffer_store_dwordx4 v[%d:%d], v3, s[16:19], s40 offen offset:%d sc1' % (g, g + 3, 1024 * j))
    stamp(a, 7)
    arrive(a, 'km_arrC', 's42', 4, 41, 28, DIRECT_C)
    stamp(a, 8)
    a('s_branch km_D')
    a.role('km_csb')
    lds_spin(a, 'km_spinR2', C_RED, 10); lds_spin(a, 'km_spinW3', C_W2, 4)
    a('s_cmp_lg_u32 s27, 0'); a('s_cbranch_scc1 km_csb_done')
    a('s_cmp_ge_u32 s49, 7'); a('s_cbranch_scc1 km_csb_done')
    a('s_lshl_b32 s32, s26, 5'); a('v_xor_b32 v12, s32, v12'); a('v_add_u32 v13, 65536, v12')
    a('v_and_b32 v10, 1, v1'); a('v_lshlrev_b32 v10, 10, v10'); a('v_lshl_add_u32 v10, v4, 4, v10'); a('v_add_u32 v10, %d, v10' % G2H)
    a('s_lshl_b32 s33, s50, 6')
    for blk in range(4):
        for k in range(8):
            n = 8 * blk + k
            if n & 1 == 0: a('v_add_u32 v11, s33, v10'); a('s_add_u32 s33, s33, 64'); a('s_and_b32 s33, s33, 1023')
            a('ds_read_b128 v[%d:%d], v11 offset:%d' % (32 + 8 * k, 35 + 8 * k, 32 * (n & 1)))
            wrd(n, n >> 4, 36 + 8 * k, 'c%d' % n)
        for k in range(8):
            n = 8 * blk + k
            a.wait_lg('c%d' % n); a.mfma(16, 32 + 8 * k, 36 + 8 * k, n == 0)
    for i in range(2):
        a('v_cvt_pk_bf16_f32 v%d, v%d, v%d' % (100 + 2 * i, 16 + i, 16 + i)); a('v_and_b32 v104, s46, v%d' % (100 + 2 * i)); a('v_sub_f32 v104, v%d, v104' % (16 + i))
        a('v_cvt_pk_bf16_f32 v%d, v104, v104' % (101 + 2 * i))
    a('s_lshl_b32 s32, s26, 9'); a('s_add_u32 s35, s35, s32')
    a('s_mov_b32 exec_hi, 0'); a('buffer_store_dwordx4 v[100:103], v7, s[16:19], s35 offen sc1'); a('s_mov_b64 exec, -1')
    arrive(a, 'km_arrS', C_ARRS, 4, 34)
    a.label('km_csb_done')
    stamp(a, 14)
    for p in range(4): lds_inc_v(a, 0, 2, 4 * p)
    a.label('km_D'); a.hist = []; a.inD = True
    if HOLD:
        a('v_mov_b32 v8, %d' % C_HOLD); a('v_mov_b32 v9, s27'); lds_inc_v(a, 8, 9)
    a('s_cmp_eq_u32 s27, 0'); a('s_cbranch_scc1 km_d_pa'); a('s_setprio %d' % PRIO_DB); a('s_branch km_d_pb')
    a.label('km_d_pa'); a('s_setprio %d' % PRIO_D)
    a.label('km_d_pb')
    dmap()
    a('s_lshl_b32 s29, s27, 5'); a('s_add_u32 s53, s53, s29')
    a('v_bfe_u32 v12, v1, 2, 2'); a('v_lshl_add_u32 v12, v4, 3, v12'); a('v_lshlrev_b32 v12, 7, v12')
    a('v_bfe_u32 v13, v1, 4, 1'); a('v_lshl_add_u32 v12, v13, 5, v12'); a('v_and_b32 v13, 1, v1'); a('v_lshl_add_u32 v12, v13, 4, v12')
    a('v_bfe_u32 v13, v1, 1, 1'); a('v_lshl_add_u32 v12, v13, 3, v12'); a('v_bfe_u32 v13, v1, 3, 1'); a('v_lshl_add_u32 v12, v13, 6, v12')
    a('s_lshl_b32 s29, s26, 5'); a('v_xor_b32 v12, s29, v12'); a('s_lshl_b32 s29, s26, 13'); a('v_add_u32 v12, s29, v12'); a('v_xor_b32 v13, 64, v12')
    a('v_add_u32 v14, 65536, v12'); a('v_add_u32 v15, 65536, v13')
    a('s_mul_i32 s30, s53, %d' % (112 * 1024)); a('s_mul_i32 s31, s26, %d' % (28 * 1024)); a('s_add_u32 s30, s30, s31'); a('s_add_u32 s30, s30, 0x%x' % ACT)
    for g in range(7):
        if PASS2:
            a('s_cmp_eq_u32 s27, 0'); a('s_cselect_b32 s31, %d, %d' % (g, [4, 5, 6, 3, 0, 1, 2][g])); a('s_add_u32 s31, s31, s54'); a('s_sub_u32 s32, s31, 7')
            a('s_cmp_ge_u32 s31, 7'); a('s_cselect_b32 s31, s32, s31'); a('s_lshl_b32 s31, s31, 12'); a('s_add_u32 s%d, s31, s30' % (33 + g))
        else:
            region(31, g, 32); a('s_lshl_b32 s31, s31, 12'); a('s_add_u32 s%d, s31, s30' % (33 + g))
    a('s_lshr_b32 s32, s53, 2'); a('s_lshl_b32 s32, s32, 8'); a('s_add_u32 s32, s32, 0x%x' % (FLAGC + (0 if DIRECT_C else 128)))
    AD = [16, 32]; AF = 48; NR = 16; WD = [112, 120, 128, 136]; X1R = 144; GBR = 152; XA = 156; FC = 158
    a('s_lshl_b32 s44, s52, 3'); a('s_lshl_b32 s45, s26, 1'); a('s_add_u32 s44, s44, s45'); a('v_add_u32 v11, s44, v4')
    a('s_and_b32 s47, s53, 31'); token_of(a, 5, 8, 47); a('s_cmp_ge_u32 s53, 32'); mirror_if(a, 5, 8, 9)
    a('v_lshlrev_b32 v5, 10, v5'); a('v_lshl_add_u32 v5, v11, 4, v5')
    a('s_lshl_b32 s45, s53, 15'); a('s_add_u32 s45, s45, 0x%x' % X1T)
    a('s_lshl_b32 s29, s26, 2'); a('s_add_u32 s29, s29, %d' % C_FULL); a('v_mov_b32 v0, s29')
    a('s_lshl_b32 s29, s27, 2'); a('s_add_u32 s29, s29, %d' % C_GO); a('v_mov_b32 v7, s29')
    a('s_lshl_b32 s29, s27, 5'); a('v_add_u32 v10, s29, v0')
    srd(a, 40, 8, 2048 * 1024)
    a('s_cmp_eq_u32 s27, 0'); a('s_cselect_b32 s60, 0, 2048'); a('s_add_u32 s60, s60, 6144'); a('s_cmp_eq_u32 s27, 0'); a('s_cselect_b32 s61, %d, 0' % (XCH - 98304)); a('s_add_u32 s61, s61, 98304')
    for k in range(4):
        a('s_xor_b32 s29, s26, %d' % k); a('s_mul_i32 s29, s29, s60'); a('s_add_u32 s%d, s29, s61' % (48 + k))
    FC = 166
    def late():
        L = ['v_lshlrev_b32 v8, 4, v11', 'v_add_u32 v8, %d, v8' % GBH, 'ds_read_b128 v[%d:%d], v8' % (GBR, GBR + 3),
             'v_sub_u32 v8, 95, v11', 'v_cmp_gt_u32 vcc, 32, v11', 'v_cndmask_b32 v8, v8, v11, vcc', 'v_lshlrev_b32 v8, 9, v8', 'v_lshl_add_u32 v%d, v6, 4, v8' % XA,
             'v_sub_u32 v8, 64, v11', 'v_and_b32 v8, 31, v8', 'v_add_u32 v8, 32, v8', 'v_lshlrev_b32 v8, 9, v8', 'v_lshl_add_u32 v%d, v6, 4, v8' % (XA + 1)]
        L += ['v_add_u32 v%d, s%d, v3' % (160 + k, 48 + k) for k in range(4)]
        L += ['v_and_b32 v164, 3, v1', 'v_lshlrev_b32 v164, 2, v164', 'v_bfe_u32 v8, v1, 2, 1', 'v_lshl_add_u32 v164, v8, 5, v164', 'v_add_u32 v164, %d, v164' % C_FREE]
        return L
    areg = {}; wreg = {}
    def act_load(n, free):
        r = areg[n] = free.pop(0)
        a('buffer_load_dwordx4 v[%d:%d], v3, s[16:19], s%d offen offset:%d %s' % (r, r + 3, 33 + n // 4, 1024 * (n & 3), LD), tag='a%d' % n)
    def wd_read(n, free):
        pos = (n >> 2) & 3; wreg[n] = []
        for t in range(2):
            r0 = free.pop(0); wreg[n].append(r0)
            for hf in range(2):
                a('ds_read_b64_tr_b16 v[%d:%d], v%d offset:%d' % (r0 + 2 * hf, r0 + 2 * hf + 1, 12 + t + 2 * (pos >> 1), (pos & 1) * 32768 + (16 * (n & 3) + 4 * hf) * 128), tag='w%d' % n)
    stamp(a, 2)
    free0 = list(range(48, 144, 4))
    a('s_mov_b32 s31, %d' % (NPB // 4)); lds_spin_v(a, 'km_spinD1', 0, 's31')
    for k in range(NPB): wd_read(k, free0)
    a('s_waitcnt lgkmcnt(0)')
    a('v_mov_b32 v9, %d' % (NPB // 4)); lds_inc_v(a, 10, 9, C_FREE - C_FULL)
    wpre = dict(wreg)
    if HOLD:
        a('v_mov_b32 v8, %d' % C_HOLD); a('s_lshl_b32 s29, s27, 2'); a('s_sub_u32 s29, 4, s29')
        lds_spin_v(a, 'km_hold', 8, 's29')
    a('s_cmp_lg_u32 s26, 0'); a('s_cbranch_scc1 km_d_w')
    poll(a, 'km_pollC', 32, 1)
    lds_inc_v(a, 7, 2)
    a('s_branch km_d_go')
    a.label('km_d_w')
    lds_spin_v(a, 'km_spinH', 7, '1')
    a.label('km_d_go')
    stamp(a, 9)
    a('s_cmp_eq_u32 s27, 1'); a('s_cbranch_scc1 km_dB')
    svd = (a.vm, dict(a.tags), a.lg, dict(a.ltags))
    for G, dinit, dahead in (('A', D_INIT, D_AHEAD), ('B', DB_INIT, DB_AHEAD)):
        if G == 'B': a.role('km_dB'); a.vm, a.tags, a.lg, a.ltags = svd[0], dict(svd[1]), svd[2], dict(svd[3])
        a.reg = 'D'
        free = list(range(144, 164, 4)) + list(free0); LQ = late(); wreg.clear(); wreg.update(wpre); areg.clear()
        nxt = 0
        while (nxt < dinit or nxt < 5) and free: act_load(nxt, free); nxt += 1
        xdone = False; later = []
        for n in range(28):
            if n == 25: a('ds_read_b32 v165, v164')
            if n % 4 == 0 and NPB <= n + 4 < 28: a('ds_read_b32 v%d, v0' % FC, tag='fc%d' % n)
            if n % 4 == 1 and NPB <= n + 3 < 28:
                a.wait_lg('fc%d' % (n - 1)); a('v_readfirstlane_b32 s56, v%d' % FC); a('s_add_u32 s31, s31, 1')
                a('s_cmp_ge_u32 s56, s31'); a('s_cbranch_scc1 km_fu%s%d_ok' % (G, n))
                lg = a.lg; lds_spin_v(a, 'km_fu%s%d' % (G, n), 0, 's31'); a.lg = lg
            if NPB <= n + 3 < 28: wd_read(n + 3, free)
            a.wait_vm('a%d' % n)
            if n == 0: stamp(a, 1)
            if n in (4, 12, 20): stamp(a, {4: 3, 12: 4, 20: 12}[n])
            if n >= NPB: a.wait_lg('w%d' % n)
            for t in range(2):
                a.mfma(AD[t], wreg[n][t], areg[n], n == 0)
                if t == 0: free += later; later = []
                keep = 2 if NPB <= n + 4 < 28 else 0
                if nxt < 28 and nxt < n + dahead + t and len(free) > keep: act_load(nxt, free); nxt += 1
                if t == 0 and G == 'B' and D3 and nxt < 28 and nxt < n + dahead and len(free) > keep + 1: act_load(nxt, free); nxt += 1
            later = [r for r in wreg[n] + [areg[n]] if r < 144]
            if n >= 6:
                assert all(areg[k] < 144 for k in areg if k >= n - 1)
                for t in LQ[:6]: a(t)
                LQ = LQ[6:]
            if n in (3, 7, 11, 15) and n >= NPB: lds_inc_v(a, 10, 2, C_FREE - C_FULL)
            if nxt == 28 and not xdone and not LQ:
                xdone = True
                a('buffer_load_dwordx4 v[%d:%d], v%d, s[16:19], s45 offen %s' % (X1R, X1R + 3, XA, LD))
                a('buffer_load_ushort v%d, v%d, s[16:19], s45 offen %s' % (X1R + 4, XA + 1, LD))
        assert xdone and not LQ
        if G == 'A': a('s_branch km_djoin')
    a.label('km_djoin')
    a.reg = ''
    stamp(a, 10)
    a('s_waitcnt lgkmcnt(0)')
    a('v_cmp_lt_u32 vcc, 3, v165'); a('s_cmp_eq_u64 vcc, -1'); a('s_cbranch_scc1 km_x_ok')
    a('s_cmp_eq_u32 s27, 0'); a('s_cbranch_scc1 km_x_ok')
    a('s_mov_b32 s57, 0')
    a.label('km_x_sp')
    a('ds_read_b32 v9, v164'); a('s_waitcnt lgkmcnt(0)'); a('v_cmp_lt_u32 vcc, 3, v9'); a('s_cmp_eq_u64 vcc, -1'); a('s_cbranch_scc1 km_x_ok')
    a('s_sleep 1'); a('s_add_u32 s57, s57, 1'); a('s_cmp_lt_u32 s57, %d' % (SPIN * 16)); a('s_cbranch_scc1 km_x_sp')
    a.label('km_x_ok')
    a('s_nop 7')
    for k in range(1, 4):
        for hf in range(2): a('ds_write_b128 v%d, v[%d:%d] offset:%d' % (160 + k, 16 + 8 * k + 4 * hf, 19 + 8 * k + 4 * hf, 2048 * (k - 1) + 1024 * hf))
    X = 64; GF = 72
    a('s_waitcnt vmcnt(0)')
    unpack(a, GF, GBR, 4, 46)
    a('s_cmp_ge_u32 s52, 4'); a('s_cbranch_scc1 km_up')
    unpack(a, X, X1R, 4, 46)
    a('s_branch km_fin')
    a.label('km_up')
    unpack_rev(a, X, X1R, X1R + 4, 46)
    a.label('km_fin')
    a('s_waitcnt lgkmcnt(0)')
    lds_inc_v(a, 7, 2, C_XW - C_GO)
    lds_spin_v(a, 'km_spinX1', 7, '4', C_XW - C_GO, 0)
    for k in range(6): a('ds_read_b128 v[%d:%d], v160 offset:%d' % (80 + 4 * k, 83 + 4 * k, 1024 * k))
    for k in range(3):
        a('s_waitcnt lgkmcnt(%d)' % (4 - 2 * k))
        for i in range(0, 8, 2): a.pk('v_pk_add_f32', 16 + i, 16 + i, 80 + 8 * k + i)
    for r in range(8): a('v_fmac_f32 v%d, v%d, v%d' % (X + r, GF + r, 16 + r))
    for d in range(4): a('v_cvt_pk_bf16_f32 v%d, v%d, v%d' % (104 + d, X + 2 * d, X + 1 + 2 * d))
    a('buffer_store_dwordx4 v[104:107], v5, s[40:43], 0 offen')
    stamp(a, 11)
    assert nbar_h == 3 - B_MERGE and a.nbar == 3 - B_MERGE, (nbar_h, a.nbar)
    finish(a, name, 1)
    return name, a.text() + kernel_desc(name, 168, 100), (256, 768, LDS_TOTAL)

HEADER = open('adaLN_cond__spectral_fnet__geglu_ffn__prompt.s.ref').read().split('; Override launch')[0]
def all_kernels(): return [kM()]
GROUPS = {}
def build(kernels):
    hdr = HEADER
    body = '.amdgcn_target "amdgcn-amd-amdhsa--gfx950"\n.text\n'
    for name, text, (g, b, lds) in kernels:
        hdr += '; @launch grid=(%d,1,1) block=(%d,1,1) lds=%d\n' % (g, b, lds)
        body += text
    return hdr + body

if __name__ == '__main__':
    if len(sys.argv) > 2 and sys.argv[2] == 'debug': DEBUG = True
    for idx in range(512): assert (idx * 4682) >> 16 == idx // 14
    out = sys.argv[1] if len(sys.argv) > 1 else 'adaLN_cond__spectral_fnet__geglu_ffn__prompt.s'
    open(out, 'w').write(build(all_kernels()))
    print('wrote', out)
```

```python
import sys, struct
from asmlib import Asm, kernel_desc

PART = 0x000000
FLAGB= 0x010000
FLAGC= 0x010800
FLAGS= 0x011800
FLAGA= 0x013000
REGX = 0x011C00
FB2  = 0x012000
FC2  = 0x012400
CSG  = 0x080000
STATS= 0x020000
ZB   = 0x100000
X1T  = 0x300000
ZT   = 0x500000
ACT  = 0x700000
WSZ  = 0x1000000
STAMP = 0xE00000
DEBUG = False
EXP = set()
K4_MAP = '8x4'; K4_ROT = True; K5_ROT = True
PF_CODE = True; PF_W = 128; PF_WD = 2
ZST = ''
SPIN = 1 << 15
PSLEEP = 2
LSLEEP = 1
H_PRIO = 3
W_THR = 35
Z_TOUCH = 0
A_TOUCH = 0
PF_MODE = 'km'
TOUCH_AT = 0
SIDE_AT = 1
W_START = 'early'
FORCE_SLOW = 0
D_PRIO = 0
B_PRIO = 0
D_AHEAD = 10
D_INIT = 4
Z_INIT = 4
TAIL_B = 9
W_STASH = 0
W_MORE = 1
GATHER = 'w'
ZPF = 1
LD = 'sc1'
KA_W = 0
KM_W = 0
WD_FROM = 20
FB_ROT = 1
SELF_T = 0
PRE_Z = 0
PRE_A = 0
W_NT = ''
EPI_PK = 0
KA_BAR = 7
KA_GLATE = 1
PAD = 6000
PADEV = 0
PADW = 4
E_PRIO = 2
WD_MALL = 1
KA_MALL = 0
D_START = ''
LOG2E = 1.4426950408889634

class XAsm(Asm):
    def __init__(self): super().__init__(); self.nbar = 0; self.reg = ''
    def __call__(self, text, tag=None):
        t = text.strip()
        if self.reg:
            if (self.reg + 'nomfma') in EXP and t.startswith('v_mfma'): return
            if (self.reg + 'nods') in EXP and t.startswith('ds_read'): return
            if (self.reg + 'noload') in EXP and t.startswith('buffer_load'): return
            if (self.reg + 'plain') in EXP and t.startswith('buffer_load'): text = text.replace(' sc1', '')
            if (self.reg + 'novalu') in EXP and t.startswith(('v_mul', 'v_cvt', 'v_dot')): return
        super().__call__(text, tag)
    def pk(self, op, d, x, y, extra=''): self('%s v[%d:%d], v[%d:%d], v[%d:%d]%s' % (op, d, d + 1, x, x + 1, y, y + 1, extra))
    def mfma(self, acc, A, B, first=False):
        self('v_mfma_f32_32x32x16_bf16 v[%d:%d], v[%d:%d], v[%d:%d], %s' % (acc, acc + 15, A, A + 3, B, B + 3, '0' if first else 'v[%d:%d]' % (acc, acc + 15)))
    def bar(self, n=1): self('s_barrier'); self.nbar += n
    def role(self, l): self.label(l); self.hist = []

def fbits(f): return '0x%08x' % struct.unpack('<I', struct.pack('<f', f))[0]
def stamp(a, i):
    if 'lite' in EXP and i not in (0, 15): return
    if DEBUG and not ('bst' in EXP and getattr(a, 'inD', False) and i not in (10, 11, 15)): a('s_memrealtime s[%d:%d]' % (64 + 2 * i, 65 + 2 * i))
def cstamp(a, i):
    if DEBUG and 'cyc' in EXP: a('s_memtime s[%d:%d]' % (64 + 2 * i, 65 + 2 * i))
def finish(a, name, kidx, vbase=4):
    a.label(name + '_end')
    if 'padev' in EXP:
        a.hist = []
        a('s_cmp_lg_u32 s2, 37'); a('s_cbranch_scc1 %s_exit' % name); a('s_cmp_lg_u32 s3, %d' % (0 if kidx == 0 else PADW)); a('s_cbranch_scc1 %s_exit' % name)
        a('s_mov_b64 exec, 1'); a('v_mov_b32 v8, 0'); a('s_mov_b32 s62, 0x1f000'); a('s_waitcnt lgkmcnt(0)')
        if kidx == 1:
            a('s_waitcnt vmcnt(0)'); a('s_memrealtime s[94:95]'); a('s_waitcnt lgkmcnt(0)')
            a('s_mov_b32 s63, s%d' % (64 + 2 * PADEV)); a('s_mov_b32 s61, 0')
            a.label('km_padloop2')
            a('s_memrealtime s[58:59]'); a('s_waitcnt lgkmcnt(0)'); a('s_sub_u32 s60, s58, s63'); a('s_cmp_ge_u32 s60, 4000'); a('s_cbranch_scc1 %s_exit' % name)
            a('s_add_u32 s61, s61, 1'); a('s_cmp_lt_u32 s61, 100000'); a('s_cbranch_scc1 km_padloop2')
        a('s_branch %s_exit' % name)
    if 'pad' in EXP:
        a.hist = []
        a('s_cmp_lg_u32 s2, 0'); a('s_cbranch_scc1 %s_exit' % name); a('s_cmp_lg_u32 s3, 0'); a('s_cbranch_scc1 %s_exit' % name)
        a('s_mov_b64 exec, 1'); a('v_mov_b32 v8, 0'); a('s_mov_b32 s62, 0x1f000')
        if kidx == 0:
            a('s_waitcnt lgkmcnt(0)'); a('v_mov_b32 v9, s64'); a('buffer_store_dword v9, v8, s[16:19], s62 offen')
        else:
            a('buffer_load_dword v9, v8, s[16:19], s62 offen'); a('s_waitcnt vmcnt(0)'); a('v_readfirstlane_b32 s63, v9'); a('s_mov_b32 s61, 0')
            a.label('km_padloop')
            a('s_memrealtime s[64:65]'); a('s_waitcnt lgkmcnt(0)'); a('s_sub_u32 s66, s64, s63'); a('s_cmp_ge_u32 s66, %d' % PAD); a('s_cbranch_scc1 %s_exit' % name)
            a('s_add_u32 s61, s61, 1'); a('s_cmp_lt_u32 s61, 100000'); a('s_cbranch_scc1 km_padloop')
    if DEBUG:
        a.hist = []
        a('s_waitcnt vmcnt(0)')
        stamp(a, 15)
        a('s_waitcnt lgkmcnt(0)'); a('s_mov_b64 exec, 1')
        for i in range(16): a('v_mov_b32 v%d, s%d' % (vbase + i, 64 + 2 * i))
        a('s_lshl_b32 s60, s2, 4'); a('s_add_u32 s60, s60, s3'); a('s_lshl_b32 s60, s60, 6'); a('s_add_u32 s60, s60, 0x%x' % (STAMP + kidx * 0x80000))
        a('v_mov_b32 v%d, 0' % (vbase + 16))
        for i in range(4): a('buffer_store_dwordx4 v[%d:%d], v%d, s[16:19], s60 offen offset:%d' % (vbase + 4 * i, vbase + 4 * i + 3, vbase + 16, 16 * i))
        if 'dbgout' in EXP:
            a('s_cmp_lg_u32 s2, 37'); a('s_cbranch_scc1 %s_exit' % name)
            a('s_load_dwordx2 s[56:57], s[0:1], 96'); a('s_waitcnt lgkmcnt(0)')
            if kidx == 0: a('s_add_u32 s56, s56, 512'); a('s_addc_u32 s57, s57, 0')
            a('s_mov_b32 s58, 256'); a('s_mov_b32 s59, 0x20000')
            sel = {0: {0: [(0, 0), (3, 1), (4, 2), (15, 3)]}, 1: {4: [(0, 4), (14, 5), (12, 6), (5, 7), (6, 8), (7, 9), (8, 10), (9, 11), (10, 12), (15, 13)], 10: [(2, 14), (7, 15)]}}[kidx]
            for w, lst in sel.items():
                a('s_cmp_lg_u32 s3, %d' % w); a('s_cbranch_scc1 %s_dn%d' % (name, w))
                for st, pos in lst: a('buffer_store_dword v%d, v%d, s[56:59], 0 offen offset:%d' % (vbase + st, vbase + 16, 4 * pos))
                a.label('%s_dn%d' % (name, w))
    a.label(name + '_exit')
    a('s_endpgm')
def srd(a, d, lo, size):
    a('s_mov_b32 s%d, s%d' % (d, lo)); a('s_mov_b32 s%d, s%d' % (d + 1, lo + 1))
    a('s_mov_b32 s%d, 0x%x' % (d + 2, size)); a('s_mov_b32 s%d, 0x20000' % (d + 3))
def head(a, name, nwg):
    a.raw('.p2align 8'); a.raw('.globl %s' % name); a.raw('.type %s,@function' % name); a.label(name)
    a('s_cmp_ge_u32 s2, %d' % nwg); a('s_cbranch_scc1 %s_exit' % name)
    if DEBUG:
        for i in range(16): a('s_mov_b32 s%d, 0' % (64 + 2 * i))
    stamp(a, 0)
    if 'pad' in EXP: a('s_memrealtime s[64:65]')
def ids(a):
    a('v_and_b32 v1, 63, v0'); a('v_lshrrev_b32 v2, 6, v0'); a('v_readfirstlane_b32 s3, v2'); a('v_lshlrev_b32 v3, 4, v1')
    a('v_lshrrev_b32 v4, 5, v1'); a('v_and_b32 v6, 31, v1')
    a('s_and_b32 s20, s2, 7'); a('s_lshr_b32 s21, s2, 3'); a('s_and_b32 s26, s3, 3')
def swap23_v(a, dst, src, t0):
    a('v_and_b32 v%d, 0x13, v%d' % (dst, src))
    a('v_and_b32 v%d, 4, v%d' % (t0, src)); a('v_lshl_or_b32 v%d, v%d, 1, v%d' % (dst, t0, dst))
    a('v_and_b32 v%d, 8, v%d' % (t0, src)); a('v_lshrrev_b32 v%d, 1, v%d' % (t0, t0)); a('v_or_b32 v%d, v%d, v%d' % (dst, dst, t0))
def half_sum(a, regs, tmp, op='v_permlane32_swap_b32'):
    for i, r in enumerate(regs): a('v_mov_b32 v%d, v%d' % (tmp + i, r))
    for i, r in enumerate(regs): a('%s v%d, v%d' % (op, tmp + i, r))
    for i, r in enumerate(regs): a('v_add_f32 v%d, v%d, v%d' % (r, r, tmp + i))
def unpack(a, dst, src, n, mask):
    for d in range(n):
        a('v_lshlrev_b32 v%d, 16, v%d' % (dst + 2 * d, src + d)); a('v_and_b32 v%d, s%d, v%d' % (dst + 2 * d + 1, mask, src + d))
def unpack_rev(a, dst, src, extra, mask):
    a('v_lshlrev_b32 v%d, 16, v%d' % (dst, extra))
    for i in range(1, 8):
        el = 8 - i
        if el & 1: a('v_and_b32 v%d, s%d, v%d' % (dst + i, mask, src + el // 2))
        else: a('v_lshlrev_b32 v%d, 16, v%d' % (dst + i, src + el // 2))
def token_of(a, dst, tmp, sq):
    a('v_lshlrev_b32 v%d, 6, v6' % dst); a('v_add_u32 v%d, s%d, v%d' % (dst, sq, dst))
    a('v_subrev_u32 v%d, 992, v%d' % (tmp, dst)); a('v_cmp_lt_u32 vcc, 15, v6'); a('s_cmp_eq_u32 s%d, 0' % sq); a('s_cselect_b64 vcc, vcc, 0')
    a('v_cndmask_b32 v%d, v%d, v%d, vcc' % (dst, dst, tmp))
def mirror_if(a, dst, t0, t1):
    a('s_cselect_b64 s[58:59], -1, 0')
    a('v_sub_u32 v%d, 2048, v%d' % (t0, dst)); a('v_cmp_eq_u32 vcc, 0, v%d' % dst); a('v_mov_b32 v%d, 1024' % t1); a('v_cndmask_b32 v%d, v%d, v%d, vcc' % (t0, t0, t1))
    a('v_cndmask_b32 v%d, v%d, v%d, s[58:59]' % (dst, dst, t0))


def w_rows_touch(a, u, first, nst, wsel, srd0, vdst):
    for k in range(nst):
        a('s_lshl_b32 s46, s20, 1'); a('s_add_u32 s46, s46, s%d' % wsel); a('s_add_u32 s46, s46, %d' % (first + k * u)); a('s_and_b32 s46, s46, 15')
        a('s_lshl_b32 s46, s46, 5'); a('s_add_u32 s46, s46, s21')
        a('s_sub_u32 s47, 768, s46'); a('s_cmp_eq_u32 s46, 256'); a('s_cselect_b32 s47, 256, s47'); a('s_cmp_lt_u32 s46, 256'); a('s_cselect_b32 s46, s46, s47')
        a('s_mul_i32 s46, s46, 3584')
        for m in range(2): a('buffer_load_dword v%d, v%d, s[%d:%d], s46 offen' % (vdst, vdst + 1, srd0 + 4 * m, srd0 + 4 * m + 3))

XP = 1040
def phaseA(a, name):
    SA = 64 * XP; GP = SA + 512
    KC = C_KC
    a('v_mov_b32 v8, %d' % CNT)
    for r in range(12, 16): a('v_mov_b32 v%d, 0' % r)
    a('v_lshl_add_u32 v8, v6, 4, v8'); a('s_mov_b32 exec_lo, 0x3ff'); a('s_mov_b32 exec_hi, 0'); a('ds_write_b128 v8, v[12:15]'); a('s_mov_b64 exec, -1')
    def arriveA(u):
        a('s_waitcnt vmcnt(0)')
        a('v_mov_b32 v8, %d' % C_ARRA); a('v_mov_b32 v9, 1'); a('s_mov_b64 exec, 1')
        a('ds_add_rtn_u32 v10, v8, v9'); a('ds_read_b32 v11, v8 offset:%d' % (C_INIT - C_ARRA)); a('s_waitcnt lgkmcnt(0)')
        a('v_readfirstlane_b32 s56, v10'); a('v_readfirstlane_b32 s57, v11'); a('s_mov_b64 exec, -1')
        a('s_cmp_lg_u32 s56, 4'); a('s_cbranch_scc1 km_start')
        a('s_branch ka_signal')
    a('s_cmp_ge_u32 s3, 8'); a('s_cbranch_scc1 ka_gemv')
    a('s_lshr_b32 s23, s21, 3'); a('s_lshl_b32 s22, s20, 2'); a('s_add_u32 s23, s23, s22')
    a('s_and_b32 s24, s21, 7')
    a('s_lshl_b32 s25, s3, 18'); a('s_lshl_b32 s27, s23, 10'); a('s_add_u32 s25, s25, s27')
    a('s_mul_i32 s28, s3, %d' % (8 * XP)); a('s_mov_b32 s27, s24')
    a('v_and_b32 v12, 7, v1'); a('v_mul_u32_u24 v13, %d, v12' % XP); a('v_lshrrev_b32 v14, 3, v1'); a('v_lshl_add_u32 v13, v14, 7, v13'); a('v_add_u32 v13, s28, v13')
    a('s_waitcnt lgkmcnt(0)')
    srd(a, 12, 4, 2048 * 1024); srd(a, 16, 6, WSZ); a('s_mov_b32 s46, 256'); a('s_mov_b32 s47, 0x20000')
    for i in range(8):
        a('s_mul_i32 s31, s27, %d' % XP); a('s_add_u32 m0, s31, s28'); a('s_lshl_b32 s32, s27, 15'); a('s_add_u32 s32, s32, s25')
        a('buffer_load_dwordx4 v3, s[12:15], s32 offen lds')
        if i == KA_BAR: a('s_barrier')
        if i < 7: a('s_add_u32 s27, s27, 1'); a('s_and_b32 s27, s27, 7')
    a('s_lshl_b32 s31, s3, 3'); a('v_add_u32 v17, s31, v12'); a('v_lshlrev_b32 v18, 1, v17'); a('v_lshlrev_b32 v17, 2, v17')
    a('v_add_u32 v17, %d, v17' % SA); a('v_add_u32 v18, %d, v18' % SA)
    for r in range(24, 32): a('v_mov_b32 v%d, 0' % r)
    a('v_mov_b32 v21, 0'); a('v_mov_b32 v22, 0x3f803f80'); a('s_mov_b32 s36, 0xffff0000')
    BF = 32
    a('s_cmp_ge_u32 s3, 4'); a('s_cbranch_scc1 ka_nogen')
    a('s_and_b32 s29, s3, 1'); a('s_lshr_b32 s30, s3, 1')
    a('s_lshl_b32 s31, s29, 5'); a('v_add_u32 v7, s31, v6')
    a('v_lshrrev_b32 v8, 1, v7'); a('v_cmp_eq_u32 vcc, 1, v7'); a('v_cndmask_b32 v8, v8, 32, vcc')
    a('v_and_b32 v9, 1, v7'); a('v_cndmask_b32 v9, v9, 0, vcc'); a('v_cvt_f32_u32 v9, v9'); a('v_mul_f32 v9, %s, v9' % fbits(-0.25))
    a('v_cvt_f32_u32 v8, v8'); a('v_mul_f32 v8, %s, v8' % fbits(1 / 64))
    a('v_lshlrev_b32 v10, 3, v4'); a('v_cvt_f32_u32 v10, v10')
    a('v_fma_f32 v%d, v8, v10, v9' % BF); a('v_mul_f32 v11, %s, v8' % fbits(16.0))
    for i in range(1, 8): a('v_add_f32 v%d, v%d, v8' % (BF + i, BF + i - 1))
    for k in range(8, 32): a('v_add_f32 v%d, v%d, v11' % (BF + k, BF + k - 8))
    for k in range(32): a('v_cos_f32 v%d, v%d' % (BF + k, BF + k))
    a('v_bfe_u32 v15, v1, 2, 2'); a('v_lshl_add_u32 v15, v4, 3, v15'); a('v_mul_u32_u24 v15, %d, v15' % XP)
    a('v_and_b32 v16, 1, v1'); a('v_lshl_add_u32 v15, v16, 5, v15'); a('v_bfe_u32 v16, v1, 4, 1'); a('v_lshl_add_u32 v15, v16, 4, v15')
    a('v_bfe_u32 v16, v1, 1, 1'); a('v_lshl_add_u32 v15, v16, 3, v15')
    a('s_lshl_b32 s31, s24, 7'); a('s_lshl_b32 s32, s30, 6'); a('s_add_u32 s31, s31, s32'); a('v_add_u32 v15, s31, v15')
    a('v_lshlrev_b32 v19, 5, v4'); a('v_add_u32 v19, %d, v19' % SA); a('v_lshlrev_b32 v20, 4, v4'); a('v_add_u32 v20, %d, v20' % SA)
    a('s_lshl_b32 s31, s3, 11'); a('s_add_u32 s31, s31, %d' % TB); a('v_lshlrev_b32 v21, 6, v6'); a('v_lshl_add_u32 v21, v4, 5, v21'); a('v_add_u32 v21, s31, v21'); a('v_add_u32 v23, s31, v3')
    a('s_lshl_b32 s33, s24, 1'); a('s_add_u32 s33, s33, s30'); a('s_lshl_b32 s33, s33, 17'); a('s_lshl_b32 s34, s23, 12'); a('s_add_u32 s33, s33, s34'); a('s_add_u32 s33, s33, 0x%x' % ZB)
    a('s_lshl_b32 s34, s29, 11'); a('s_add_u32 s33, s33, s34')
    a.label('ka_nogen')
    a('s_waitcnt vmcnt(0)')
    a.label('ka_w1')
    XR = 64
    for j in range(8): a('ds_read_b128 v[%d:%d], v13 offset:%d' % (XR + 4 * j, XR + 4 * j + 3, 16 * j))
    for j in range(8):
        a('s_waitcnt lgkmcnt(%d)' % (7 - j))
        for d in range(4):
            a('v_dot2c_f32_bf16 v%d, v%d, v22' % (24 + d, XR + 4 * j + d)); a('v_dot2c_f32_bf16 v%d, v%d, v%d' % (28 + d, XR + 4 * j + d, XR + 4 * j + d))
    a('s_nop 2')
    a('v_add_f32 v24, v24, v25'); a('v_add_f32 v26, v26, v27'); a('v_add_f32 v28, v28, v29'); a('v_add_f32 v30, v30, v31')
    a('v_add_f32 v24, v24, v26'); a('v_add_f32 v25, v28, v30')
    a('v_add_f32_dpp v24, v24, v24 row_ror:8'); a('v_add_f32_dpp v25, v25, v25 row_ror:8')
    half_sum(a, [24, 25], 26, 'v_permlane16_swap_b32'); half_sum(a, [24, 25], 26)
    a('v_mul_f32 v24, %s, v24' % fbits(-1.0 / 512)); a('v_mul_f32 v25, %s, v25' % fbits(1.0 / 512))
    a('v_fma_f32 v25, -v24, v24, v25'); a('v_max_f32 v25, 0, v25'); a('v_add_f32 v25, %s, v25' % fbits(1e-5)); a('v_rsq_f32 v25, v25')
    a('v_cvt_pk_bf16_f32 v26, v24, v24'); a('v_and_b32 v27, s36, v26'); a('v_sub_f32 v27, v24, v27'); a('v_cvt_pk_bf16_f32 v27, v27, v27')
    a('ds_write_b32 v17, v25'); a('ds_write_b16 v18, v26 offset:256'); a('ds_write_b16 v18, v27 offset:384')
    a('s_waitcnt lgkmcnt(0)')
    lds_inc(a, KC)
    a('s_cmp_ge_u32 s3, 4'); a('s_cbranch_scc1 ka_pf')
    lds_spin(a, 'ka_spin', KC, 8)
    RR = 64; AF = 96; MF = 112; ACC = 64
    for j in range(4):
        for k in range(2): a('ds_read_b128 v[%d:%d], v19 offset:%d' % (RR + 8 * j + 4 * k, RR + 8 * j + 4 * k + 3, 64 * j + 16 * k), tag='r%d' % j)
    for j in range(4):
        for hf in range(2): a('ds_read_b64_tr_b16 v[%d:%d], v15 offset:%d' % (AF + 4 * j + 2 * hf, AF + 4 * j + 2 * hf + 1, (16 * j + 4 * hf) * XP), tag='a%d' % j)
    for j in range(4):
        a.wait_lg('r%d' % j)
        for i in range(0, 8, 2): a.pk('v_pk_mul_f32', BF + 8 * j + i, BF + 8 * j + i, RR + 8 * j + i)
        for d in range(4): a('v_cvt_pk_bf16_f32 v%d, v%d, v%d' % (BF + 8 * j + d, BF + 8 * j + 2 * d, BF + 8 * j + 2 * d + 1))
        for k in range(2): a('ds_read_b128 v[%d:%d], v20 offset:%d' % (MF + 8 * j + 4 * k, MF + 8 * j + 4 * k + 3, 256 + 128 * k + 32 * j), tag='m%d' % j)
    for j in range(4):
        a.wait_lg('a%d' % j); a.mfma(ACC, AF + 4 * j, BF + 8 * j, j == 0)
    for j in range(4):
        a.wait_lg('m%d' % j); a.mfma(ACC, MF + 8 * j, BF + 8 * j); a.mfma(ACC, MF + 8 * j + 4, BF + 8 * j)
    for d in range(8): a('v_cvt_pk_bf16_f32 v%d, v%d, v%d' % (80 + d, ACC + 2 * d, ACC + 2 * d + 1))
    a('ds_write_b128 v21, v[80:83]'); a('ds_write_b128 v21, v[84:87] offset:16'); a('s_waitcnt lgkmcnt(0)')
    a('ds_read_b128 v[88:91], v23'); a('ds_read_b128 v[92:95], v23 offset:1024')
    a('s_waitcnt lgkmcnt(1)'); a('buffer_store_dwordx4 v[88:91], v3, s[16:19], s33 offen sc1')
    a('s_waitcnt lgkmcnt(0)'); a('buffer_store_dwordx4 v[92:95], v3, s[16:19], s33 offen offset:1024 sc1')
    stamp(a, 14)
    arriveA('m')
    a.role('ka_signal')
    a('s_cmp_lg_u32 s57, 0'); a('s_cbranch_scc1 ka_inited')
    lds_spin(a, 'ka_iw', C_INIT, 1)
    a.label('ka_inited')
    a('s_and_b32 s57, s2, %d' % (NGA - 1)); a('s_lshl_b32 s57, s57, 7'); a('s_add_u32 s57, s57, 0x%x' % FLAGA)
    a('s_mov_b32 s56, 1'); a('s_atomic_add s56, s[6:7], s57 glc'); a('s_waitcnt lgkmcnt(0)')
    a('s_cmp_lg_u32 s56, %d' % (256 // NGA - 1)); a('s_cbranch_scc1 km_start')
    if A_TOP:
        a('s_mov_b32 s56, 1'); a('s_atomic_add s56, s[44:45], 64 glc'); a('s_waitcnt lgkmcnt(0)')
        a('s_cmp_lg_u32 s56, 7'); a('s_cbranch_scc1 km_start')
        a('s_mov_b32 s57, 0')
    a('s_mov_b64 exec, 1'); a('v_mov_b32 v8, 0'); a('v_mov_b32 v9, 1')
    if A_TOP: a('buffer_store_dword v9, v8, s[44:47], s57 offen offset:128 sc1')
    else: a('buffer_store_dword v9, v8, s[16:19], s57 offen offset:2048 sc1')
    a('s_mov_b64 exec, -1')
    a('s_branch km_start')
    a.role('ka_pf')
    a('s_cmp_lg_u32 s3, 4'); a('s_cbranch_scc1 km_start')
    a('v_mov_b32 v8, 0'); a('s_mov_b32 s57, 0')
    a.label('ka_gi_lp')
    a('buffer_load_dword v9, v8, s[44:47], 0 offen sc1'); a('s_waitcnt vmcnt(0)'); a('v_readfirstlane_b32 s56, v9'); a('s_cmp_lg_u32 s56, 0'); a('s_cbranch_scc1 ka_gi_ok')
    a('s_sleep 2'); a('s_add_u32 s57, s57, 1'); a('s_cmp_lt_u32 s57, %d' % SPIN); a('s_cbranch_scc1 ka_gi_lp')
    a.label('ka_gi_ok')
    stamp(a, 14)
    lds_inc(a, C_INIT)
    a('s_branch km_start')
    a.role('ka_gemv')
    a('v_and_b32 v5, 255, v0'); a('v_lshrrev_b32 v7, 3, v5'); a('v_and_b32 v8, 7, v5')
    a('s_lshr_b32 s22, s2, 2'); a('s_sub_u32 s22, s22, 16'); a('s_and_b32 s23, s2, 3')
    a('v_lshlrev_b32 v9, 3, v7'); a('s_lshl_b32 s24, s23, 8')
    a('v_mul_u32_u24 v10, %d, v7' % (4 * 6144)); a('v_lshl_add_u32 v10, v8, 4, v10')
    a('s_mul_i32 s25, s23, %d' % (128 * 6144)); a('s_lshl_b32 s27, s22, 7'); a('s_add_u32 s25, s25, s27')
    a('v_lshrrev_b32 v30, 4, v5'); a('v_lshlrev_b32 v30, 8, v30'); a('v_lshl_add_u32 v30, v8, 5, v30'); a('v_add_u32 v30, %d, v30' % GP)
    a('s_waitcnt lgkmcnt(0)')
    srd(a, 12, 8, 1024); srd(a, 28, 10, 512 * 6144); srd(a, 16, 6, WSZ); a('s_mov_b32 s46, 256'); a('s_mov_b32 s47, 0x20000')
    a('s_cmp_ge_u32 s2, 64'); a('s_cbranch_scc1 ka_job')
    a('s_lshl_b32 s25, s2, 4'); a('s_add_u32 s25, s25, s3')
    a('s_cmp_lg_u32 s25, %d' % (1 * 16 + 8)); a('s_cbranch_scc1 ka_nj')
    a('s_mov_b32 s24, 0x%x' % FLAGA)
    [a('buffer_store_dwordx4 v[12:15], v3, s[16:19], s24 offen offset:%d sc1' % (1024 * k)) for k in range(4)]
    a.label('ka_nj')
    a('s_barrier')
    a('s_cmp_lg_u32 s25, %d' % (1 * 16 + 8)); a('s_cbranch_scc1 ka_nj2')
    a('s_waitcnt vmcnt(0)')
    a('s_mov_b64 exec, 1'); a('v_mov_b32 v8, 0'); a('v_mov_b32 v9, 1'); a('buffer_store_dword v9, v8, s[44:47], 0 offen sc1'); a('s_mov_b64 exec, -1')
    a('s_mov_b32 s24, 0x%x' % FLAGB)
    for i in range(10): a('buffer_store_dwordx4 v[12:15], v3, s[16:19], s24 offen sc1'); a('s_add_u32 s24, s24, 1024')
    a.label('ka_nj2')
    if PF_CODE:
        a('s_cmp_ge_u32 s21, 2'); a('s_cbranch_scc1 ka_npf'); a('s_cmp_lt_u32 s26, 2'); a('s_cbranch_scc1 ka_npf')
        a('s_getpc_b64 s[40:41]')
        a.label('ka_pc')
        a('s_add_u32 s40, s40, km_start-ka_pc'); a('s_addc_u32 s41, s41, 0')
        a('s_mov_b32 s42, %s_exit-km_start' % name); a('s_mov_b32 s43, 0x20000')
        a('s_and_b32 s24, s21, 1'); a('s_lshl_b32 s24, s24, 1'); a('s_add_u32 s24, s24, s26'); a('s_sub_u32 s24, s24, 2'); a('s_lshl_b32 s24, s24, 13')
        a('v_lshlrev_b32 v8, 7, v1')
        a('buffer_load_dword v139, v8, s[40:43], s24 offen')
        a.label('ka_npf')
    a('s_cmp_lg_u32 s3, 8'); a('s_cbranch_scc1 km_start')
    arriveA('n')
    a.role('ka_job')
    a('buffer_load_dwordx2 v[12:13], v9, s[12:15], s24 offen', tag='c')
    if KA_GLATE: a('s_barrier')
    for i in range(4):
        a('buffer_load_dwordx4 v[%d:%d], v10, s[28:31], s25 offen' % (32 + 4 * i, 35 + 4 * i), tag='w%d' % i)
        if i < 3: a('s_add_u32 s25, s25, 6144')
    if not KA_GLATE: a('s_barrier')
    a('s_mov_b32 s36, 0xffff0000'); a('s_mov_b32 s40, 0x05040100'); a('s_mov_b32 s41, 0x07060302')
    for c in range(8): a('v_mov_b32 v%d, 0' % (64 + c))
    a.wait_vm('c')
    unpack(a, 16, 12, 2, 36)
    for i in range(4): a('v_mul_f32 v%d, %s, v%d' % (20 + i, fbits(-LOG2E), 16 + i))
    for i in range(4): a('v_exp_f32 v%d, v%d' % (20 + i, 20 + i))
    for i in range(4): a('v_add_f32 v%d, 1.0, v%d' % (20 + i, 20 + i))
    for i in range(4): a('v_rcp_f32 v%d, v%d' % (20 + i, 20 + i))
    for i in range(4): a('v_mul_f32 v%d, v%d, v%d' % (20 + i, 20 + i, 16 + i))
    for d in range(2): a('v_cvt_pk_bf16_f32 v%d, v%d, v%d' % (12 + d, 20 + 2 * d, 21 + 2 * d))
    for ip in range(2):
        a.wait_vm('w%d' % (2 * ip + 1))
        r0 = 32 + 8 * ip; r1 = r0 + 4
        for d in range(4):
            a('v_perm_b32 v%d, v%d, v%d, s40' % (48 + 2 * d, r1 + d, r0 + d)); a('v_perm_b32 v%d, v%d, v%d, s41' % (49 + 2 * d, r1 + d, r0 + d))
        for c in range(8): a('v_dot2c_f32_bf16 v%d, v%d, v%d' % (64 + c, 48 + c, 12 + ip))
        a('s_nop 2')
    for c in range(8): a('v_add_f32_dpp v%d, v%d, v%d row_ror:8' % (64 + c, 64 + c, 64 + c))
    a('ds_write_b128 v30, v[64:67]'); a('ds_write_b128 v30, v[68:71] offset:16')
    a('s_waitcnt lgkmcnt(0)')
    a('v_mov_b32 v8, %d' % (KC + 4)); a('v_mov_b32 v9, 1'); a('s_mov_b64 exec, 1')
    a('ds_add_rtn_u32 v10, v8, v9'); a('s_waitcnt lgkmcnt(0)'); a('v_readfirstlane_b32 s56, v10'); a('s_mov_b64 exec, -1')
    a('s_cmp_lg_u32 s56, 3'); a('s_cbranch_scc1 km_start')
    a('v_lshlrev_b32 v10, 2, v1'); a('v_add_u32 v10, %d, v10' % GP)
    for p in range(8): a('ds_read2st64_b32 v[%d:%d], v10 offset0:%d offset1:%d' % (32 + 2 * p, 33 + 2 * p, 2 * p, 2 * p + 1))
    a('s_lshr_b32 s24, s22, 3')
    a('s_lshl_b32 s25, s22, 6'); a('v_add_u32 v23, s25, v1'); a('v_and_b32 v26, 511, v23')
    a('v_sub_u32 v27, 512, v26'); a('v_and_b32 v27, 255, v27'); a('v_or_b32 v27, 256, v27')
    a('v_cmp_lt_u32 vcc, 255, v26'); a('s_sub_u32 s25, s24, 2'); a('s_cmp_lt_u32 s25, 3'); a('s_cselect_b64 vcc, vcc, 0')
    a('v_cndmask_b32 v27, v26, v27, vcc'); a('v_lshlrev_b32 v27, 2, v27')
    a('s_lshl_b32 s24, s24, 11'); a('s_mul_i32 s25, s23, 12288'); a('s_add_u32 s24, s24, s25')
    a('s_waitcnt lgkmcnt(0)')
    for st in (8, 4, 2, 1):
        for i in range(st): a('v_add_f32 v%d, v%d, v%d' % (32 + i, 32 + i, 32 + st + i))
    a('buffer_store_dword v32, v27, s[16:19], s24 offen sc1')
    arriveA('g')

def cheb(a, dst, p1, p2, K):
    for i in range(0, 8, 2):
        a('v_pk_fma_f32 v[%d:%d], v[%d:%d], v[%d:%d], v[%d:%d] op_sel_hi:[1,0,1] neg_lo:[0,0,1] neg_hi:[0,0,1]' % (
            dst + i, dst + i + 1, p1 + i, p1 + i + 1, K, K + 1, p2 + i, p2 + i + 1))

PS = 156672; LDS_TOTAL = PS + 7168
G2H = PS; SBH = PS + 1024; GBH = PS + 2048; SAL = PS + 3072; YST = SAL + 1024; CNT = PS + 6656
TB = 74240; NPRE = 9
ZI = TB; B1L = TB + 65536; G1L = B1L + 8192; GAL = G1L + 2048; G2L = GAL + 2048; EXT = G2L + 2048; XEL = EXT + 2048
assert XEL + 512 <= PS and NPRE * 8192 <= TB
XCH = 131072
C_ARRB, C_RED, C_ARRC, C_W1, C_W2, C_GOB, C_GO, C_Y, C_ISS, C_ARRS, C_PROG, C_FULL, C_FREE, C_XW, C_XR = [CNT + o for o in (0, 4, 8, 16, 20, 24, 40, 32, 36, 28, 48, 64, 80, 96, 104)]
C_KC = CNT + 128; C_ARRA = CNT + 136; C_INIT = CNT + 140; C_GOA = CNT + 144; W1_EARLY = 0; A_TOP = 0; NGA = 16; A_WAIT = 0
C_HOLD = CNT + 108; HOLD = 0; PASS2 = 0; PRIO_EA = 3; Q0_DRY = 0; C_FREEB = CNT + 112
W2_MODE = 'arr'; B_MERGE = 1
S_ATOM = 1; DB_INIT = 8; DB_AHEAD = 14; R_PRIO = 3; NPB = 12; D3 = 1; DIRECT_C = 0; DIRECT_B = 0
ZRING = 12; NWB = 6; PRIO_A = 1; PRIO_B = 1; PRIO_D = 0; PRIO_DB = 0; B_DELAY = 0

def poll(a, lbl, soff, nlanes, need=0):
    a('v_lshlrev_b32 v8, 2, v1'); a('s_mov_b32 s57, 0'); a('s_mov_b32 exec_lo, 0x%x' % ((1 << nlanes) - 1)); a('s_mov_b32 exec_hi, 0')
    a.label(lbl)
    a('buffer_load_dword v9, v8, s[16:19], s%d offen sc1' % soff); a('s_waitcnt vmcnt(0)')
    a('v_cmp_lt_u32 vcc, %d, v9' % max(0, need - 1)); a('s_cmp_eq_u32 vcc_lo, 0x%x' % ((1 << nlanes) - 1)); a('s_cbranch_scc1 %s_ok' % lbl)
    a('s_sleep %d' % PSLEEP); a('s_add_u32 s57, s57, 1'); a('s_cmp_lt_u32 s57, %d' % SPIN); a('s_cbranch_scc1 %s' % lbl)
    a.label(lbl + '_ok')
    a('s_mov_b64 exec, -1')
def lds_spin(a, lbl, addr, val):
    a('v_mov_b32 v8, %d' % addr); a('s_mov_b32 s57, 0')
    a.label(lbl)
    a('ds_read_b32 v9, v8'); a('s_waitcnt lgkmcnt(0)'); a('v_readfirstlane_b32 s56, v9')
    a('s_cmp_ge_u32 s56, %d' % val); a('s_cbranch_scc1 %s_ok' % lbl)
    a('s_sleep %d' % LSLEEP); a('s_add_u32 s57, s57, 1'); a('s_cmp_lt_u32 s57, %d' % (SPIN * 16)); a('s_cbranch_scc1 %s' % lbl)
    a.label(lbl + '_ok')
def lds_spin_v(a, lbl, vaddr, sval, off=0, sl=None):
    a('s_mov_b32 s57, 0')
    a.label(lbl)
    a('ds_read_b32 v9, v%d offset:%d' % (vaddr, off)); a('s_waitcnt lgkmcnt(0)'); a('v_readfirstlane_b32 s56, v9')
    a('s_cmp_ge_u32 s56, %s' % sval); a('s_cbranch_scc1 %s_ok' % lbl)
    a('s_sleep %d' % (LSLEEP if sl is None else sl)); a('s_add_u32 s57, s57, 1'); a('s_cmp_lt_u32 s57, %d' % (SPIN * 16)); a('s_cbranch_scc1 %s' % lbl)
    a.label(lbl + '_ok')
def lds_inc_v(a, vaddr, vone, off=0):
    a('s_mov_b64 exec, 1'); a('ds_add_u32 v%d, v%d offset:%d' % (vaddr, vone, off)); a('s_mov_b64 exec, -1')
def lds_inc(a, addr):
    a('v_mov_b32 v8, %d' % addr); a('v_mov_b32 v9, 1'); a('s_mov_b64 exec, 1'); a('ds_add_u32 v8, v9'); a('s_mov_b64 exec, -1')
def arrive(a, lbl, addr, n, soff, total=0, direct=False):
    a('s_waitcnt vmcnt(0)')
    a('v_mov_b32 v8, %s' % addr); a('v_mov_b32 v9, 1'); a('s_mov_b64 exec, 1')
    a('ds_add_rtn_u32 v10, v8, v9'); a('s_waitcnt lgkmcnt(0)'); a('v_readfirstlane_b32 s56, v10')
    a('s_cmp_lg_u32 s56, %d' % (n - 1)); a('s_cbranch_scc1 %s' % lbl)
    a('v_mov_b32 v8, 0')
    if direct:
        a('buffer_atomic_add v9, v8, s[16:19], s%d offen sc1' % soff)
    elif total and S_ATOM:
        a('s_mov_b32 s56, 1'); a('s_atomic_add s56, s[6:7], s%d glc' % soff); a('s_waitcnt lgkmcnt(0)')
        a('s_cmp_lg_u32 s56, %d' % (total - 1)); a('s_cbranch_scc1 %s' % lbl)
        if S_ATOM == 2:
            a('s_add_u32 s57, s%d, 128' % soff); a('s_mov_b32 s56, 1'); a('s_atomic_add s56, s[6:7], s57'); a('s_waitcnt lgkmcnt(0)')
        else:
            a('buffer_store_dword v9, v8, s[16:19], s%d offen offset:128 sc1' % soff)
    elif total:
        a('v_mov_b32 v10, 1'); a('buffer_atomic_add v10, v8, s[16:19], s%d offen sc0 sc1' % soff); a('s_waitcnt vmcnt(0)'); a('v_readfirstlane_b32 s56, v10')
        a('s_cmp_lg_u32 s56, %d' % (total - 1)); a('s_cbranch_scc1 %s' % lbl)
        a('buffer_store_dword v9, v8, s[16:19], s%d offen offset:128 sc1' % soff)
    else:
        a('buffer_store_dword v9, v8, s[16:19], s%d offen sc1' % soff)
    a.label(lbl)
    a('s_mov_b64 exec, -1')

def gen_a2(a, A2, CH, sphase):
    swap23_v(a, 9, 6, 10); a('s_lshl_b32 s32, s22, 5'); a('v_add_u32 v9, s32, v9')
    a('s_lshl_b32 s32, s25, 5'); a('v_lshl_add_u32 v8, v4, 3, s32')
    a('v_mul_u32_u24 v12, v9, v8'); a('v_and_b32 v12, 511, v12'); a('v_cvt_f32_u32 v12, v12'); a('v_cvt_f32_u32 v13, v9')
    a('v_mul_f32 v13, %s, v13' % fbits(1 / 512)); a('v_mov_b32 v%d, %s' % (CH[0], sphase)); a('v_fmac_f32 v%d, %s, v12' % (CH[0], fbits(1 / 512)))
    a('v_mul_f32 v10, %s, v13' % fbits(16.0))
    for i in range(1, 8): a('v_add_f32 v%d, v%d, v13' % (CH[0] + i, CH[0] + i - 1))
    for i in range(8): a('v_add_f32 v%d, v%d, v10' % (CH[1] + i, CH[0] + i))
    a('v_cos_f32 v10, v10')
    for g in range(2):
        for i in range(8): a('v_cos_f32 v%d, v%d' % (CH[g] + i, CH[g] + i))
    a('v_add_f32 v10, v10, v10')
    for j in range(8):
        c = CH[j % 3]
        if j >= 2: cheb(a, c, CH[(j - 1) % 3], CH[(j - 2) % 3], 10)
        for d in range(4): a('v_cvt_pk_bf16_f32 v%d, v%d, v%d' % (A2 + 4 * j + d, c + 2 * d, c + 2 * d + 1))
def z_bases(a):
    a('v_bfe_u32 v10, v1, 2, 2'); a('v_lshl_add_u32 v10, v4, 3, v10'); a('v_lshlrev_b32 v10, 7, v10')
    a('v_bfe_u32 v11, v1, 4, 1'); a('v_lshl_add_u32 v10, v11, 5, v10'); a('v_and_b32 v11, 1, v1'); a('v_lshl_add_u32 v10, v11, 4, v10')
    a('v_bfe_u32 v11, v1, 1, 1'); a('v_lshl_add_u32 v10, v11, 3, v10'); a('v_bfe_u32 v11, v1, 3, 1'); a('v_lshl_add_u32 v10, v11, 6, v10')
    a('v_xor_b32 v11, 64, v10')
    a('s_lshl_b32 s32, s26, 12'); a('s_add_u32 s32, s32, %d' % ZI); a('v_add_u32 v10, s32, v10'); a('v_add_u32 v11, s32, v11')
    a('v_lshlrev_b32 v12, 5, v4'); a('v_add_u32 v12, %d, v12' % G1L)
    a('v_mov_b32 v14, 0'); a('v_mov_b32 v15, 0xbf803f80')

KNAME = 'adaLN_cond__spectral_fnet__geglu_ffn__prompt_kernel'
def kM():
    W2_AT = {'go': (C_GOB, 1), 'iss': (C_ISS, 4), 'arr': (C_ARRB, 4)}[W2_MODE]
    a = XAsm(); name = KNAME
    head(a, name, 256)
    a('s_load_dwordx2 s[6:7], s[0:1], 104'); a('s_load_dwordx2 s[4:5], s[0:1], 0'); a('s_load_dwordx4 s[8:11], s[0:1], 72'); a('s_load_dwordx2 s[44:45], s[0:1], 96')
    ids(a)
    phaseA(a, name)
    a.role('km_start'); a.vm = 0; a.tags = {}; a.lg = 0; a.ltags = {}
    a('s_and_b32 s22, s21, 7'); a('s_lshr_b32 s23, s21, 3'); a('s_lshl_b32 s24, s20, 2'); a('s_add_u32 s23, s23, s24')
    a('s_lshl_b32 s25, s26, 2'); a('s_lshl_b32 s24, s22, 1'); a('s_add_u32 s25, s25, s24')
    def cmap():
        a('s_and_b32 s49, s21, 3'); a('s_lshr_b32 s48, s21, 2'); a('s_lshl_b32 s50, s49, 1'); a('s_add_u32 s50, s50, s48'); a('s_lshl_b32 s50, s50, 1'); a('s_and_b32 s50, s50, 15')
        a('s_and_b32 s51, s20, 4'); a('s_add_u32 s49, s49, s51'); a('s_min_u32 s51, s49, 6')
        a('s_cmp_ge_u32 s21, 28'); a('s_cselect_b32 s48, s51, s48')
        a('s_and_b32 s51, s20, 3'); a('s_mul_i32 s51, s51, 7'); a('s_add_u32 s48, s48, s51')
    def dmap():
        a('s_and_b32 s51, s21, 3'); a('s_lshr_b32 s52, s21, 2'); a('s_lshl_b32 s53, s20, 2'); a('s_add_u32 s53, s53, s51')
        a('s_lshl_b32 s54, s51, 1'); a('s_add_u32 s54, s54, s52'); a('s_and_b32 s54, s54, 7'); a('s_cmp_eq_u32 s54, 7'); a('s_cselect_b32 s54, 3, s54')
    def region(dst, k, tmp):
        a('s_add_u32 s%d, s54, %d' % (dst, k)); a('s_sub_u32 s%d, s%d, 7' % (tmp, dst)); a('s_cmp_ge_u32 s%d, 7' % dst); a('s_cselect_b32 s%d, s%d, s%d' % (dst, tmp, dst))
    a('s_cmp_lt_u32 s3, 8'); a('s_cbranch_scc1 km_compute')
    a('s_load_dwordx4 s[8:11], s[0:1], 48')
    if H_PRIO: a('s_setprio %d' % H_PRIO)
    a('v_lshrrev_b32 v5, 3, v1'); a('v_lshlrev_b32 v5, 12, v5'); a('v_and_b32 v7, 7, v1'); a('v_lshrrev_b32 v8, 2, v1'); a('v_and_b32 v8, 4, v8'); a('v_xor_b32 v7, v7, v8')
    a('v_lshl_add_u32 v5, v7, 4, v5')
    a('s_lshl_b32 s27, s23, 7'); a('s_add_u32 s27, s27, 0x%x' % ZB)
    a('s_lshl_b32 s28, s26, 12'); a('s_add_u32 s28, s28, %d' % ZI)
    a('s_lshl_b32 s33, s26, 9'); a('v_lshlrev_b32 v16, 4, v6'); a('v_add_u32 v16, s33, v16')
    a('v_lshlrev_b32 v17, 11, v4'); a('v_sub_u32 v17, 2048, v17'); a('v_add_u32 v17, v17, v16')
    a('v_add_u32 v18, %d, v16' % G1L); a('v_lshrrev_b32 v20, 1, v16'); a('v_add_u32 v20, %d, v20' % SAL)
    a('v_cvt_f32_u32 v19, v4'); a('v_mul_f32 v21, %s, v19' % fbits(2047.0)); a('v_add_f32 v21, 1.0, v21'); a('v_sub_f32 v19, 1.0, v19')
    def w_prep():
        a('s_cmp_eq_u32 s37, 1'); a('s_cselect_b32 s40, s10, s8'); a('s_cselect_b32 s41, s11, s9'); a('s_mov_b32 s42, %d' % (512 * 3584)); a('s_mov_b32 s43, 0x20000')
        a('v_lshrrev_b32 v140, 3, v1'); a('v_bfe_u32 v141, v1, 1, 2'); a('v_and_b32 v142, 2, v140'); a('v_or_b32 v142, s37, v142'); a('v_xor_b32 v141, v141, v142')
        a('v_lshlrev_b32 v141, 5, v141'); a('v_and_b32 v142, 1, v1'); a('v_lshl_add_u32 v141, v142, 4, v141')
        a('v_mul_u32_u24 v142, 3584, v140'); a('v_add_u32 v144, v142, v141')
        a('v_sub_u32 v142, %d, v142' % (263 * 3584)); a('v_add_u32 v145, v142, v141')
        a('v_subrev_u32 v146, %d, v145' % (256 * 3584)); a('v_cmp_eq_u32 vcc, 0, v140'); a('v_cndmask_b32 v146, v145, v146, vcc')
        a('s_lshl_b32 s30, s48, 7')
    def w_loop(lbl, upto, hsel, hstep):
        a.label(lbl)
        a('s_lshr_b32 s33, s24, 1'); a('s_lshl_b32 s31, s33, 13'); a('s_add_u32 s33, s33, s50'); a('s_and_b32 s33, s33, 15'); a('s_lshl_b32 s33, s33, 5')
        a('s_and_b32 s34, s24, 1'); a('s_lshl_b32 s35, s34, 11'); a('s_add_u32 s31, s31, s35'); a('s_lshl_b32 s35, s37, 12'); a('s_add_u32 m0, s31, s35')
        a('s_lshl_b32 s34, s34, 4'); a('s_add_u32 s33, s33, s34')
        a('s_cmp_ge_u32 s33, 256'); a('s_cbranch_scc1 %s_up' % lbl)
        a('s_mul_i32 s33, s33, 3584'); a('s_add_u32 s33, s33, s30'); a('s_add_u32 s34, s33, %d' % (8 * 3584))
        a('buffer_load_dwordx4 v144, s[40:43], s33 offen lds'); a('s_add_u32 m0, m0, 1024')
        a('buffer_load_dwordx4 v144, s[40:43], s34 offen lds')
        a('s_branch %s_nx' % lbl)
        a.label(lbl + '_up')
        a('s_cmp_eq_u32 s33, 256'); a('s_cselect_b64 vcc, -1, 0'); a('v_cndmask_b32 v147, v145, v146, vcc')
        a('s_sub_u32 s33, 505, s33'); a('s_mul_i32 s33, s33, 3584'); a('s_add_u32 s33, s33, s30'); a('s_sub_u32 s34, s33, %d' % (8 * 3584))
        a('buffer_load_dwordx4 v147, s[40:43], s33 offen lds'); a('s_add_u32 m0, m0, 1024')
        a('buffer_load_dwordx4 v145, s[40:43], s34 offen lds')
        a.label(lbl + '_nx')
        a('s_add_u32 s24, s24, %d' % hstep); a('s_cmp_lt_u32 s24, %d' % upto); a('s_cbranch_scc1 %s' % lbl)
    a('s_and_b32 s37, s26, 1'); a('s_lshr_b32 s38, s26, 1')
    cmap()
    a('s_waitcnt lgkmcnt(0)')
    w_prep()
    a('s_cmp_eq_u32 s26, 3'); a('s_cbranch_scc1 km_ga_poll')
    if W1_EARLY:
        a('s_cmp_eq_u32 s38, 1'); a('s_cbranch_scc1 km_ga_wait')
        lds_spin(a, 'km_spinA', C_ARRA, 5)
        stamp(a, 4)
        a('s_mov_b32 s24, 0')
        w_loop('km_hw_p1', 2 * NPRE, 0, 1)
        a.vm = 0
        stamp(a, 6)
    a.label('km_ga_wait')
    lds_spin(a, 'km_spinGA', C_GOA, 1)
    a('s_branch km_ga_go')
    a.role('km_ga_poll')
    if not A_TOP:
        lds_spin(a, 'km_gi', C_INIT, 1)
    lds_spin(a, 'km_spinA2', C_ARRA, 5)
    a('v_and_b32 v8, %d, v1' % (0 if A_TOP else NGA - 1)); a('v_lshlrev_b32 v8, 7, v8'); a('s_mov_b32 s57, 0'); a('s_mov_b32 s32, 0x%x' % (FLAGA + 2048))
    a('s_mov_b32 exec_lo, 0xffff'); a('s_mov_b32 exec_hi, 0')
    a.label('km_ga_lp')
    if A_TOP: a('buffer_load_dword v9, v8, s[44:47], 0 offen offset:128 sc1')
    else: a('buffer_load_dword v9, v8, s[16:19], s32 offen sc1')
    a('s_waitcnt vmcnt(0)')
    a('v_cmp_ne_u32 vcc, 0, v9'); a('s_cmp_eq_u32 vcc_lo, 0xffff'); a('s_cbranch_scc1 km_ga_ok')
    a('s_sleep %d' % PSLEEP); a('s_add_u32 s57, s57, 1'); a('s_cmp_lt_u32 s57, %d' % SPIN); a('s_cbranch_scc1 km_ga_lp')
    a.label('km_ga_ok')
    a('s_mov_b64 exec, -1')
    lds_inc(a, C_GOA)
    a.label('km_ga_go'); a.vm = 0
    a('s_mov_b32 s46, 0xffff0000'); a('s_mov_b32 s34, 12288'); a('s_mov_b32 s35, 24576'); a('s_mov_b32 s36, 36864')
    stamp(a, 1)
    def zdma(i):
        a('s_add_u32 s32, s25, %d' % i); a('s_and_b32 s32, s32, 15'); a('s_lshl_b32 s32, s32, 17'); a('s_add_u32 s32, s32, s27')
        a('s_add_u32 m0, s28, %d' % (16384 * i))
        for k in range(4):
            a('buffer_load_dwordx4 v5, s[16:19], s32 offen sc1 lds', tag='z%d' % i)
            if k < 3: a('s_add_u32 m0, m0, 1024'); a('s_add_u32 s32, s32, 32768')
    FP = 32
    if not B_MERGE: zdma(0)
    for p, so in enumerate(('0', 's34', 's35', 's36')): a('buffer_load_dwordx4 v[%d:%d], v17, s[16:19], %s offen sc1' % (FP + 4 * p, FP + 4 * p + 3, so), tag='f1')
    if B_MERGE: zdma(0)
    zdma(1)
    if not B_MERGE:
        zdma(2); zdma(3)
        a('s_waitcnt lgkmcnt(0)'); a.wait_vm('z0'); a.bar()
    else: zdma(2)
    a.wait_vm('f1')
    for i in (0, 2): a.pk('v_pk_add_f32', FP + i, FP + i, FP + 4 + i); a.pk('v_pk_add_f32', FP + 8 + i, FP + 8 + i, FP + 12 + i)
    for i in (0, 2): a.pk('v_pk_add_f32', FP + i, FP + i, FP + 8 + i)
    for d in range(2): a('v_cvt_pk_bf16_f32 v%d, v%d, v%d' % (FP + 4 + d, FP + 2 * d, FP + 2 * d + 1))
    unpack(a, FP, FP + 4, 2, 46)
    for i in range(4): a('v_fma_f32 v%d, v%d, v21, v19' % (FP + i, FP + i))
    for d in range(2): a('v_cvt_pk_bf16_f32 v%d, v%d, v%d' % (FP + 4 + d, FP + 2 * d, FP + 2 * d + 1))
    unpack(a, FP, FP + 4, 2, 46)
    a('s_mov_b32 exec_hi, 0'); a('ds_write_b128 v18, v[%d:%d]' % (FP, FP + 3))
    a('s_not_b64 exec, exec'); a('ds_write_b64 v20, v[%d:%d]' % (FP + 4, FP + 5)); a('s_mov_b64 exec, -1')
    a('s_waitcnt lgkmcnt(0)')
    a.wait_vm('z1'); a.bar()
    if B_MERGE: zdma(3)
    stamp(a, 2)
    def q0pre():
        z_bases(a)
        for d in range(4): a('v_mov_b32 v%d, v15' % (16 + d))
        swap23_v(a, 7, 6, 9)
        for t in range(8):
            a('s_add_u32 s32, s25, %d' % ((t & 3) + 8 * (t >> 2))); a('s_and_b32 s32, s32, 15'); a('s_lshl_b32 s32, s32, 5')
            a('v_add_u32 v9, s32, v7'); a('v_lshlrev_b32 v%d, 1, v9' % (152 + t)); a('v_lshlrev_b32 v9, 2, v9'); a('v_add_u32 v9, %d, v9' % G1L)
            a('v_add_u32 v%d, %d, v%d' % (152 + t, YST, 152 + t)); a('ds_read_b32 v%d, v9' % (160 + t))
    def q0job():
        ZQ = 24; AQ = [88, 104, 120, 88]
        for t in range(8):
            for j in range(2):
                for hf in range(2):
                    r = ZQ + 8 * t + 4 * j + 2 * hf
                    a('ds_read_b64_tr_b16 v[%d:%d], v10 offset:%d' % (r, r + 1, 16384 * (t & 3) + 8192 * (t >> 2) + (16 * j + 4 * hf) * 128), tag='q%d' % t)
        def post(t):
            a('v_mul_f32 v20, v%d, v%d' % (AQ[t % 3], 160 + t)); a('v_cvt_pk_bf16_f32 v%d, v20, v20' % (160 + t)); a('ds_write_b16 v%d, v%d' % (152 + t, 160 + t))
        for t in range(8):
            a.wait_lg('q%d' % t)
            a.mfma(AQ[t % 3], 16, ZQ + 8 * t, True); a.mfma(AQ[t % 3], 16, ZQ + 8 * t + 4)
            if t >= 2: post(t - 2)
        post(6); post(7)
        a('s_waitcnt lgkmcnt(0)')
        lds_inc(a, C_Y)
    a('s_load_dwordx2 s[4:5], s[0:1], 64')
    a('s_cmp_eq_u32 s38, 1'); a('s_cbranch_scc1 km_hz')
    sv = (a.vm, dict(a.tags), a.nbar)
    a('s_cmp_lg_u32 s23, 0'); a('s_cbranch_scc1 km_h_nq')
    q0pre()
    a.wait_vm('z3'); a('s_barrier')
    q0job()
    a('s_branch km_hw')
    a.role('km_h_nq')
    a.wait_vm('z3'); a.bar()
    a('s_branch km_hw')
    a.role('km_hz'); a.vm, a.tags, a.nbar = sv[0], dict(sv[1]), sv[2]
    a('s_lshl_b32 s34, s37, 1'); a('s_add_u32 s34, s34, 2'); a('s_lshl_b32 s34, s34, 11')
    for p in range(4):
        for rnd in range(2):
            for k in range(2):
                r = FP + 32 * rnd + 8 * p + 4 * k
                a('buffer_load_dwordx4 v[%d:%d], v3, s[16:19], s34 offen offset:%d sc1' % (r, r + 3, 2048 * rnd + 1024 * k), tag='f2')
        if p < 3: a('s_add_u32 s34, s34, 12288')
    a.wait_vm('z3'); a.bar()
    a('s_load_dwordx2 s[40:41], s[0:1], 0')
    a('v_mov_b32 v163, v6')
    for k in range(2):
        a('v_lshrrev_b32 v6, 2, v1')
        if k: a('v_add_u32 v6, 16, v6')
        token_of(a, 164 + k, 8, 23); a('s_cmp_eq_u32 s37, 1'); mirror_if(a, 164 + k, 8, 9)
        a('v_lshlrev_b32 v%d, 10, v%d' % (164 + k, 164 + k)); a('v_and_b32 v8, 3, v1'); a('v_lshl_add_u32 v%d, v8, 4, v%d' % (164 + k, 164 + k))
    a('v_mov_b32 v6, v163')
    token_of(a, 166, 8, 23); a('s_cmp_eq_u32 s37, 1'); mirror_if(a, 166, 8, 9); a('v_lshlrev_b32 v166, 10, v166')
    a('s_lshl_b32 s30, s22, 6'); a('s_sub_u32 s31, 960, s30'); a('s_sub_u32 s33, 1024, s30'); a('s_and_b32 s33, s33, 511'); a('s_add_u32 s33, s33, 512')
    a('s_lshl_b32 s32, s37, 12'); a('s_add_u32 s32, s32, %d' % B1L)
    a('s_waitcnt lgkmcnt(0)'); a('s_mov_b32 s42, 0x200000'); a('s_mov_b32 s43, 0x20000')
    for up in range(2):
        for k in range(2):
            a('s_add_u32 m0, s32, %d' % (2048 * up + 1024 * k)); a('buffer_load_dwordx4 v%d, s[40:43], s%d offen lds' % (164 + k, 30 + up))
    a('s_lshl_b32 s32, s37, 8'); a('s_add_u32 m0, s32, %d' % XEL); a('buffer_load_dword v166, s[40:43], s33 offen lds', tag='xl')
    a.wait_vm('f2')
    a('s_cmp_eq_u32 s37, 1'); a('s_cselect_b32 s35, 1.0, 0')
    for rnd in range(2):
        F = FP + 32 * rnd
        for i in range(0, 8, 2): a.pk('v_pk_add_f32', F + i, F + i, F + 8 + i); a.pk('v_pk_add_f32', F + 16 + i, F + 16 + i, F + 24 + i)
        for i in range(0, 8, 2): a.pk('v_pk_add_f32', F + i, F + i, F + 16 + i)
        for d in range(4): a('v_cvt_pk_bf16_f32 v%d, v%d, v%d' % (F + 8 + d, F + 2 * d, F + 2 * d + 1))
    unpack(a, FP, FP + 8, 4, 46)
    for i in range(8): a('v_add_f32 v%d, s35, v%d' % (FP + i, FP + i))
    for d in range(4): a('v_cvt_pk_bf16_f32 v%d, v%d, v%d' % (FP + 8 + d, FP + 2 * d, FP + 2 * d + 1))
    unpack(a, FP, FP + 8, 4, 46)
    a('s_lshl_b32 s33, s37, 11'); a('s_add_u32 s33, s33, %d' % GAL); a('v_add_u32 v8, s33, v3')
    a('ds_write_b128 v8, v[%d:%d]' % (FP, FP + 3)); a('ds_write_b128 v8, v[%d:%d] offset:1024' % (FP + 4, FP + 7))
    a('s_lshl_b32 s33, s37, 10'); a('s_add_u32 s33, s33, %d' % SBH); a('v_lshl_add_u32 v20, v1, 3, s33')
    a('ds_write_b64 v20, v[%d:%d]' % (FP + 40, FP + 41)); a('ds_write_b64 v20, v[%d:%d] offset:512' % (FP + 42, FP + 43))
    a('s_cmp_eq_u32 s37, 0'); a('s_cbranch_scc1 km_nochk')
    a('v_subrev_u32 v20, 2048, v20')
    a('ds_write_b64 v20, v[%d:%d]' % (FP + 8, FP + 9)); a('ds_write_b64 v20, v[%d:%d] offset:512' % (FP + 10, FP + 11))
    a.label('km_nochk')
    a('s_waitcnt vmcnt(0) lgkmcnt(0)')
    lds_inc(a, C_RED)
    stamp(a, 3)
    w_prep()
    a('s_branch km_hw2')
    a.role('km_hw')
    if not W1_EARLY:
        stamp(a, 4)
        a('s_mov_b32 s24, 0')
        w_loop('km_hw_p1', 2 * NPRE, 0, 1)
    a('s_waitcnt vmcnt(0)'); lds_inc(a, C_W1)
    a.label('km_hw2')
    a('s_waitcnt lgkmcnt(0)')
    srd(a, 12, 4, 1792 * 1024)
    a('s_cmp_ge_u32 s21, 28'); a('s_cselect_b32 s32, %d, 0' % (C_ISS - W2_AT[0])); a('s_cselect_b32 s33, 4, %d' % W2_AT[1]); a('s_add_u32 s32, s32, %d' % W2_AT[0]); a('v_mov_b32 v8, s32')
    lds_spin_v(a, 'km_spinT', 8, 's33')
    a('s_add_u32 s24, s38, %d' % (2 * NPRE))
    w_loop('km_hw_p2', 32, 0, 2)
    a('s_waitcnt vmcnt(0)'); lds_inc(a, C_W2)
    stamp(a, 5)
    a('s_setprio %d' % D_PRIO)
    dmap()
    a('v_lshrrev_b32 v5, 3, v1'); a('v_and_b32 v7, 7, v1'); a('v_lshrrev_b32 v8, 2, v1'); a('v_and_b32 v8, 4, v8'); a('v_xor_b32 v7, v7, v8')
    a('v_lshlrev_b32 v5, 10, v5'); a('v_lshl_add_u32 v5, v7, 4, v5')
    a('s_mul_i32 s27, s26, %d' % (448 * 1024)); a('s_lshl_b32 s28, s52, 7'); a('s_add_u32 s27, s27, s28')
    a('s_lshl_b32 s28, s26, 13'); a('v_add_u32 v7, s28, v3'); a('v_add_u32 v10, 65536, v7')
    a('s_lshl_b32 s32, s26, 2'); a('s_add_u32 s32, s32, %d' % C_FULL); a('v_mov_b32 v11, s32'); a('v_mov_b32 v12, 1')
    def stash(g, k):
        region(32, k, 25); a('s_lshl_b32 s32, s32, 16'); a('s_add_u32 s32, s32, s27')
        for i in range(8):
            r = 16 + 32 * g + 4 * i
            a('buffer_load_dwordx4 v[%d:%d], v5, s[12:15], s32 offen' % (r, r + 3))
            if i < 7: a('s_add_u32 s32, s32, 8192')
    for p in range(4):
        lds_spin(a, 'km_spinP%d' % p, C_PROG + 4 * p, 8)
        region(32, p, 25); a('s_lshl_b32 s32, s32, 16'); a('s_add_u32 s32, s32, s27'); a('s_add_u32 m0, s28, %d' % (32768 * p))
        for i in range(8):
            a('buffer_load_dwordx4 v5, s[12:15], s32 offen lds')
            if i < 7: a('s_add_u32 m0, m0, 1024'); a('s_add_u32 s32, s32, 8192')
        if p < 3: stash(p, 4 + p); a('s_waitcnt vmcnt(8)')
        else: a('s_waitcnt vmcnt(0)')
        lds_inc_v(a, 11, 12)
    stamp(a, 8)
    if R_PRIO: a('s_setprio %d' % R_PRIO)
    def refill(g):
        for i in range(8):
            r = 16 + 32 * g + 4 * i
            a('ds_write_b128 v%d, v[%d:%d] offset:%d' % (7 if g < 2 else 10, r, r + 3, (g & 1) * 32768 + 1024 * i))
        a('s_waitcnt lgkmcnt(0)')
        lds_inc_v(a, 11, 12)
    for g in range(3):
        lds_spin_v(a, 'km_spinFA%d' % g, 11, str(g + 1), C_FREE - C_FULL)
        if not PASS2: lds_spin_v(a, 'km_spinFB%d' % g, 11, str(g + 1), C_FREEB - C_FULL)
        refill(g)
    if PASS2:
        for g in range(3): stash(g, g)
        for g in range(3):
            lds_spin_v(a, 'km_spinFB%d' % g, 11, str(g + 1), C_FREEB - C_FULL); lds_spin_v(a, 'km_spinFC%d' % g, 11, str(g + 5), C_FREE - C_FULL)
            a('s_waitcnt vmcnt(%d)' % (8 * (2 - g)))
            refill(g)
    nbar_h = a.nbar
    a('s_branch %s_end' % name)
    a.role('km_compute'); a.nbar = 0
    a('s_lshr_b32 s27, s3, 2')
    a('s_load_dwordx2 s[8:9], s[0:1], 88')
    A2, B1, AC1, AP, ZF, GG = 16, 48, [64, 80], 96, 112, 128
    token_of(a, 7, 8, 23)
    a('s_mov_b64 s[30:31], vcc')
    a('s_lshr_b32 s28, s26, 1'); a('s_and_b32 s29, s26, 1'); a('s_lshl_b32 s29, s29, 4'); a('v_lshl_add_u32 v8, v4, 3, s29')
    a('s_cmp_eq_u32 s23, 0'); a('s_cselect_b32 s32, 0, s28'); a('s_sub_i32 s32, s32, s27'); a('v_cvt_f32_i32 v9, s32'); a('v_mul_f32 v9, %s, v9' % fbits(0.25))
    a('v_mul_u32_u24 v12, v7, v8'); a('v_and_b32 v12, 2047, v12'); a('v_cvt_f32_u32 v12, v12'); a('v_cvt_f32_u32 v13, v7')
    a('v_mul_f32 v13, %s, v13' % fbits(1 / 2048)); a('v_fmamk_f32 v64, v12, %s, v9' % fbits(1 / 2048))
    for i in range(1, 8): a('v_add_f32 v%d, v%d, v13' % (64 + i, 63 + i))
    for i in range(8): a('v_cos_f32 v%d, v%d' % (64 + i, 64 + i))
    for d in range(4): a('v_cvt_pk_bf16_f32 v%d, v%d, v%d' % (72 + d, 64 + 2 * d, 65 + 2 * d))
    a('s_not_b64 s[32:33], s[30:31]'); a('s_cmp_eq_u32 s28, 1'); a('s_cselect_b64 s[32:33], s[30:31], s[32:33]'); a('s_cmp_eq_u32 s23, 0'); a('s_cselect_b64 s[32:33], s[32:33], -1')
    for d in range(4): a('v_cndmask_b32 v%d, 0, v%d, s[32:33]' % (72 + d, 72 + d))
    a('s_lshl_b32 s32, s3, 10'); a('s_add_u32 s32, s32, %d' % B1L); a('v_add_u32 v8, s32, v3'); a('ds_write_b128 v8, v[72:75]')
    a('s_cmp_eq_u32 s27, 1'); a('s_cselect_b32 s34, %s, 0' % fbits(-0.25))
    gen_a2(a, A2, [64, 72, 80], 's34'); z_bases(a)
    a('v_cmp_eq_u32 s[42:43], 0, v7'); a('s_cmp_eq_u32 s27, 1'); a('s_cselect_b64 s[44:45], s[42:43], 0')
    a('v_lshlrev_b32 v5, 4, v4'); a('v_add_u32 v5, %d, v5' % YST); a('s_or_b32 s33, s22, s27')
    for r in range(160, 164): a('v_mov_b32 v%d, 0' % r)
    a('v_subrev_u32 v9, 1024, v5'); a('v_cndmask_b32 v5, v5, v9, s[42:43]')
    a('s_mov_b64 s[62:63], 0'); a('s_mov_b32 s59, 0')
    if Q0_DRY: a('s_cmp_eq_u32 s23, 0'); a('s_cbranch_scc1 km_q0dry')
    a.label('km_q0dryback'); a.hist = []
    a('s_lshl_b32 s32, s27, 12'); a('s_add_u32 s32, s32, %d' % B1L); a('v_add_u32 v8, s32, v3')
    a('s_waitcnt lgkmcnt(0)')
    stamp(a, 1)
    XL, XU, XX = 156, 160, 2
    a('s_and_b32 s37, s26, 1'); a('s_lshr_b32 s38, s26, 1')
    ZFS = [112, 128]
    def zread(i):
        for j in range(4):
            for hf in range(2):
                r = ZFS[i & 1] + 4 * j + 2 * hf
                a('ds_read_b64_tr_b16 v[%d:%d], v%d offset:%d' % (r, r + 1, 10 + (j >> 1), 16384 * i + (16 * (j & 1) + 4 * hf) * 128), tag='zr%d_%d' % (i, j))
    AY = 112; GG = 144
    def gread(i):
        a('s_add_u32 s32, s25, %d' % i); a('s_and_b32 s32, s32, 15'); a('s_lshl_b32 s32, s32, 7'); a('v_add_u32 v13, s32, v12')
        for k in range(4): a('ds_read_b128 v[%d:%d], v13 offset:%d' % (GG + 4 * k, GG + 4 * k + 3, 64 * (k >> 1) + 16 * (k & 1)), tag='g%d' % i)
    a.bar()
    stamp(a, 2)
    for j in range(4): a('ds_read_b128 v[%d:%d], v8 offset:%d' % (B1 + 4 * j, B1 + 4 * j + 3, 1024 * j))
    a.reg = 'B'
    zread(0)
    if B_MERGE: zread(1); gread(0)
    for j in range(4):
        a.wait_lg('zr0_%d' % j); a.mfma(AC1[0], ZFS[0] + 4 * j, B1 + 4 * j, j == 0)
    if not B_MERGE: a.bar(); zread(1); gread(0)
    for i in range(4):
        xc = AC1[i & 1]
        V = ['v_mul_f32 v%d, v%d, v%d' % (xc + r, xc + r, GG + r) for r in range(16)] + ['G'] + \
            ['v_cvt_pk_bf16_f32 v%d, v%d, v%d' % (xc + d, xc + 2 * d, xc + 2 * d + 1) for d in range(8)]
        def emit(n):
            for _ in range(n):
                if not V: return
                t = V.pop(0)
                if t == 'G':
                    if i < 3: gread(i + 1)
                else: a(t)
        if i < 3:
            for j in range(4):
                a.wait_lg('zr%d_%d' % (i + 1, j)); a.mfma(AC1[(i + 1) & 1], ZFS[(i + 1) & 1] + 4 * j, B1 + 4 * j, j == 0)
                if j == 3 and i == 0: a.bar(); zread(2)
                if j == 0 and i == 1: zread(3)
                if j == 0: a.wait_lg('g%d' % i)
                emit(6)
        else:
            a.wait_lg('g3')
        emit(99)
        a('s_cmp_lg_u32 s33, 0')
        for h in range(2): a.mfma(AP, A2 + 8 * i + 4 * h, xc + 4 * h, i == 0 and h == 0)
        a('s_cbranch_scc1 km_nd%d' % i)
        for d in range(8): a('v_dot2c_f32_bf16 v%d, v%d, v15' % (160 + (d & 3), xc + d))
        if i == 3:
            a('s_nop 2'); a('v_add_f32 v160, v160, v161'); a('v_add_f32 v162, v162, v163'); a('v_add_f32 v14, v160, v162')
        a.label('km_nd%d' % i)
    a.reg = ''
    stamp(a, 3)
    a('s_lshl_b32 s32, s3, 12'); a('s_add_u32 s32, s32, %d' % ZI); a('v_add_u32 v11, s32, v3')
    a('s_lshl_b32 s32, s26, 8'); a('s_add_u32 s32, s32, %d' % EXT); a('v_lshl_add_u32 v12, v1, 2, s32')
    a('s_cmp_eq_u32 s27, 0'); a('s_cselect_b64 s[30:31], -1, 0'); a('s_andn2_b64 s[34:35], s[30:31], s[42:43]')
    a('s_cmp_eq_u32 s23, 0'); a('s_cbranch_scc1 km_q0tail')
    a.label('km_q0back')
    a('s_nop 3')
    a('s_andn2_b64 exec, -1, s[44:45]')
    for k in range(4): a('ds_write_b128 v11, v[%d:%d] offset:%d' % (AP + 4 * k, AP + 4 * k + 3, 1024 * k))
    a('s_mov_b64 exec, s[30:31]'); a('ds_write_b32 v12, v14'); a('s_mov_b64 exec, s[34:35]'); a('ds_write_b32 v12, v14 offset:1024')
    a('s_mov_b64 exec, -1')
    a('s_waitcnt lgkmcnt(0)')
    lds_inc(a, CNT + 4)
    a('s_mov_b32 s46, 0xffff0000')
    cmap()
    a('s_cmp_eq_u32 s27, 0'); a('s_cbranch_scc1 km_C')
    XLF, XUF = 120, 128
    a('s_lshl_b32 s30, s37, 1'); a('v_add_u32 v9, s30, v4')
    a('s_lshl_b32 s39, s22, 7'); a('v_lshl_add_u32 v7, v9, 5, s39')
    a('s_lshl_b32 s30, s38, 12'); a('s_add_u32 s30, s30, %d' % B1L); a('v_lshl_add_u32 v13, v6, 6, s30')
    a('v_lshl_add_u32 v14, v9, 4, v13'); a('v_lshlrev_b32 v15, 4, v9'); a('v_sub_u32 v15, v13, v15')
    a('s_lshl_b32 s30, s38, 8'); a('s_add_u32 s30, s30, %d' % (XEL - 2112)); a('v_lshl_add_u32 v13, v6, 2, s30')
    a('v_cmp_eq_u32 vcc, 0, v9'); a('v_cndmask_b32 v13, v15, v13, vcc')
    GA, G2, GAU, G2U = 24, 32, 40, 48
    a('v_add_u32 v21, %d, v7' % GAL)
    a('s_lshl_b32 s32, s37, 11'); a('s_add_u32 s32, s32, %d' % ZI); a('v_add_u32 v11, s32, v3')
    a('s_cmp_eq_u32 s38, 0'); a('s_cselect_b32 s34, -1.0, 1.0'); a('s_cselect_b32 s35, 0, 1.0')
    a('v_mov_b32 v16, s34'); a('v_mov_b32 v17, s35'); a('v_sub_f32 v18, 0, v16'); a('v_sub_f32 v22, 1.0, v17')
    a('v_cndmask_b32 v16, v16, v17, s[42:43]'); a('v_cndmask_b32 v18, v18, v17, s[42:43]'); a('v_cndmask_b32 v22, 1.0, v22, s[42:43]')
    a('s_lshl_b32 s39, s38, 5'); a('s_add_u32 s39, s39, s23')
    a('s_lshl_b32 s36, s39, 15'); a('s_lshl_b32 s33, s22, 1'); a('s_add_u32 s33, s33, s37'); a('s_lshl_b32 s33, s33, 10'); a('s_add_u32 s36, s36, s33')
    a('s_lshl_b32 s32, s38, 10'); a('s_add_u32 s32, s32, %d' % EXT); a('v_lshl_add_u32 v20, v1, 2, s32')
    a('s_or_b32 s33, s22, s37'); a('s_cmp_eq_u32 s33, 0'); a('s_cselect_b32 s30, -1, 0'); a('s_mov_b32 s31, 0')
    a('s_setprio 0')
    lds_spin(a, 'km_spinR', CNT + 4, 10)
    if E_PRIO: a('s_setprio 3')
    stamp(a, 4)
    RP, RQ, YL, YU = 56, 88, 64, 72
    a('ds_read_b128 v[%d:%d], v14' % (XL, XL + 3)); a('ds_read_b128 v[%d:%d], v15 offset:2096' % (XU, XU + 3)); a('ds_read_u16 v%d, v13 offset:2112' % XX)
    for R, o in ((RP, 0), (RQ, 16384)):
        for src in range(4):
            for hf in range(2): a('ds_read_b128 v[%d:%d], v11 offset:%d' % (R + 8 * src + 4 * hf, R + 3 + 8 * src + 4 * hf, o + src * 4096 + hf * 1024))
    a('s_waitcnt lgkmcnt(15)')
    unpack(a, XLF, XL, 4, 46); unpack_rev(a, XUF, XU, XX, 46)
    for n, R in enumerate((RP, RQ)):
        a('s_waitcnt lgkmcnt(%d)' % (8 if n == 0 else 10))
        if n == 0:
            for reg, off in ((GA, 0), (GAU, 1024), (G2, 2048), (G2U, 3072)):
                for k in range(2): a('ds_read_b128 v[%d:%d], v21 offset:%d' % (reg + 4 * k, reg + 4 * k + 3, off + 16 * k))
            a('ds_read2st64_b32 v[136:137], v20 offset0:0 offset1:1'); a('ds_read2st64_b32 v[138:139], v20 offset0:2 offset1:3')
        for i in range(0, 8, 2): a.pk('v_pk_add_f32', R + i, R + i, R + 8 + i); a.pk('v_pk_add_f32', R + 16 + i, R + 16 + i, R + 24 + i)
        for i in range(0, 8, 2): a.pk('v_pk_add_f32', R + i, R + i, R + 16 + i)
    for i in range(0, 8, 2): a('v_pk_mul_f32 v[%d:%d], v[%d:%d], v[22:23] op_sel_hi:[1,0]' % (RP + i, RP + i + 1, RP + i, RP + i + 1))
    for i in range(0, 8, 2):
        a('v_pk_fma_f32 v[%d:%d], v[%d:%d], v[16:17], v[%d:%d] op_sel_hi:[1,0,1]' % (YL + i, YL + i + 1, RQ + i, RQ + i + 1, RP + i, RP + i + 1))
        a('v_pk_fma_f32 v[%d:%d], v[%d:%d], v[18:19], v[%d:%d] op_sel_hi:[1,0,1]' % (YU + i, YU + i + 1, RQ + i, RQ + i + 1, RP + i, RP + i + 1))
    a('s_waitcnt lgkmcnt(0)')
    a.pk('v_pk_add_f32', 136, 136, 138); a('v_add_f32 v136, v136, v137'); half_sum(a, [136], 137)
    a('v_cndmask_b32 v%d, v%d, v136, s[30:31]' % (YU, YU))
    for Y, G, X in ((YL, GA, XLF), (YU, GAU, XUF)):
        for i in range(0, 8, 2): a('v_pk_fma_f32 v[%d:%d], v[%d:%d], v[%d:%d], v[%d:%d]' % (Y + i, Y + i + 1, Y + i, Y + i + 1, G + i, G + i + 1, X + i, X + i + 1))
    for Y, G in ((YL, G2), (YU, G2U)):
        for i in range(0, 8, 2): a.pk('v_pk_mul_f32', G + i, Y + i, G + i)
    a('s_add_u32 s32, s36, 0x%x' % ZT); a('s_add_u32 s33, s32, 16384'); a('s_add_u32 s34, s36, 0x%x' % X1T); a('s_add_u32 s35, s34, 16384')
    for src, dst, so in ((G2, 80, 32), (G2U, 84, 33), (YL, 88, 34), (YU, 92, 35)):
        for d in range(4): a('v_cvt_pk_bf16_f32 v%d, v%d, v%d' % (dst + d, src + 2 * d, src + 2 * d + 1))
        a('buffer_store_dwordx4 v[%d:%d], v3, s[16:19], s%d offen sc1' % (dst, dst + 3, so))
    a.pk('v_pk_add_f32', 96, YL, YL + 2); a.pk('v_pk_mul_f32', 98, YL, YL)
    for i in range(2, 16, 2):
        if i > 2: a.pk('v_pk_add_f32', 96, 96, YL + i)
        a('v_pk_fma_f32 v[98:99], v[%d:%d], v[%d:%d], v[98:99]' % (YL + i, YL + i + 1, YL + i, YL + i + 1))
    a('v_add_f32 v100, v96, v97'); a('v_add_f32 v101, v98, v99')
    half_sum(a, [100, 101], 102)
    a('s_lshl_b32 s32, s39, 12'); a('s_lshl_b32 s33, s22, 9'); a('s_add_u32 s32, s32, s33'); a('s_lshl_b32 s33, s37, 8'); a('s_add_u32 s32, s32, s33'); a('s_add_u32 s32, s32, 0x%x' % STATS)
    a('v_lshlrev_b32 v8, 3, v1')
    a('s_mov_b32 exec_hi, 0')
    a('buffer_store_dwordx2 v[100:101], v8, s[16:19], s32 offen sc1')
    a('s_mov_b64 exec, -1')
    stamp(a, 12)
    a('s_lshl_b32 s32, s20, 8'); a('s_add_u32 s32, s32, 0x%x' % FLAGB)
    lds_inc(a, C_ISS)
    arrive(a, 'km_arrB', CNT, 4, 32, 32, DIRECT_B)
    stamp(a, 9)
    a('s_setprio 0')
    a('s_branch km_C')
    a.role('km_q0tail')
    a('s_mov_b64 s[62:63], s[42:43]'); a('s_mov_b32 s59, 2'); a('s_setprio 3')
    a.label('km_q0dry')
    a('v_mov_b32 v8, %d' % C_Y); lds_spin_v(a, 'km_spinY', 8, 's59', 0, 0)
    a('s_cmp_lg_u32 s27, 0'); a('s_cbranch_scc1 km_q0ret')
    for i in range(4):
        a('s_add_u32 s32, s25, %d' % i); a('s_and_b32 s32, s32, 15'); a('s_lshl_b32 s32, s32, 6'); a('v_add_u32 v9, s32, v5')
        for h in range(2): a('ds_read_b128 v[%d:%d], v9 offset:%d' % (128 + 8 * i + 4 * h, 131 + 8 * i + 4 * h, 32 * h))
    for r in range(164, 168): a('v_mov_b32 v%d, 0' % r)
    for j in range(8):
        a('s_waitcnt lgkmcnt(%d)' % (7 - j)); a.mfma(AY, A2 + 4 * j, 128 + 4 * j, j == 0)
        for d in range(4): a('v_dot2c_f32_bf16 v%d, v%d, v15' % (164 + d, 128 + 4 * j + d))
    a('s_nop 2')
    a('v_add_f32 v164, v164, v165'); a('v_add_f32 v166, v166, v167'); a('v_add_f32 v13, v164, v166')
    a('s_mov_b64 exec, s[62:63]')
    a('v_add_f32 v14, v14, v13')
    for r in range(0, 16, 2): a.pk('v_pk_add_f32', AP + r, AP + r, AY + r)
    a('s_lshl_b64 exec, s[62:63], 1')
    for k in range(4): a('ds_write_b128 v11, v[%d:%d] offset:%d' % (AY + 4 * k, AY + 4 * k + 3, 16384 - 16 + 1024 * k))
    a('ds_write_b32 v12, v13 offset:1020')
    a('s_mov_b64 exec, -1')
    a.label('km_q0ret')
    a('s_cmp_eq_u32 s59, 0'); a('s_cbranch_scc1 km_q0dryback')
    a('s_branch km_q0back')
    a.role('km_C')
    a('s_setprio 0')
    ACC = 16; WB = 80; ZF = WB + 4 * NWB; ST = ZF + 4 * ZRING
    assert ST + 16 <= 168
    a('v_bfe_u32 v10, v1, 4, 1'); a('v_bfe_u32 v11, v1, 2, 2'); a('v_lshl_add_u32 v12, v4, 3, v11'); a('v_lshlrev_b32 v12, 7, v12'); a('v_lshl_add_u32 v12, v10, 12, v12')
    a('v_and_b32 v11, 2, v11'); a('v_or_b32 v11, v11, v10'); a('v_lshl_add_u32 v12, v11, 5, v12')
    a('v_and_b32 v11, 1, v1'); a('v_lshl_add_u32 v12, v11, 4, v12'); a('v_bfe_u32 v11, v1, 1, 1'); a('v_lshl_add_u32 v12, v11, 3, v12')
    for j in range(1, 4): a('v_xor_b32 v%d, %d, v12' % (12 + j, 32 * j))
    a('v_mov_b32 v0, %d' % C_PROG); a('v_mov_b32 v2, 1')
    a('s_lshl_b32 s34, s48, 7'); a('s_add_u32 s34, s34, 0x%x' % FLAGS); a('s_lshl_b32 s35, s48, 11'); a('s_add_u32 s35, s35, 0x%x' % CSG)
    a('v_lshlrev_b32 v7, 4, v6')
    def wrd(n, j, dst, tag=None):
        for hf in range(2):
            a('ds_read_b64_tr_b16 v[%d:%d], v%d offset:%d' % (dst + 2 * hf, dst + 2 * hf + 1, 12 + j, ((n >> 1) & 7) * 8192 + (16 * (n & 1) + 4 * hf) * 128), tag=tag)
    a('s_cmp_ge_u32 s21, 28'); a('s_cbranch_scc1 km_csb')
    a('s_lshl_b32 s28, s49, 2'); a('s_add_u32 s28, s28, s26'); a('s_lshl_b32 s29, s27, 5'); a('s_add_u32 s28, s28, s29')
    a('s_lshl_b32 s36, s28, 15'); a('s_add_u32 s36, s36, 0x%x' % ZT); a('s_lshl_b32 s37, s50, 11')
    a('s_lshl_b32 s39, s28, 12'); a('s_add_u32 s39, s39, 0x%x' % STATS); a('v_lshlrev_b32 v5, 3, v6'); a('v_lshl_add_u32 v5, v4, 11, v5')
    k1c = -2 * 0.7978845608028654 * LOG2E; k2c = k1c * 0.044715
    a('s_mov_b32 s44, %s' % fbits(k2c))
    a('s_mul_i32 s40, s28, %d' % (112 * 1024)); a('s_lshl_b32 s41, s48, 12'); a('s_add_u32 s40, s40, s41'); a('s_add_u32 s40, s40, 0x%x' % ACT)
    a('s_lshr_b32 s41, s28, 2'); a('s_lshl_b32 s41, s41, 8'); a('s_add_u32 s41, s41, 0x%x' % FLAGC)
    a('s_lshl_b32 s42, s27, 2'); a('s_add_u32 s42, s42, %d' % C_ARRC)
    a('s_lshl_b32 s32, s49, 8'); a('s_add_u32 s32, s32, 0x%x' % (FLAGB + (0 if DIRECT_B else 128)))
    a('s_cmp_lg_u32 s3, 0'); a('s_cbranch_scc1 km_c_w')
    lds_spin(a, 'km_spinZ', C_ARRB, 4)
    poll(a, 'km_pollB', 32, 1, 32 if DIRECT_B else 0)
    lds_inc(a, C_GOB)
    a('s_branch km_c_go')
    a.label('km_c_w')
    lds_spin(a, 'km_spinG', C_GOB, 1)
    a.label('km_c_go')
    stamp(a, 13)
    a('s_cmp_eq_u32 s27, 0'); a('s_cbranch_scc1 km_c_pa'); a('s_setprio %d' % PRIO_B)
    if B_DELAY: lds_spin(a, 'km_spinBD', C_PROG, B_DELAY)
    a('s_branch km_c_pb')
    a.label('km_c_pa'); a('s_setprio %d' % PRIO_A)
    a.label('km_c_pb')
    def zld(n):
        if n & 1 == 0: a('s_add_u32 s38, s36, s37'); a('s_add_u32 s37, s37, 2048'); a('s_and_b32 s37, s37, 32767')
        r = ZF + 4 * (n % ZRING)
        a('buffer_load_dwordx4 v[%d:%d], v3, s[16:19], s38 offen offset:%d %s' % (r, r + 3, 1024 * (n & 1), LD), tag='z%d' % n)
    zn = 0
    while zn < Z_INIT: zld(zn); zn += 1
    lds_spin(a, 'km_spinW1', C_W1, 2)
    stamp(a, 5)
    a.reg = 'C'
    AHEAD = NWB - 1
    seq = [(n, j) for n in range(32) for j in range(4)]
    def issue_w(i):
        n, j = seq[i]
        if n == 2 * NPRE and j == 0: lds_spin(a, 'km_spinW2', C_W2, 4)
        if n == 16: a('v_add_u32 v%d, 65536, v%d' % (12 + j, 12 + j))
        wrd(n, j, WB + 4 * (i % NWB), 'w%d' % i)
    for i in range(AHEAD): issue_w(i)
    CS = [ZF + 4 * ((32 + k) % ZRING) for k in range(4)]
    for i, (n, j) in enumerate(seq):
        if j == 0: a.wait_vm('z%d' % n)
        a.wait_lg('w%d' % i)
        a.mfma(ACC + 16 * j, WB + 4 * (i % NWB), ZF + 4 * (n % ZRING), n == 0)
        if i + AHEAD < 128: issue_w(i + AHEAD)
        if j in (1, 3) and zn < 32 and zn < n + ZRING - (0 if j == 3 else 1) - 0 and (zn - ZRING < n or (zn - ZRING == n and False)):
            zld(zn); zn += 1
        if j == 2 and 8 <= n < 16: a('buffer_load_dwordx2 v[%d:%d], v5, s[16:19], s39 offen offset:%d %s' % (ST + 2 * (n - 8), ST + 2 * (n - 8) + 1, 256 * (n - 8), LD), tag='st')
        if j == 2 and n == 17: a('v_mov_b32 v10, 0'); a('buffer_load_dword v11, v10, s[16:19], s34 offen sc1', tag='fs')
        if j == 2 and n == 24:
            a.wait_vm('fs'); a('v_readfirstlane_b32 s56, v11'); a('s_cmp_lg_u32 s56, 0'); a('s_cbranch_scc1 km_fs_ok')
            vm = a.vm; poll(a, 'km_pollS', 34, 1); a.vm = vm
            a.label('km_fs_ok')
        if j == 2 and 25 <= n < 29:
            k = n - 25; assert 32 + k - ZRING < n
            a('buffer_load_dwordx4 v[%d:%d], v7, s[16:19], s35 offen offset:%d sc1' % (CS[k], CS[k] + 3, 512 * k), tag='cs')
        if j == 3 and n % 8 == 7: lds_inc_v(a, 0, 2, 4 * (n >> 3))
    assert zn == 32
    a.reg = ''
    stamp(a, 6)
    a('s_cmp_eq_u32 s27, 0'); a('s_cbranch_scc1 km_e_pa'); a('s_setprio 3'); a('s_branch km_e_pb')
    a.label('km_e_pa'); a('s_setprio %d' % PRIO_EA)
    a.label('km_e_pb')
    for st in (8, 4, 2):
        for i in range(st): a('v_add_f32 v%d, v%d, v%d' % (ST + i, ST + i, ST + st + i))
    half_sum(a, [ST, ST + 1], ST + 2)
    a('v_mul_f32 v10, %s, v%d' % (fbits(-1.0 / 512), ST))
    a('v_mul_f32 v11, %s, v%d' % (fbits(1.0 / 512), ST + 1)); a('v_fma_f32 v11, -v10, v10, v11'); a('v_max_f32 v11, 0, v11')
    a('v_add_f32 v11, %s, v11' % fbits(1e-5))
    a('v_rsq_f32 v8, v11'); a('v_sqrt_f32 v9, v11')
    for src, dst in ((10, 12), (9, 14)):
        a('v_cvt_pk_bf16_f32 v%d, v%d, v%d' % (ST, src, src)); a('v_and_b32 v%d, s46, v%d' % (ST, ST)); a('v_sub_f32 v%d, v%d, v%d' % (ST + 1, src, ST))
        a('v_cvt_pk_bf16_f32 v%d, v%d, v%d' % (dst, ST, ST + 1))
    a('v_cmp_gt_u32 vcc, 32, v1'); a('v_cndmask_b32 v12, 0, v12, vcc'); a('v_cndmask_b32 v14, 0, v14, vcc')
    a('v_mov_b32 v13, v12'); a('v_mov_b32 v15, v14'); a('v_mov_b32 v10, %s' % fbits(k1c)); a('v_mov_b32 v11, s44')
    a('s_waitcnt vmcnt(0)')
    for j in range(4): a.mfma(ACC + 16 * j, CS[j], 12)
    for j in range(4):
        g = ACC + 16 * j; u = g + 8; t = 80 + 8 * (j & 1)
        if EPI_PK:
            P = range(0, 8, 2)
            for i in P: a('v_pk_mul_f32 v[%d:%d], v[%d:%d], v[8:9] op_sel_hi:[1,0]' % (g + i, g + i + 1, g + i, g + i + 1))
            for i in P: a.pk('v_pk_mul_f32', t + i, g + i, g + i)
            for i in P: a('v_pk_fma_f32 v[%d:%d], v[%d:%d], v[10:11], v[10:11] op_sel:[0,1,0] op_sel_hi:[1,1,0]' % (t + i, t + i + 1, t + i, t + i + 1))
            for i in P: a.pk('v_pk_mul_f32', t + i, t + i, g + i)
            for i in range(8): a('v_exp_f32 v%d, v%d' % (t + i, t + i))
            for i in P: a.pk('v_pk_mul_f32', u + i, u + i, g + i)
            for i in P: a('v_pk_fma_f32 v[%d:%d], v[%d:%d], v[8:9], v[8:9] op_sel:[0,1,1] op_sel_hi:[1,1,1]' % (t + i, t + i + 1, t + i, t + i + 1))
            for i in range(8): a('v_rcp_f32 v%d, v%d' % (t + i, t + i))
            for i in P: a.pk('v_pk_mul_f32', u + i, u + i, t + i)
        else:
            for i in range(8): a('v_mul_f32 v%d, v8, v%d' % (g + i, g + i))
            for i in range(8): a('v_mul_f32 v%d, v%d, v%d' % (t + i, g + i, g + i))
            for i in range(8): a('v_fma_f32 v%d, v%d, s44, v10' % (t + i, t + i))
            for i in range(8): a('v_mul_f32 v%d, v%d, v%d' % (t + i, t + i, g + i))
            for i in range(8): a('v_exp_f32 v%d, v%d' % (t + i, t + i))
            for i in range(8): a('v_mul_f32 v%d, v%d, v%d' % (u + i, u + i, g + i))
            for i in range(8): a('v_fma_f32 v%d, v%d, v9, v9' % (t + i, t + i))
            for i in range(8): a('v_rcp_f32 v%d, v%d' % (t + i, t + i))
            for i in range(8): a('v_mul_f32 v%d, v%d, v%d' % (u + i, u + i, t + i))
        for d in range(4): a('v_cvt_pk_bf16_f32 v%d, v%d, v%d' % (g + d, u + 2 * d, u + 2 * d + 1))
        a('buffer_store_dwordx4 v[%d:%d], v3, s[16:19], s40 offen offset:%d sc1' % (g, g + 3, 1024 * j))
    stamp(a, 7)
    arrive(a, 'km_arrC', 's42', 4, 41, 28, DIRECT_C)
    stamp(a, 8)
    a('s_branch km_D')
    a.role('km_csb')
    lds_spin(a, 'km_spinR2', C_RED, 10); lds_spin(a, 'km_spinW3', C_W2, 4)
    a('s_cmp_lg_u32 s27, 0'); a('s_cbranch_scc1 km_csb_done')
    a('s_cmp_ge_u32 s49, 7'); a('s_cbranch_scc1 km_csb_done')
    a('s_lshl_b32 s32, s26, 5'); a('v_xor_b32 v12, s32, v12'); a('v_add_u32 v13, 65536, v12')
    a('v_and_b32 v10, 1, v1'); a('v_lshlrev_b32 v10, 10, v10'); a('v_lshl_add_u32 v10, v4, 4, v10'); a('v_add_u32 v10, %d, v10' % G2H)
    a('s_lshl_b32 s33, s50, 6')
    for blk in range(4):
        for k in range(8):
            n = 8 * blk + k
            if n & 1 == 0: a('v_add_u32 v11, s33, v10'); a('s_add_u32 s33, s33, 64'); a('s_and_b32 s33, s33, 1023')
            a('ds_read_b128 v[%d:%d], v11 offset:%d' % (32 + 8 * k, 35 + 8 * k, 32 * (n & 1)))
            wrd(n, n >> 4, 36 + 8 * k, 'c%d' % n)
        for k in range(8):
            n = 8 * blk + k
            a.wait_lg('c%d' % n); a.mfma(16, 32 + 8 * k, 36 + 8 * k, n == 0)
    for i in range(2):
        a('v_cvt_pk_bf16_f32 v%d, v%d, v%d' % (100 + 2 * i, 16 + i, 16 + i)); a('v_and_b32 v104, s46, v%d' % (100 + 2 * i)); a('v_sub_f32 v104, v%d, v104' % (16 + i))
        a('v_cvt_pk_bf16_f32 v%d, v104, v104' % (101 + 2 * i))
    a('s_lshl_b32 s32, s26, 9'); a('s_add_u32 s35, s35, s32')
    a('s_mov_b32 exec_hi, 0'); a('buffer_store_dwordx4 v[100:103], v7, s[16:19], s35 offen sc1'); a('s_mov_b64 exec, -1')
    arrive(a, 'km_arrS', C_ARRS, 4, 34)
    a.label('km_csb_done')
    stamp(a, 14)
    for p in range(4): lds_inc_v(a, 0, 2, 4 * p)
    a.label('km_D'); a.hist = []; a.inD = True
    if HOLD:
        a('v_mov_b32 v8, %d' % C_HOLD); a('v_mov_b32 v9, s27'); lds_inc_v(a, 8, 9)
    a('s_cmp_eq_u32 s27, 0'); a('s_cbranch_scc1 km_d_pa'); a('s_setprio %d' % PRIO_DB); a('s_branch km_d_pb')
    a.label('km_d_pa'); a('s_setprio %d' % PRIO_D)
    a.label('km_d_pb')
    dmap()
    a('s_lshl_b32 s29, s27, 5'); a('s_add_u32 s53, s53, s29')
    a('v_bfe_u32 v12, v1, 2, 2'); a('v_lshl_add_u32 v12, v4, 3, v12'); a('v_lshlrev_b32 v12, 7, v12')
    a('v_bfe_u32 v13, v1, 4, 1'); a('v_lshl_add_u32 v12, v13, 5, v12'); a('v_and_b32 v13, 1, v1'); a('v_lshl_add_u32 v12, v13, 4, v12')
    a('v_bfe_u32 v13, v1, 1, 1'); a('v_lshl_add_u32 v12, v13, 3, v12'); a('v_bfe_u32 v13, v1, 3, 1'); a('v_lshl_add_u32 v12, v13, 6, v12')
    a('s_lshl_b32 s29, s26, 5'); a('v_xor_b32 v12, s29, v12'); a('s_lshl_b32 s29, s26, 13'); a('v_add_u32 v12, s29, v12'); a('v_xor_b32 v13, 64, v12')
    a('v_add_u32 v14, 65536, v12'); a('v_add_u32 v15, 65536, v13')
    a('s_mul_i32 s30, s53, %d' % (112 * 1024)); a('s_mul_i32 s31, s26, %d' % (28 * 1024)); a('s_add_u32 s30, s30, s31'); a('s_add_u32 s30, s30, 0x%x' % ACT)
    for g in range(7):
        if PASS2:
            a('s_cmp_eq_u32 s27, 0'); a('s_cselect_b32 s31, %d, %d' % (g, [4, 5, 6, 3, 0, 1, 2][g])); a('s_add_u32 s31, s31, s54'); a('s_sub_u32 s32, s31, 7')
            a('s_cmp_ge_u32 s31, 7'); a('s_cselect_b32 s31, s32, s31'); a('s_lshl_b32 s31, s31, 12'); a('s_add_u32 s%d, s31, s30' % (33 + g))
        else:
            region(31, g, 32); a('s_lshl_b32 s31, s31, 12'); a('s_add_u32 s%d, s31, s30' % (33 + g))
    a('s_lshr_b32 s32, s53, 2'); a('s_lshl_b32 s32, s32, 8'); a('s_add_u32 s32, s32, 0x%x' % (FLAGC + (0 if DIRECT_C else 128)))
    AD = [16, 32]; AF = 48; NR = 16; WD = [112, 120, 128, 136]; X1R = 144; GBR = 152; XA = 156; FC = 158
    a('s_lshl_b32 s44, s52, 3'); a('s_lshl_b32 s45, s26, 1'); a('s_add_u32 s44, s44, s45'); a('v_add_u32 v11, s44, v4')
    a('s_and_b32 s47, s53, 31'); token_of(a, 5, 8, 47); a('s_cmp_ge_u32 s53, 32'); mirror_if(a, 5, 8, 9)
    a('v_lshlrev_b32 v5, 10, v5'); a('v_lshl_add_u32 v5, v11, 4, v5')
    a('s_lshl_b32 s45, s53, 15'); a('s_add_u32 s45, s45, 0x%x' % X1T)
    a('s_lshl_b32 s29, s26, 2'); a('s_add_u32 s29, s29, %d' % C_FULL); a('v_mov_b32 v0, s29')
    a('s_lshl_b32 s29, s27, 2'); a('s_add_u32 s29, s29, %d' % C_GO); a('v_mov_b32 v7, s29')
    a('s_lshl_b32 s29, s27, 5'); a('v_add_u32 v10, s29, v0')
    srd(a, 40, 8, 2048 * 1024)
    a('s_cmp_eq_u32 s27, 0'); a('s_cselect_b32 s60, 0, 2048'); a('s_add_u32 s60, s60, 6144'); a('s_cmp_eq_u32 s27, 0'); a('s_cselect_b32 s61, %d, 0' % (XCH - 98304)); a('s_add_u32 s61, s61, 98304')
    for k in range(4):
        a('s_xor_b32 s29, s26, %d' % k); a('s_mul_i32 s29, s29, s60'); a('s_add_u32 s%d, s29, s61' % (48 + k))
    FC = 166
    def late():
        L = ['v_lshlrev_b32 v8, 4, v11', 'v_add_u32 v8, %d, v8' % GBH, 'ds_read_b128 v[%d:%d], v8' % (GBR, GBR + 3),
             'v_sub_u32 v8, 95, v11', 'v_cmp_gt_u32 vcc, 32, v11', 'v_cndmask_b32 v8, v8, v11, vcc', 'v_lshlrev_b32 v8, 9, v8', 'v_lshl_add_u32 v%d, v6, 4, v8' % XA,
             'v_sub_u32 v8, 64, v11', 'v_and_b32 v8, 31, v8', 'v_add_u32 v8, 32, v8', 'v_lshlrev_b32 v8, 9, v8', 'v_lshl_add_u32 v%d, v6, 4, v8' % (XA + 1)]
        L += ['v_add_u32 v%d, s%d, v3' % (160 + k, 48 + k) for k in range(4)]
        L += ['v_and_b32 v164, 3, v1', 'v_lshlrev_b32 v164, 2, v164', 'v_bfe_u32 v8, v1, 2, 1', 'v_lshl_add_u32 v164, v8, 5, v164', 'v_add_u32 v164, %d, v164' % C_FREE]
        return L
    areg = {}; wreg = {}
    def act_load(n, free):
        r = areg[n] = free.pop(0)
        a('buffer_load_dwordx4 v[%d:%d], v3, s[16:19], s%d offen offset:%d %s' % (r, r + 3, 33 + n // 4, 1024 * (n & 3), LD), tag='a%d' % n)
    def wd_read(n, free):
        pos = (n >> 2) & 3; wreg[n] = []
        for t in range(2):
            r0 = free.pop(0); wreg[n].append(r0)
            for hf in range(2):
                a('ds_read_b64_tr_b16 v[%d:%d], v%d offset:%d' % (r0 + 2 * hf, r0 + 2 * hf + 1, 12 + t + 2 * (pos >> 1), (pos & 1) * 32768 + (16 * (n & 3) + 4 * hf) * 128), tag='w%d' % n)
    stamp(a, 2)
    free0 = list(range(48, 144, 4))
    a('s_mov_b32 s31, %d' % (NPB // 4)); lds_spin_v(a, 'km_spinD1', 0, 's31')
    for k in range(NPB): wd_read(k, free0)
    a('s_waitcnt lgkmcnt(0)')
    a('v_mov_b32 v9, %d' % (NPB // 4)); lds_inc_v(a, 10, 9, C_FREE - C_FULL)
    wpre = dict(wreg)
    if HOLD:
        a('v_mov_b32 v8, %d' % C_HOLD); a('s_lshl_b32 s29, s27, 2'); a('s_sub_u32 s29, 4, s29')
        lds_spin_v(a, 'km_hold', 8, 's29')
    a('s_cmp_lg_u32 s26, 0'); a('s_cbranch_scc1 km_d_w')
    poll(a, 'km_pollC', 32, 1)
    lds_inc_v(a, 7, 2)
    a('s_branch km_d_go')
    a.label('km_d_w')
    lds_spin_v(a, 'km_spinH', 7, '1')
    a.label('km_d_go')
    stamp(a, 9)
    a('s_cmp_eq_u32 s27, 1'); a('s_cbranch_scc1 km_dB')
    svd = (a.vm, dict(a.tags), a.lg, dict(a.ltags))
    for G, dinit, dahead in (('A', D_INIT, D_AHEAD), ('B', DB_INIT, DB_AHEAD)):
        if G == 'B': a.role('km_dB'); a.vm, a.tags, a.lg, a.ltags = svd[0], dict(svd[1]), svd[2], dict(svd[3])
        a.reg = 'D'
        free = list(range(144, 164, 4)) + list(free0); LQ = late(); wreg.clear(); wreg.update(wpre); areg.clear()
        nxt = 0
        while (nxt < dinit or nxt < 5) and free: act_load(nxt, free); nxt += 1
        xdone = False; later = []
        for n in range(28):
            if n == 25: a('ds_read_b32 v165, v164')
            if n % 4 == 0 and NPB <= n + 4 < 28: a('ds_read_b32 v%d, v0' % FC, tag='fc%d' % n)
            if n % 4 == 1 and NPB <= n + 3 < 28:
                a.wait_lg('fc%d' % (n - 1)); a('v_readfirstlane_b32 s56, v%d' % FC); a('s_add_u32 s31, s31, 1')
                a('s_cmp_ge_u32 s56, s31'); a('s_cbranch_scc1 km_fu%s%d_ok' % (G, n))
                lg = a.lg; lds_spin_v(a, 'km_fu%s%d' % (G, n), 0, 's31'); a.lg = lg
            if NPB <= n + 3 < 28: wd_read(n + 3, free)
            a.wait_vm('a%d' % n)
            if n == 0: stamp(a, 1)
            if n in (4, 12, 20): stamp(a, {4: 3, 12: 4, 20: 12}[n])
            if n >= NPB: a.wait_lg('w%d' % n)
            for t in range(2):
                a.mfma(AD[t], wreg[n][t], areg[n], n == 0)
                if t == 0: free += later; later = []
                keep = 2 if NPB <= n + 4 < 28 else 0
                if nxt < 28 and nxt < n + dahead + t and len(free) > keep: act_load(nxt, free); nxt += 1
                if t == 0 and G == 'B' and D3 and nxt < 28 and nxt < n + dahead and len(free) > keep + 1: act_load(nxt, free); nxt += 1
            later = [r for r in wreg[n] + [areg[n]] if r < 144]
            if n >= 6:
                assert all(areg[k] < 144 for k in areg if k >= n - 1)
                for t in LQ[:6]: a(t)
                LQ = LQ[6:]
            if n in (3, 7, 11, 15) and n >= NPB: lds_inc_v(a, 10, 2, C_FREE - C_FULL)
            if nxt == 28 and not xdone and not LQ:
                xdone = True
                a('buffer_load_dwordx4 v[%d:%d], v%d, s[16:19], s45 offen %s' % (X1R, X1R + 3, XA, LD))
                a('buffer_load_ushort v%d, v%d, s[16:19], s45 offen %s' % (X1R + 4, XA + 1, LD))
        assert xdone and not LQ
        if G == 'A': a('s_branch km_djoin')
    a.label('km_djoin')
    a.reg = ''
    stamp(a, 10)
    a('s_waitcnt lgkmcnt(0)')
    a('v_cmp_lt_u32 vcc, 3, v165'); a('s_cmp_eq_u64 vcc, -1'); a('s_cbranch_scc1 km_x_ok')
    a('s_cmp_eq_u32 s27, 0'); a('s_cbranch_scc1 km_x_ok')
    a('s_mov_b32 s57, 0')
    a.label('km_x_sp')
    a('ds_read_b32 v9, v164'); a('s_waitcnt lgkmcnt(0)'); a('v_cmp_lt_u32 vcc, 3, v9'); a('s_cmp_eq_u64 vcc, -1'); a('s_cbranch_scc1 km_x_ok')
    a('s_sleep 1'); a('s_add_u32 s57, s57, 1'); a('s_cmp_lt_u32 s57, %d' % (SPIN * 16)); a('s_cbranch_scc1 km_x_sp')
    a.label('km_x_ok')
    a('s_nop 7')
    for k in range(1, 4):
        for hf in range(2): a('ds_write_b128 v%d, v[%d:%d] offset:%d' % (160 + k, 16 + 8 * k + 4 * hf, 19 + 8 * k + 4 * hf, 2048 * (k - 1) + 1024 * hf))
    X = 64; GF = 72
    a('s_waitcnt vmcnt(0)')
    unpack(a, GF, GBR, 4, 46)
    a('s_cmp_ge_u32 s52, 4'); a('s_cbranch_scc1 km_up')
    unpack(a, X, X1R, 4, 46)
    a('s_branch km_fin')
    a.label('km_up')
    unpack_rev(a, X, X1R, X1R + 4, 46)
    a.label('km_fin')
    a('s_waitcnt lgkmcnt(0)')
    lds_inc_v(a, 7, 2, C_XW - C_GO)
    lds_spin_v(a, 'km_spinX1', 7, '4', C_XW - C_GO, 0)
    for k in range(6): a('ds_read_b128 v[%d:%d], v160 offset:%d' % (80 + 4 * k, 83 + 4 * k, 1024 * k))
    for k in range(3):
        a('s_waitcnt lgkmcnt(%d)' % (4 - 2 * k))
        for i in range(0, 8, 2): a.pk('v_pk_add_f32', 16 + i, 16 + i, 80 + 8 * k + i)
    for r in range(8): a('v_fmac_f32 v%d, v%d, v%d' % (X + r, GF + r, 16 + r))
    for d in range(4): a('v_cvt_pk_bf16_f32 v%d, v%d, v%d' % (104 + d, X + 2 * d, X + 1 + 2 * d))
    a('buffer_store_dwordx4 v[104:107], v5, s[40:43], 0 offen')
    stamp(a, 11)
    assert nbar_h == 3 - B_MERGE and a.nbar == 3 - B_MERGE, (nbar_h, a.nbar)
    finish(a, name, 1)
    return name, a.text() + kernel_desc(name, 168, 100), (256, 768, LDS_TOTAL)

HEADER = open('adaLN_cond__spectral_fnet__geglu_ffn__prompt.s.ref').read().split('; Override launch')[0]
def all_kernels(): return [kM()]
GROUPS = {}
def build(kernels):
    hdr = HEADER
    body = '.amdgcn_target "amdgcn-amd-amdhsa--gfx950"\n.text\n'
    for name, text, (g, b, lds) in kernels:
        hdr += '; @launch grid=(%d,1,1) block=(%d,1,1) lds=%d\n' % (g, b, lds)
        body += text
    return hdr + body

if __name__ == '__main__':
    if len(sys.argv) > 2 and sys.argv[2] == 'debug': DEBUG = True
    for idx in range(512): assert (idx * 4682) >> 16 == idx // 14
    out = sys.argv[1] if len(sys.argv) > 1 else 'adaLN_cond__spectral_fnet__geglu_ffn__prompt.s'
    open(out, 'w').write(build(all_kernels()))
    print('wrote', out)
```

```python
import sys, struct
from asmlib import Asm, kernel_desc

PART = 0x000000
FLAGB= 0x010000
FLAGC= 0x010800
FLAGS= 0x011800
FLAGA= 0x013000
REGX = 0x011C00
FB2  = 0x012000
FC2  = 0x012400
CSG  = 0x080000
STATS= 0x020000
ZB   = 0x100000
X1T  = 0x300000
ZT   = 0x500000
ACT  = 0x700000
WSZ  = 0x1000000
STAMP = 0xE00000
DEBUG = False
EXP = set()
K4_MAP = '8x4'; K4_ROT = True; K5_ROT = True
PF_CODE = True; PF_W = 128; PF_WD = 2
ZST = ''
SPIN = 1 << 15
PSLEEP = 2
LSLEEP = 1
H_PRIO = 3
W_THR = 35
Z_TOUCH = 0
A_TOUCH = 0
PF_MODE = 'km'
TOUCH_AT = 0
SIDE_AT = 1
W_START = 'early'
FORCE_SLOW = 0
D_PRIO = 0
B_PRIO = 0
D_AHEAD = 10
D_INIT = 4
Z_INIT = 4
TAIL_B = 9
W_STASH = 0
W_MORE = 1
GATHER = 'w'
ZPF = 1
LD = 'sc1'
KA_W = 0
KM_W = 0
WD_FROM = 20
FB_ROT = 1
SELF_T = 0
PRE_Z = 0
PRE_A = 0
W_NT = ''
EPI_PK = 0
KA_BAR = 7
KA_GLATE = 1
PAD = 6000
PADEV = 0
PADW = 4
E_PRIO = 2
WD_MALL = 1
KA_MALL = 0
D_START = ''
LOG2E = 1.4426950408889634

class XAsm(Asm):
    def __init__(self): super().__init__(); self.nbar = 0; self.reg = ''
    def __call__(self, text, tag=None):
        t = text.strip()
        if self.reg:
            if (self.reg + 'nomfma') in EXP and t.startswith('v_mfma'): return
            if (self.reg + 'nods') in EXP and t.startswith('ds_read'): return
            if (self.reg + 'noload') in EXP and t.startswith('buffer_load'): return
            if (self.reg + 'plain') in EXP and t.startswith('buffer_load'): text = text.replace(' sc1', '')
            if (self.reg + 'novalu') in EXP and t.startswith(('v_mul', 'v_cvt', 'v_dot')): return
        super().__call__(text, tag)
    def pk(self, op, d, x, y, extra=''): self('%s v[%d:%d], v[%d:%d], v[%d:%d]%s' % (op, d, d + 1, x, x + 1, y, y + 1, extra))
    def mfma(self, acc, A, B, first=False):
        self('v_mfma_f32_32x32x16_bf16 v[%d:%d], v[%d:%d], v[%d:%d], %s' % (acc, acc + 15, A, A + 3, B, B + 3, '0' if first else 'v[%d:%d]' % (acc, acc + 15)))
    def bar(self, n=1): self('s_barrier'); self.nbar += n
    def role(self, l): self.label(l); self.hist = []

def fbits(f): return '0x%08x' % struct.unpack('<I', struct.pack('<f', f))[0]
def stamp(a, i):
    if 'bst2' in EXP and i in (10, 11, 12): return
    if 'lite' in EXP and i not in (0, 15): return
    if DEBUG and not ('bst' in EXP and getattr(a, 'inD', False) and i not in (10, 11, 15)): a('s_memrealtime s[%d:%d]' % (64 + 2 * i, 65 + 2 * i))
def cstamp(a, i):
    if DEBUG and 'cyc' in EXP: a('s_memtime s[%d:%d]' % (64 + 2 * i, 65 + 2 * i))
def finish(a, name, kidx, vbase=4):
    a.label(name + '_end')
    if 'padev' in EXP:
        a.hist = []
        a('s_cmp_lg_u32 s2, 37'); a('s_cbranch_scc1 %s_exit' % name); a('s_cmp_lg_u32 s3, %d' % (0 if kidx == 0 else PADW)); a('s_cbranch_scc1 %s_exit' % name)
        a('s_mov_b64 exec, 1'); a('v_mov_b32 v8, 0'); a('s_mov_b32 s62, 0x1f000'); a('s_waitcnt lgkmcnt(0)')
        if kidx == 1:
            a('s_waitcnt vmcnt(0)'); a('s_memrealtime s[94:95]'); a('s_waitcnt lgkmcnt(0)')
            a('s_mov_b32 s63, s%d' % (64 + 2 * PADEV)); a('s_mov_b32 s61, 0')
            a.label('km_padloop2')
            a('s_memrealtime s[58:59]'); a('s_waitcnt lgkmcnt(0)'); a('s_sub_u32 s60, s58, s63'); a('s_cmp_ge_u32 s60, 4000'); a('s_cbranch_scc1 %s_exit' % name)
            a('s_add_u32 s61, s61, 1'); a('s_cmp_lt_u32 s61, 100000'); a('s_cbranch_scc1 km_padloop2')
        a('s_branch %s_exit' % name)
    if 'pad' in EXP:
        a.hist = []
        a('s_cmp_lg_u32 s2, 0'); a('s_cbranch_scc1 %s_exit' % name); a('s_cmp_lg_u32 s3, 0'); a('s_cbranch_scc1 %s_exit' % name)
        a('s_mov_b64 exec, 1'); a('v_mov_b32 v8, 0'); a('s_mov_b32 s62, 0x1f000')
        if kidx == 0:
            a('s_waitcnt lgkmcnt(0)'); a('v_mov_b32 v9, s64'); a('buffer_store_dword v9, v8, s[16:19], s62 offen')
        else:
            a('buffer_load_dword v9, v8, s[16:19], s62 offen'); a('s_waitcnt vmcnt(0)'); a('v_readfirstlane_b32 s63, v9'); a('s_mov_b32 s61, 0')
            a.label('km_padloop')
            a('s_memrealtime s[64:65]'); a('s_waitcnt lgkmcnt(0)'); a('s_sub_u32 s66, s64, s63'); a('s_cmp_ge_u32 s66, %d' % PAD); a('s_cbranch_scc1 %s_exit' % name)
            a('s_add_u32 s61, s61, 1'); a('s_cmp_lt_u32 s61, 100000'); a('s_cbranch_scc1 km_padloop')
    if DEBUG:
        a.hist = []
        a('s_waitcnt vmcnt(0)')
        stamp(a, 15)
        a('s_waitcnt lgkmcnt(0)'); a('s_mov_b64 exec, 1')
        for i in range(16): a('v_mov_b32 v%d, s%d' % (vbase + i, 64 + 2 * i))
        a('s_lshl_b32 s60, s2, 4'); a('s_add_u32 s60, s60, s3'); a('s_lshl_b32 s60, s60, 6'); a('s_add_u32 s60, s60, 0x%x' % (STAMP + kidx * 0x80000))
        a('v_mov_b32 v%d, 0' % (vbase + 16))
        for i in range(4): a('buffer_store_dwordx4 v[%d:%d], v%d, s[16:19], s60 offen offset:%d' % (vbase + 4 * i, vbase + 4 * i + 3, vbase + 16, 16 * i))
        if 'dbgout' in EXP:
            a('s_cmp_lg_u32 s2, 37'); a('s_cbranch_scc1 %s_exit' % name)
            a('s_load_dwordx2 s[56:57], s[0:1], 96'); a('s_waitcnt lgkmcnt(0)')
            if kidx == 0: a('s_add_u32 s56, s56, 512'); a('s_addc_u32 s57, s57, 0')
            a('s_mov_b32 s58, 256'); a('s_mov_b32 s59, 0x20000')
            sel = {0: {0: [(0, 0), (3, 1), (4, 2), (15, 3)]}, 1: {4: [(0, 4), (14, 5), (12, 6), (5, 7), (6, 8), (7, 9), (8, 10), (9, 11), (10, 12), (15, 13)], 10: [(2, 14), (7, 15)]}}[kidx]
            for w, lst in sel.items():
                a('s_cmp_lg_u32 s3, %d' % w); a('s_cbranch_scc1 %s_dn%d' % (name, w))
                for st, pos in lst: a('buffer_store_dword v%d, v%d, s[56:59], 0 offen offset:%d' % (vbase + st, vbase + 16, 4 * pos))
                a.label('%s_dn%d' % (name, w))
    a.label(name + '_exit')
    a('s_endpgm')
def srd(a, d, lo, size):
    a('s_mov_b32 s%d, s%d' % (d, lo)); a('s_mov_b32 s%d, s%d' % (d + 1, lo + 1))
    a('s_mov_b32 s%d, 0x%x' % (d + 2, size)); a('s_mov_b32 s%d, 0x20000' % (d + 3))
def head(a, name, nwg):
    a.raw('.p2align 8'); a.raw('.globl %s' % name); a.raw('.type %s,@function' % name); a.label(name)
    a('s_cmp_ge_u32 s2, %d' % nwg); a('s_cbranch_scc1 %s_exit' % name)
    if DEBUG:
        for i in range(16): a('s_mov_b32 s%d, 0' % (64 + 2 * i))
    stamp(a, 0)
    if 'pad' in EXP: a('s_memrealtime s[64:65]')
def ids(a):
    a('v_and_b32 v1, 63, v0'); a('v_lshrrev_b32 v2, 6, v0'); a('v_readfirstlane_b32 s3, v2'); a('v_lshlrev_b32 v3, 4, v1')
    a('v_lshrrev_b32 v4, 5, v1'); a('v_and_b32 v6, 31, v1')
    a('s_and_b32 s20, s2, 7'); a('s_lshr_b32 s21, s2, 3'); a('s_and_b32 s26, s3, 3')
def swap23_v(a, dst, src, t0):
    a('v_and_b32 v%d, 0x13, v%d' % (dst, src))
    a('v_and_b32 v%d, 4, v%d' % (t0, src)); a('v_lshl_or_b32 v%d, v%d, 1, v%d' % (dst, t0, dst))
    a('v_and_b32 v%d, 8, v%d' % (t0, src)); a('v_lshrrev_b32 v%d, 1, v%d' % (t0, t0)); a('v_or_b32 v%d, v%d, v%d' % (dst, dst, t0))
def half_sum(a, regs, tmp, op='v_permlane32_swap_b32'):
    for i, r in enumerate(regs): a('v_mov_b32 v%d, v%d' % (tmp + i, r))
    for i, r in enumerate(regs): a('%s v%d, v%d' % (op, tmp + i, r))
    for i, r in enumerate(regs): a('v_add_f32 v%d, v%d, v%d' % (r, r, tmp + i))
def unpack(a, dst, src, n, mask):
    for d in range(n):
        a('v_lshlrev_b32 v%d, 16, v%d' % (dst + 2 * d, src + d)); a('v_and_b32 v%d, s%d, v%d' % (dst + 2 * d + 1, mask, src + d))
def unpack_rev(a, dst, src, extra, mask):
    a('v_lshlrev_b32 v%d, 16, v%d' % (dst, extra))
    for i in range(1, 8):
        el = 8 - i
        if el & 1: a('v_and_b32 v%d, s%d, v%d' % (dst + i, mask, src + el // 2))
        else: a('v_lshlrev_b32 v%d, 16, v%d' % (dst + i, src + el // 2))
def token_of(a, dst, tmp, sq):
    a('v_lshlrev_b32 v%d, 6, v6' % dst); a('v_add_u32 v%d, s%d, v%d' % (dst, sq, dst))
    a('v_subrev_u32 v%d, 992, v%d' % (tmp, dst)); a('v_cmp_lt_u32 vcc, 15, v6'); a('s_cmp_eq_u32 s%d, 0' % sq); a('s_cselect_b64 vcc, vcc, 0')
    a('v_cndmask_b32 v%d, v%d, v%d, vcc' % (dst, dst, tmp))
def mirror_if(a, dst, t0, t1):
    a('s_cselect_b64 s[58:59], -1, 0')
    a('v_sub_u32 v%d, 2048, v%d' % (t0, dst)); a('v_cmp_eq_u32 vcc, 0, v%d' % dst); a('v_mov_b32 v%d, 1024' % t1); a('v_cndmask_b32 v%d, v%d, v%d, vcc' % (t0, t0, t1))
    a('v_cndmask_b32 v%d, v%d, v%d, s[58:59]' % (dst, dst, t0))


def w_rows_touch(a, u, first, nst, wsel, srd0, vdst):
    for k in range(nst):
        a('s_lshl_b32 s46, s20, 1'); a('s_add_u32 s46, s46, s%d' % wsel); a('s_add_u32 s46, s46, %d' % (first + k * u)); a('s_and_b32 s46, s46, 15')
        a('s_lshl_b32 s46, s46, 5'); a('s_add_u32 s46, s46, s21')
        a('s_sub_u32 s47, 768, s46'); a('s_cmp_eq_u32 s46, 256'); a('s_cselect_b32 s47, 256, s47'); a('s_cmp_lt_u32 s46, 256'); a('s_cselect_b32 s46, s46, s47')
        a('s_mul_i32 s46, s46, 3584')
        for m in range(2): a('buffer_load_dword v%d, v%d, s[%d:%d], s46 offen' % (vdst, vdst + 1, srd0 + 4 * m, srd0 + 4 * m + 3))

XP = 1040
def phaseA(a, name):
    SA = 64 * XP; GP = SA + 512
    KC = C_KC
    a('v_mov_b32 v8, %d' % CNT)
    for r in range(12, 16): a('v_mov_b32 v%d, 0' % r)
    a('v_lshl_add_u32 v8, v6, 4, v8'); a('s_mov_b32 exec_lo, 0x3ff'); a('s_mov_b32 exec_hi, 0'); a('ds_write_b128 v8, v[12:15]'); a('s_mov_b64 exec, -1')
    def arriveA(u):
        if 'ast' in EXP: stamp(a, 10)
        a('s_waitcnt vmcnt(0)')
        if 'ast' in EXP: stamp(a, 11)
        a('v_mov_b32 v8, %d' % C_ARRA); a('v_mov_b32 v9, 1'); a('s_mov_b64 exec, 1')
        a('ds_add_rtn_u32 v10, v8, v9'); a('ds_read_b32 v11, v8 offset:%d' % (C_INIT - C_ARRA)); a('s_waitcnt lgkmcnt(0)')
        a('v_readfirstlane_b32 s56, v10'); a('v_readfirstlane_b32 s57, v11'); a('s_mov_b64 exec, -1')
        a('s_cmp_lg_u32 s56, 4'); a('s_cbranch_scc1 km_start')
        a('s_branch ka_signal')
    a('s_cmp_ge_u32 s3, 8'); a('s_cbranch_scc1 ka_gemv')
    a('s_lshr_b32 s23, s21, 3'); a('s_lshl_b32 s22, s20, 2'); a('s_add_u32 s23, s23, s22')
    a('s_and_b32 s24, s21, 7')
    a('s_lshl_b32 s25, s3, 18'); a('s_lshl_b32 s27, s23, 10'); a('s_add_u32 s25, s25, s27')
    a('s_mul_i32 s28, s3, %d' % (8 * XP)); a('s_mov_b32 s27, s24')
    a('v_and_b32 v12, 7, v1'); a('v_mul_u32_u24 v13, %d, v12' % XP); a('v_lshrrev_b32 v14, 3, v1'); a('v_lshl_add_u32 v13, v14, 7, v13'); a('v_add_u32 v13, s28, v13')
    a('s_waitcnt lgkmcnt(0)')
    srd(a, 12, 4, 2048 * 1024); srd(a, 16, 6, WSZ); a('s_mov_b32 s46, 256'); a('s_mov_b32 s47, 0x20000')
    for i in range(8):
        a('s_mul_i32 s31, s27, %d' % XP); a('s_add_u32 m0, s31, s28'); a('s_lshl_b32 s32, s27, 15'); a('s_add_u32 s32, s32, s25')
        a('buffer_load_dwordx4 v3, s[12:15], s32 offen lds')
        if i == KA_BAR: a('s_barrier')
        if i < 7: a('s_add_u32 s27, s27, 1'); a('s_and_b32 s27, s27, 7')
    a('s_lshl_b32 s31, s3, 3'); a('v_add_u32 v17, s31, v12'); a('v_lshlrev_b32 v18, 1, v17'); a('v_lshlrev_b32 v17, 2, v17')
    a('v_add_u32 v17, %d, v17' % SA); a('v_add_u32 v18, %d, v18' % SA)
    for r in range(24, 32): a('v_mov_b32 v%d, 0' % r)
    a('v_mov_b32 v21, 0'); a('v_mov_b32 v22, 0x3f803f80'); a('s_mov_b32 s36, 0xffff0000')
    BF = 32
    a('s_cmp_ge_u32 s3, 4'); a('s_cbranch_scc1 ka_nogen')
    a('s_and_b32 s29, s3, 1'); a('s_lshr_b32 s30, s3, 1')
    a('s_lshl_b32 s31, s29, 5'); a('v_add_u32 v7, s31, v6')
    a('v_lshrrev_b32 v8, 1, v7'); a('v_cmp_eq_u32 vcc, 1, v7'); a('v_cndmask_b32 v8, v8, 32, vcc')
    a('v_and_b32 v9, 1, v7'); a('v_cndmask_b32 v9, v9, 0, vcc'); a('v_cvt_f32_u32 v9, v9'); a('v_mul_f32 v9, %s, v9' % fbits(-0.25))
    a('v_cvt_f32_u32 v8, v8'); a('v_mul_f32 v8, %s, v8' % fbits(1 / 64))
    a('v_lshlrev_b32 v10, 3, v4'); a('v_cvt_f32_u32 v10, v10')
    a('v_fma_f32 v%d, v8, v10, v9' % BF); a('v_mul_f32 v11, %s, v8' % fbits(16.0))
    for i in range(1, 8): a('v_add_f32 v%d, v%d, v8' % (BF + i, BF + i - 1))
    for k in range(8, 32): a('v_add_f32 v%d, v%d, v11' % (BF + k, BF + k - 8))
    for k in range(32): a('v_cos_f32 v%d, v%d' % (BF + k, BF + k))
    a('v_bfe_u32 v15, v1, 2, 2'); a('v_lshl_add_u32 v15, v4, 3, v15'); a('v_mul_u32_u24 v15, %d, v15' % XP)
    a('v_and_b32 v16, 1, v1'); a('v_lshl_add_u32 v15, v16, 5, v15'); a('v_bfe_u32 v16, v1, 4, 1'); a('v_lshl_add_u32 v15, v16, 4, v15')
    a('v_bfe_u32 v16, v1, 1, 1'); a('v_lshl_add_u32 v15, v16, 3, v15')
    a('s_lshl_b32 s31, s24, 7'); a('s_lshl_b32 s32, s30, 6'); a('s_add_u32 s31, s31, s32'); a('v_add_u32 v15, s31, v15')
    a('v_lshlrev_b32 v19, 5, v4'); a('v_add_u32 v19, %d, v19' % SA); a('v_lshlrev_b32 v20, 4, v4'); a('v_add_u32 v20, %d, v20' % SA)
    a('s_lshl_b32 s31, s3, 11'); a('s_add_u32 s31, s31, %d' % TB); a('v_lshlrev_b32 v21, 6, v6'); a('v_lshl_add_u32 v21, v4, 5, v21'); a('v_add_u32 v21, s31, v21'); a('v_add_u32 v23, s31, v3')
    a('s_lshl_b32 s33, s24, 1'); a('s_add_u32 s33, s33, s30'); a('s_lshl_b32 s33, s33, 17'); a('s_lshl_b32 s34, s23, 12'); a('s_add_u32 s33, s33, s34'); a('s_add_u32 s33, s33, 0x%x' % ZB)
    a('s_lshl_b32 s34, s29, 11'); a('s_add_u32 s33, s33, s34')
    a.label('ka_nogen')
    a('s_waitcnt vmcnt(0)')
    a.label('ka_w1')
    XR = 64
    for j in range(8): a('ds_read_b128 v[%d:%d], v13 offset:%d' % (XR + 4 * j, XR + 4 * j + 3, 16 * j))
    for j in range(8):
        a('s_waitcnt lgkmcnt(%d)' % (7 - j))
        for d in range(4):
            a('v_dot2c_f32_bf16 v%d, v%d, v22' % (24 + d, XR + 4 * j + d)); a('v_dot2c_f32_bf16 v%d, v%d, v%d' % (28 + d, XR + 4 * j + d, XR + 4 * j + d))
    a('s_nop 2')
    a('v_add_f32 v24, v24, v25'); a('v_add_f32 v26, v26, v27'); a('v_add_f32 v28, v28, v29'); a('v_add_f32 v30, v30, v31')
    a('v_add_f32 v24, v24, v26'); a('v_add_f32 v25, v28, v30')
    a('v_add_f32_dpp v24, v24, v24 row_ror:8'); a('v_add_f32_dpp v25, v25, v25 row_ror:8')
    half_sum(a, [24, 25], 26, 'v_permlane16_swap_b32'); half_sum(a, [24, 25], 26)
    a('v_mul_f32 v24, %s, v24' % fbits(-1.0 / 512)); a('v_mul_f32 v25, %s, v25' % fbits(1.0 / 512))
    a('v_fma_f32 v25, -v24, v24, v25'); a('v_max_f32 v25, 0, v25'); a('v_add_f32 v25, %s, v25' % fbits(1e-5)); a('v_rsq_f32 v25, v25')
    a('v_cvt_pk_bf16_f32 v26, v24, v24'); a('v_and_b32 v27, s36, v26'); a('v_sub_f32 v27, v24, v27'); a('v_cvt_pk_bf16_f32 v27, v27, v27')
    a('ds_write_b32 v17, v25'); a('ds_write_b16 v18, v26 offset:256'); a('ds_write_b16 v18, v27 offset:384')
    a('s_waitcnt lgkmcnt(0)')
    lds_inc(a, KC)
    a('s_cmp_ge_u32 s3, 4'); a('s_cbranch_scc1 ka_pf')
    lds_spin(a, 'ka_spin', KC, 8)
    RR = 64; AF = 96; MF = 112; ACC = 64
    for j in range(4):
        for k in range(2): a('ds_read_b128 v[%d:%d], v19 offset:%d' % (RR + 8 * j + 4 * k, RR + 8 * j + 4 * k + 3, 64 * j + 16 * k), tag='r%d' % j)
    for j in range(4):
        for hf in range(2): a('ds_read_b64_tr_b16 v[%d:%d], v15 offset:%d' % (AF + 4 * j + 2 * hf, AF + 4 * j + 2 * hf + 1, (16 * j + 4 * hf) * XP), tag='a%d' % j)
    for j in range(4):
        a.wait_lg('r%d' % j)
        for i in range(0, 8, 2): a.pk('v_pk_mul_f32', BF + 8 * j + i, BF + 8 * j + i, RR + 8 * j + i)
        for d in range(4): a('v_cvt_pk_bf16_f32 v%d, v%d, v%d' % (BF + 8 * j + d, BF + 8 * j + 2 * d, BF + 8 * j + 2 * d + 1))
        for k in range(2): a('ds_read_b128 v[%d:%d], v20 offset:%d' % (MF + 8 * j + 4 * k, MF + 8 * j + 4 * k + 3, 256 + 128 * k + 32 * j), tag='m%d' % j)
    for j in range(4):
        a.wait_lg('a%d' % j); a.mfma(ACC, AF + 4 * j, BF + 8 * j, j == 0)
    for j in range(4):
        a.wait_lg('m%d' % j); a.mfma(ACC, MF + 8 * j, BF + 8 * j); a.mfma(ACC, MF + 8 * j + 4, BF + 8 * j)
    for d in range(8): a('v_cvt_pk_bf16_f32 v%d, v%d, v%d' % (80 + d, ACC + 2 * d, ACC + 2 * d + 1))
    a('ds_write_b128 v21, v[80:83]'); a('ds_write_b128 v21, v[84:87] offset:16'); a('s_waitcnt lgkmcnt(0)')
    a('ds_read_b128 v[88:91], v23'); a('ds_read_b128 v[92:95], v23 offset:1024')
    a('s_waitcnt lgkmcnt(1)'); a('buffer_store_dwordx4 v[88:91], v3, s[16:19], s33 offen sc1')
    a('s_waitcnt lgkmcnt(0)'); a('buffer_store_dwordx4 v[92:95], v3, s[16:19], s33 offen offset:1024 sc1')
    stamp(a, 14)
    arriveA('m')
    a.role('ka_signal')
    a('s_cmp_lg_u32 s57, 0'); a('s_cbranch_scc1 ka_inited')
    lds_spin(a, 'ka_iw', C_INIT, 1)
    a.label('ka_inited')
    a('s_and_b32 s57, s2, %d' % (NGA - 1)); a('s_lshl_b32 s57, s57, 7'); a('s_add_u32 s57, s57, 0x%x' % FLAGA)
    a('s_mov_b32 s56, 1'); a('s_atomic_add s56, s[6:7], s57 glc'); a('s_waitcnt lgkmcnt(0)')
    a('s_cmp_lg_u32 s56, %d' % (256 // NGA - 1)); a('s_cbranch_scc1 km_start')
    if A_TOP:
        a('s_mov_b32 s56, 1'); a('s_atomic_add s56, s[44:45], 64 glc'); a('s_waitcnt lgkmcnt(0)')
        a('s_cmp_lg_u32 s56, 7'); a('s_cbranch_scc1 km_start')
        a('s_mov_b32 s57, 0')
    a('s_mov_b64 exec, 1'); a('v_mov_b32 v8, 0'); a('v_mov_b32 v9, 1')
    if A_TOP: a('buffer_store_dword v9, v8, s[44:47], s57 offen offset:128 sc1')
    else: a('buffer_store_dword v9, v8, s[16:19], s57 offen offset:2048 sc1')
    a('s_mov_b64 exec, -1')
    a('s_branch km_start')
    a.role('ka_pf')
    a('s_cmp_lg_u32 s3, 4'); a('s_cbranch_scc1 km_start')
    a('v_mov_b32 v8, 0'); a('s_mov_b32 s57, 0')
    a.label('ka_gi_lp')
    a('buffer_load_dword v9, v8, s[44:47], 0 offen sc1'); a('s_waitcnt vmcnt(0)'); a('v_readfirstlane_b32 s56, v9'); a('s_cmp_lg_u32 s56, 0'); a('s_cbranch_scc1 ka_gi_ok')
    a('s_sleep 2'); a('s_add_u32 s57, s57, 1'); a('s_cmp_lt_u32 s57, %d' % SPIN); a('s_cbranch_scc1 ka_gi_lp')
    a.label('ka_gi_ok')
    stamp(a, 14)
    lds_inc(a, C_INIT)
    a('s_branch km_start')
    a.role('ka_gemv')
    a('v_and_b32 v5, 255, v0'); a('v_lshrrev_b32 v7, 3, v5'); a('v_and_b32 v8, 7, v5')
    a('s_lshr_b32 s22, s2, 2'); a('s_sub_u32 s22, s22, 16'); a('s_and_b32 s23, s2, 3')
    a('v_lshlrev_b32 v9, 3, v7'); a('s_lshl_b32 s24, s23, 8')
    a('v_mul_u32_u24 v10, %d, v7' % (4 * 6144)); a('v_lshl_add_u32 v10, v8, 4, v10')
    a('s_mul_i32 s25, s23, %d' % (128 * 6144)); a('s_lshl_b32 s27, s22, 7'); a('s_add_u32 s25, s25, s27')
    a('v_lshrrev_b32 v30, 4, v5'); a('v_lshlrev_b32 v30, 8, v30'); a('v_lshl_add_u32 v30, v8, 5, v30'); a('v_add_u32 v30, %d, v30' % GP)
    a('s_waitcnt lgkmcnt(0)')
    srd(a, 12, 8, 1024); srd(a, 28, 10, 512 * 6144); srd(a, 16, 6, WSZ); a('s_mov_b32 s46, 256'); a('s_mov_b32 s47, 0x20000')
    a('s_cmp_ge_u32 s2, 64'); a('s_cbranch_scc1 ka_job')
    a('s_lshl_b32 s25, s2, 4'); a('s_add_u32 s25, s25, s3')
    a('s_cmp_lg_u32 s25, %d' % (1 * 16 + 8)); a('s_cbranch_scc1 ka_nj')
    a('s_mov_b32 s24, 0x%x' % FLAGA)
    [a('buffer_store_dwordx4 v[12:15], v3, s[16:19], s24 offen offset:%d sc1' % (1024 * k)) for k in range(4)]
    a.label('ka_nj')
    a('s_barrier')
    a('s_cmp_lg_u32 s25, %d' % (1 * 16 + 8)); a('s_cbranch_scc1 ka_nj2')
    a('s_waitcnt vmcnt(0)')
    a('s_mov_b64 exec, 1'); a('v_mov_b32 v8, 0'); a('v_mov_b32 v9, 1'); a('buffer_store_dword v9, v8, s[44:47], 0 offen sc1'); a('s_mov_b64 exec, -1')
    a('s_mov_b32 s24, 0x%x' % FLAGB)
    for i in range(10): a('buffer_store_dwordx4 v[12:15], v3, s[16:19], s24 offen sc1'); a('s_add_u32 s24, s24, 1024')
    a.label('ka_nj2')
    if PF_CODE:
        a('s_cmp_ge_u32 s21, 2'); a('s_cbranch_scc1 ka_npf'); a('s_cmp_lt_u32 s26, 2'); a('s_cbranch_scc1 ka_npf')
        a('s_getpc_b64 s[40:41]')
        a.label('ka_pc')
        a('s_add_u32 s40, s40, km_start-ka_pc'); a('s_addc_u32 s41, s41, 0')
        a('s_mov_b32 s42, %s_exit-km_start' % name); a('s_mov_b32 s43, 0x20000')
        a('s_and_b32 s24, s21, 1'); a('s_lshl_b32 s24, s24, 1'); a('s_add_u32 s24, s24, s26'); a('s_sub_u32 s24, s24, 2'); a('s_lshl_b32 s24, s24, 13')
        a('v_lshlrev_b32 v8, 7, v1')
        a('buffer_load_dword v139, v8, s[40:43], s24 offen')
        a.label('ka_npf')
    a('s_cmp_lg_u32 s3, 8'); a('s_cbranch_scc1 km_start')
    arriveA('n')
    a.role('ka_job')
    a('buffer_load_dwordx2 v[12:13], v9, s[12:15], s24 offen', tag='c')
    if KA_GLATE: a('s_barrier')
    for i in range(4):
        a('buffer_load_dwordx4 v[%d:%d], v10, s[28:31], s25 offen' % (32 + 4 * i, 35 + 4 * i), tag='w%d' % i)
        if i < 3: a('s_add_u32 s25, s25, 6144')
    if not KA_GLATE: a('s_barrier')
    a('s_mov_b32 s36, 0xffff0000'); a('s_mov_b32 s40, 0x05040100'); a('s_mov_b32 s41, 0x07060302')
    for c in range(8): a('v_mov_b32 v%d, 0' % (64 + c))
    a.wait_vm('c')
    if 'ast' in EXP: stamp(a, 7)
    unpack(a, 16, 12, 2, 36)
    for i in range(4): a('v_mul_f32 v%d, %s, v%d' % (20 + i, fbits(-LOG2E), 16 + i))
    for i in range(4): a('v_exp_f32 v%d, v%d' % (20 + i, 20 + i))
    for i in range(4): a('v_add_f32 v%d, 1.0, v%d' % (20 + i, 20 + i))
    for i in range(4): a('v_rcp_f32 v%d, v%d' % (20 + i, 20 + i))
    for i in range(4): a('v_mul_f32 v%d, v%d, v%d' % (20 + i, 20 + i, 16 + i))
    for d in range(2): a('v_cvt_pk_bf16_f32 v%d, v%d, v%d' % (12 + d, 20 + 2 * d, 21 + 2 * d))
    for ip in range(2):
        a.wait_vm('w%d' % (2 * ip + 1))
        r0 = 32 + 8 * ip; r1 = r0 + 4
        for d in range(4):
            a('v_perm_b32 v%d, v%d, v%d, s40' % (48 + 2 * d, r1 + d, r0 + d)); a('v_perm_b32 v%d, v%d, v%d, s41' % (49 + 2 * d, r1 + d, r0 + d))
        for c in range(8): a('v_dot2c_f32_bf16 v%d, v%d, v%d' % (64 + c, 48 + c, 12 + ip))
        a('s_nop 2')
    if 'ast' in EXP: stamp(a, 9)
    for c in range(8): a('v_add_f32_dpp v%d, v%d, v%d row_ror:8' % (64 + c, 64 + c, 64 + c))
    a('ds_write_b128 v30, v[64:67]'); a('ds_write_b128 v30, v[68:71] offset:16')
    a('s_waitcnt lgkmcnt(0)')
    a('v_mov_b32 v8, %d' % (KC + 4)); a('v_mov_b32 v9, 1'); a('s_mov_b64 exec, 1')
    a('ds_add_rtn_u32 v10, v8, v9'); a('s_waitcnt lgkmcnt(0)'); a('v_readfirstlane_b32 s56, v10'); a('s_mov_b64 exec, -1')
    a('s_cmp_lg_u32 s56, 3'); a('s_cbranch_scc1 km_start')
    a('v_lshlrev_b32 v10, 2, v1'); a('v_add_u32 v10, %d, v10' % GP)
    for p in range(8): a('ds_read2st64_b32 v[%d:%d], v10 offset0:%d offset1:%d' % (32 + 2 * p, 33 + 2 * p, 2 * p, 2 * p + 1))
    a('s_lshr_b32 s24, s22, 3')
    a('s_lshl_b32 s25, s22, 6'); a('v_add_u32 v23, s25, v1'); a('v_and_b32 v26, 511, v23')
    a('v_sub_u32 v27, 512, v26'); a('v_and_b32 v27, 255, v27'); a('v_or_b32 v27, 256, v27')
    a('v_cmp_lt_u32 vcc, 255, v26'); a('s_sub_u32 s25, s24, 2'); a('s_cmp_lt_u32 s25, 3'); a('s_cselect_b64 vcc, vcc, 0')
    a('v_cndmask_b32 v27, v26, v27, vcc'); a('v_lshlrev_b32 v27, 2, v27')
    a('s_lshl_b32 s24, s24, 11'); a('s_mul_i32 s25, s23, 12288'); a('s_add_u32 s24, s24, s25')
    a('s_waitcnt lgkmcnt(0)')
    for st in (8, 4, 2, 1):
        for i in range(st): a('v_add_f32 v%d, v%d, v%d' % (32 + i, 32 + i, 32 + st + i))
    a('buffer_store_dword v32, v27, s[16:19], s24 offen sc1')
    arriveA('g')

def cheb(a, dst, p1, p2, K):
    for i in range(0, 8, 2):
        a('v_pk_fma_f32 v[%d:%d], v[%d:%d], v[%d:%d], v[%d:%d] op_sel_hi:[1,0,1] neg_lo:[0,0,1] neg_hi:[0,0,1]' % (
            dst + i, dst + i + 1, p1 + i, p1 + i + 1, K, K + 1, p2 + i, p2 + i + 1))

PS = 156672; LDS_TOTAL = PS + 7168
G2H = PS; SBH = PS + 1024; GBH = PS + 2048; SAL = PS + 3072; YST = SAL + 1024; CNT = PS + 6656
TB = 74240; NPRE = 9
ZI = TB; B1L = TB + 65536; G1L = B1L + 8192; GAL = G1L + 2048; G2L = GAL + 2048; EXT = G2L + 2048; XEL = EXT + 2048
assert XEL + 512 <= PS and NPRE * 8192 <= TB
XCH = 131072
C_ARRB, C_RED, C_ARRC, C_W1, C_W2, C_GOB, C_GO, C_Y, C_ISS, C_ARRS, C_PROG, C_FULL, C_FREE, C_XW, C_XR = [CNT + o for o in (0, 4, 8, 16, 20, 24, 40, 32, 36, 28, 48, 64, 80, 96, 104)]
C_KC = CNT + 128; C_ARRA = CNT + 136; C_INIT = CNT + 140; C_GOA = CNT + 144; W1_EARLY = 0; A_TOP = 0; NGA = 16; A_WAIT = 0
C_HOLD = CNT + 108; HOLD = 0; PASS2 = 0; PRIO_EA = 3; Q0_DRY = 0; C_FREEB = CNT + 112
W2_MODE = 'arr'; B_MERGE = 1
S_ATOM = 1; DB_INIT = 8; DB_AHEAD = 14; R_PRIO = 3; NPB = 12; LONGS = 6; LONGS2 = 2; D3 = 1; DIRECT_C = 0; DIRECT_B = 0
ZRING = 12; NWB = 6; PRIO_A = 1; PRIO_B = 1; PRIO_D = 0; PRIO_DB = 0; B_DELAY = 0

def poll(a, lbl, soff, nlanes, need=0):
    a('v_lshlrev_b32 v8, 2, v1'); a('s_mov_b32 s57, 0'); a('s_mov_b32 exec_lo, 0x%x' % ((1 << nlanes) - 1)); a('s_mov_b32 exec_hi, 0')
    a.label(lbl)
    a('buffer_load_dword v9, v8, s[16:19], s%d offen sc1' % soff); a('s_waitcnt vmcnt(0)')
    a('v_cmp_lt_u32 vcc, %d, v9' % max(0, need - 1)); a('s_cmp_eq_u32 vcc_lo, 0x%x' % ((1 << nlanes) - 1)); a('s_cbranch_scc1 %s_ok' % lbl)
    a('s_sleep %d' % PSLEEP); a('s_add_u32 s57, s57, 1'); a('s_cmp_lt_u32 s57, %d' % SPIN); a('s_cbranch_scc1 %s' % lbl)
    a.label(lbl + '_ok')
    a('s_mov_b64 exec, -1')
def lds_spin(a, lbl, addr, val, sl=None):
    a('v_mov_b32 v8, %d' % addr); a('s_mov_b32 s57, 0')
    a.label(lbl)
    a('ds_read_b32 v9, v8'); a('s_waitcnt lgkmcnt(0)'); a('v_readfirstlane_b32 s56, v9')
    a('s_cmp_ge_u32 s56, %d' % val); a('s_cbranch_scc1 %s_ok' % lbl)
    a('s_sleep %d' % (LSLEEP if sl is None else sl)); a('s_add_u32 s57, s57, 1'); a('s_cmp_lt_u32 s57, %d' % (SPIN * 16)); a('s_cbranch_scc1 %s' % lbl)
    a.label(lbl + '_ok')
def lds_spin_v(a, lbl, vaddr, sval, off=0, sl=None):
    a('s_mov_b32 s57, 0')
    a.label(lbl)
    a('ds_read_b32 v9, v%d offset:%d' % (vaddr, off)); a('s_waitcnt lgkmcnt(0)'); a('v_readfirstlane_b32 s56, v9')
    a('s_cmp_ge_u32 s56, %s' % sval); a('s_cbranch_scc1 %s_ok' % lbl)
    a('s_sleep %d' % (LSLEEP if sl is None else sl)); a('s_add_u32 s57, s57, 1'); a('s_cmp_lt_u32 s57, %d' % (SPIN * 16)); a('s_cbranch_scc1 %s' % lbl)
    a.label(lbl + '_ok')
def lds_inc_v(a, vaddr, vone, off=0):
    a('s_mov_b64 exec, 1'); a('ds_add_u32 v%d, v%d offset:%d' % (vaddr, vone, off)); a('s_mov_b64 exec, -1')
def lds_inc(a, addr):
    a('v_mov_b32 v8, %d' % addr); a('v_mov_b32 v9, 1'); a('s_mov_b64 exec, 1'); a('ds_add_u32 v8, v9'); a('s_mov_b64 exec, -1')
def arrive(a, lbl, addr, n, soff, total=0, direct=False):
    a('s_waitcnt vmcnt(0)')
    a('v_mov_b32 v8, %s' % addr); a('v_mov_b32 v9, 1'); a('s_mov_b64 exec, 1')
    a('ds_add_rtn_u32 v10, v8, v9'); a('s_waitcnt lgkmcnt(0)'); a('v_readfirstlane_b32 s56, v10')
    a('s_cmp_lg_u32 s56, %d' % (n - 1)); a('s_cbranch_scc1 %s' % lbl)
    a('v_mov_b32 v8, 0')
    if direct:
        a('buffer_atomic_add v9, v8, s[16:19], s%d offen sc1' % soff)
    elif total and S_ATOM:
        a('s_mov_b32 s56, 1'); a('s_atomic_add s56, s[6:7], s%d glc' % soff); a('s_waitcnt lgkmcnt(0)')
        a('s_cmp_lg_u32 s56, %d' % (total - 1)); a('s_cbranch_scc1 %s' % lbl)
        if S_ATOM == 2:
            a('s_add_u32 s57, s%d, 128' % soff); a('s_mov_b32 s56, 1'); a('s_atomic_add s56, s[6:7], s57'); a('s_waitcnt lgkmcnt(0)')
        else:
            a('buffer_store_dword v9, v8, s[16:19], s%d offen offset:128 sc1' % soff)
    elif total:
        a('v_mov_b32 v10, 1'); a('buffer_atomic_add v10, v8, s[16:19], s%d offen sc0 sc1' % soff); a('s_waitcnt vmcnt(0)'); a('v_readfirstlane_b32 s56, v10')
        a('s_cmp_lg_u32 s56, %d' % (total - 1)); a('s_cbranch_scc1 %s' % lbl)
        a('buffer_store_dword v9, v8, s[16:19], s%d offen offset:128 sc1' % soff)
    else:
        a('buffer_store_dword v9, v8, s[16:19], s%d offen sc1' % soff)
    a.label(lbl)
    a('s_mov_b64 exec, -1')

def gen_a2(a, A2, CH, sphase):
    swap23_v(a, 9, 6, 10); a('s_lshl_b32 s32, s22, 5'); a('v_add_u32 v9, s32, v9')
    a('s_lshl_b32 s32, s25, 5'); a('v_lshl_add_u32 v8, v4, 3, s32')
    a('v_mul_u32_u24 v12, v9, v8'); a('v_and_b32 v12, 511, v12'); a('v_cvt_f32_u32 v12, v12'); a('v_cvt_f32_u32 v13, v9')
    a('v_mul_f32 v13, %s, v13' % fbits(1 / 512)); a('v_mov_b32 v%d, %s' % (CH[0], sphase)); a('v_fmac_f32 v%d, %s, v12' % (CH[0], fbits(1 / 512)))
    a('v_mul_f32 v10, %s, v13' % fbits(16.0))
    for i in range(1, 8): a('v_add_f32 v%d, v%d, v13' % (CH[0] + i, CH[0] + i - 1))
    for i in range(8): a('v_add_f32 v%d, v%d, v10' % (CH[1] + i, CH[0] + i))
    a('v_cos_f32 v10, v10')
    for g in range(2):
        for i in range(8): a('v_cos_f32 v%d, v%d' % (CH[g] + i, CH[g] + i))
    a('v_add_f32 v10, v10, v10')
    for j in range(8):
        c = CH[j % 3]
        if j >= 2: cheb(a, c, CH[(j - 1) % 3], CH[(j - 2) % 3], 10)
        for d in range(4): a('v_cvt_pk_bf16_f32 v%d, v%d, v%d' % (A2 + 4 * j + d, c + 2 * d, c + 2 * d + 1))
def z_bases(a):
    a('v_bfe_u32 v10, v1, 2, 2'); a('v_lshl_add_u32 v10, v4, 3, v10'); a('v_lshlrev_b32 v10, 7, v10')
    a('v_bfe_u32 v11, v1, 4, 1'); a('v_lshl_add_u32 v10, v11, 5, v10'); a('v_and_b32 v11, 1, v1'); a('v_lshl_add_u32 v10, v11, 4, v10')
    a('v_bfe_u32 v11, v1, 1, 1'); a('v_lshl_add_u32 v10, v11, 3, v10'); a('v_bfe_u32 v11, v1, 3, 1'); a('v_lshl_add_u32 v10, v11, 6, v10')
    a('v_xor_b32 v11, 64, v10')
    a('s_lshl_b32 s32, s26, 12'); a('s_add_u32 s32, s32, %d' % ZI); a('v_add_u32 v10, s32, v10'); a('v_add_u32 v11, s32, v11')
    a('v_lshlrev_b32 v12, 5, v4'); a('v_add_u32 v12, %d, v12' % G1L)
    a('v_mov_b32 v14, 0'); a('v_mov_b32 v15, 0xbf803f80')

KNAME = 'adaLN_cond__spectral_fnet__geglu_ffn__prompt_kernel'
def kM():
    W2_AT = {'go': (C_GOB, 1), 'iss': (C_ISS, 4), 'arr': (C_ARRB, 4)}[W2_MODE]
    a = XAsm(); name = KNAME
    head(a, name, 256)
    a('s_load_dwordx2 s[6:7], s[0:1], 104'); a('s_load_dwordx2 s[4:5], s[0:1], 0'); a('s_load_dwordx4 s[8:11], s[0:1], 72'); a('s_load_dwordx2 s[44:45], s[0:1], 96')
    ids(a)
    phaseA(a, name)
    a.role('km_start')
    if 'ast' in EXP: stamp(a, 12); a.inD = True; EXP.add('bst2')
    a.vm = 0; a.tags = {}; a.lg = 0; a.ltags = {}
    a('s_and_b32 s22, s21, 7'); a('s_lshr_b32 s23, s21, 3'); a('s_lshl_b32 s24, s20, 2'); a('s_add_u32 s23, s23, s24')
    a('s_lshl_b32 s25, s26, 2'); a('s_lshl_b32 s24, s22, 1'); a('s_add_u32 s25, s25, s24')
    def cmap():
        a('s_and_b32 s49, s21, 3'); a('s_lshr_b32 s48, s21, 2'); a('s_lshl_b32 s50, s49, 1'); a('s_add_u32 s50, s50, s48'); a('s_lshl_b32 s50, s50, 1'); a('s_and_b32 s50, s50, 15')
        a('s_and_b32 s51, s20, 4'); a('s_add_u32 s49, s49, s51'); a('s_min_u32 s51, s49, 6')
        a('s_cmp_ge_u32 s21, 28'); a('s_cselect_b32 s48, s51, s48')
        a('s_and_b32 s51, s20, 3'); a('s_mul_i32 s51, s51, 7'); a('s_add_u32 s48, s48, s51')
    def dmap():
        a('s_and_b32 s51, s21, 3'); a('s_lshr_b32 s52, s21, 2'); a('s_lshl_b32 s53, s20, 2'); a('s_add_u32 s53, s53, s51')
        a('s_lshl_b32 s54, s51, 1'); a('s_add_u32 s54, s54, s52'); a('s_and_b32 s54, s54, 7'); a('s_cmp_eq_u32 s54, 7'); a('s_cselect_b32 s54, 3, s54')
    def region(dst, k, tmp):
        a('s_add_u32 s%d, s54, %d' % (dst, k)); a('s_sub_u32 s%d, s%d, 7' % (tmp, dst)); a('s_cmp_ge_u32 s%d, 7' % dst); a('s_cselect_b32 s%d, s%d, s%d' % (dst, tmp, dst))
    a('s_cmp_lt_u32 s3, 8'); a('s_cbranch_scc1 km_compute')
    a('s_load_dwordx4 s[8:11], s[0:1], 48')
    if H_PRIO: a('s_setprio %d' % H_PRIO)
    a('v_lshrrev_b32 v5, 3, v1'); a('v_lshlrev_b32 v5, 12, v5'); a('v_and_b32 v7, 7, v1'); a('v_lshrrev_b32 v8, 2, v1'); a('v_and_b32 v8, 4, v8'); a('v_xor_b32 v7, v7, v8')
    a('v_lshl_add_u32 v5, v7, 4, v5')
    a('s_lshl_b32 s27, s23, 7'); a('s_add_u32 s27, s27, 0x%x' % ZB)
    a('s_lshl_b32 s28, s26, 12'); a('s_add_u32 s28, s28, %d' % ZI)
    a('s_lshl_b32 s33, s26, 9'); a('v_lshlrev_b32 v16, 4, v6'); a('v_add_u32 v16, s33, v16')
    a('v_lshlrev_b32 v17, 11, v4'); a('v_sub_u32 v17, 2048, v17'); a('v_add_u32 v17, v17, v16')
    a('v_add_u32 v18, %d, v16' % G1L); a('v_lshrrev_b32 v20, 1, v16'); a('v_add_u32 v20, %d, v20' % SAL)
    a('v_cvt_f32_u32 v19, v4'); a('v_mul_f32 v21, %s, v19' % fbits(2047.0)); a('v_add_f32 v21, 1.0, v21'); a('v_sub_f32 v19, 1.0, v19')
    def w_prep():
        a('s_cmp_eq_u32 s37, 1'); a('s_cselect_b32 s40, s10, s8'); a('s_cselect_b32 s41, s11, s9'); a('s_mov_b32 s42, %d' % (512 * 3584)); a('s_mov_b32 s43, 0x20000')
        a('v_lshrrev_b32 v140, 3, v1'); a('v_bfe_u32 v141, v1, 1, 2'); a('v_and_b32 v142, 2, v140'); a('v_or_b32 v142, s37, v142'); a('v_xor_b32 v141, v141, v142')
        a('v_lshlrev_b32 v141, 5, v141'); a('v_and_b32 v142, 1, v1'); a('v_lshl_add_u32 v141, v142, 4, v141')
        a('v_mul_u32_u24 v142, 3584, v140'); a('v_add_u32 v144, v142, v141')
        a('v_sub_u32 v142, %d, v142' % (263 * 3584)); a('v_add_u32 v145, v142, v141')
        a('v_subrev_u32 v146, %d, v145' % (256 * 3584)); a('v_cmp_eq_u32 vcc, 0, v140'); a('v_cndmask_b32 v146, v145, v146, vcc')
        a('s_lshl_b32 s30, s48, 7')
    def w_loop(lbl, upto, hsel, hstep):
        a.label(lbl)
        a('s_lshr_b32 s33, s24, 1'); a('s_lshl_b32 s31, s33, 13'); a('s_add_u32 s33, s33, s50'); a('s_and_b32 s33, s33, 15'); a('s_lshl_b32 s33, s33, 5')
        a('s_and_b32 s34, s24, 1'); a('s_lshl_b32 s35, s34, 11'); a('s_add_u32 s31, s31, s35'); a('s_lshl_b32 s35, s37, 12'); a('s_add_u32 m0, s31, s35')
        a('s_lshl_b32 s34, s34, 4'); a('s_add_u32 s33, s33, s34')
        a('s_cmp_ge_u32 s33, 256'); a('s_cbranch_scc1 %s_up' % lbl)
        a('s_mul_i32 s33, s33, 3584'); a('s_add_u32 s33, s33, s30'); a('s_add_u32 s34, s33, %d' % (8 * 3584))
        a('buffer_load_dwordx4 v144, s[40:43], s33 offen lds'); a('s_add_u32 m0, m0, 1024')
        a('buffer_load_dwordx4 v144, s[40:43], s34 offen lds')
        a('s_branch %s_nx' % lbl)
        a.label(lbl + '_up')
        a('s_cmp_eq_u32 s33, 256'); a('s_cselect_b64 vcc, -1, 0'); a('v_cndmask_b32 v147, v145, v146, vcc')
        a('s_sub_u32 s33, 505, s33'); a('s_mul_i32 s33, s33, 3584'); a('s_add_u32 s33, s33, s30'); a('s_sub_u32 s34, s33, %d' % (8 * 3584))
        a('buffer_load_dwordx4 v147, s[40:43], s33 offen lds'); a('s_add_u32 m0, m0, 1024')
        a('buffer_load_dwordx4 v145, s[40:43], s34 offen lds')
        a.label(lbl + '_nx')
        a('s_add_u32 s24, s24, %d' % hstep); a('s_cmp_lt_u32 s24, %d' % upto); a('s_cbranch_scc1 %s' % lbl)
    a('s_and_b32 s37, s26, 1'); a('s_lshr_b32 s38, s26, 1')
    cmap()
    a('s_waitcnt lgkmcnt(0)')
    w_prep()
    a('s_cmp_eq_u32 s26, 3'); a('s_cbranch_scc1 km_ga_poll')
    if W1_EARLY:
        a('s_cmp_eq_u32 s38, 1'); a('s_cbranch_scc1 km_ga_wait')
        lds_spin(a, 'km_spinA', C_ARRA, 5)
        stamp(a, 4)
        a('s_mov_b32 s24, 0')
        w_loop('km_hw_p1', 2 * NPRE, 0, 1)
        a.vm = 0
        stamp(a, 6)
    a.label('km_ga_wait')
    lds_spin(a, 'km_spinGA', C_GOA, 1)
    a('s_branch km_ga_go')
    a.role('km_ga_poll')
    if not A_TOP:
        lds_spin(a, 'km_gi', C_INIT, 1)
    lds_spin(a, 'km_spinA2', C_ARRA, 5)
    a('v_and_b32 v8, %d, v1' % (0 if A_TOP else NGA - 1)); a('v_lshlrev_b32 v8, 7, v8'); a('s_mov_b32 s57, 0'); a('s_mov_b32 s32, 0x%x' % (FLAGA + 2048))
    a('s_mov_b32 exec_lo, 0xffff'); a('s_mov_b32 exec_hi, 0')
    a.label('km_ga_lp')
    if A_TOP: a('buffer_load_dword v9, v8, s[44:47], 0 offen offset:128 sc1')
    else: a('buffer_load_dword v9, v8, s[16:19], s32 offen sc1')
    a('s_waitcnt vmcnt(0)')
    a('v_cmp_ne_u32 vcc, 0, v9'); a('s_cmp_eq_u32 vcc_lo, 0xffff'); a('s_cbranch_scc1 km_ga_ok')
    a('s_sleep %d' % PSLEEP); a('s_add_u32 s57, s57, 1'); a('s_cmp_lt_u32 s57, %d' % SPIN); a('s_cbranch_scc1 km_ga_lp')
    a.label('km_ga_ok')
    a('s_mov_b64 exec, -1')
    lds_inc(a, C_GOA)
    a.label('km_ga_go'); a.vm = 0
    a('s_mov_b32 s46, 0xffff0000'); a('s_mov_b32 s34, 12288'); a('s_mov_b32 s35, 24576'); a('s_mov_b32 s36, 36864')
    stamp(a, 1)
    def zdma(i):
        a('s_add_u32 s32, s25, %d' % i); a('s_and_b32 s32, s32, 15'); a('s_lshl_b32 s32, s32, 17'); a('s_add_u32 s32, s32, s27')
        a('s_add_u32 m0, s28, %d' % (16384 * i))
        for k in range(4):
            a('buffer_load_dwordx4 v5, s[16:19], s32 offen sc1 lds', tag='z%d' % i)
            if k < 3: a('s_add_u32 m0, m0, 1024'); a('s_add_u32 s32, s32, 32768')
    FP = 32
    if not B_MERGE: zdma(0)
    for p, so in enumerate(('0', 's34', 's35', 's36')): a('buffer_load_dwordx4 v[%d:%d], v17, s[16:19], %s offen sc1' % (FP + 4 * p, FP + 4 * p + 3, so), tag='f1')
    if B_MERGE: zdma(0)
    zdma(1)
    if not B_MERGE:
        zdma(2); zdma(3)
        a('s_waitcnt lgkmcnt(0)'); a.wait_vm('z0'); a.bar()
    else: zdma(2)
    a.wait_vm('f1')
    for i in (0, 2): a.pk('v_pk_add_f32', FP + i, FP + i, FP + 4 + i); a.pk('v_pk_add_f32', FP + 8 + i, FP + 8 + i, FP + 12 + i)
    for i in (0, 2): a.pk('v_pk_add_f32', FP + i, FP + i, FP + 8 + i)
    for d in range(2): a('v_cvt_pk_bf16_f32 v%d, v%d, v%d' % (FP + 4 + d, FP + 2 * d, FP + 2 * d + 1))
    unpack(a, FP, FP + 4, 2, 46)
    for i in range(4): a('v_fma_f32 v%d, v%d, v21, v19' % (FP + i, FP + i))
    for d in range(2): a('v_cvt_pk_bf16_f32 v%d, v%d, v%d' % (FP + 4 + d, FP + 2 * d, FP + 2 * d + 1))
    unpack(a, FP, FP + 4, 2, 46)
    a('s_mov_b32 exec_hi, 0'); a('ds_write_b128 v18, v[%d:%d]' % (FP, FP + 3))
    a('s_not_b64 exec, exec'); a('ds_write_b64 v20, v[%d:%d]' % (FP + 4, FP + 5)); a('s_mov_b64 exec, -1')
    a('s_waitcnt lgkmcnt(0)')
    a.wait_vm('z1'); a.bar()
    if B_MERGE: zdma(3)
    stamp(a, 2)
    def q0pre():
        z_bases(a)
        for d in range(4): a('v_mov_b32 v%d, v15' % (16 + d))
        swap23_v(a, 7, 6, 9)
        for t in range(8):
            a('s_add_u32 s32, s25, %d' % ((t & 3) + 8 * (t >> 2))); a('s_and_b32 s32, s32, 15'); a('s_lshl_b32 s32, s32, 5')
            a('v_add_u32 v9, s32, v7'); a('v_lshlrev_b32 v%d, 1, v9' % (152 + t)); a('v_lshlrev_b32 v9, 2, v9'); a('v_add_u32 v9, %d, v9' % G1L)
            a('v_add_u32 v%d, %d, v%d' % (152 + t, YST, 152 + t)); a('ds_read_b32 v%d, v9' % (160 + t))
    def q0job():
        ZQ = 24; AQ = [88, 104, 120, 88]
        for t in range(8):
            for j in range(2):
                for hf in range(2):
                    r = ZQ + 8 * t + 4 * j + 2 * hf
                    a('ds_read_b64_tr_b16 v[%d:%d], v10 offset:%d' % (r, r + 1, 16384 * (t & 3) + 8192 * (t >> 2) + (16 * j + 4 * hf) * 128), tag='q%d' % t)
        def post(t):
            a('v_mul_f32 v20, v%d, v%d' % (AQ[t % 3], 160 + t)); a('v_cvt_pk_bf16_f32 v%d, v20, v20' % (160 + t)); a('ds_write_b16 v%d, v%d' % (152 + t, 160 + t))
        for t in range(8):
            a.wait_lg('q%d' % t)
            a.mfma(AQ[t % 3], 16, ZQ + 8 * t, True); a.mfma(AQ[t % 3], 16, ZQ + 8 * t + 4)
            if t >= 2: post(t - 2)
        post(6); post(7)
        a('s_waitcnt lgkmcnt(0)')
        lds_inc(a, C_Y)
    a('s_load_dwordx2 s[4:5], s[0:1], 64')
    a('s_cmp_eq_u32 s38, 1'); a('s_cbranch_scc1 km_hz')
    sv = (a.vm, dict(a.tags), a.nbar)
    a('s_cmp_lg_u32 s23, 0'); a('s_cbranch_scc1 km_h_nq')
    q0pre()
    a.wait_vm('z3'); a('s_barrier')
    q0job()
    a('s_branch km_hw')
    a.role('km_h_nq')
    a.wait_vm('z3'); a.bar()
    a('s_branch km_hw')
    a.role('km_hz'); a.vm, a.tags, a.nbar = sv[0], dict(sv[1]), sv[2]
    a('s_lshl_b32 s34, s37, 1'); a('s_add_u32 s34, s34, 2'); a('s_lshl_b32 s34, s34, 11')
    for p in range(4):
        for rnd in range(2):
            for k in range(2):
                r = FP + 32 * rnd + 8 * p + 4 * k
                a('buffer_load_dwordx4 v[%d:%d], v3, s[16:19], s34 offen offset:%d sc1' % (r, r + 3, 2048 * rnd + 1024 * k), tag='f2')
        if p < 3: a('s_add_u32 s34, s34, 12288')
    a.wait_vm('z3'); a.bar()
    a('s_load_dwordx2 s[40:41], s[0:1], 0')
    a('v_mov_b32 v163, v6')
    for k in range(2):
        a('v_lshrrev_b32 v6, 2, v1')
        if k: a('v_add_u32 v6, 16, v6')
        token_of(a, 164 + k, 8, 23); a('s_cmp_eq_u32 s37, 1'); mirror_if(a, 164 + k, 8, 9)
        a('v_lshlrev_b32 v%d, 10, v%d' % (164 + k, 164 + k)); a('v_and_b32 v8, 3, v1'); a('v_lshl_add_u32 v%d, v8, 4, v%d' % (164 + k, 164 + k))
    a('v_mov_b32 v6, v163')
    token_of(a, 166, 8, 23); a('s_cmp_eq_u32 s37, 1'); mirror_if(a, 166, 8, 9); a('v_lshlrev_b32 v166, 10, v166')
    a('s_lshl_b32 s30, s22, 6'); a('s_sub_u32 s31, 960, s30'); a('s_sub_u32 s33, 1024, s30'); a('s_and_b32 s33, s33, 511'); a('s_add_u32 s33, s33, 512')
    a('s_lshl_b32 s32, s37, 12'); a('s_add_u32 s32, s32, %d' % B1L)
    a('s_waitcnt lgkmcnt(0)'); a('s_mov_b32 s42, 0x200000'); a('s_mov_b32 s43, 0x20000')
    for up in range(2):
        for k in range(2):
            a('s_add_u32 m0, s32, %d' % (2048 * up + 1024 * k)); a('buffer_load_dwordx4 v%d, s[40:43], s%d offen lds' % (164 + k, 30 + up))
    a('s_lshl_b32 s32, s37, 8'); a('s_add_u32 m0, s32, %d' % XEL); a('buffer_load_dword v166, s[40:43], s33 offen lds', tag='xl')
    a.wait_vm('f2')
    a('s_cmp_eq_u32 s37, 1'); a('s_cselect_b32 s35, 1.0, 0')
    for rnd in range(2):
        F = FP + 32 * rnd
        for i in range(0, 8, 2): a.pk('v_pk_add_f32', F + i, F + i, F + 8 + i); a.pk('v_pk_add_f32', F + 16 + i, F + 16 + i, F + 24 + i)
        for i in range(0, 8, 2): a.pk('v_pk_add_f32', F + i, F + i, F + 16 + i)
        for d in range(4): a('v_cvt_pk_bf16_f32 v%d, v%d, v%d' % (F + 8 + d, F + 2 * d, F + 2 * d + 1))
    unpack(a, FP, FP + 8, 4, 46)
    for i in range(8): a('v_add_f32 v%d, s35, v%d' % (FP + i, FP + i))
    for d in range(4): a('v_cvt_pk_bf16_f32 v%d, v%d, v%d' % (FP + 8 + d, FP + 2 * d, FP + 2 * d + 1))
    unpack(a, FP, FP + 8, 4, 46)
    a('s_lshl_b32 s33, s37, 11'); a('s_add_u32 s33, s33, %d' % GAL); a('v_add_u32 v8, s33, v3')
    a('ds_write_b128 v8, v[%d:%d]' % (FP, FP + 3)); a('ds_write_b128 v8, v[%d:%d] offset:1024' % (FP + 4, FP + 7))
    a('s_lshl_b32 s33, s37, 10'); a('s_add_u32 s33, s33, %d' % SBH); a('v_lshl_add_u32 v20, v1, 3, s33')
    a('ds_write_b64 v20, v[%d:%d]' % (FP + 40, FP + 41)); a('ds_write_b64 v20, v[%d:%d] offset:512' % (FP + 42, FP + 43))
    a('s_cmp_eq_u32 s37, 0'); a('s_cbranch_scc1 km_nochk')
    a('v_subrev_u32 v20, 2048, v20')
    a('ds_write_b64 v20, v[%d:%d]' % (FP + 8, FP + 9)); a('ds_write_b64 v20, v[%d:%d] offset:512' % (FP + 10, FP + 11))
    a.label('km_nochk')
    a('s_waitcnt vmcnt(0) lgkmcnt(0)')
    lds_inc(a, C_RED)
    stamp(a, 3)
    w_prep()
    a('s_branch km_hw2')
    a.role('km_hw')
    if not W1_EARLY:
        stamp(a, 4)
        a('s_mov_b32 s24, 0')
        w_loop('km_hw_p1', 2 * NPRE, 0, 1)
    a('s_waitcnt vmcnt(0)'); lds_inc(a, C_W1)
    a.label('km_hw2')
    a('s_waitcnt lgkmcnt(0)')
    srd(a, 12, 4, 1792 * 1024)
    a('s_cmp_ge_u32 s21, 28'); a('s_cselect_b32 s32, %d, 0' % (C_ISS - W2_AT[0])); a('s_cselect_b32 s33, 4, %d' % W2_AT[1]); a('s_add_u32 s32, s32, %d' % W2_AT[0]); a('v_mov_b32 v8, s32')
    lds_spin_v(a, 'km_spinT', 8, 's33')
    a('s_add_u32 s24, s38, %d' % (2 * NPRE))
    w_loop('km_hw_p2', 32, 0, 2)
    a('s_waitcnt vmcnt(0)'); lds_inc(a, C_W2)
    stamp(a, 5)
    a('s_setprio %d' % D_PRIO)
    dmap()
    a('v_lshrrev_b32 v5, 3, v1'); a('v_and_b32 v7, 7, v1'); a('v_lshrrev_b32 v8, 2, v1'); a('v_and_b32 v8, 4, v8'); a('v_xor_b32 v7, v7, v8')
    a('v_lshlrev_b32 v5, 10, v5'); a('v_lshl_add_u32 v5, v7, 4, v5')
    a('s_mul_i32 s27, s26, %d' % (448 * 1024)); a('s_lshl_b32 s28, s52, 7'); a('s_add_u32 s27, s27, s28')
    a('s_lshl_b32 s28, s26, 13'); a('v_add_u32 v7, s28, v3'); a('v_add_u32 v10, 65536, v7')
    a('s_lshl_b32 s32, s26, 2'); a('s_add_u32 s32, s32, %d' % C_FULL); a('v_mov_b32 v11, s32'); a('v_mov_b32 v12, 1')
    def stash(g, k):
        region(32, k, 25); a('s_lshl_b32 s32, s32, 16'); a('s_add_u32 s32, s32, s27')
        for i in range(8):
            r = 16 + 32 * g + 4 * i
            a('buffer_load_dwordx4 v[%d:%d], v5, s[12:15], s32 offen' % (r, r + 3))
            if i < 7: a('s_add_u32 s32, s32, 8192')
    for p in range(4):
        lds_spin(a, 'km_spinP%d' % p, C_PROG + 4 * p, 8, LONGS)
        region(32, p, 25); a('s_lshl_b32 s32, s32, 16'); a('s_add_u32 s32, s32, s27'); a('s_add_u32 m0, s28, %d' % (32768 * p))
        for i in range(8):
            a('buffer_load_dwordx4 v5, s[12:15], s32 offen lds')
            if i < 7: a('s_add_u32 m0, m0, 1024'); a('s_add_u32 s32, s32, 8192')
        if p < 3: stash(p, 4 + p); a('s_waitcnt vmcnt(8)')
        else: a('s_waitcnt vmcnt(0)')
        lds_inc_v(a, 11, 12)
    stamp(a, 8)
    if R_PRIO: a('s_setprio %d' % R_PRIO)
    def refill(g):
        for i in range(8):
            r = 16 + 32 * g + 4 * i
            a('ds_write_b128 v%d, v[%d:%d] offset:%d' % (7 if g < 2 else 10, r, r + 3, (g & 1) * 32768 + 1024 * i))
        a('s_waitcnt lgkmcnt(0)')
        lds_inc_v(a, 11, 12)
    for g in range(3):
        lds_spin_v(a, 'km_spinFA%d' % g, 11, str(g + 1), C_FREE - C_FULL, LONGS2)
        if not PASS2: lds_spin_v(a, 'km_spinFB%d' % g, 11, str(g + 1), C_FREEB - C_FULL, LONGS2)
        refill(g)
    if PASS2:
        for g in range(3): stash(g, g)
        for g in range(3):
            lds_spin_v(a, 'km_spinFB%d' % g, 11, str(g + 1), C_FREEB - C_FULL); lds_spin_v(a, 'km_spinFC%d' % g, 11, str(g + 5), C_FREE - C_FULL)
            a('s_waitcnt vmcnt(%d)' % (8 * (2 - g)))
            refill(g)
    nbar_h = a.nbar
    a('s_branch %s_end' % name)
    a.role('km_compute'); a.nbar = 0
    a('s_lshr_b32 s27, s3, 2')
    a('s_load_dwordx2 s[8:9], s[0:1], 88')
    A2, B1, AC1, AP, ZF, GG = 16, 48, [64, 80], 96, 112, 128
    token_of(a, 7, 8, 23)
    a('s_mov_b64 s[30:31], vcc')
    a('s_lshr_b32 s28, s26, 1'); a('s_and_b32 s29, s26, 1'); a('s_lshl_b32 s29, s29, 4'); a('v_lshl_add_u32 v8, v4, 3, s29')
    a('s_cmp_eq_u32 s23, 0'); a('s_cselect_b32 s32, 0, s28'); a('s_sub_i32 s32, s32, s27'); a('v_cvt_f32_i32 v9, s32'); a('v_mul_f32 v9, %s, v9' % fbits(0.25))
    a('v_mul_u32_u24 v12, v7, v8'); a('v_and_b32 v12, 2047, v12'); a('v_cvt_f32_u32 v12, v12'); a('v_cvt_f32_u32 v13, v7')
    a('v_mul_f32 v13, %s, v13' % fbits(1 / 2048)); a('v_fmamk_f32 v64, v12, %s, v9' % fbits(1 / 2048))
    for i in range(1, 8): a('v_add_f32 v%d, v%d, v13' % (64 + i, 63 + i))
    for i in range(8): a('v_cos_f32 v%d, v%d' % (64 + i, 64 + i))
    for d in range(4): a('v_cvt_pk_bf16_f32 v%d, v%d, v%d' % (72 + d, 64 + 2 * d, 65 + 2 * d))
    a('s_not_b64 s[32:33], s[30:31]'); a('s_cmp_eq_u32 s28, 1'); a('s_cselect_b64 s[32:33], s[30:31], s[32:33]'); a('s_cmp_eq_u32 s23, 0'); a('s_cselect_b64 s[32:33], s[32:33], -1')
    for d in range(4): a('v_cndmask_b32 v%d, 0, v%d, s[32:33]' % (72 + d, 72 + d))
    a('s_lshl_b32 s32, s3, 10'); a('s_add_u32 s32, s32, %d' % B1L); a('v_add_u32 v8, s32, v3'); a('ds_write_b128 v8, v[72:75]')
    a('s_cmp_eq_u32 s27, 1'); a('s_cselect_b32 s34, %s, 0' % fbits(-0.25))
    gen_a2(a, A2, [64, 72, 80], 's34'); z_bases(a)
    a('v_cmp_eq_u32 s[42:43], 0, v7'); a('s_cmp_eq_u32 s27, 1'); a('s_cselect_b64 s[44:45], s[42:43], 0')
    a('v_lshlrev_b32 v5, 4, v4'); a('v_add_u32 v5, %d, v5' % YST); a('s_or_b32 s33, s22, s27')
    for r in range(160, 164): a('v_mov_b32 v%d, 0' % r)
    a('v_subrev_u32 v9, 1024, v5'); a('v_cndmask_b32 v5, v5, v9, s[42:43]')
    a('s_mov_b64 s[62:63], 0'); a('s_mov_b32 s59, 0')
    if Q0_DRY: a('s_cmp_eq_u32 s23, 0'); a('s_cbranch_scc1 km_q0dry')
    a.label('km_q0dryback'); a.hist = []
    a('s_lshl_b32 s32, s27, 12'); a('s_add_u32 s32, s32, %d' % B1L); a('v_add_u32 v8, s32, v3')
    a('s_waitcnt lgkmcnt(0)')
    stamp(a, 1)
    XL, XU, XX = 156, 160, 2
    a('s_and_b32 s37, s26, 1'); a('s_lshr_b32 s38, s26, 1')
    ZFS = [112, 128]
    def zread(i):
        for j in range(4):
            for hf in range(2):
                r = ZFS[i & 1] + 4 * j + 2 * hf
                a('ds_read_b64_tr_b16 v[%d:%d], v%d offset:%d' % (r, r + 1, 10 + (j >> 1), 16384 * i + (16 * (j & 1) + 4 * hf) * 128), tag='zr%d_%d' % (i, j))
    AY = 112; GG = 144
    def gread(i):
        a('s_add_u32 s32, s25, %d' % i); a('s_and_b32 s32, s32, 15'); a('s_lshl_b32 s32, s32, 7'); a('v_add_u32 v13, s32, v12')
        for k in range(4): a('ds_read_b128 v[%d:%d], v13 offset:%d' % (GG + 4 * k, GG + 4 * k + 3, 64 * (k >> 1) + 16 * (k & 1)), tag='g%d' % i)
    a.bar()
    stamp(a, 2)
    for j in range(4): a('ds_read_b128 v[%d:%d], v8 offset:%d' % (B1 + 4 * j, B1 + 4 * j + 3, 1024 * j))
    a.reg = 'B'
    zread(0)
    if B_MERGE: zread(1); gread(0)
    for j in range(4):
        a.wait_lg('zr0_%d' % j); a.mfma(AC1[0], ZFS[0] + 4 * j, B1 + 4 * j, j == 0)
    if not B_MERGE: a.bar(); zread(1); gread(0)
    for i in range(4):
        xc = AC1[i & 1]
        V = ['v_mul_f32 v%d, v%d, v%d' % (xc + r, xc + r, GG + r) for r in range(16)] + ['G'] + \
            ['v_cvt_pk_bf16_f32 v%d, v%d, v%d' % (xc + d, xc + 2 * d, xc + 2 * d + 1) for d in range(8)]
        def emit(n):
            for _ in range(n):
                if not V: return
                t = V.pop(0)
                if t == 'G':
                    if i < 3: gread(i + 1)
                else: a(t)
        if i < 3:
            for j in range(4):
                a.wait_lg('zr%d_%d' % (i + 1, j)); a.mfma(AC1[(i + 1) & 1], ZFS[(i + 1) & 1] + 4 * j, B1 + 4 * j, j == 0)
                if j == 3 and i == 0: a.bar(); zread(2)
                if j == 0 and i == 1: zread(3)
                if j == 0: a.wait_lg('g%d' % i)
                emit(6)
        else:
            a.wait_lg('g3')
        emit(99)
        a('s_cmp_lg_u32 s33, 0')
        for h in range(2): a.mfma(AP, A2 + 8 * i + 4 * h, xc + 4 * h, i == 0 and h == 0)
        a('s_cbranch_scc1 km_nd%d' % i)
        for d in range(8): a('v_dot2c_f32_bf16 v%d, v%d, v15' % (160 + (d & 3), xc + d))
        if i == 3:
            a('s_nop 2'); a('v_add_f32 v160, v160, v161'); a('v_add_f32 v162, v162, v163'); a('v_add_f32 v14, v160, v162')
        a.label('km_nd%d' % i)
    a.reg = ''
    stamp(a, 3)
    a('s_lshl_b32 s32, s3, 12'); a('s_add_u32 s32, s32, %d' % ZI); a('v_add_u32 v11, s32, v3')
    a('s_lshl_b32 s32, s26, 8'); a('s_add_u32 s32, s32, %d' % EXT); a('v_lshl_add_u32 v12, v1, 2, s32')
    a('s_cmp_eq_u32 s27, 0'); a('s_cselect_b64 s[30:31], -1, 0'); a('s_andn2_b64 s[34:35], s[30:31], s[42:43]')
    a('s_cmp_eq_u32 s23, 0'); a('s_cbranch_scc1 km_q0tail')
    a.label('km_q0back')
    a('s_nop 3')
    a('s_andn2_b64 exec, -1, s[44:45]')
    for k in range(4): a('ds_write_b128 v11, v[%d:%d] offset:%d' % (AP + 4 * k, AP + 4 * k + 3, 1024 * k))
    a('s_mov_b64 exec, s[30:31]'); a('ds_write_b32 v12, v14'); a('s_mov_b64 exec, s[34:35]'); a('ds_write_b32 v12, v14 offset:1024')
    a('s_mov_b64 exec, -1')
    a('s_waitcnt lgkmcnt(0)')
    lds_inc(a, CNT + 4)
    a('s_mov_b32 s46, 0xffff0000')
    cmap()
    a('s_cmp_eq_u32 s27, 0'); a('s_cbranch_scc1 km_C')
    XLF, XUF = 120, 128
    a('s_lshl_b32 s30, s37, 1'); a('v_add_u32 v9, s30, v4')
    a('s_lshl_b32 s39, s22, 7'); a('v_lshl_add_u32 v7, v9, 5, s39')
    a('s_lshl_b32 s30, s38, 12'); a('s_add_u32 s30, s30, %d' % B1L); a('v_lshl_add_u32 v13, v6, 6, s30')
    a('v_lshl_add_u32 v14, v9, 4, v13'); a('v_lshlrev_b32 v15, 4, v9'); a('v_sub_u32 v15, v13, v15')
    a('s_lshl_b32 s30, s38, 8'); a('s_add_u32 s30, s30, %d' % (XEL - 2112)); a('v_lshl_add_u32 v13, v6, 2, s30')
    a('v_cmp_eq_u32 vcc, 0, v9'); a('v_cndmask_b32 v13, v15, v13, vcc')
    GA, G2, GAU, G2U = 24, 32, 40, 48
    a('v_add_u32 v21, %d, v7' % GAL)
    a('s_lshl_b32 s32, s37, 11'); a('s_add_u32 s32, s32, %d' % ZI); a('v_add_u32 v11, s32, v3')
    a('s_cmp_eq_u32 s38, 0'); a('s_cselect_b32 s34, -1.0, 1.0'); a('s_cselect_b32 s35, 0, 1.0')
    a('v_mov_b32 v16, s34'); a('v_mov_b32 v17, s35'); a('v_sub_f32 v18, 0, v16'); a('v_sub_f32 v22, 1.0, v17')
    a('v_cndmask_b32 v16, v16, v17, s[42:43]'); a('v_cndmask_b32 v18, v18, v17, s[42:43]'); a('v_cndmask_b32 v22, 1.0, v22, s[42:43]')
    a('s_lshl_b32 s39, s38, 5'); a('s_add_u32 s39, s39, s23')
    a('s_lshl_b32 s36, s39, 15'); a('s_lshl_b32 s33, s22, 1'); a('s_add_u32 s33, s33, s37'); a('s_lshl_b32 s33, s33, 10'); a('s_add_u32 s36, s36, s33')
    a('s_lshl_b32 s32, s38, 10'); a('s_add_u32 s32, s32, %d' % EXT); a('v_lshl_add_u32 v20, v1, 2, s32')
    a('s_or_b32 s33, s22, s37'); a('s_cmp_eq_u32 s33, 0'); a('s_cselect_b32 s30, -1, 0'); a('s_mov_b32 s31, 0')
    a('s_setprio 0')
    lds_spin(a, 'km_spinR', CNT + 4, 10)
    if E_PRIO: a('s_setprio 3')
    stamp(a, 4)
    RP, RQ, YL, YU = 56, 88, 64, 72
    a('ds_read_b128 v[%d:%d], v14' % (XL, XL + 3)); a('ds_read_b128 v[%d:%d], v15 offset:2096' % (XU, XU + 3)); a('ds_read_u16 v%d, v13 offset:2112' % XX)
    for R, o in ((RP, 0), (RQ, 16384)):
        for src in range(4):
            for hf in range(2): a('ds_read_b128 v[%d:%d], v11 offset:%d' % (R + 8 * src + 4 * hf, R + 3 + 8 * src + 4 * hf, o + src * 4096 + hf * 1024))
    a('s_waitcnt lgkmcnt(15)')
    unpack(a, XLF, XL, 4, 46); unpack_rev(a, XUF, XU, XX, 46)
    for n, R in enumerate((RP, RQ)):
        a('s_waitcnt lgkmcnt(%d)' % (8 if n == 0 else 10))
        if n == 0:
            for reg, off in ((GA, 0), (GAU, 1024), (G2, 2048), (G2U, 3072)):
                for k in range(2): a('ds_read_b128 v[%d:%d], v21 offset:%d' % (reg + 4 * k, reg + 4 * k + 3, off + 16 * k))
            a('ds_read2st64_b32 v[136:137], v20 offset0:0 offset1:1'); a('ds_read2st64_b32 v[138:139], v20 offset0:2 offset1:3')
        for i in range(0, 8, 2): a.pk('v_pk_add_f32', R + i, R + i, R + 8 + i); a.pk('v_pk_add_f32', R + 16 + i, R + 16 + i, R + 24 + i)
        for i in range(0, 8, 2): a.pk('v_pk_add_f32', R + i, R + i, R + 16 + i)
    for i in range(0, 8, 2): a('v_pk_mul_f32 v[%d:%d], v[%d:%d], v[22:23] op_sel_hi:[1,0]' % (RP + i, RP + i + 1, RP + i, RP + i + 1))
    for i in range(0, 8, 2):
        a('v_pk_fma_f32 v[%d:%d], v[%d:%d], v[16:17], v[%d:%d] op_sel_hi:[1,0,1]' % (YL + i, YL + i + 1, RQ + i, RQ + i + 1, RP + i, RP + i + 1))
        a('v_pk_fma_f32 v[%d:%d], v[%d:%d], v[18:19], v[%d:%d] op_sel_hi:[1,0,1]' % (YU + i, YU + i + 1, RQ + i, RQ + i + 1, RP + i, RP + i + 1))
    a('s_waitcnt lgkmcnt(0)')
    a.pk('v_pk_add_f32', 136, 136, 138); a('v_add_f32 v136, v136, v137'); half_sum(a, [136], 137)
    a('v_cndmask_b32 v%d, v%d, v136, s[30:31]' % (YU, YU))
    for Y, G, X in ((YL, GA, XLF), (YU, GAU, XUF)):
        for i in range(0, 8, 2): a('v_pk_fma_f32 v[%d:%d], v[%d:%d], v[%d:%d], v[%d:%d]' % (Y + i, Y + i + 1, Y + i, Y + i + 1, G + i, G + i + 1, X + i, X + i + 1))
    for Y, G in ((YL, G2), (YU, G2U)):
        for i in range(0, 8, 2): a.pk('v_pk_mul_f32', G + i, Y + i, G + i)
    a('s_add_u32 s32, s36, 0x%x' % ZT); a('s_add_u32 s33, s32, 16384'); a('s_add_u32 s34, s36, 0x%x' % X1T); a('s_add_u32 s35, s34, 16384')
    for src, dst, so in ((G2, 80, 32), (G2U, 84, 33), (YL, 88, 34), (YU, 92, 35)):
        for d in range(4): a('v_cvt_pk_bf16_f32 v%d, v%d, v%d' % (dst + d, src + 2 * d, src + 2 * d + 1))
        a('buffer_store_dwordx4 v[%d:%d], v3, s[16:19], s%d offen sc1' % (dst, dst + 3, so))
    a.pk('v_pk_add_f32', 96, YL, YL + 2); a.pk('v_pk_mul_f32', 98, YL, YL)
    for i in range(2, 16, 2):
        if i > 2: a.pk('v_pk_add_f32', 96, 96, YL + i)
        a('v_pk_fma_f32 v[98:99], v[%d:%d], v[%d:%d], v[98:99]' % (YL + i, YL + i + 1, YL + i, YL + i + 1))
    a('v_add_f32 v100, v96, v97'); a('v_add_f32 v101, v98, v99')
    half_sum(a, [100, 101], 102)
    a('s_lshl_b32 s32, s39, 12'); a('s_lshl_b32 s33, s22, 9'); a('s_add_u32 s32, s32, s33'); a('s_lshl_b32 s33, s37, 8'); a('s_add_u32 s32, s32, s33'); a('s_add_u32 s32, s32, 0x%x' % STATS)
    a('v_lshlrev_b32 v8, 3, v1')
    a('s_mov_b32 exec_hi, 0')
    a('buffer_store_dwordx2 v[100:101], v8, s[16:19], s32 offen sc1')
    a('s_mov_b64 exec, -1')
    stamp(a, 12)
    a('s_lshl_b32 s32, s20, 8'); a('s_add_u32 s32, s32, 0x%x' % FLAGB)
    lds_inc(a, C_ISS)
    arrive(a, 'km_arrB', CNT, 4, 32, 32, DIRECT_B)
    stamp(a, 9)
    a('s_setprio 0')
    a('s_branch km_C')
    a.role('km_q0tail')
    a('s_mov_b64 s[62:63], s[42:43]'); a('s_mov_b32 s59, 2'); a('s_setprio 3')
    a.label('km_q0dry')
    a('v_mov_b32 v8, %d' % C_Y); lds_spin_v(a, 'km_spinY', 8, 's59', 0, 0)
    a('s_cmp_lg_u32 s27, 0'); a('s_cbranch_scc1 km_q0ret')
    for i in range(4):
        a('s_add_u32 s32, s25, %d' % i); a('s_and_b32 s32, s32, 15'); a('s_lshl_b32 s32, s32, 6'); a('v_add_u32 v9, s32, v5')
        for h in range(2): a('ds_read_b128 v[%d:%d], v9 offset:%d' % (128 + 8 * i + 4 * h, 131 + 8 * i + 4 * h, 32 * h))
    for r in range(164, 168): a('v_mov_b32 v%d, 0' % r)
    for j in range(8):
        a('s_waitcnt lgkmcnt(%d)' % (7 - j)); a.mfma(AY, A2 + 4 * j, 128 + 4 * j, j == 0)
        for d in range(4): a('v_dot2c_f32_bf16 v%d, v%d, v15' % (164 + d, 128 + 4 * j + d))
    a('s_nop 2')
    a('v_add_f32 v164, v164, v165'); a('v_add_f32 v166, v166, v167'); a('v_add_f32 v13, v164, v166')
    a('s_mov_b64 exec, s[62:63]')
    a('v_add_f32 v14, v14, v13')
    for r in range(0, 16, 2): a.pk('v_pk_add_f32', AP + r, AP + r, AY + r)
    a('s_lshl_b64 exec, s[62:63], 1')
    for k in range(4): a('ds_write_b128 v11, v[%d:%d] offset:%d' % (AY + 4 * k, AY + 4 * k + 3, 16384 - 16 + 1024 * k))
    a('ds_write_b32 v12, v13 offset:1020')
    a('s_mov_b64 exec, -1')
    a.label('km_q0ret')
    a('s_cmp_eq_u32 s59, 0'); a('s_cbranch_scc1 km_q0dryback')
    a('s_branch km_q0back')
    a.role('km_C')
    a('s_setprio 0')
    ACC = 16; WB = 80; ZF = WB + 4 * NWB; ST = ZF + 4 * ZRING
    assert ST + 16 <= 168
    a('v_bfe_u32 v10, v1, 4, 1'); a('v_bfe_u32 v11, v1, 2, 2'); a('v_lshl_add_u32 v12, v4, 3, v11'); a('v_lshlrev_b32 v12, 7, v12'); a('v_lshl_add_u32 v12, v10, 12, v12')
    a('v_and_b32 v11, 2, v11'); a('v_or_b32 v11, v11, v10'); a('v_lshl_add_u32 v12, v11, 5, v12')
    a('v_and_b32 v11, 1, v1'); a('v_lshl_add_u32 v12, v11, 4, v12'); a('v_bfe_u32 v11, v1, 1, 1'); a('v_lshl_add_u32 v12, v11, 3, v12')
    for j in range(1, 4): a('v_xor_b32 v%d, %d, v12' % (12 + j, 32 * j))
    a('v_mov_b32 v0, %d' % C_PROG); a('v_mov_b32 v2, 1')
    a('s_lshl_b32 s34, s48, 7'); a('s_add_u32 s34, s34, 0x%x' % FLAGS); a('s_lshl_b32 s35, s48, 11'); a('s_add_u32 s35, s35, 0x%x' % CSG)
    a('v_lshlrev_b32 v7, 4, v6')
    def wrd(n, j, dst, tag=None):
        if 'b128' in EXP and a.reg == 'C':
            a('ds_read_b128 v[%d:%d], v3 offset:%d' % (dst, dst + 3, ((n >> 1) & 7) * 8192 + (n & 1) * 4096 + j * 1024), tag=tag); return
        for hf in range(2):
            a('ds_read_b64_tr_b16 v[%d:%d], v%d offset:%d' % (dst + 2 * hf, dst + 2 * hf + 1, 12 + j, ((n >> 1) & 7) * 8192 + (16 * (n & 1) + 4 * hf) * 128), tag=tag)
    a('s_cmp_ge_u32 s21, 28'); a('s_cbranch_scc1 km_csb')
    a('s_lshl_b32 s28, s49, 2'); a('s_add_u32 s28, s28, s26'); a('s_lshl_b32 s29, s27, 5'); a('s_add_u32 s28, s28, s29')
    a('s_lshl_b32 s36, s28, 15'); a('s_add_u32 s36, s36, 0x%x' % ZT); a('s_lshl_b32 s37, s50, 11')
    a('s_lshl_b32 s39, s28, 12'); a('s_add_u32 s39, s39, 0x%x' % STATS); a('v_lshlrev_b32 v5, 3, v6'); a('v_lshl_add_u32 v5, v4, 11, v5')
    k1c = -2 * 0.7978845608028654 * LOG2E; k2c = k1c * 0.044715
    a('s_mov_b32 s44, %s' % fbits(k2c))
    a('s_mul_i32 s40, s28, %d' % (112 * 1024)); a('s_lshl_b32 s41, s48, 12'); a('s_add_u32 s40, s40, s41'); a('s_add_u32 s40, s40, 0x%x' % ACT)
    a('s_lshr_b32 s41, s28, 2'); a('s_lshl_b32 s41, s41, 8'); a('s_add_u32 s41, s41, 0x%x' % FLAGC)
    a('s_lshl_b32 s42, s27, 2'); a('s_add_u32 s42, s42, %d' % C_ARRC)
    a('s_lshl_b32 s32, s49, 8'); a('s_add_u32 s32, s32, 0x%x' % (FLAGB + (0 if DIRECT_B else 128)))
    a('s_cmp_lg_u32 s3, 0'); a('s_cbranch_scc1 km_c_w')
    lds_spin(a, 'km_spinZ', C_ARRB, 4)
    poll(a, 'km_pollB', 32, 1, 32 if DIRECT_B else 0)
    lds_inc(a, C_GOB)
    a('s_branch km_c_go')
    a.label('km_c_w')
    lds_spin(a, 'km_spinG', C_GOB, 1)
    a.label('km_c_go')
    stamp(a, 13)
    a('s_cmp_eq_u32 s27, 0'); a('s_cbranch_scc1 km_c_pa'); a('s_setprio %d' % PRIO_B)
    if B_DELAY: lds_spin(a, 'km_spinBD', C_PROG, B_DELAY)
    a('s_branch km_c_pb')
    a.label('km_c_pa'); a('s_setprio %d' % PRIO_A)
    a.label('km_c_pb')
    def zld(n):
        if n & 1 == 0: a('s_add_u32 s38, s36, s37'); a('s_add_u32 s37, s37, 2048'); a('s_and_b32 s37, s37, 32767')
        r = ZF + 4 * (n % ZRING)
        a('buffer_load_dwordx4 v[%d:%d], v3, s[16:19], s38 offen offset:%d %s' % (r, r + 3, 1024 * (n & 1), LD), tag='z%d' % n)
    zn = 0
    while zn < Z_INIT: zld(zn); zn += 1
    lds_spin(a, 'km_spinW1', C_W1, 2)
    stamp(a, 5)
    a.reg = 'C'
    AHEAD = NWB - 1
    seq = [(n, j) for n in range(32) for j in range(4)]
    def issue_w(i):
        n, j = seq[i]
        if n == 2 * NPRE and j == 0: lds_spin(a, 'km_spinW2', C_W2, 4)
        if n == 16: a('v_add_u32 v%d, 65536, v%d' % (12 + j, 12 + j))
        wrd(n, j, WB + 4 * (i % NWB), 'w%d' % i)
    for i in range(AHEAD): issue_w(i)
    CS = [ZF + 4 * ((32 + k) % ZRING) for k in range(4)]
    for i, (n, j) in enumerate(seq):
        if j == 0: a.wait_vm('z%d' % n)
        a.wait_lg('w%d' % i)
        a.mfma(ACC + 16 * j, WB + 4 * (i % NWB), ZF + 4 * (n % ZRING), n == 0)
        if i + AHEAD < 128: issue_w(i + AHEAD)
        if j in (1, 3) and zn < 32 and zn < n + ZRING - (0 if j == 3 else 1) - 0 and (zn - ZRING < n or (zn - ZRING == n and False)):
            zld(zn); zn += 1
        if j == 2 and 8 <= n < 16: a('buffer_load_dwordx2 v[%d:%d], v5, s[16:19], s39 offen offset:%d %s' % (ST + 2 * (n - 8), ST + 2 * (n - 8) + 1, 256 * (n - 8), LD), tag='st')
        if j == 2 and n == 17: a('v_mov_b32 v10, 0'); a('buffer_load_dword v11, v10, s[16:19], s34 offen sc1', tag='fs')
        if j == 2 and n == 24:
            a.wait_vm('fs'); a('v_readfirstlane_b32 s56, v11'); a('s_cmp_lg_u32 s56, 0'); a('s_cbranch_scc1 km_fs_ok')
            vm = a.vm; poll(a, 'km_pollS', 34, 1); a.vm = vm
            a.label('km_fs_ok')
        if j == 2 and 25 <= n < 29:
            k = n - 25; assert 32 + k - ZRING < n
            a('buffer_load_dwordx4 v[%d:%d], v7, s[16:19], s35 offen offset:%d sc1' % (CS[k], CS[k] + 3, 512 * k), tag='cs')
        if j == 3 and n % 8 == 7: lds_inc_v(a, 0, 2, 4 * (n >> 3))
    assert zn == 32
    a.reg = ''
    stamp(a, 6)
    a('s_cmp_eq_u32 s27, 0'); a('s_cbranch_scc1 km_e_pa'); a('s_setprio 3'); a('s_branch km_e_pb')
    a.label('km_e_pa'); a('s_setprio %d' % PRIO_EA)
    a.label('km_e_pb')
    for st in (8, 4, 2):
        for i in range(st): a('v_add_f32 v%d, v%d, v%d' % (ST + i, ST + i, ST + st + i))
    half_sum(a, [ST, ST + 1], ST + 2)
    a('v_mul_f32 v10, %s, v%d' % (fbits(-1.0 / 512), ST))
    a('v_mul_f32 v11, %s, v%d' % (fbits(1.0 / 512), ST + 1)); a('v_fma_f32 v11, -v10, v10, v11'); a('v_max_f32 v11, 0, v11')
    a('v_add_f32 v11, %s, v11' % fbits(1e-5))
    a('v_rsq_f32 v8, v11'); a('v_sqrt_f32 v9, v11')
    for src, dst in ((10, 12), (9, 14)):
        a('v_cvt_pk_bf16_f32 v%d, v%d, v%d' % (ST, src, src)); a('v_and_b32 v%d, s46, v%d' % (ST, ST)); a('v_sub_f32 v%d, v%d, v%d' % (ST + 1, src, ST))
        a('v_cvt_pk_bf16_f32 v%d, v%d, v%d' % (dst, ST, ST + 1))
    a('v_cmp_gt_u32 vcc, 32, v1'); a('v_cndmask_b32 v12, 0, v12, vcc'); a('v_cndmask_b32 v14, 0, v14, vcc')
    a('v_mov_b32 v13, v12'); a('v_mov_b32 v15, v14'); a('v_mov_b32 v10, %s' % fbits(k1c)); a('v_mov_b32 v11, s44')
    a('s_waitcnt vmcnt(0)')
    for j in range(4): a.mfma(ACC + 16 * j, CS[j], 12)
    if 'skipA' in EXP: a('s_cmp_eq_u32 s27, 0'); a('s_cbranch_scc1 km_skipA')
    for j in range(4):
        g = ACC + 16 * j; u = g + 8; t = 80 + 8 * (j & 1)
        if EPI_PK:
            P = range(0, 8, 2)
            for i in P: a('v_pk_mul_f32 v[%d:%d], v[%d:%d], v[8:9] op_sel_hi:[1,0]' % (g + i, g + i + 1, g + i, g + i + 1))
            for i in P: a.pk('v_pk_mul_f32', t + i, g + i, g + i)
            for i in P: a('v_pk_fma_f32 v[%d:%d], v[%d:%d], v[10:11], v[10:11] op_sel:[0,1,0] op_sel_hi:[1,1,0]' % (t + i, t + i + 1, t + i, t + i + 1))
            for i in P: a.pk('v_pk_mul_f32', t + i, t + i, g + i)
            for i in range(8): a('v_exp_f32 v%d, v%d' % (t + i, t + i))
            for i in P: a.pk('v_pk_mul_f32', u + i, u + i, g + i)
            for i in P: a('v_pk_fma_f32 v[%d:%d], v[%d:%d], v[8:9], v[8:9] op_sel:[0,1,1] op_sel_hi:[1,1,1]' % (t + i, t + i + 1, t + i, t + i + 1))
            for i in range(8): a('v_rcp_f32 v%d, v%d' % (t + i, t + i))
            for i in P: a.pk('v_pk_mul_f32', u + i, u + i, t + i)
        else:
            for i in range(8): a('v_mul_f32 v%d, v8, v%d' % (g + i, g + i))
            for i in range(8): a('v_mul_f32 v%d, v%d, v%d' % (t + i, g + i, g + i))
            for i in range(8): a('v_fma_f32 v%d, v%d, s44, v10' % (t + i, t + i))
            for i in range(8): a('v_mul_f32 v%d, v%d, v%d' % (t + i, t + i, g + i))
            for i in range(8): a('v_exp_f32 v%d, v%d' % (t + i, t + i))
            for i in range(8): a('v_mul_f32 v%d, v%d, v%d' % (u + i, u + i, g + i))
            for i in range(8): a('v_fma_f32 v%d, v%d, v9, v9' % (t + i, t + i))
            for i in range(8): a('v_rcp_f32 v%d, v%d' % (t + i, t + i))
            for i in range(8): a('v_mul_f32 v%d, v%d, v%d' % (u + i, u + i, t + i))
        for d in range(4): a('v_cvt_pk_bf16_f32 v%d, v%d, v%d' % (g + d, u + 2 * d, u + 2 * d + 1))
        a('buffer_store_dwordx4 v[%d:%d], v3, s[16:19], s40 offen offset:%d sc1' % (g, g + 3, 1024 * j))
    if 'skipA' in EXP: a.label('km_skipA')
    stamp(a, 7)
    arrive(a, 'km_arrC', 's42', 4, 41, 28, DIRECT_C)
    stamp(a, 8)
    a('s_branch km_D')
    a.role('km_csb')
    lds_spin(a, 'km_spinR2', C_RED, 10); lds_spin(a, 'km_spinW3', C_W2, 4)
    a('s_cmp_lg_u32 s27, 0'); a('s_cbranch_scc1 km_csb_done')
    a('s_cmp_ge_u32 s49, 7'); a('s_cbranch_scc1 km_csb_done')
    a('s_lshl_b32 s32, s26, 5'); a('v_xor_b32 v12, s32, v12'); a('v_add_u32 v13, 65536, v12')
    a('v_and_b32 v10, 1, v1'); a('v_lshlrev_b32 v10, 10, v10'); a('v_lshl_add_u32 v10, v4, 4, v10'); a('v_add_u32 v10, %d, v10' % G2H)
    a('s_lshl_b32 s33, s50, 6')
    for blk in range(4):
        for k in range(8):
            n = 8 * blk + k
            if n & 1 == 0: a('v_add_u32 v11, s33, v10'); a('s_add_u32 s33, s33, 64'); a('s_and_b32 s33, s33, 1023')
            a('ds_read_b128 v[%d:%d], v11 offset:%d' % (32 + 8 * k, 35 + 8 * k, 32 * (n & 1)))
            wrd(n, n >> 4, 36 + 8 * k, 'c%d' % n)
        for k in range(8):
            n = 8 * blk + k
            a.wait_lg('c%d' % n); a.mfma(16, 32 + 8 * k, 36 + 8 * k, n == 0)
    for i in range(2):
        a('v_cvt_pk_bf16_f32 v%d, v%d, v%d' % (100 + 2 * i, 16 + i, 16 + i)); a('v_and_b32 v104, s46, v%d' % (100 + 2 * i)); a('v_sub_f32 v104, v%d, v104' % (16 + i))
        a('v_cvt_pk_bf16_f32 v%d, v104, v104' % (101 + 2 * i))
    a('s_lshl_b32 s32, s26, 9'); a('s_add_u32 s35, s35, s32')
    a('s_mov_b32 exec_hi, 0'); a('buffer_store_dwordx4 v[100:103], v7, s[16:19], s35 offen sc1'); a('s_mov_b64 exec, -1')
    arrive(a, 'km_arrS', C_ARRS, 4, 34)
    a.label('km_csb_done')
    stamp(a, 14)
    for p in range(4): lds_inc_v(a, 0, 2, 4 * p)
    a.label('km_D'); a.hist = []; a.inD = True
    if HOLD:
        a('v_mov_b32 v8, %d' % C_HOLD); a('v_mov_b32 v9, s27'); lds_inc_v(a, 8, 9)
    a('s_cmp_eq_u32 s27, 0'); a('s_cbranch_scc1 km_d_pa'); a('s_setprio %d' % PRIO_DB); a('s_branch km_d_pb')
    a.label('km_d_pa'); a('s_setprio %d' % PRIO_D)
    a.label('km_d_pb')
    dmap()
    a('s_lshl_b32 s29, s27, 5'); a('s_add_u32 s53, s53, s29')
    a('v_bfe_u32 v12, v1, 2, 2'); a('v_lshl_add_u32 v12, v4, 3, v12'); a('v_lshlrev_b32 v12, 7, v12')
    a('v_bfe_u32 v13, v1, 4, 1'); a('v_lshl_add_u32 v12, v13, 5, v12'); a('v_and_b32 v13, 1, v1'); a('v_lshl_add_u32 v12, v13, 4, v12')
    a('v_bfe_u32 v13, v1, 1, 1'); a('v_lshl_add_u32 v12, v13, 3, v12'); a('v_bfe_u32 v13, v1, 3, 1'); a('v_lshl_add_u32 v12, v13, 6, v12')
    a('s_lshl_b32 s29, s26, 5'); a('v_xor_b32 v12, s29, v12'); a('s_lshl_b32 s29, s26, 13'); a('v_add_u32 v12, s29, v12'); a('v_xor_b32 v13, 64, v12')
    a('v_add_u32 v14, 65536, v12'); a('v_add_u32 v15, 65536, v13')
    a('s_mul_i32 s30, s53, %d' % (112 * 1024)); a('s_mul_i32 s31, s26, %d' % (28 * 1024)); a('s_add_u32 s30, s30, s31'); a('s_add_u32 s30, s30, 0x%x' % ACT)
    for g in range(7):
        if PASS2:
            a('s_cmp_eq_u32 s27, 0'); a('s_cselect_b32 s31, %d, %d' % (g, [4, 5, 6, 3, 0, 1, 2][g])); a('s_add_u32 s31, s31, s54'); a('s_sub_u32 s32, s31, 7')
            a('s_cmp_ge_u32 s31, 7'); a('s_cselect_b32 s31, s32, s31'); a('s_lshl_b32 s31, s31, 12'); a('s_add_u32 s%d, s31, s30' % (33 + g))
        else:
            region(31, g, 32); a('s_lshl_b32 s31, s31, 12'); a('s_add_u32 s%d, s31, s30' % (33 + g))
    a('s_lshr_b32 s32, s53, 2'); a('s_lshl_b32 s32, s32, 8'); a('s_add_u32 s32, s32, 0x%x' % (FLAGC + (0 if DIRECT_C else 128)))
    AD = [16, 32]; AF = 48; NR = 16; WD = [112, 120, 128, 136]; X1R = 144; GBR = 152; XA = 156; FC = 158
    a('s_lshl_b32 s44, s52, 3'); a('s_lshl_b32 s45, s26, 1'); a('s_add_u32 s44, s44, s45'); a('v_add_u32 v11, s44, v4')
    a('s_and_b32 s47, s53, 31'); token_of(a, 5, 8, 47); a('s_cmp_ge_u32 s53, 32'); mirror_if(a, 5, 8, 9)
    a('v_lshlrev_b32 v5, 10, v5'); a('v_lshl_add_u32 v5, v11, 4, v5')
    a('s_lshl_b32 s45, s53, 15'); a('s_add_u32 s45, s45, 0x%x' % X1T)
    a('s_lshl_b32 s29, s26, 2'); a('s_add_u32 s29, s29, %d' % C_FULL); a('v_mov_b32 v0, s29')
    a('s_lshl_b32 s29, s27, 2'); a('s_add_u32 s29, s29, %d' % C_GO); a('v_mov_b32 v7, s29')
    a('s_lshl_b32 s29, s27, 5'); a('v_add_u32 v10, s29, v0')
    srd(a, 40, 8, 2048 * 1024)
    a('s_cmp_eq_u32 s27, 0'); a('s_cselect_b32 s60, 0, 2048'); a('s_add_u32 s60, s60, 6144'); a('s_cmp_eq_u32 s27, 0'); a('s_cselect_b32 s61, %d, 0' % (XCH - 98304)); a('s_add_u32 s61, s61, 98304')
    for k in range(4):
        a('s_xor_b32 s29, s26, %d' % k); a('s_mul_i32 s29, s29, s60'); a('s_add_u32 s%d, s29, s61' % (48 + k))
    FC = 166
    def late():
        L = ['v_lshlrev_b32 v8, 4, v11', 'v_add_u32 v8, %d, v8' % GBH, 'ds_read_b128 v[%d:%d], v8' % (GBR, GBR + 3),
             'v_sub_u32 v8, 95, v11', 'v_cmp_gt_u32 vcc, 32, v11', 'v_cndmask_b32 v8, v8, v11, vcc', 'v_lshlrev_b32 v8, 9, v8', 'v_lshl_add_u32 v%d, v6, 4, v8' % XA,
             'v_sub_u32 v8, 64, v11', 'v_and_b32 v8, 31, v8', 'v_add_u32 v8, 32, v8', 'v_lshlrev_b32 v8, 9, v8', 'v_lshl_add_u32 v%d, v6, 4, v8' % (XA + 1)]
        L += ['v_add_u32 v%d, s%d, v3' % (160 + k, 48 + k) for k in range(4)]
        L += ['v_and_b32 v164, 3, v1', 'v_lshlrev_b32 v164, 2, v164', 'v_bfe_u32 v8, v1, 2, 1', 'v_lshl_add_u32 v164, v8, 5, v164', 'v_add_u32 v164, %d, v164' % C_FREE]
        return L
    areg = {}; wreg = {}
    def act_load(n, free):
        r = areg[n] = free.pop(0)
        a('buffer_load_dwordx4 v[%d:%d], v3, s[16:19], s%d offen offset:%d %s' % (r, r + 3, 33 + n // 4, 1024 * (n & 3), LD), tag='a%d' % n)
    def wd_read(n, free):
        pos = (n >> 2) & 3; wreg[n] = []
        for t in range(2):
            r0 = free.pop(0); wreg[n].append(r0)
            for hf in range(2):
                a('ds_read_b64_tr_b16 v[%d:%d], v%d offset:%d' % (r0 + 2 * hf, r0 + 2 * hf + 1, 12 + t + 2 * (pos >> 1), (pos & 1) * 32768 + (16 * (n & 3) + 4 * hf) * 128), tag='w%d' % n)
    stamp(a, 2)
    free0 = list(range(48, 144, 4))
    a('s_mov_b32 s31, %d' % (NPB // 4)); lds_spin_v(a, 'km_spinD1', 0, 's31', 0, LONGS2)
    for k in range(NPB): wd_read(k, free0)
    a('s_waitcnt lgkmcnt(0)')
    a('v_mov_b32 v9, %d' % (NPB // 4)); lds_inc_v(a, 10, 9, C_FREE - C_FULL)
    wpre = dict(wreg)
    if HOLD:
        a('v_mov_b32 v8, %d' % C_HOLD); a('s_lshl_b32 s29, s27, 2'); a('s_sub_u32 s29, 4, s29')
        lds_spin_v(a, 'km_hold', 8, 's29')
    a('s_cmp_lg_u32 s26, 0'); a('s_cbranch_scc1 km_d_w')
    poll(a, 'km_pollC', 32, 1)
    lds_inc_v(a, 7, 2)
    a('s_branch km_d_go')
    a.label('km_d_w')
    lds_spin_v(a, 'km_spinH', 7, '1')
    a.label('km_d_go')
    stamp(a, 9)
    a('s_cmp_eq_u32 s27, 1'); a('s_cbranch_scc1 km_dB')
    svd = (a.vm, dict(a.tags), a.lg, dict(a.ltags))
    for G, dinit, dahead in (('A', D_INIT, D_AHEAD), ('B', DB_INIT, DB_AHEAD)):
        if G == 'B': a.role('km_dB'); a.vm, a.tags, a.lg, a.ltags = svd[0], dict(svd[1]), svd[2], dict(svd[3])
        a.reg = 'D'
        free = list(range(144, 164, 4)) + list(free0); LQ = late(); wreg.clear(); wreg.update(wpre); areg.clear()
        nxt = 0
        while (nxt < dinit or nxt < 5) and free: act_load(nxt, free); nxt += 1
        xdone = False; later = []
        for n in range(28):
            if n == 25: a('ds_read_b32 v165, v164')
            if n % 4 == 0 and NPB <= n + 4 < 28: a('ds_read_b32 v%d, v0' % FC, tag='fc%d' % n)
            if n % 4 == 1 and NPB <= n + 3 < 28:
                a.wait_lg('fc%d' % (n - 1)); a('v_readfirstlane_b32 s56, v%d' % FC); a('s_add_u32 s31, s31, 1')
                a('s_cmp_ge_u32 s56, s31'); a('s_cbranch_scc1 km_fu%s%d_ok' % (G, n))
                lg = a.lg; lds_spin_v(a, 'km_fu%s%d' % (G, n), 0, 's31'); a.lg = lg
            if NPB <= n + 3 < 28: wd_read(n + 3, free)
            a.wait_vm('a%d' % n)
            if n == 0: stamp(a, 1)
            if n in (4, 12, 20): stamp(a, {4: 3, 12: 4, 20: 12}[n])
            if n >= NPB: a.wait_lg('w%d' % n)
            for t in range(2):
                a.mfma(AD[t], wreg[n][t], areg[n], n == 0)
                if t == 0: free += later; later = []
                keep = 2 if NPB <= n + 4 < 28 else 0
                if nxt < 28 and nxt < n + dahead + t and len(free) > keep: act_load(nxt, free); nxt += 1
                if t == 0 and G == 'B' and D3 and nxt < 28 and nxt < n + dahead and len(free) > keep + 1: act_load(nxt, free); nxt += 1
            later = [r for r in wreg[n] + [areg[n]] if r < 144]
            if n >= 6:
                assert all(areg[k] < 144 for k in areg if k >= n - 1)
                for t in LQ[:6]: a(t)
                LQ = LQ[6:]
            if n in (3, 7, 11, 15) and n >= NPB: lds_inc_v(a, 10, 2, C_FREE - C_FULL)
            if nxt == 28 and not xdone and not LQ:
                xdone = True
                a('buffer_load_dwordx4 v[%d:%d], v%d, s[16:19], s45 offen %s' % (X1R, X1R + 3, XA, LD))
                a('buffer_load_ushort v%d, v%d, s[16:19], s45 offen %s' % (X1R + 4, XA + 1, LD))
        assert xdone and not LQ
        if G == 'A': a('s_branch km_djoin')
    a.label('km_djoin')
    a.reg = ''
    stamp(a, 10)
    a('s_waitcnt lgkmcnt(0)')
    a('v_cmp_lt_u32 vcc, 3, v165'); a('s_cmp_eq_u64 vcc, -1'); a('s_cbranch_scc1 km_x_ok')
    a('s_cmp_eq_u32 s27, 0'); a('s_cbranch_scc1 km_x_ok')
    a('s_mov_b32 s57, 0')
    a.label('km_x_sp')
    a('ds_read_b32 v9, v164'); a('s_waitcnt lgkmcnt(0)'); a('v_cmp_lt_u32 vcc, 3, v9'); a('s_cmp_eq_u64 vcc, -1'); a('s_cbranch_scc1 km_x_ok')
    a('s_sleep 1'); a('s_add_u32 s57, s57, 1'); a('s_cmp_lt_u32 s57, %d' % (SPIN * 16)); a('s_cbranch_scc1 km_x_sp')
    a.label('km_x_ok')
    a('s_nop 7')
    for k in range(1, 4):
        for hf in range(2): a('ds_write_b128 v%d, v[%d:%d] offset:%d' % (160 + k, 16 + 8 * k + 4 * hf, 19 + 8 * k + 4 * hf, 2048 * (k - 1) + 1024 * hf))
    X = 64; GF = 72
    a('s_waitcnt vmcnt(0)')
    unpack(a, GF, GBR, 4, 46)
    a('s_cmp_ge_u32 s52, 4'); a('s_cbranch_scc1 km_up')
    unpack(a, X, X1R, 4, 46)
    a('s_branch km_fin')
    a.label('km_up')
    unpack_rev(a, X, X1R, X1R + 4, 46)
    a.label('km_fin')
    a('s_waitcnt lgkmcnt(0)')
    lds_inc_v(a, 7, 2, C_XW - C_GO)
    lds_spin_v(a, 'km_spinX1', 7, '4', C_XW - C_GO, 0)
    for k in range(6): a('ds_read_b128 v[%d:%d], v160 offset:%d' % (80 + 4 * k, 83 + 4 * k, 1024 * k))
    for k in range(3):
        a('s_waitcnt lgkmcnt(%d)' % (4 - 2 * k))
        for i in range(0, 8, 2): a.pk('v_pk_add_f32', 16 + i, 16 + i, 80 + 8 * k + i)
    for r in range(8): a('v_fmac_f32 v%d, v%d, v%d' % (X + r, GF + r, 16 + r))
    for d in range(4): a('v_cvt_pk_bf16_f32 v%d, v%d, v%d' % (104 + d, X + 2 * d, X + 1 + 2 * d))
    a('buffer_store_dwordx4 v[104:107], v5, s[40:43], 0 offen')
    stamp(a, 11)
    assert nbar_h == 3 - B_MERGE and a.nbar == 3 - B_MERGE, (nbar_h, a.nbar)
    finish(a, name, 1)
    return name, a.text() + kernel_desc(name, 168, 100), (256, 768, LDS_TOTAL)

HEADER = open('adaLN_cond__spectral_fnet__geglu_ffn__prompt.s.ref').read().split('; Override launch')[0]
DOC = """;
; ---------------------------------------------------------------------------------------------------------------------
; hand data to each other through d_ws (write-through stores, drained, then counter + go word; d_debug[0] marks the
;
; ---------------------------------------------------------------------------------------------------------------------
"""
def all_kernels(): return [kM()]
GROUPS = {}
def build(kernels):
    hdr = HEADER
    body = '.amdgcn_target "amdgcn-amd-amdhsa--gfx950"\n.text\n'
    for name, text, (g, b, lds) in kernels:
        hdr += '; @launch grid=(%d,1,1) block=(%d,1,1) lds=%d\n' % (g, b, lds)
        body += text
    return hdr + DOC + body

if __name__ == '__main__':
    if len(sys.argv) > 2 and sys.argv[2] == 'debug': DEBUG = True
    for idx in range(512): assert (idx * 4682) >> 16 == idx // 14
    out = sys.argv[1] if len(sys.argv) > 1 else 'adaLN_cond__spectral_fnet__geglu_ffn__prompt.s'
    open(out, 'w').write(build(all_kernels()))
    print('wrote', out)
```
